```python
import torch

def _softmax(x, axis=-1):
    return torch.softmax(x, dim=axis)
def _gelu(x):
    return torch.nn.functional.gelu(x, approximate="tanh")
def _silu(x):
    return torch.nn.functional.silu(x)
def _sigmoid(x):
    return torch.sigmoid(x)
def _layernorm(x, axis=-1, eps=1e-5):
    m = x.mean(dim=axis, keepdim=True)
    v = x.var(dim=axis, keepdim=True, unbiased=False)
    return (x - m) / torch.sqrt(v + eps)
def _scatter_add(tgt, idx, src, axis=0):
    return tgt.clone().index_add_(axis, idx, src)
def _segment_sum(src, seg, n):
    out = torch.zeros((n,) + src.shape[1:], dtype=src.dtype)
    return out.index_add_(0, seg, src)
def _pad(x, pw):
    flat = tuple(v for pair in reversed(pw) for v in pair)
    return torch.nn.functional.pad(x, flat)

kernel_name = 'concat_heads__mha_block__spectral_gfnet__prompt'

def setup_inputs():

    _w = (lambda a: (lambda t: t.to(torch.bfloat16) if t.is_floating_point() else t)(torch.as_tensor(a)))
    def _A_setup():
        B, S, D, H = 1, 2048, 448, 16
        return {
            "x": _w((lambda *s: torch.randn(*s, dtype=torch.bfloat16) * 0.2)(B, S, D)),
            "wqkv": _w((lambda *s: torch.randn(*s, dtype=torch.bfloat16) * 0.2)(D, 3 * D)),
            "wo": _w((lambda *s: torch.randn(*s, dtype=torch.bfloat16) * 0.05)(D, D)),
        }
    _A_in = _A_setup()

    def _B_setup():
        B, S, D = 1, 2048, 448
        Df = D // 2 + 1
        return {
            "x": _w((lambda *s: torch.randn(*s, dtype=torch.bfloat16) * 0.05)(B, S, D)),
            "w_r": _w((lambda *s: torch.randn(*s, dtype=torch.bfloat16) * 6.4)(S, Df) * 0.02),
            "w_i": _w((lambda *s: torch.randn(*s, dtype=torch.bfloat16) * 6.4)(S, Df) * 0.02),
        }
    _B_in = _B_setup()

    return {
        "A_x": _A_in["x"],
        "A_wqkv": _A_in["wqkv"],
        "A_wo": _A_in["wo"],
        "B_x": _B_in["x"],
        "B_w_r": _B_in["w_r"],
        "B_w_i": _B_in["w_i"],
    }

def reference(A_x, A_wqkv, A_wo, B_x, B_w_r, B_w_i):
    def _A_ref(x, wqkv, wo):
        B, S, D = x.shape
        H = 16
        Dh = D // H
        qkv = (lambda x, *d: x.permute(*d))((x @ wqkv).reshape(B, S, 3, H, Dh), 2, 0, 3, 1, 4)
        q, k, v = qkv[0], qkv[1], qkv[2]
        scores = torch.einsum("bhqd,bhkd->bhqk", q, k) * (Dh ** -0.5)
        p = _softmax(scores, axis=-1)
        o = torch.einsum("bhqk,bhkd->bhqd", p, v)
        return (lambda x, *d: x.permute(*d))(o, 0, 2, 1, 3).reshape(B, S, D) @ wo

    def _B_ref(x, w_r, w_i):
        B, S, D = x.shape
        X = (lambda x, axes=(-2,-1): torch.fft.rfft2(x.float(), dim=axes))(x, axes=(-2, -1))
        W = w_r + 1j * w_i
        X = X * W
        y = (lambda x, s, axes=(-2,-1): torch.fft.irfft2(x, s=s, dim=axes).to(torch.bfloat16))(X, (S, D), axes=(-2, -1))
        return y

    a = _A_ref(A_x, A_wqkv, A_wo)
    b = _B_ref(B_x, B_w_r, B_w_i)
    return torch.concatenate([a, b], axis=-1)
```

```python
import numpy as np

class Asm:
    def __init__(self):
        self.lines = []
    def __call__(self, s):
        for l in s.split("\n"):
            l = l.strip()
            if l:
                self.lines.append("    " + l)
    def label(self, l):
        self.lines.append(l + ":")
    def raw(self, s):
        self.lines.append(s)
    def comment(self, s):
        self.lines.append("    ; " + s)
    def text(self):
        return "\n".join(self.lines) + "\n"

def v(r, n=1):
    return f"v{r}" if n == 1 else f"v[{r}:{r+n-1}]"
def s(r, n=1):
    return f"s{r}" if n == 1 else f"s[{r}:{r+n-1}]"

class VAlloc:
    def __init__(self, start=0, limit=256):
        self.next = start; self.limit = limit; self.hi = start
    def __call__(self, n=1, align=None):
        if align is None:
            align = 1 if n == 1 else (2 if n == 2 else 4)
        r = (self.next + align - 1) // align * align
        self.next = r + n
        assert self.next <= self.limit, f"out of VGPRs {self.next}"
        self.hi = max(self.hi, self.next)
        return r

def mfma32(D, A, B, C):
    c = "0" if C is None else v(C, 16)
    return f"v_mfma_f32_32x32x16_bf16 {v(D,16)}, {v(A,4)}, {v(B,4)}, {c}"
def mfma16(D, A, B, C):
    c = "0" if C is None else v(C, 4)
    return f"v_mfma_f32_16x16x32_bf16 {v(D,4)}, {v(A,4)}, {v(B,4)}, {c}"

def f32hex(x):
    return "0x%08x" % np.float32(x).view(np.uint32)

def kernel_desc(name, nvgpr, nsgpr=102):
    nv = (nvgpr + 7) // 8 * 8
    acc = min(256, (nvgpr + 3) // 4 * 4)
    return f""".section .rodata,"a"
.p2align 6
.amdhsa_kernel {name}
  .amdhsa_next_free_vgpr {nv}
  .amdhsa_next_free_sgpr {nsgpr}
  .amdhsa_accum_offset {acc}
  .amdhsa_group_segment_fixed_size 0
  .amdhsa_kernarg_size 72
  .amdhsa_user_sgpr_count 2
  .amdhsa_user_sgpr_kernarg_segment_ptr 1
  .amdhsa_system_sgpr_workgroup_id_x 1
.end_amdhsa_kernel
.text
"""

def data_lines(raw: bytes):
    assert len(raw) % 8 == 0
    q = np.frombuffer(raw, dtype="<u8")
    out = []
    for i in range(0, len(q), 8):
        out.append(".quad " + ",".join("0x%x" % x for x in q[i:i+8]))
    return "\n".join(out) + "\n"
```

```python
from asmlib import *
import math

class Pool:
    def __init__(self, regs): self.free = list(regs)
    def get(self): return self.free.pop(0)
    def put(self, r): self.free.append(r)

def radd(a, pool, x, y, di=None):
    d = pool.get() if di is None else di
    (rx, sx), (ry, sy) = x, y
    if sx > 0 and sy > 0: a(f"v_add_f32 {v(d)}, {v(rx)}, {v(ry)}"); return (d, 1)
    if sx > 0 and sy < 0: a(f"v_sub_f32 {v(d)}, {v(rx)}, {v(ry)}"); return (d, 1)
    if sx < 0 and sy > 0: a(f"v_sub_f32 {v(d)}, {v(ry)}, {v(rx)}"); return (d, 1)
    a(f"v_add_f32 {v(d)}, {v(rx)}, {v(ry)}"); return (d, -1)
def neg(x): return (x[0], -x[1])

def bfly(a, pool, p, q):
    sr = radd(a, pool, p[0], q[0]); si = radd(a, pool, p[1], q[1])
    dr = radd(a, pool, p[0], neg(q[0]), di=q[0][0]); di = radd(a, pool, p[1], neg(q[1]), di=q[1][0])
    pool.put(p[0][0]); pool.put(p[1][0])
    return (sr, si), (dr, di)
def mul_i(z, sgn):
    re, im = z
    return ((im[0], -sgn * im[1]), (re[0], sgn * re[1]))
def rot45(a, pool, z, sgn, sK):
    x, y = z
    r = radd(a, pool, x, (y[0], -sgn * y[1]))
    i = radd(a, pool, y, (x[0], sgn * x[1]), di=y[0])
    pool.put(x[0])
    a(f"v_mul_f32 {v(r[0])}, {s(sK)}, {v(r[0])}")
    a(f"v_mul_f32 {v(i[0])}, {s(sK)}, {v(i[0])}")
    return (r, i)
def dft4(a, pool, b, sgn):
    c0, c1 = bfly(a, pool, b[0], b[2])
    c2, c3 = bfly(a, pool, b[1], b[3])
    c3 = mul_i(c3, sgn)
    y0, y2 = bfly(a, pool, c0, c2)
    y1, y3 = bfly(a, pool, c1, c3)
    return [y0, y1, y2, y3]
def dft8(a, pool, x, sgn, sK):
    u = [None] * 4; w = [None] * 4
    for j in range(4):
        u[j], w[j] = bfly(a, pool, x[j], x[j + 4])
    w[1] = rot45(a, pool, w[1], sgn, sK)
    w[2] = mul_i(w[2], sgn)
    w[3] = mul_i(rot45(a, pool, w[3], sgn, sK), sgn)
    E = dft4(a, pool, u, sgn); Od = dft4(a, pool, w, sgn)
    X = [None] * 8
    for t in range(4):
        X[2 * t] = E[t]; X[2 * t + 1] = Od[t]
    return X
def sv(x):
    return ("-" if x[1] < 0 else "") + v(x[0])
```

```python
from asmlib import *
import model as M
from k2 import CT_F56, CT_TW448, srd_consts, cmul, stamp, stamp_rt, dump_stamps
from dft8 import *

K1_LDS = 131072
NS = 4

def gen_k1(name="k1_kernel"):
    a = Asm()
    a.raw(f".globl {name}\n.p2align 8\n.type {name},@function\n{name}:")
    SX, SWQ, SWS, SC_, SWI = 8, 12, 16, 20, 24
    sW, sXc, sSlot, sTb, sG = 28, 29, 30, 31, 32
    sT0, sT1, sT2, sC, sSl, sXo, sWo, sOfs = 33, 34, 35, 36, 37, 38, 39, 48
    sHi = 50; sMsk = 52; sScale = 54; sPadv = 55; sTt = 64
    a(f"s_cmp_ge_u32 s2, 256")
    a(f"s_cbranch_scc1 {name}_end")
    a(f"s_load_dwordx4 s[4:7], s[0:1], 0")
    a(f"s_load_dwordx2 {s(SWS,2)}, s[0:1], 64")
    a(f"v_lshrrev_b32 v1, 6, v0")
    a(f"v_and_b32 v0, 63, v0")
    a(f"s_and_b32 {s(sXc)}, s2, 7")
    a(f"v_readfirstlane_b32 {s(sW)}, v1")
    a(f"s_lshr_b32 {s(sSlot)}, s2, 3")
    a(f"v_lshlrev_b32 v1, 4, v0")
    a(f"s_mov_b32 {s(SWS+2)}, {M.WS_END}")
    a(f"s_mov_b32 {s(SWS+3)}, 0x20000")
    a(f"s_cmp_ge_u32 {s(sSlot)}, 24")
    a(f"s_cbranch_scc1 {name}_bwg")
    a(f"s_mul_i32 {s(sT0)}, {s(sSlot)}, 43")
    a(f"s_lshr_b32 {s(sT0)}, {s(sT0)}, 8")
    a(f"s_mul_i32 {s(sT1)}, {s(sT0)}, 6")
    a(f"s_sub_u32 {s(sT1)}, {s(sSlot)}, {s(sT1)}")
    a(f"s_lshr_b32 {s(sTb)}, {s(sXc)}, 1")
    a(f"s_lshl_b32 {s(sTb)}, {s(sTb)}, 2")
    a(f"s_add_u32 {s(sTb)}, {s(sTb)}, {s(sT0)}")
    a(f"s_and_b32 {s(sG)}, {s(sXc)}, 1")
    a(f"s_mul_i32 {s(sG)}, {s(sG)}, 6")
    a(f"s_add_u32 {s(sG)}, {s(sG)}, {s(sT1)}")
    a(f"s_and_b32 {s(sOfs)}, {s(sG)}, 1")
    a(f"s_lshl_b32 {s(sOfs)}, {s(sOfs)}, 5")
    a(f"s_cmp_lt_u32 {s(sW)}, 4")
    a(f"s_cbranch_scc1 {name}_t1c")
    a(f"s_sub_u32 {s(sW)}, {s(sW)}, 4")
    vX0, vX1, vWw, vt = 2, 3, 4, 5
    a(f"v_lshrrev_b32 {v(vt)}, 3, v0")
    a(f"v_mul_u32_u24 {v(vX0)}, 896, {v(vt)}")
    a(f"v_and_b32 {v(vt)}, 7, v0")
    a(f"v_lshrrev_b32 {v(vt+1)}, 4, v0")
    a(f"v_xor_b32 {v(vt)}, {v(vt)}, {v(vt+1)}")
    a(f"v_xor_b32 {v(vt+2)}, 4, {v(vt)}")
    a(f"v_lshl_add_u32 {v(vX1)}, {v(vt+2)}, 4, {v(vX0)}")
    a(f"v_lshl_add_u32 {v(vX0)}, {v(vt)}, 4, {v(vX0)}")
    a(f"v_mul_u32_u24 {v(vWw)}, 2688, {v(vt+1)}")
    a(f"v_lshrrev_b32 {v(vt)}, 2, v0")
    a(f"v_sub_u32 {v(vt)}, {v(vt)}, {v(vt+1)}")
    a(f"v_and_b32 {v(vt)}, 3, {v(vt)}")
    a(f"v_lshl_add_u32 {v(vWw)}, {v(vt)}, 6, {v(vWw)}")
    a(f"v_and_b32 {v(vt)}, 3, v0")
    a(f"v_lshl_add_u32 {v(vWw)}, {v(vt)}, 4, {v(vWw)}")
    a(f"s_lshl_b32 {s(sT0)}, {s(sTb)}, 2")
    a(f"s_add_u32 {s(sT0)}, {s(sT0)}, {s(sW)}")
    a(f"s_mul_i32 {s(sXo)}, {s(sT0)}, {32*896}")
    a(f"s_mul_i32 {s(sWo)}, {s(sW)}, {16*2688}")
    a(f"s_mul_i32 {s(sT0)}, {s(sG)}, 224")
    a(f"s_add_u32 {s(sWo)}, {s(sWo)}, {s(sT0)}")
    a(f"s_sub_u32 {s(sWo)}, {s(sWo)}, {s(sOfs)}")
    a(f"s_lshl_b32 {s(sSl)}, {s(sW)}, 12")
    a(f"s_waitcnt lgkmcnt(0)")
    a(f"s_mov_b32 {s(SX)}, s4\ns_mov_b32 {s(SX+1)}, s5\ns_mov_b32 {s(SX+2)}, {2048*896}\ns_mov_b32 {s(SX+3)}, 0x20000")
    a(f"s_mov_b32 {s(SWQ)}, s6\ns_mov_b32 {s(SWQ+1)}, s7\ns_mov_b32 {s(SWQ+2)}, {448*2688}\ns_mov_b32 {s(SWQ+3)}, 0x20000")
    def issue(c):
        base = (c % NS) * 32768
        for i in range(4):
            a(f"s_add_u32 m0, {s(sSl)}, {base + 1024*i}")
            a(f"s_add_u32 {s(sT0)}, {s(sXo)}, {8*i*896 + 128*c}")
            a(f"buffer_load_dwordx4 {v(vX1 if i % 2 else vX0)}, {s(SX,4)}, {s(sT0)} offen lds")
            a(f"s_add_u32 m0, {s(sSl)}, {base + 16384 + 1024*i}")
            a(f"s_add_u32 {s(sT0)}, {s(sWo)}, {(64*c + 4*i)*2688}")
            a(f"buffer_load_dwordx4 {v(vWw)}, {s(SWQ,4)}, {s(sT0)} offen lds")
    for c in range(NS):
        issue(c)
    issued = NS
    for c in range(7):
        a(f"s_waitcnt vmcnt({8*(issued-1-c)})")
        a("s_barrier")
        if c >= 1 and issued < 7:
            issue(issued); issued += 1
    a("s_endpgm")
    a.label(f"{name}_t1c")
    va = VAlloc(2)
    ACC = [[va(16) for hp in range(2)] for tt in range(2)]
    XF = [[va(4) for tt in range(2)] for b in range(2)]
    WF = [[va(4) for hp in range(2)] for b in range(2)]
    bX = [va(1) for i in range(4)]; bW = [va(1) for hp in range(2)]
    aX = [va(1) for i in range(4)]; aW = [va(1) for hp in range(2)]
    t = [va(1) for i in range(6)]
    PK = va(8); vPad = va(1)
    a(f"v_and_b32 {v(t[0])}, 31, v0")
    a(f"v_lshrrev_b32 {v(t[1])}, 5, v0")
    a(f"v_bfe_u32 {v(t[2])}, v0, 1, 3")
    a(f"v_xor_b32 {v(t[2])}, {v(t[2])}, {v(t[1])}")
    a(f"s_lshr_b32 {s(sT0)}, {s(sW)}, 1")
    a(f"s_lshl_b32 {s(sT0)}, {s(sT0)}, 13")
    a(f"v_lshl_add_u32 {v(t[3])}, {v(t[0])}, 7, {s(sT0)}")
    for i in range(4):
        a(f"v_xor_b32 {v(t[4])}, {2*i}, {v(t[2])}")
        a(f"v_lshl_add_u32 {v(bX[i])}, {v(t[4])}, 4, {v(t[3])}")
    a(f"v_bfe_u32 {v(t[0])}, v0, 2, 2")
    a(f"v_lshl_add_u32 {v(t[2])}, {v(t[1])}, 3, {v(t[0])}")
    a(f"v_lshlrev_b32 {v(t[2])}, 8, {v(t[2])}")
    a(f"v_bfe_u32 {v(t[3])}, v0, 4, 1")
    a(f"v_lshlrev_b32 {v(t[3])}, 5, {v(t[3])}")
    a(f"v_lshl_add_u32 {v(t[3])}, {v(t[0])}, 6, {v(t[3])}")
    a(f"v_and_b32 {v(t[4])}, 3, v0")
    a(f"v_lshl_add_u32 {v(t[3])}, {v(t[4])}, 3, {v(t[3])}")
    a(f"s_and_b32 {s(sT0)}, {s(sW)}, 1")
    a(f"s_mul_i32 {s(sT0)}, {s(sT0)}, 112")
    a(f"s_add_u32 {s(sT0)}, {s(sT0)}, {s(sOfs)}")
    for hp in range(2):
        a(f"s_add_u32 {s(sT1)}, {s(sT0)}, {56*hp}")
        a(f"v_add_u32 {v(t[4])}, {s(sT1)}, {v(t[3])}")
        a(f"v_and_b32 {v(t[4])}, 255, {v(t[4])}")
        a(f"v_add_u32 {v(bW[hp])}, {v(t[4])}, {v(t[2])}")
    for tt in range(2):
        for hp in range(2):
            for r in range(16):
                a(f"v_mov_b32 {v(ACC[tt][hp]+r)}, 0")
    a(f"s_mov_b32 {s(sC)}, 0")
    a("s_waitcnt lgkmcnt(0)")
    a(f"s_cmp_ge_u32 {s(sG)}, 8")
    a(f"s_cbranch_scc1 {name}_t1v")
    def reads(i, b):
        for tt in range(2):
            a(f"ds_read_b128 {v(XF[b][tt],4)}, {v(aX[i])} offset:{4096*tt}")
        for hp in range(2):
            for jj in range(2):
                a(f"ds_read_b64_tr_b16 {v(WF[b][hp]+2*jj,2)}, {v(aW[hp])} offset:{16384+(16*i+4*jj)*256}")
    def kloop(lbl, vmode):
        a.label(lbl)
        a(f"s_and_b32 {s(sT0)}, {s(sC)}, {NS-1}")
        a(f"s_lshl_b32 {s(sT0)}, {s(sT0)}, 15")
        for i in range(4):
            a(f"v_add_u32 {v(aX[i])}, {s(sT0)}, {v(bX[i])}")
        for hp in range(2):
            a(f"v_add_u32 {v(aW[hp])}, {s(sT0)}, {v(bW[hp])}")
        a("s_barrier")
        reads(0, 0)
        for i in range(4):
            b = i % 2
            if i < 3:
                reads(i + 1, 1 - b)
                a("s_waitcnt lgkmcnt(6)")
            else:
                a("s_waitcnt lgkmcnt(0)")
            for tt in range(2):
                for hp in range(2):
                    if vmode: a(mfma32(ACC[tt][hp], XF[b][tt], WF[b][hp], ACC[tt][hp]))
                    else:     a(mfma32(ACC[tt][hp], WF[b][hp], XF[b][tt], ACC[tt][hp]))
        a(f"s_add_u32 {s(sC)}, {s(sC)}, 1")
        a(f"s_cmp_lt_u32 {s(sC)}, 7")
        a(f"s_cbranch_scc1 {lbl}")
    def dest():
        a(f"s_lshr_b32 {s(sT0)}, {s(sG)}, 2")
        a(f"s_lshl_b32 {s(sT2)}, {s(sT0)}, 21")
        a(f"s_and_b32 {s(sT0)}, {s(sG)}, 3")
        a(f"s_lshl_b32 {s(sT0)}, {s(sT0)}, 19")
        a(f"s_add_u32 {s(sT2)}, {s(sT2)}, {s(sT0)}")
        a(f"s_and_b32 {s(sT0)}, {s(sW)}, 1")
        a(f"s_lshl_b32 {s(sT0)}, {s(sT0)}, 18")
        a(f"s_add_u32 {s(sT2)}, {s(sT2)}, {s(sT0)}")
        a(f"s_lshl_b32 {s(sT0)}, {s(sTb)}, 13")
        a(f"s_add_u32 {s(sT2)}, {s(sT2)}, {s(sT0)}")
        a(f"s_lshr_b32 {s(sT0)}, {s(sW)}, 1")
        a(f"s_lshl_b32 {s(sT0)}, {s(sT0)}, 12")
        a(f"s_add_u32 {s(sT2)}, {s(sT2)}, {s(sT0)}")
        a(f"s_add_u32 {s(sT1)}, {s(sT2)}, {64*2048}")
    kloop(f"{name}_qk_loop", False)
    dest()
    a(f"s_mov_b32 {s(sHi)}, 0\ns_mov_b32 {s(sHi+1)}, -1")
    a(f"s_cmp_lt_u32 {s(sG)}, 4")
    a(f"s_cselect_b32 {s(sScale)}, {f32hex(M.SC)}, 1.0")
    a(f"s_cselect_b32 {s(sPadv)}, 0, 0x3f803f80")
    a("s_waitcnt lgkmcnt(0)")
    a("s_nop 7")
    for hp in range(2):
        for tt in range(2):
            A_ = ACC[tt][hp]
            for r in range(16):
                a(f"v_mul_f32 {v(A_+r)}, {s(sScale)}, {v(A_+r)}")
            for k in range(8):
                a(f"v_cvt_pk_bf16_f32 {v(A_+k)}, {v(A_+2*k)}, {v(A_+2*k+1)}")
            a(f"s_mov_b64 exec, {s(sHi,2)}")
            a(f"v_mov_b32 {v(A_+6)}, {s(sPadv)}")
            a(f"v_mov_b32 {v(A_+7)}, 0")
            a(f"s_mov_b64 exec, -1")
            for t_ in range(2):
                a(f"buffer_store_dwordx4 {v(A_+4*t_,4)}, v1, {s(SWS,4)}, {s(sT1 if hp else sT2)} offen offset:{2048*tt+1024*t_}")
    a("s_endpgm")
    a.label(f"{name}_t1v")
    kloop(f"{name}_v_loop", True)
    dest()
    a(f"s_mov_b32 {s(sMsk)}, 0xf0000000\ns_mov_b32 {s(sMsk+1)}, 0xf0000000")
    a(f"v_and_b32 {v(t[0])}, 31, v0")
    a(f"v_mov_b32 {v(vPad)}, 0")
    a(f"v_mov_b32 {v(t[1])}, 0x3f803f80")
    a(f"v_cmp_eq_u32 vcc, 28, {v(t[0])}")
    a("s_nop 1")
    a(f"v_cndmask_b32 {v(vPad)}, {v(vPad)}, {v(t[1])}, vcc")
    a("s_waitcnt lgkmcnt(0)")
    a("s_nop 7")
    for hp in range(2):
        for tt in range(2):
            A_ = ACC[tt][hp]
            for k in range(8):
                a(f"v_cvt_pk_bf16_f32 {v(A_+k)}, {v(A_+2*k)}, {v(A_+2*k+1)}")
            a(f"s_mov_b64 exec, {s(sMsk,2)}")
            for k in range(8):
                a(f"v_mov_b32 {v(A_+k)}, {v(vPad)}")
            a(f"s_mov_b64 exec, -1")
            for t_ in range(2):
                a(f"buffer_store_dwordx4 {v(A_+4*t_,4)}, v1, {s(SWS,4)}, {s(sT1 if hp else sT2)} offen offset:{2048*tt+1024*t_}")
    a("s_endpgm")
    hi1 = va.hi
    a.label(f"{name}_bwg")
    sB = sTb
    a(f"s_load_dwordx2 {s(SX,2)}, s[0:1], 24")
    a(f"s_load_dwordx4 s[72:75], s[0:1], 32")
    a(f"s_sub_u32 {s(sB)}, s2, 192")
    a(f"s_cmp_ge_u32 {s(sW)}, 4")
    a(f"s_cbranch_scc1 {name}_t3")
    srd_consts(a, SC_)
    a(f"s_mov_b32 {s(SX+2)}, {2048*896}\ns_mov_b32 {s(SX+3)}, 0x20000")
    va = VAlloc(2)
    RAW = [va(32), va(32)]
    XFc = [va(4) for j in range(8)]
    AC = [[va(4) for cs in range(2)] for j in range(8)]
    FC = [[va(4) for u in range(2)] for cs in range(2)]
    TWv = va(56)
    t = [va(1) for i in range(8)]
    vP = [va(1) for r in range(4)]; vM = [va(1) for r in range(4)]
    aR = [va(1), va(1)]
    sGq, sO = sG, sC
    a(f"s_lshr_b32 {s(sGq)}, {s(sB)}, 2")
    a(f"s_and_b32 {s(sO)}, {s(sB)}, 3")
    a(f"s_lshl_b32 {s(sT0)}, {s(sGq)}, 2")
    a(f"s_add_u32 {s(sT0)}, {s(sT0)}, {s(sW)}")
    a(f"s_lshl_b32 {s(sT0)}, {s(sT0)}, 2")
    a(f"s_add_u32 {s(sT0)}, {s(sT0)}, {s(sO)}")
    a(f"s_mul_i32 {s(sXo)}, {s(sT0)}, {8*896}")
    a(f"s_mul_i32 {s(sSl)}, {s(sW)}, 7168")
    a(f"v_lshrrev_b32 {v(t[0])}, 3, v0")
    a(f"v_and_b32 {v(t[1])}, 7, v0")
    a(f"v_xor_b32 {v(t[1])}, {s(sW)}, {v(t[1])}")
    a(f"v_lshlrev_b32 {v(t[2])}, 7, {v(t[0])}")
    a(f"s_waitcnt lgkmcnt(0)")
    for i in range(7):
        a(f"v_add_u32 {v(t[3])}, {i+1}, {v(t[0])}")
        a(f"v_lshrrev_b32 {v(t[3])}, 3, {v(t[3])}")
        a(f"v_add_u32 {v(t[3])}, {i}, {v(t[3])}")
        a(f"v_and_b32 {v(t[3])}, 1, {v(t[3])}")
        a(f"v_lshlrev_b32 {v(t[3])}, 2, {v(t[3])}")
        a(f"v_xor_b32 {v(t[3])}, {v(t[3])}, {v(t[1])}")
        a(f"v_lshl_add_u32 {v(t[4])}, {v(t[3])}, 4, {v(t[2])}")
        a(f"s_add_u32 m0, {s(sSl)}, {1024*i}")
        a(f"s_add_u32 {s(sT0)}, {s(sXo)}, {1024*i}")
        a(f"buffer_load_dwordx4 {v(t[4])}, {s(SX,4)}, {s(sT0)} offen lds")
    a(f"s_and_b32 {s(sT1)}, {s(sW)}, 1")
    a(f"s_lshl_b32 {s(sT0)}, {s(sT1)}, 12")
    a(f"s_add_u32 {s(sT0)}, {s(sT0)}, {CT_F56}")
    for cs in range(2):
        for u in range(2):
            a(f"buffer_load_dwordx4 {v(FC[cs][u],4)}, v1, {s(SC_,4)}, {s(sT0)} offen offset:{2048*cs+1024*u}")
    a(f"v_lshrrev_b32 {v(t[5])}, 4, v0")
    a(f"v_lshlrev_b32 {v(t[6])}, 8, {v(t[5])}")
    a(f"s_lshl_b32 {s(sT0)}, {s(sT1)}, 10")
    a(f"s_add_u32 {s(sT0)}, {s(sT0)}, {CT_TW448}")
    for rr in range(4):
        b_ = TWv + 14 * rr
        for q in range(3):
            a(f"buffer_load_dwordx4 {v(b_+4*q,4)}, {v(t[6])}, {s(SC_,4)}, {s(sT0)} offen offset:{64*rr+16*q}")
        a(f"buffer_load_dwordx2 {v(b_+12,2)}, {v(t[6])}, {s(SC_,4)}, {s(sT0)} offen offset:{64*rr+48}")
    a(f"v_and_b32 {v(t[0])}, 3, v0")
    a(f"v_bfe_u32 {v(t[1])}, v0, 2, 2")
    a(f"s_lshr_b32 {s(sT2)}, {s(sW)}, 1")
    a(f"s_lshl_b32 {s(sT0)}, {s(sT2)}, 2")
    a(f"v_lshl_add_u32 {v(t[2])}, {v(t[0])}, 3, {v(t[1])}")
    a(f"v_add_u32 {v(t[2])}, {s(sT0)}, {v(t[2])}")
    a(f"v_mul_u32_u24 {v(t[2])}, 896, {v(t[2])}")
    a(f"v_and_b32 {v(t[1])}, 1, {v(t[1])}")
    a(f"v_lshl_add_u32 {v(t[3])}, {v(t[1])}, 2, {v(t[0])}")
    a(f"v_lshlrev_b32 {v(t[3])}, 4, {v(t[3])}")
    a(f"v_lshl_add_u32 {v(aR[0])}, {v(t[5])}, 7, {v(t[2])}")
    a(f"v_min_u32 {v(t[4])}, 2, {v(t[5])}")
    a(f"v_lshl_add_u32 {v(aR[1])}, {v(t[4])}, 7, {v(t[2])}")
    a(f"v_add_u32 {v(aR[1])}, 512, {v(aR[1])}")
    a(f"v_and_b32 {v(t[0])}, 15, v0")
    a(f"v_lshlrev_b32 {v(t[0])}, 2, {v(t[0])}")
    a(f"s_lshl_b32 {s(sT0)}, {s(sT1)}, 4")
    a(f"v_lshl_add_u32 {v(t[1])}, {v(t[5])}, 2, {s(sT0)}")
    a(f"v_mov_b32 {v(t[7])}, 0x7f000000")
    for rr in range(4):
        a(f"v_add_u32 {v(t[2])}, {rr}, {v(t[1])}")
        a(f"v_lshl_add_u32 {v(vP[rr])}, {v(t[2])}, 13, {v(t[0])}")
        a(f"v_sub_u32 {v(t[4])}, 28, {v(t[2])}")
        a(f"v_lshl_add_u32 {v(vM[rr])}, {v(t[4])}, 13, {v(t[0])}")
        a(f"v_cmp_lt_u32 vcc, 28, {v(t[2])}")
        a("s_nop 1")
        a(f"v_cndmask_b32 {v(vP[rr])}, {v(vP[rr])}, {v(t[7])}, vcc")
        a(f"v_cndmask_b32 {v(vM[rr])}, {v(vM[rr])}, {v(t[7])}, vcc")
    a(f"s_lshr_b32 {s(sT0)}, {s(sO)}, 1")
    a(f"s_lshl_b32 {s(sT0)}, {s(sT0)}, 12")
    a(f"s_lshl_b32 {s(sT1)}, {s(sGq)}, 8")
    a(f"s_add_u32 {s(sT0)}, {s(sT0)}, {s(sT1)}")
    a(f"s_and_b32 {s(sT1)}, {s(sO)}, 1")
    a(f"s_lshl_b32 {s(sT1)}, {s(sT1)}, 7")
    a(f"s_add_u32 {s(sT0)}, {s(sT0)}, {s(sT1)}")
    a(f"s_lshl_b32 {s(sT1)}, {s(sT2)}, 6")
    a(f"s_add_u32 {s(sT0)}, {s(sT0)}, {s(sT1)}")
    for tt_ in range(8):
        col = 56 * tt_ if tt_ < 4 else 56 * (8 - tt_) - 28
        a(f"s_add_u32 {s(sTt+tt_)}, {s(sT0)}, {M.WS_X1 + col*8192}")
    a(f"s_mov_b32 {s(sScale)}, {f32hex(0.5**0.5)}")
    a(f"s_mov_b32 {s(sMsk)}, 0x05040100")
    a(f"s_mov_b32 {s(sMsk+1)}, 0x07060302")
    a("s_waitcnt vmcnt(20)")
    a("s_barrier")
    for u in range(2):
        for e in range(8):
            a(f"v_xor_b32 {v(t[e%2])}, {16*e}, {v(t[3])}")
            a(f"v_add_u32 {v(t[e%2])}, {v(t[e%2])}, {v(aR[u])}")
            a(f"ds_read_b128 {v(RAW[u]+4*e,4)}, {v(t[e%2])}")
    a("s_waitcnt vmcnt(16)")
    for u in range(2):
        a(f"s_waitcnt lgkmcnt({8 if u == 0 else 0})")
        for j in range(8):
            for q in range(4):
                lo = RAW[u] + 8 * q + j // 2; hi = RAW[u] + 8 * q + 4 + j // 2
                a(f"v_perm_b32 {v(XFc[j]+q)}, {v(hi)}, {v(lo)}, {s(sMsk + j % 2)}")
            if j >= 1:
                for cs in range(2):
                    a(mfma16(AC[j-1][cs], FC[cs][u], XFc[j-1], None if u == 0 else AC[j-1][cs]))
        a("s_nop 1")
        for cs in range(2):
            a(mfma16(AC[7][cs], FC[cs][u], XFc[7], None if u == 0 else AC[7][cs]))
    a("s_waitcnt vmcnt(0)")
    a("s_nop 7")
    for rr in range(4):
        pool = Pool([RAW[0] + i for i in range(12)])
        for j in range(1, 8):
            tw = TWv + 14 * rr + 2 * (j - 1)
            cmul(a, AC[j][0] + rr, AC[j][1] + rr, AC[j][0] + rr, AC[j][1] + rr, tw, tw + 1, t[2 * (j % 2)])
        X = dft8(a, pool, [((AC[j][0] + rr, 1), (AC[j][1] + rr, 1)) for j in range(8)], -1, sScale)
        for tt_ in range(8):
            re, im = X[tt_]
            if tt_ >= 4: im = neg(im)
            o_ = RAW[1] + 8 * rr + tt_
            a(f"v_cvt_pk_bf16_f32 {v(o_)}, {sv(re)}, {sv(im)}")
            a(f"buffer_store_dword {v(o_)}, {v(vP[rr] if tt_ < 4 else vM[rr])}, {s(SWS,4)}, {s(sTt+tt_)} offen")
    a("s_endpgm")
    hi2 = va.hi
    a.label(f"{name}_t3")
    a(f"s_sub_u32 {s(sW)}, {s(sW)}, 4")
    a(f"s_lshr_b32 {s(sG)}, {s(sB)}, 3")
    a(f"s_and_b32 {s(sC)}, {s(sB)}, 7")
    a(f"s_lshl_b32 {s(sT0)}, {s(sG)}, 2")
    a(f"s_add_u32 {s(sT0)}, {s(sT0)}, {s(sW)}")
    a(f"s_lshl_b32 {s(sT0)}, {s(sT0)}, 3")
    a(f"s_add_u32 {s(sT0)}, {s(sT0)}, {s(sC)}")
    a(f"s_mul_i32 {s(sXo)}, {s(sT0)}, 3600")
    a(f"s_lshl_b32 {s(sSl)}, {s(sW)}, 12")
    a(f"s_waitcnt lgkmcnt(0)")
    a(f"s_mov_b32 {s(SWQ)}, s72\ns_mov_b32 {s(SWQ+1)}, s73\ns_mov_b32 {s(SWQ+2)}, {2048*450}\ns_mov_b32 {s(SWQ+3)}, 0x20000")
    a(f"s_mov_b32 {s(SWI)}, s74\ns_mov_b32 {s(SWI+1)}, s75\ns_mov_b32 {s(SWI+2)}, {2048*450}\ns_mov_b32 {s(SWI+3)}, 0x20000")
    for arr in range(2):
        a(f"s_add_u32 m0, {s(sSl)}, {32768 + 16384*arr}")
        a("s_nop 0")
        for i in range(4):
            a(f"buffer_load_dwordx4 v1, {s(SWI if arr else SWQ,4)}, {s(sXo)} offen offset:{1024*i} lds")
    a(f"v_and_b32 v2, 7, v0")
    a(f"v_lshrrev_b32 v3, 3, v0")
    a(f"s_lshl_b32 {s(sT0)}, {s(sW)}, 3")
    a(f"v_add_u32 v3, {s(sT0)}, v3")
    a(f"v_mul_u32_u24 v4, 450, v2")
    a(f"v_lshl_add_u32 v4, v3, 1, v4")
    a(f"v_lshlrev_b32 v5, 13, v3")
    a(f"v_lshl_add_u32 v5, v2, 4, v5")
    a(f"s_lshl_b32 {s(sT0)}, {s(sG)}, 10")
    a(f"s_lshl_b32 {s(sT1)}, {s(sC)}, 7")
    a(f"s_add_u32 {s(sT0)}, {s(sT0)}, {s(sT1)}")
    a(f"s_add_u32 {s(sT0)}, {s(sT0)}, {M.WS_WT}")
    a("s_waitcnt vmcnt(0)")
    a("s_barrier")
    D0 = 8
    def t3_reads(it):
        for r in range(4):
            a(f"ds_read_u16 {v(D0+4*it+r)}, v4 offset:{32768+4096*r+64*it}")
            a(f"ds_read_u16 {v(D0+32+4*(it%2)+r)}, v4 offset:{32768+16384+4096*r+64*it}")
    t3_reads(0)
    for it in range(8):
        if it < 7:
            t3_reads(it + 1)
            a("s_waitcnt lgkmcnt(8)")
        else:
            a("s_waitcnt lgkmcnt(0)")
        for r in range(4):
            a(f"v_lshl_or_b32 {v(D0+4*it+r)}, {v(D0+32+4*(it%2)+r)}, 16, {v(D0+4*it+r)}")
        a(f"buffer_store_dwordx4 {v(D0+4*it,4)}, v5, {s(SWS,4)}, {s(sT0)} offen")
        a(f"s_add_u32 {s(sT0)}, {s(sT0)}, {32*8192}")
    a.label(f"{name}_end")
    a("s_endpgm")
    nv = max(hi1, hi2, 48)
    return a.text() + kernel_desc(name, nv, 80), nv
```

```python
from asmlib import *
import model as M

CT_F64 = 0
CT_F32 = 32768
CT_T2048 = CT_F32 + 6144
CT_F56 = CT_T2048 + 16384
CT_TW448 = CT_F56 + 8192
CT_G56 = CT_TW448 + 2048
CT_SIZE = CT_G56 + 8192

def const_table():
    parts = [M.bf16_bits(M.const_F64()).tobytes(), M.bf16_bits(M.const_F32()).tobytes(), M.const_T2048().tobytes(),
             M.bf16_bits(M.const_F56()).tobytes(), M.const_TW448().tobytes(), M.bf16_bits(M.const_G56()).tobytes()]
    raw = b"".join(parts)
    assert len(raw) == CT_SIZE
    return raw

LDS_PART = 0
LDS_C = 49152
LDS_FFT = LDS_C + 3072
K2_LDS = LDS_FFT + 32 * 272

def srd_consts(a, sd):
    a(f"s_getpc_b64 {s(sd,2)}")
    a(f"s_add_u32 {s(sd)}, {s(sd)}, ctab@rel32@lo+4")
    a(f"s_addc_u32 {s(sd+1)}, {s(sd+1)}, ctab@rel32@hi+12")
    a(f"s_mov_b32 {s(sd+2)}, {CT_SIZE}")
    a(f"s_mov_b32 {s(sd+3)}, 0x20000")

def cmul(a, outr, outi, ar, ai, br, bi, t, conj_out=False):
    a(f"v_mul_f32 {v(t)}, {v(ai)}, {v(bi)}")
    a(f"v_mul_f32 {v(t+1)}, {v(ai)}, {v(br)}")
    if not conj_out:
        a(f"v_fma_f32 {v(outi)}, {v(ar)}, {v(bi)}, {v(t+1)}")
    else:
        a(f"v_fma_f32 {v(outi)}, -{v(ar)}, {v(bi)}, -{v(t+1)}")
    a(f"v_fma_f32 {v(outr)}, {v(ar)}, {v(br)}, -{v(t)}")

WS_DBG = M.WS_ZB + 256 * M.ZSTRIDE
import os
INSTR = os.environ.get("INSTR", "0") == "1"
def stamp(a, idx):
    if INSTR:
        a(f"s_memtime s[60:61]")
        a(f"s_waitcnt lgkmcnt(0)")
        a(f"s_mov_b32 s{40+idx}, s60")
def stamp_rt(a, idx):
    if INSTR:
        a(f"s_memrealtime s[60:61]")
        a(f"s_waitcnt lgkmcnt(0)")
        a(f"s_mov_b32 s{40+idx}, s60")
def dump_stamps(a, n, SRD, sWave, vt):
    if INSTR:
        a(f"s_lshl_b32 s60, s2, 9")
        a(f"s_lshl_b32 s61, {s(sWave)}, 6")
        a(f"s_add_u32 s60, s60, s61")
        a(f"s_add_u32 s60, s60, {WS_DBG}")
        a(f"v_mov_b32 {v(vt)}, 0")
        for i in range(n):
            a(f"v_mov_b32 {v(vt+1)}, s{40+i}")
            a(f"buffer_store_dword {v(vt+1)}, {v(vt)}, {s(SRD,4)}, s60 offen offset:{4*i}")
            a("s_nop 1")

def gen_k2(name="k2_kernel"):
    a = Asm()
    a.raw(f".globl {name}\n.p2align 8\n.type {name},@function\n{name}:")
    SRD = 8; SRDC = 12
    sW, sX, sSlot, sHead, sQb, sCol = 16, 17, 18, 19, 20, 21
    sK, sV, sIt, sPass, sT0, sT1 = 22, 23, 24, 25, 26, 27
    sHi = 28
    sK0, sV0, sJ = 30, 31, 32
    a(f"s_cmp_ge_u32 s2, 256")
    a(f"s_cbranch_scc1 {name}_end")
    a(f"s_load_dwordx2 s[4:5], s[0:1], 64")
    a(f"v_lshrrev_b32 v1, 6, v0")
    a(f"v_and_b32 v0, 63, v0")
    a(f"s_and_b32 {s(sX)}, s2, 7")
    a(f"v_readfirstlane_b32 {s(sW)}, v1")
    a(f"s_lshr_b32 {s(sSlot)}, s2, 3")
    a(f"v_lshlrev_b32 v1, 4, v0")
    a(f"s_mov_b32 {s(SRD+2)}, {M.WS_END}")
    a(f"s_mov_b32 {s(SRD+3)}, 0x20000")
    a(f"s_cmp_ge_u32 {s(sW)}, 4")
    a(f"s_cbranch_scc1 {name}_fft")
    va = VAlloc(2)
    Q = [[va(4) for t in range(2)] for i in range(4)]
    O = [va(16) for i in range(4)]
    S_ = [va(16) for i in range(2)]
    P_ = [va(8), va(8)]
    assert P_[1] == P_[0] + 8
    KV = [va(16) for b in range(4)]
    C_ = [va(1) for i in range(4)]
    Mx = [va(1) for i in range(4)]
    T = [va(1) for i in range(8)]
    vLw = va(1); vLc = va(1)
    TS = [S_[0], S_[1], P_[0], KV[3]]
    Kf = lambda b, t: KV[b] + 4 * t
    Vf = lambda b, t: KV[b] + 8 + 4 * t
    stamp_rt(a, 6)
    stamp(a, 0)
    a(f"s_lshr_b32 {s(sHead)}, {s(sSlot)}, 4")
    a(f"s_lshl_b32 {s(sT0)}, {s(sX)}, 1")
    a(f"s_add_u32 {s(sHead)}, {s(sHead)}, {s(sT0)}")
    a(f"s_and_b32 {s(sQb)}, {s(sSlot)}, 15")
    a(f"s_lshl_b32 {s(sT0)}, {s(sHead)}, 17")
    a(f"s_lshl_b32 {s(sT1)}, {s(sW)}, 15")
    a(f"s_add_u32 {s(sK0)}, {s(sT0)}, {s(sT1)}")
    a(f"s_add_u32 {s(sK0)}, {s(sK0)}, {M.WS_KF}")
    a(f"s_add_u32 {s(sV0)}, {s(sK0)}, {M.WS_VF - M.WS_KF}")
    a(f"s_lshl_b32 {s(sT1)}, {s(sQb)}, 13")
    a(f"s_add_u32 {s(sT0)}, {s(sT0)}, {s(sT1)}")
    a(f"s_mov_b32 {s(sHi)}, 0")
    a(f"s_mov_b32 {s(sHi+1)}, -1")
    a(f"s_mov_b32 {s(sPass)}, 0")
    a(f"s_waitcnt lgkmcnt(0)")
    a(f"s_mov_b32 {s(SRD)}, s4")
    a(f"s_mov_b32 {s(SRD+1)}, s5")
    for i in range(4):
        a(f"s_add_u32 {s(sT1)}, {s(sW)}, {1+i}")
        a(f"s_and_b32 {s(sT1)}, {s(sT1)}, 3")
        a(f"s_lshl_b32 {s(sT1)}, {s(sT1)}, 11")
        a(f"s_add_u32 {s(sJ)}, {s(sT0)}, {s(sT1)}")
        for t in range(2):
            a(f"buffer_load_dwordx4 {v(Q[i][t],4)}, v1, {s(SRD,4)}, {s(sJ)} offen offset:{1024*t}")
    for i in range(4):
        a(f"v_mov_b32 {v(Mx[i])}, 0xff800000")
    a.label(f"{name}_start")
    for t in range(2):
        a(f"buffer_load_dwordx4 {v(Kf(0,t),4)}, v1, {s(SRD,4)}, {s(sK0)} offen offset:{1024*t}")
    for t in range(2):
        a(f"buffer_load_dwordx4 {v(Vf(0,t),4)}, v1, {s(SRD,4)}, {s(sV0)} offen offset:{1024*t}")
    for t in range(2):
        a(f"buffer_load_dwordx4 {v(Kf(1,t),4)}, v1, {s(SRD,4)}, {s(sK0)} offen offset:{2048+1024*t}")
    for t in range(2):
        a(f"buffer_load_dwordx4 {v(Vf(1,t),4)}, v1, {s(SRD,4)}, {s(sV0)} offen offset:{2048+1024*t}")
    a(f"s_add_u32 {s(sK)}, {s(sK0)}, 4096")
    a(f"s_add_u32 {s(sV)}, {s(sV0)}, 4096")
    for t in range(2):
        a(f"buffer_load_dwordx4 {v(Kf(2,t),4)}, v1, {s(SRD,4)}, {s(sK)} offen offset:{1024*t}")
    for t in range(2):
        a(f"buffer_load_dwordx4 {v(Vf(2,t),4)}, v1, {s(SRD,4)}, {s(sV)} offen offset:{1024*t}")
    a(f"s_add_u32 {s(sK)}, {s(sK)}, 2048")
    a(f"s_add_u32 {s(sV)}, {s(sV)}, 2048")
    for i in range(4):
        for r in range(16):
            a(f"v_mov_b32 {v(O[i]+r)}, 0")
    a(f"s_waitcnt vmcnt(10)")
    stamp(a, 1)
    def maxstep():
        for i in range(4):
            a(mfma32(TS[i], Kf(0, 0), Q[i][0], None))
            a(mfma32(TS[i], Kf(0, 1), Q[i][1], TS[i]))
        a("s_nop 7")
        for i in range(4):
            if i == 3:
                a("s_nop 3")
            for r in range(0, 16, 2):
                a(f"v_max3_f32 {v(Mx[i])}, {v(TS[i]+r)}, {v(TS[i]+r+1)}, {v(Mx[i])}")
    maxstep()
    for i in range(4):
        a(f"v_mov_b32 {v(T[2*i])}, {v(Mx[i])}")
        a(f"v_mov_b32 {v(T[2*i+1])}, {v(Mx[i])}")
    a("s_nop 1")
    for i in range(4):
        a(f"v_permlane32_swap_b32 {v(T[2*i])}, {v(T[2*i+1])}")
    a("s_nop 1")
    for i in range(4):
        a(f"v_max_f32 {v(Mx[i])}, {v(T[2*i])}, {v(T[2*i+1])}")
    for i in range(4):
        a(f"v_cvt_pk_bf16_f32 {v(T[2*i])}, {v(Mx[i])}, {v(Mx[i])}")
    for i in range(4):
        a(f"v_and_b32 {v(T[2*i])}, 0xffff0000, {v(T[2*i])}")
    for i in range(4):
        a(f"v_sub_f32 {v(T[2*i+1])}, {v(Mx[i])}, {v(T[2*i])}")
    for i in range(4):
        a(f"v_cvt_pk_bf16_f32 {v(T[2*i+1])}, -{v(T[2*i])}, -{v(T[2*i+1])}")
    for i in range(4):
        a(f"v_and_b32 {v(C_[i])}, 0xffff0000, {v(T[2*i+1])}")
    for i in range(4):
        a(f"v_sub_f32 {v(C_[i])}, {v(T[2*i])}, {v(C_[i])}")
    a(f"s_mov_b64 exec, {s(sHi,2)}")
    for i in range(4):
        a(f"v_mov_b32 {v(Q[i][1]+2)}, {v(T[2*i+1])}")
    a(f"s_mov_b64 exec, -1")
    for r in range(8):
        a(f"v_mov_b32 {v(P_[1]+r)}, 0")
    for r in range(8):
        a(f"v_mov_b32 {v(Vf(3,0)+r)}, 0")
    a(mfma32(S_[0], Kf(0, 0), Q[0][0], None))
    a(mfma32(S_[0], Kf(0, 1), Q[0][1], S_[0]))
    a(f"s_mov_b32 {s(sIt)}, 0")
    a(f"s_waitcnt vmcnt(8)")
    a("s_nop 7")
    stamp(a, 2)
    a.raw(".p2align 6")
    a.label(f"{name}_loop")
    for tl in range(4):
        for i in range(4):
            sb = S_[i % 2]; pb = P_[i % 2]
            sn = S_[(i + 1) % 2]; pp = P_[(i + 1) % 2]
            nb, ni = (tl, i + 1) if i < 3 else ((tl + 1) % 4, 0)
            pbuf, pi = (tl, i - 1) if i > 0 else ((tl - 1) % 4, 3)
            e = lambda r: a(f"v_exp_f32 {v(sb+r)}, {v(sb+r)}")
            c = lambda k: a(f"v_cvt_pk_bf16_f32 {v(pb+k)}, {v(sb+2*k)}, {v(sb+2*k+1)}")
            if i == 3:
                a("s_waitcnt vmcnt(8)")
            a(mfma32(sn, Kf(nb, 0), Q[ni][0], None))
            e(0); e(1); e(2); e(3)
            a(mfma32(sn, Kf(nb, 1), Q[ni][1], sn))
            e(4); e(5); c(0); e(6); e(7); c(1)
            a(mfma32(O[pi], Vf(pbuf, 0), pp, O[pi]))
            if i == 1:
                lb = (tl + 3) % 4
                a(f"buffer_load_dwordx4 {v(Kf(lb,0),4)}, v1, {s(SRD,4)}, {s(sK)} offen")
                a(f"buffer_load_dwordx4 {v(Kf(lb,1),4)}, v1, {s(SRD,4)}, {s(sK)} offen offset:1024")
            e(8); e(9); c(2); e(10); e(11); c(3)
            a(mfma32(O[pi], Vf(pbuf, 1), pp + 4, O[pi]))
            if i == 1:
                a(f"buffer_load_dwordx4 {v(Vf(lb,0),4)}, v1, {s(SRD,4)}, {s(sV)} offen")
                a(f"buffer_load_dwordx4 {v(Vf(lb,1),4)}, v1, {s(SRD,4)}, {s(sV)} offen offset:1024")
                a(f"s_add_u32 {s(sK)}, {s(sK)}, 2048")
                a(f"s_add_u32 {s(sV)}, {s(sV)}, 2048")
            e(12); e(13); c(4); e(14); e(15); c(5); c(6); c(7)
    a(f"s_add_u32 {s(sT0)}, {s(sIt)}, {s(sPass)}")
    a(f"s_cmp_lg_u32 {s(sT0)}, 1")
    a(f"s_cbranch_scc1 {name}_nobar")
    a("s_barrier")
    a.label(f"{name}_nobar")
    a(f"s_add_u32 {s(sIt)}, {s(sIt)}, 1")
    a(f"s_cmp_lt_u32 {s(sIt)}, 4")
    a(f"s_cbranch_scc1 {name}_loop")
    stamp(a, 3)
    a(mfma32(O[3], Vf(3, 0), P_[1], O[3]))
    a(mfma32(O[3], Vf(3, 1), P_[1] + 4, O[3]))
    a(f"v_lshlrev_b32 {v(vLc)}, 2, v0")
    a(f"s_mov_b32 {s(sT1)}, 0x5d800000")
    a("s_nop 7")
    a("s_nop 3")
    a(f"s_mov_b32 {s(sJ)}, 0")
    for i in range(4):
        a(f"v_cmp_nle_f32 vcc, {v(O[i]+12)}, {s(sT1)}" .replace("v_cmp_nle_f32 vcc, %s, %s" % (v(O[i]+12), s(sT1)), "v_cmp_nge_f32 vcc, %s, %s" % (s(sT1), v(O[i]+12))))
        a("s_nop 1")
        a(f"s_or_b32 {s(sJ)}, {s(sJ)}, vcc_hi")
    a(f"s_cmp_lg_u32 {s(sJ)}, 0")
    a(f"s_cbranch_scc1 {name}_redo")
    a.label(f"{name}_epi")
    for i in range(3):
        a(f"s_add_u32 {s(sT0)}, {s(sW)}, {1+i}")
        a(f"s_and_b32 {s(sT0)}, {s(sT0)}, 3")
        a(f"s_mul_i32 {s(sT0)}, {s(sT0)}, 3")
        a(f"s_add_u32 {s(sT0)}, {s(sT0)}, {i}")
        a(f"s_lshl_b32 {s(sT1)}, {s(sT0)}, 12")
        a(f"v_add_u32 {v(T[2*i])}, {s(sT1)}, v1")
        a(f"s_lshl_b32 {s(sT1)}, {s(sT0)}, 8")
        a(f"v_add_u32 {v(T[2*i+1])}, {s(sT1)}, {v(vLc)}")
        for q in range(4):
            a(f"ds_write_b128 {v(T[2*i])}, {v(O[i]+4*q,4)} offset:{LDS_PART+1024*q}")
        a(f"ds_write_b32 {v(T[2*i+1])}, {v(C_[i])} offset:{LDS_C}")
    a(f"s_mul_i32 {s(sT0)}, {s(sW)}, 3")
    a(f"s_lshl_b32 {s(sT1)}, {s(sT0)}, 12")
    a(f"v_add_u32 {v(vLw)}, {s(sT1)}, v1")
    a(f"s_lshl_b32 {s(sT1)}, {s(sT0)}, 8")
    a(f"v_add_u32 {v(vLc)}, {s(sT1)}, {v(vLc)}")
    a("s_waitcnt lgkmcnt(0)")
    a("s_barrier")
    for i in range(3):
        a(f"ds_read_b32 {v(C_[i])}, {v(vLc)} offset:{LDS_C+256*i}")
    for i in range(3):
        for q in range(4):
            a(f"ds_read_b128 {v(O[i]+4*q,4)}, {v(vLw)} offset:{LDS_PART+4096*i+1024*q}")
    a(f"s_lshl_b32 {s(sT0)}, {s(sQb)}, 2")
    a(f"s_add_u32 {s(sT0)}, {s(sT0)}, {s(sW)}")
    a(f"s_lshl_b32 {s(sT0)}, {s(sT0)}, 4")
    a(f"s_add_u32 {s(sT0)}, {s(sT0)}, {s(sHead)}")
    a(f"s_lshl_b32 {s(sT0)}, {s(sT0)}, 11")
    a(f"s_add_u32 {s(sT0)}, {s(sT0)}, {M.WS_OF}")
    a("s_waitcnt lgkmcnt(12)")
    a(f"v_max3_f32 {v(T[0])}, {v(C_[0])}, {v(C_[1])}, {v(C_[2])}")
    a(f"v_max_f32 {v(T[0])}, {v(T[0])}, {v(C_[3])}")
    for i in range(4):
        a(f"v_sub_f32 {v(C_[i])}, {v(C_[i])}, {v(T[0])}")
    for i in range(4):
        a(f"v_exp_f32 {v(C_[i])}, {v(C_[i])}")
    a("s_nop 0")
    for r in range(16):
        a(f"v_mul_f32 {v(O[3]+r)}, {v(O[3]+r)}, {v(C_[3])}")
    for i in range(3):
        a(f"s_waitcnt lgkmcnt({8-4*i})")
        for r in range(16):
            a(f"v_fmac_f32 {v(O[3]+r)}, {v(O[i]+r)}, {v(C_[i])}")
    a(f"v_mov_b32 {v(T[0])}, {v(O[3]+12)}")
    a(f"v_mov_b32 {v(T[1])}, {v(O[3]+12)}")
    a("s_nop 1")
    a(f"v_permlane32_swap_b32 {v(T[0])}, {v(T[1])}")
    a("s_nop 1")
    a(f"v_rcp_f32 {v(T[1])}, {v(T[1])}")
    a("s_nop 0")
    for r in range(16):
        a(f"v_mul_f32 {v(O[3]+r)}, {v(O[3]+r)}, {v(T[1])}")
    for k in range(8):
        a(f"v_cvt_pk_bf16_f32 {v(P_[0]+k)}, {v(O[3]+2*k)}, {v(O[3]+2*k+1)}")
    a(f"s_mov_b64 exec, {s(sHi,2)}")
    a(f"v_mov_b32 {v(P_[0]+6)}, 0")
    a(f"v_mov_b32 {v(P_[0]+7)}, 0")
    a(f"s_mov_b64 exec, -1")
    a(f"buffer_store_dwordx4 {v(P_[0],4)}, v1, {s(SRD,4)}, {s(sT0)} offen")
    a(f"buffer_store_dwordx4 {v(P_[0]+4,4)}, v1, {s(SRD,4)}, {s(sT0)} offen offset:1024")
    stamp(a, 4)
    stamp_rt(a, 7)
    a("s_mov_b32 s45, 0")
    dump_stamps(a, 8, SRD, sW, T[0])
    a("s_endpgm")
    a.label(f"{name}_redo")
    a(f"s_cmp_lg_u32 {s(sPass)}, 0")
    a(f"s_cbranch_scc1 {name}_epi")
    a(f"s_mov_b32 {s(sPass)}, 8")
    a("s_waitcnt vmcnt(0)")
    a(f"s_mov_b64 exec, {s(sHi,2)}")
    for i in range(4):
        a(f"v_mov_b32 {v(Q[i][1]+2)}, 0")
    a(f"s_mov_b64 exec, -1")
    a(f"s_mov_b32 {s(sJ)}, 15")
    a.label(f"{name}_redo_loop")
    a(f"s_lshl_b32 {s(sT0)}, {s(sJ)}, 11")
    a(f"s_add_u32 {s(sT0)}, {s(sT0)}, {s(sK0)}")
    for t in range(2):
        a(f"buffer_load_dwordx4 {v(Kf(0,t),4)}, v1, {s(SRD,4)}, {s(sT0)} offen offset:{1024*t}")
    a("s_waitcnt vmcnt(0)")
    maxstep()
    a(f"s_sub_u32 {s(sJ)}, {s(sJ)}, 1")
    a(f"s_cmp_lg_u32 {s(sJ)}, 0")
    a(f"s_cbranch_scc1 {name}_redo_loop")
    a(f"s_branch {name}_start")
    attn_hi = va.hi
    a.label(f"{name}_fft")
    a(f"s_lshl_b32 {s(sCol)}, {s(sX)}, 5")
    a(f"s_add_u32 {s(sCol)}, {s(sCol)}, {s(sSlot)}")
    a(f"s_cmp_ge_u32 {s(sCol)}, 225")
    a(f"s_cbranch_scc1 {name}_end")
    a("s_setprio 2")
    a(f"s_sub_u32 {s(sW)}, {s(sW)}, 4")
    srd_consts(a, SRDC)
    va = VAlloc(2)
    DA = [[va(4) for ks in range(4)] for mt in range(2)]
    F64 = [[va(4) for ks in range(4)] for c in range(2)]
    F32 = [[va(4) for k in range(3)] for mt in range(2)]
    TW = va(16); Wv = [va(4), va(4)]
    AC = [[va(4) for c in range(2)] for mt in range(2)]
    BF = [va(4), va(4)]
    T = va(4); WR = va(1); WI = va(1)
    vL16 = va(1); vG = va(1); vA = va(1); vB = va(1); vC = va(1); vD = va(1)
    a(f"v_and_b32 {v(vL16)}, 15, v0")
    a(f"v_lshrrev_b32 {v(vG)}, 4, v0")
    a(f"s_lshl_b32 {s(sT0)}, {s(sCol)}, 13")
    a(f"s_add_u32 {s(sT1)}, {s(sT0)}, {M.WS_X1}")
    a(f"s_add_u32 {s(sJ)}, {s(sT1)}, 4096")
    a(f"s_waitcnt lgkmcnt(0)")
    a(f"s_mov_b32 {s(SRD)}, s4")
    a(f"s_mov_b32 {s(SRD+1)}, s5")
    a(f"s_lshl_b32 {s(sK)}, {s(sW)}, 13")
    a(f"s_add_u32 {s(sV)}, {s(sK)}, 4096")
    for ks in range(4):
        a(f"buffer_load_dwordx4 {v(DA[0][ks],4)}, v1, {s(SRD,4)}, {s(sT1)} offen offset:{1024*ks}")
        a(f"buffer_load_dwordx4 {v(DA[1][ks],4)}, v1, {s(SRD,4)}, {s(sJ)} offen offset:{1024*ks}")
        a(f"buffer_load_dwordx4 {v(F64[0][ks],4)}, v1, {s(SRDC,4)}, {s(sK)} offen offset:{1024*ks}")
        a(f"buffer_load_dwordx4 {v(F64[1][ks],4)}, v1, {s(SRDC,4)}, {s(sV)} offen offset:{1024*ks}")
    a(f"s_lshl_b32 {s(sK)}, {s(sW)}, 12")
    a(f"s_add_u32 {s(sK)}, {s(sK)}, {CT_T2048}")
    for q in range(4):
        a(f"buffer_load_dwordx4 {v(TW+4*q,4)}, v1, {s(SRDC,4)}, {s(sK)} offen offset:{1024*q}")
    a(f"s_mov_b32 {s(sK)}, {CT_F32}")
    a(f"s_mov_b32 {s(sV)}, {CT_F32+3072}")
    for k in range(3):
        a(f"buffer_load_dwordx4 {v(F32[0][k],4)}, v1, {s(SRDC,4)}, {s(sK)} offen offset:{1024*k}")
        a(f"buffer_load_dwordx4 {v(F32[1][k],4)}, v1, {s(SRDC,4)}, {s(sV)} offen offset:{1024*k}")
    a(f"v_lshlrev_b32 {v(vA)}, 10, {v(vG)}")
    a(f"v_lshl_add_u32 {v(vA)}, {v(vL16)}, 4, {v(vA)}")
    a(f"s_lshl_b32 {s(sK)}, {s(sW)}, 8")
    a(f"s_add_u32 {s(sK)}, {s(sK)}, {s(sT0)}")
    a(f"s_add_u32 {s(sK)}, {s(sK)}, {M.WS_WT}")
    a(f"s_add_u32 {s(sV)}, {s(sK)}, 4096")
    a(f"buffer_load_dwordx4 {v(Wv[0],4)}, {v(vA)}, {s(SRD,4)}, {s(sK)} offen")
    a(f"buffer_load_dwordx4 {v(Wv[1],4)}, {v(vA)}, {s(SRD,4)}, {s(sV)} offen")
    a(f"v_mul_u32_u24 {v(vB)}, {4*272}, {v(vG)}")
    a(f"v_lshl_add_u32 {v(vB)}, {v(vL16)}, 2, {v(vB)}")
    a(f"s_lshl_b32 {s(sK)}, {s(sW)}, 6")
    a(f"v_add_u32 {v(vB)}, {s(sK)}, {v(vB)}")
    a(f"v_mul_u32_u24 {v(vC)}, 272, {v(vL16)}")
    a(f"v_lshl_add_u32 {v(vC)}, {v(vG)}, 4, {v(vC)}")
    a(f"v_lshlrev_b32 {v(vD)}, 2, {v(vL16)}")
    a(f"v_lshrrev_b32 {v(T)}, 1, {v(vG)}")
    a(f"v_add_u32 {v(vD)}, {v(vD)}, {v(T)}")
    a(f"v_mul_u32_u24 {v(vD)}, {M.ZSTRIDE}, {v(vD)}")
    a(f"v_and_b32 {v(T)}, 1, {v(vG)}")
    a(f"v_lshl_add_u32 {v(vD)}, {v(T)}, 4, {v(vD)}")
    a(f"s_mul_i32 {s(sK0)}, {s(sW)}, {64*M.ZSTRIDE}")
    a(f"s_lshl_b32 {s(sT1)}, {s(sCol)}, 5")
    a(f"s_add_u32 {s(sK0)}, {s(sK0)}, {s(sT1)}")
    a(f"s_add_u32 {s(sK0)}, {s(sK0)}, {M.WS_ZB}")
    a(f"s_add_u32 {s(sV0)}, {s(sK0)}, {2*M.ZSTRIDE}")
    def stage64(waits=None):
        for ks in range(4):
            if waits: a(waits[ks])
            for mt in range(2):
                for c in range(2):
                    a(mfma16(AC[mt][c], DA[mt][ks], F64[c][ks], None if ks == 0 else AC[mt][c]))
        a("s_nop 7")
    def twiddle():
        for mt in range(2):
            for r in range(4):
                tw = TW + 4 * (2 * mt + r // 2) + 2 * (r % 2)
                cmul(a, AC[mt][0] + r, AC[mt][1] + r, AC[mt][0] + r, AC[mt][1] + r, tw, tw + 1, T + 2 * (r % 2))
    def pack_sep():
        for c in range(2):
            for mt in range(2):
                for h in range(2):
                    a(f"v_cvt_pk_bf16_f32 {v(BF[c]+2*mt+h)}, {v(AC[mt][c]+2*h)}, {v(AC[mt][c]+2*h+1)}")
        a("s_nop 1")
    def stage32():
        for mt in range(2):
            a(mfma16(AC[mt][0], F32[mt][0], BF[0], None))
            a(mfma16(AC[mt][1], F32[mt][2], BF[0], None))
        for mt in range(2):
            a(mfma16(AC[mt][0], F32[mt][1], BF[1], AC[mt][0]))
            a(mfma16(AC[mt][1], F32[mt][0], BF[1], AC[mt][1]))
        a("s_nop 7")
    stage64([f"s_waitcnt vmcnt({12+4*(3-ks)})" for ks in range(4)])
    a("s_waitcnt vmcnt(8)")
    twiddle()
    pack_sep()
    a("s_waitcnt vmcnt(2)")
    stage32()
    a("s_waitcnt vmcnt(0)")
    for mt in range(2):
        for r in range(4):
            a(f"v_lshlrev_b32 {v(WR)}, 16, {v(Wv[mt]+r)}")
            a(f"v_and_b32 {v(WI)}, 0xffff0000, {v(Wv[mt]+r)}")
            cmul(a, AC[mt][0] + r, AC[mt][1] + r, AC[mt][0] + r, AC[mt][1] + r, WR, WI, T + 2 * (r % 2), conj_out=True)
    pack_sep()
    stage32()
    twiddle()
    for mt in range(2):
        for r in range(4):
            a(f"v_cvt_pk_bf16_f32 {v(BF[mt]+r)}, {v(AC[mt][0]+r)}, {v(AC[mt][1]+r)}")
    for mt in range(2):
        for r in range(4):
            a(f"ds_write_b32 {v(vB)}, {v(BF[mt]+r)} offset:{LDS_FFT+(16*mt+r)*272}")
    a("s_waitcnt lgkmcnt(0)")
    a("s_barrier")
    for ks in range(4):
        for mt in range(2):
            a(f"ds_read_b128 {v(DA[mt][ks],4)}, {v(vC)} offset:{LDS_FFT+16*mt*272+64*ks}")
    stage64([f"s_waitcnt lgkmcnt({2*(3-ks)})" for ks in range(4)])
    for mt in range(2):
        for r in range(4):
            a(f"v_cvt_pk_bf16_f32 {v(BF[mt]+r)}, {v(AC[mt][0]+r)}, {v(AC[mt][1]+r)}")
    a(f"buffer_store_dwordx4 {v(BF[0],4)}, {v(vD)}, {s(SRD,4)}, {s(sK0)} offen")
    a(f"buffer_store_dwordx4 {v(BF[1],4)}, {v(vD)}, {s(SRD,4)}, {s(sV0)} offen")
    a.label(f"{name}_end")
    a("s_endpgm")
    nv = max(attn_hi, va.hi)
    return a.text() + kernel_desc(name, nv, 64), nv
```

```python
from asmlib import *
import model as M
from k2 import CT_G56, CT_TW448, srd_consts, stamp, stamp_rt, dump_stamps
from dft8 import *

L_WO = 0
L_O = 61440
L_EX = L_O + 65536
L_TR = L_EX + 9472
K3_LDS = L_TR + 4 * 2560
PRE = 4

def gen_k3(name="k3_kernel"):
    a = Asm()
    a.raw(f".globl {name}\n.p2align 8\n.type {name},@function\n{name}:")
    SWO, SWS, SC_, SOUT = 8, 12, 16, 20
    sW, sXc, sSlot, sTb, sCg = 28, 29, 30, 31, 32
    sT0, sT1, sT2, sC, sOo, sWo, sMo, sMw, sK, sZ = 33, 34, 35, 36, 37, 38, 39, 48, 49, 50
    a(f"s_cmp_ge_u32 s2, 256")
    a(f"s_cbranch_scc1 {name}_end")
    a(f"s_load_dwordx2 {s(SWO,2)}, s[0:1], 16")
    a(f"s_load_dwordx2 {s(SOUT,2)}, s[0:1], 48")
    a(f"s_load_dwordx2 {s(SWS,2)}, s[0:1], 64")
    a(f"v_lshrrev_b32 v1, 6, v0")
    a(f"v_and_b32 v0, 63, v0")
    a(f"s_and_b32 {s(sXc)}, s2, 7")
    a(f"v_readfirstlane_b32 {s(sW)}, v1")
    a(f"s_lshr_b32 {s(sSlot)}, s2, 3")
    a(f"v_lshlrev_b32 v1, 4, v0")
    a(f"s_mov_b32 {s(SWS+2)}, {M.WS_END}\ns_mov_b32 {s(SWS+3)}, 0x20000")
    a(f"s_mov_b32 {s(SWO+2)}, {448*896}\ns_mov_b32 {s(SWO+3)}, 0x20000")
    a(f"s_mov_b32 {s(SOUT+2)}, {2048*1792}\ns_mov_b32 {s(SOUT+3)}, 0x20000")
    a(f"s_mul_i32 {s(sT0)}, {s(sSlot)}, 37")
    a(f"s_lshr_b32 {s(sT0)}, {s(sT0)}, 8")
    a(f"s_mul_i32 {s(sT1)}, {s(sT0)}, 7")
    a(f"s_sub_u32 {s(sCg)}, {s(sSlot)}, {s(sT1)}")
    a(f"s_lshl_b32 {s(sTb)}, {s(sXc)}, 2")
    a(f"s_add_u32 {s(sTb)}, {s(sTb)}, {s(sT0)}")
    a(f"s_cmp_lt_u32 {s(sW)}, 4")
    a(f"s_cbranch_scc1 {name}_c")
    a(f"s_cmp_ge_u32 {s(sSlot)}, 28")
    a(f"s_cbranch_scc1 {name}_end")
    a(f"s_sub_u32 {s(sW)}, {s(sW)}, 4")
    a(f"v_lshrrev_b32 v2, 4, v0")
    a(f"v_bfe_u32 v3, v0, 2, 1")
    a(f"v_lshl_add_u32 v3, v2, 1, v3")
    a(f"v_mul_u32_u24 v3, 896, v3")
    a(f"v_lshrrev_b32 v4, 3, v0")
    a(f"v_xor_b32 v4, v4, v2")
    a(f"v_and_b32 v4, 1, v4")
    a(f"v_lshl_add_u32 v3, v4, 6, v3")
    a(f"v_and_b32 v4, 3, v0")
    a(f"v_lshl_add_u32 v3, v4, 4, v3")
    a(f"s_lshr_b32 {s(sT0)}, {s(sW)}, 1")
    a(f"s_lshl_b32 {s(sT0)}, {s(sT0)}, 15")
    a(f"s_and_b32 {s(sT1)}, {s(sW)}, 1")
    a(f"s_lshl_b32 {s(sT1)}, {s(sT1)}, 11")
    a(f"s_add_u32 {s(sMo)}, {s(sT0)}, {s(sT1)}")
    a(f"s_lshl_b32 {s(sOo)}, {s(sTb)}, 16")
    a(f"s_add_u32 {s(sOo)}, {s(sOo)}, {s(sMo)}")
    a(f"s_add_u32 {s(sOo)}, {s(sOo)}, {M.WS_OF}")
    a(f"s_add_u32 {s(sMo)}, {s(sMo)}, {L_O}")
    a(f"s_mul_i32 {s(sWo)}, {s(sW)}, {16*896}")
    a(f"s_lshl_b32 {s(sT0)}, {s(sCg)}, 7")
    a(f"s_add_u32 {s(sWo)}, {s(sWo)}, {s(sT0)}")
    a(f"s_lshl_b32 {s(sMw)}, {s(sW)}, 11")
    a(f"s_waitcnt lgkmcnt(0)")
    cnt = []
    def issue(c):
        n = 0
        if c < 7:
            for i in range(2):
                a(f"s_add_u32 m0, {s(sMw)}, {L_WO + 8192*c + 1024*i}")
                a(f"s_add_u32 {s(sT0)}, {s(sWo)}, {(64*c + 8*i)*896}")
                a(f"buffer_load_dwordx4 v3, {s(SWO,4)}, {s(sT0)} offen lds"); n += 1
        else:
            a(f"s_lshr_b32 {s(sT1)}, {s(sMw)}, 1")
            a(f"s_add_u32 m0, {s(sT1)}, {L_WO + 8192*7}")
            a(f"s_mov_b32 {s(sT0)}, {448*896}")
            a(f"buffer_load_dwordx4 v3, {s(SWO,4)}, {s(sT0)} offen lds"); n += 1
        a(f"s_add_u32 m0, {s(sMo)}, {4096*c}")
        a(f"s_add_u32 {s(sT0)}, {s(sOo)}, {4096*c}")
        a(f"buffer_load_dwordx4 v1, {s(SWS,4)}, {s(sT0)} offen lds")
        a(f"buffer_load_dwordx4 v1, {s(SWS,4)}, {s(sT0)} offen offset:1024 lds"); n += 2
        cnt.append(n)
    for c in range(PRE):
        issue(c)
    for c in range(8):
        a(f"s_waitcnt vmcnt({sum(cnt[c+1:])})")
        a("s_barrier")
        if len(cnt) < 8:
            issue(len(cnt))
    a("s_endpgm")
    a.label(f"{name}_c")
    srd_consts(a, SC_)
    va = VAlloc(2)
    ACC = va(16); D5 = va(16)
    OFr = [va(4) for i in range(4)]; WFr = [va(4) for i in range(4)]
    Zr = va(8); Hh = va(16); TWv = va(16); GF = [va(4) for ks in range(4)]; AF = [va(4) for ks in range(4)]
    PL = va(8); t = [va(1) for i in range(8)]
    vP, vM, vEw, vEr, vY, aO, aW, vTw, vTr, vSt = [va(1) for i in range(10)]
    a(f"v_lshlrev_b32 {v(vP)}, 2, v0")
    a(f"v_lshrrev_b32 {v(t[0])}, 3, v0")
    a(f"v_and_b32 {v(t[1])}, 7, v0")
    a(f"v_sub_u32 {v(t[2])}, 7, {v(t[0])}")
    a(f"v_lshlrev_b32 {v(t[2])}, 5, {v(t[2])}")
    a(f"v_lshl_add_u32 {v(vM)}, {v(t[1])}, 2, {v(t[2])}")
    a(f"s_mul_i32 {s(sZ)}, s2, {M.ZSTRIDE}")
    a(f"s_add_u32 {s(sZ)}, {s(sZ)}, {M.WS_ZB}")
    a(f"s_lshl_b32 {s(sT2)}, {s(sW)}, 8")
    a(f"s_add_u32 {s(sT0)}, {s(sZ)}, {s(sT2)}")
    a(f"s_sub_u32 {s(sT1)}, {s(sZ)}, {s(sT2)}")
    a(f"v_lshlrev_b32 {v(t[3])}, 6, {v(t[0])}")
    a(f"s_lshl_b32 {s(sT2)}, {s(sW)}, 9")
    a(f"s_add_u32 {s(sT2)}, {s(sT2)}, {CT_TW448}")
    a(f"s_waitcnt lgkmcnt(0)")
    for tt_ in range(8):
        if tt_ < 4:
            a(f"s_add_u32 {s(sK)}, {s(sT0)}, {56*tt_*32}")
            a(f"buffer_load_dword {v(Zr+tt_)}, {v(vP)}, {s(SWS,4)}, {s(sK)} offen")
        else:
            a(f"s_add_u32 {s(sK)}, {s(sT1)}, {(56*(8-tt_)-7)*32}")
            a(f"buffer_load_dword {v(Zr+tt_)}, {v(vM)}, {s(SWS,4)}, {s(sK)} offen")
    for q in range(4):
        a(f"buffer_load_dwordx4 {v(TWv+4*q,4)}, {v(t[3])}, {s(SC_,4)}, {s(sT2)} offen offset:{16*q}")
    a(f"s_and_b32 {s(sT0)}, {s(sW)}, 1")
    a(f"s_lshl_b32 {s(sT1)}, {s(sT0)}, 12")
    a(f"s_add_u32 {s(sT1)}, {s(sT1)}, {CT_G56}")
    for ks in range(4):
        a(f"buffer_load_dwordx4 {v(GF[ks],4)}, v1, {s(SC_,4)}, {s(sT1)} offen offset:{1024*ks}")
    a(f"v_mul_u32_u24 {v(vEw)}, 1168, {v(t[1])}")
    a(f"v_lshl_add_u32 {v(vEw)}, {v(t[0])}, 2, {v(vEw)}")
    a(f"s_lshl_b32 {s(sT1)}, {s(sW)}, 5")
    a(f"v_add_u32 {v(vEw)}, {s(sT1)}, {v(vEw)}")
    a(f"v_and_b32 {v(t[4])}, 31, v0")
    a(f"v_lshrrev_b32 {v(t[5])}, 5, v0")
    a(f"v_mul_u32_u24 {v(vEr)}, 144, {v(t[4])}")
    a(f"v_lshrrev_b32 {v(t[6])}, 3, {v(t[4])}")
    a(f"v_add_u32 {v(t[6])}, {v(t[6])}, {v(t[5])}")
    a(f"v_lshl_add_u32 {v(vEr)}, {v(t[6])}, 4, {v(vEr)}")
    a(f"s_lshr_b32 {s(sT2)}, {s(sW)}, 1")
    a(f"s_mul_i32 {s(sT1)}, {s(sT2)}, {4*1168}")
    a(f"v_add_u32 {v(vEr)}, {s(sT1)}, {v(vEr)}")
    a(f"s_lshl_b32 {s(sT1)}, {s(sT0)}, 5")
    a(f"v_add_u32 {v(t[6])}, {s(sT1)}, {v(t[4])}")
    a(f"v_lshlrev_b32 {v(vY)}, 4, {v(t[6])}")
    a(f"v_lshl_add_u32 {v(vY)}, {v(t[5])}, 3, {v(vY)}")
    a(f"v_mov_b32 {v(t[7])}, 0x7f000000")
    a(f"v_cmp_lt_u32 vcc, 55, {v(t[6])}")
    a("s_nop 1")
    a(f"v_cndmask_b32 {v(vY)}, {v(vY)}, {v(t[7])}, vcc")
    a(f"s_lshl_b32 {s(sT1)}, {s(sT2)}, 15")
    a(f"s_add_u32 {s(sT1)}, {s(sT1)}, {L_O}")
    a(f"v_add_u32 {v(aO)}, {s(sT1)}, v1")
    a(f"v_bfe_u32 {v(t[6])}, v0, 3, 1")
    a(f"v_lshlrev_b32 {v(aW)}, 9, {v(t[5])}")
    a(f"v_lshl_add_u32 {v(aW)}, {v(t[6])}, 8, {v(aW)}")
    a(f"v_xor_b32 {v(t[6])}, {s(sT0)}, {v(t[6])}")
    a(f"v_lshl_add_u32 {v(aW)}, {v(t[6])}, 7, {v(aW)}")
    a(f"v_bfe_u32 {v(t[6])}, v0, 2, 1")
    a(f"v_lshl_add_u32 {v(aW)}, {v(t[6])}, 6, {v(aW)}")
    a(f"v_bfe_u32 {v(t[6])}, v0, 4, 1")
    a(f"v_lshl_add_u32 {v(aW)}, {v(t[6])}, 5, {v(aW)}")
    a(f"v_and_b32 {v(t[6])}, 3, v0")
    a(f"v_lshl_add_u32 {v(aW)}, {v(t[6])}, 3, {v(aW)}")
    a(f"s_mul_i32 {s(sT1)}, {s(sW)}, 2560")
    a(f"s_add_u32 {s(sT1)}, {s(sT1)}, {L_TR}")
    a(f"v_mul_u32_u24 {v(vTw)}, 80, {v(t[4])}")
    a(f"v_lshl_add_u32 {v(vTw)}, {v(t[5])}, 3, {v(vTw)}")
    a(f"v_add_u32 {v(vTw)}, {s(sT1)}, {v(vTw)}")
    a(f"v_lshrrev_b32 {v(t[7])}, 2, v0")
    a(f"v_mul_u32_u24 {v(vTr)}, 80, {v(t[7])}")
    a(f"v_lshl_add_u32 {v(vTr)}, {v(t[6])}, 4, {v(vTr)}")
    a(f"v_add_u32 {v(vTr)}, {s(sT1)}, {v(vTr)}")
    a(f"v_mul_u32_u24 {v(vSt)}, 1792, {v(t[7])}")
    a(f"v_lshl_add_u32 {v(vSt)}, {v(t[6])}, 4, {v(vSt)}")
    a(f"s_mov_b32 {s(sK)}, {f32hex(0.5**0.5)}")
    a("s_waitcnt vmcnt(8)")
    for tt_ in range(8):
        a(f"v_lshlrev_b32 {v(Hh+2*tt_)}, 16, {v(Zr+tt_)}")
        a(f"v_and_b32 {v(Hh+2*tt_+1)}, 0xffff0000, {v(Zr+tt_)}")
    pool = Pool([PL + i for i in range(8)])
    X = dft8(a, pool, [((Hh + 2 * tt_, 1), (Hh + 2 * tt_ + 1, -1 if tt_ < 4 else 1)) for tt_ in range(8)], +1, sK)
    a("s_waitcnt vmcnt(4)")
    for j in range(8):
        xr, xi = X[j]
        o_ = Zr + j
        if j == 0:
            a(f"v_cvt_pk_bf16_f32 {v(o_)}, {sv(xr)}, {sv(xi)}")
        else:
            tr = TWv + 2 * (j - 1); ti = tr + 1
            p, q = t[2 * (j % 2)], t[2 * (j % 2) + 1]
            a(f"v_mul_f32_e64 {v(p)}, {sv(xi)}, {v(ti)}")
            a(f"v_mul_f32_e64 {v(q)}, {sv(xi)}, {v(tr)}")
            a(f"v_fma_f32 {v(p)}, {sv(xr)}, {v(tr)}, {v(p)}")
            a(f"v_fma_f32 {v(q)}, {sv(neg(xr))}, {v(ti)}, {v(q)}")
            a(f"v_cvt_pk_bf16_f32 {v(o_)}, {v(p)}, {v(q)}")
        a(f"ds_write_b32 {v(vEw)}, {v(o_)} offset:{144*j}" .replace(f"offset:{144*j}", f"offset:{144*j}"))
    return_marker = len(a.lines)
    a("s_waitcnt lgkmcnt(0)")
    def chunk_body(first):
        a("s_barrier")
        for i in range(4):
            h2, t_ = i // 2, i % 2
            a(f"ds_read_b128 {v(OFr[i],4)}, {v(aO)} offset:{1024*i}")
            for jj in range(2):
                a(f"ds_read_b64_tr_b16 {v(WFr[i]+2*jj,2)}, {v(aW)} offset:{L_WO+(28*h2+16*t_+8*jj)*128}")
        for i in range(4):
            a(f"s_waitcnt lgkmcnt({3*(3-i)})")
            a(mfma32(ACC, WFr[i], OFr[i], None if (first and i == 0) else ACC))
        a(f"v_add_u32 {v(aO)}, 4096, {v(aO)}")
        a(f"v_add_u32 {v(aW)}, {56*128}, {v(aW)}")
    def t5_part2():
        for ks in range(4):
            a(f"ds_read_b128 {v(AF[ks],4)}, {v(vEr)} offset:{32*ks}")
        a(f"s_lshl_b32 {s(sT1)}, s2, 3")
        a(f"s_lshl_b32 {s(sC)}, {s(sT2)}, 2")
        a(f"s_add_u32 {s(sT1)}, {s(sT1)}, {s(sC)}")
        a(f"s_mul_i32 {s(sT1)}, {s(sT1)}, 1792")
        a(f"s_add_u32 {s(sT1)}, {s(sT1)}, 896")
        a(f"s_add_u32 {s(sZ)}, {s(sT1)}, 3584")
        a("s_waitcnt vmcnt(0)")
        for ks in range(4):
            a(f"s_waitcnt lgkmcnt({3-ks})")
            a(mfma32(D5, AF[ks], GF[ks], None if ks == 0 else D5))
        a("s_nop 7\ns_nop 3")
        for k in range(8):
            a(f"v_cvt_pk_bf16_f32 {v(Hh+k)}, {v(D5+2*k)}, {v(D5+2*k+1)}")
        for q in range(4):
            a(f"buffer_store_dwordx2 {v(Hh+2*q,2)}, {v(vY)}, {s(SOUT,4)}, {s(sT1 if q < 2 else sZ)} offen offset:{1792*(q%2)}")
    a(f"s_cmp_lt_u32 {s(sSlot)}, 28")
    a(f"s_cbranch_scc1 {name}_t4")
    a("s_barrier")
    t5_part2()
    a("s_endpgm")
    a.label(f"{name}_t4")
    chunk_body(True)
    t5_part2()
    a(f"s_mov_b32 {s(sC)}, 1")
    a.label(f"{name}_loop")
    chunk_body(False)
    a(f"s_add_u32 {s(sC)}, {s(sC)}, 1")
    a(f"s_cmp_lt_u32 {s(sC)}, 8")
    a(f"s_cbranch_scc1 {name}_loop")
    a(f"s_lshl_b32 {s(sT1)}, {s(sTb)}, 1")
    a(f"s_add_u32 {s(sT1)}, {s(sT1)}, {s(sT2)}")
    a(f"s_mul_i32 {s(sT1)}, {s(sT1)}, {32*1792}")
    a(f"s_lshl_b32 {s(sC)}, {s(sCg)}, 7")
    a(f"s_add_u32 {s(sT1)}, {s(sT1)}, {s(sC)}")
    a(f"s_lshl_b32 {s(sC)}, {s(sT0)}, 6")
    a(f"s_add_u32 {s(sT1)}, {s(sT1)}, {s(sC)}")
    a(f"s_add_u32 {s(sZ)}, {s(sT1)}, {16*1792}")
    a("s_nop 7")
    for k in range(8):
        a(f"v_cvt_pk_bf16_f32 {v(D5+k)}, {v(ACC+2*k)}, {v(ACC+2*k+1)}")
    for q in range(4):
        a(f"ds_write_b64 {v(vTw)}, {v(D5+2*q,2)} offset:{16*q}")
    a("s_waitcnt lgkmcnt(0)")
    a(f"ds_read_b128 {v(OFr[0],4)}, {v(vTr)}")
    a(f"ds_read_b128 {v(OFr[1],4)}, {v(vTr)} offset:{16*80}")
    a("s_waitcnt lgkmcnt(1)")
    a(f"buffer_store_dwordx4 {v(OFr[0],4)}, {v(vSt)}, {s(SOUT,4)}, {s(sT1)} offen")
    a("s_waitcnt lgkmcnt(0)")
    a(f"buffer_store_dwordx4 {v(OFr[1],4)}, {v(vSt)}, {s(SOUT,4)}, {s(sZ)} offen")
    a.label(f"{name}_end")
    a("s_endpgm")
    txt = a.text()
    txt = txt.replace(f"    s_lshl_b32 {s(sT1)}, {s(sW)}, 5\n    v_add_u32 {v(vEw)}, {s(sT1)}, {v(vEw)}",
                      f"    s_lshl_b32 {s(sT1)}, {s(sW)}, 5\n    s_add_u32 {s(sT1)}, {s(sT1)}, {L_EX}\n    v_add_u32 {v(vEw)}, {s(sT1)}, {v(vEw)}")
    txt = txt.replace(f"    s_mul_i32 {s(sT1)}, {s(sT2)}, {4*1168}\n",
                      f"    s_mul_i32 {s(sT1)}, {s(sT2)}, {4*1168}\n    s_add_u32 {s(sT1)}, {s(sT1)}, {L_EX}\n")
    nv = max(va.hi, 8)
    return txt + kernel_desc(name, nv, 64), nv
```

```python
import numpy as np

S, D, H, DH = 2048, 448, 16, 28
SC = DH ** -0.5 * np.log2(np.e)

def bf16_bits(x):
    x = np.ascontiguousarray(x, dtype=np.float32)
    u = x.view(np.uint32)
    r = ((u + 0x7FFF + ((u >> 16) & 1)) >> 16).astype(np.uint16)
    return r
def bf16_val(b):
    return (b.astype(np.uint32) << 16).view(np.float32)
def rb(x):
    return bf16_val(bf16_bits(x))

WS_QF = 0
WS_KF = 2 << 20
WS_VF = 4 << 20
WS_X1 = 6 << 20
WS_WT = 8 << 20
WS_OF = 10 << 20
WS_ZB = 12 << 20
ZSTRIDE = 7296
WS_DBG = 14 << 20
WS_END = 16 << 20

def feat(t, half, j):
    return 16 * t + 8 * (j // 4) + 4 * half + j % 4

_t, _half, _j = np.meshgrid(np.arange(2), np.arange(2), np.arange(8), indexing='ij')
FEAT = 16 * _t + 8 * (_j // 4) + 4 * _half + _j % 4

def qkv_stage(x, wqkv):
    qkv = x.astype(np.float64) @ wqkv.astype(np.float64)
    q = qkv[:, :448].reshape(S, H, DH); k = qkv[:, 448:896].reshape(S, H, DH); v = qkv[:, 896:].reshape(S, H, DH)
    qp = np.zeros((S, H, 32)); kp = np.zeros((S, H, 32)); vp = np.zeros((S, H, 32))
    qp[:, :, :28] = q * SC; kp[:, :, :28] = k; kp[:, :, 28:30] = 1.0; vp[:, :, :28] = v; vp[:, :, 28] = 1.0
    def tokfrag(a):
        a = a.reshape(64, 32, H, 32)
        out = a[:, :, :, FEAT]
        out = out.transpose(2, 0, 3, 4, 1, 5)
        return rb(out.reshape(H, 64, 2, 64, 8))
    QF = tokfrag(qp); KF = tokfrag(kp)
    a = vp.reshape(64, 32, H, 32)
    out = a[:, FEAT]
    out = out.transpose(4, 0, 1, 2, 5, 3)
    VF = rb(out.reshape(H, 64, 2, 64, 8))
    return QF, KF, VF

def unfrag_tok(F):
    a = F.reshape(H, 64, 2, 2, 32, 8)
    out = np.zeros((64, 32, H, 32), F.dtype)
    for t in range(2):
        for hf in range(2):
            for j in range(8):
                out[:, :, :, FEAT[t, hf, j]] = a[:, :, t, hf, :, j].transpose(1, 2, 0)
    return out.reshape(S, H, 32)
def unfrag_v(F):
    a = F.reshape(H, 64, 2, 2, 32, 8)
    out = np.zeros((64, 32, H, 32), F.dtype)
    for t in range(2):
        for hf in range(2):
            for j in range(8):
                out[:, FEAT[t, hf, j], :, :] = a[:, :, t, hf, :, j].transpose(1, 0, 2)
    return out.reshape(S, H, 32)

def attn_stage(QF, KF, VF):
    q = unfrag_tok(QF).astype(np.float64); k = unfrag_tok(KF).astype(np.float64); v = unfrag_v(VF).astype(np.float64)
    o = np.zeros((S, H, 32))
    for h in range(H):
        s = q[:, h, :28] @ k[:, h, :28].T
        p = rb(np.exp2(s - s.max(axis=1, keepdims=True))).astype(np.float64)
        oo = p @ v[:, h, :]
        o[:, h, :28] = oo[:, :28] / oo[:, 28:29]
    a = o.reshape(64, 32, H, 32)
    out = a[:, :, :, FEAT]
    out = out.transpose(0, 2, 3, 4, 1, 5)
    return rb(out.reshape(64, H, 2, 64, 8))

def outproj_stage(OF, wo):
    a = OF.reshape(64, H, 2, 2, 32, 8)
    o = np.zeros((64, 32, H, 32))
    for t in range(2):
        for hf in range(2):
            for j in range(8):
                o[:, :, :, FEAT[t, hf, j]] = a[:, :, t, hf, :, j].transpose(0, 2, 1)
    o = o.reshape(S, H, 32)[:, :, :28].reshape(S, 448)
    return rb(o @ wo.astype(np.float64))

def const_F56():
    out = np.zeros((2, 2, 2, 64, 8))
    for kb in range(2):
        for u in range(2):
            for l in range(64):
                kap = 16 * kb + l % 16; g = l // 16
                for j in range(8):
                    m = 32 * u + 8 * g + j
                    if m < 56 and kap <= 28:
                        th = 2 * np.pi * ((kap * m) % 56) / 56
                        out[kb, 0, u, l, j] = np.cos(th); out[kb, 1, u, l, j] = -np.sin(th)
    return rb(out)
def const_TW448():
    out = np.zeros((32, 16), np.float32)
    for kap in range(32):
        for j in range(1, 8):
            th = 2 * np.pi * (kap * j) / 448
            out[kap, 2 * (j - 1)] = np.cos(th); out[kap, 2 * (j - 1) + 1] = -np.sin(th)
    return out
def const_F64():
    out = np.zeros((4, 2, 4, 64, 8))
    for w in range(4):
        for ks in range(4):
            for l in range(64):
                k1 = 16 * w + l % 16; g = l // 16
                for j in range(8):
                    n1 = 16 * ks + 4 * g + j // 2; c = j % 2
                    th = 2 * np.pi * ((n1 * k1) % 64) / 64
                    out[w, 0, ks, l, j] = np.cos(th) if c == 0 else np.sin(th)
                    out[w, 1, ks, l, j] = -np.sin(th) if c == 0 else np.cos(th)
    return rb(out)
def const_F32():
    out = np.zeros((2, 3, 64, 8))
    for mt in range(2):
        for l in range(64):
            k2 = 16 * mt + l % 16; g = l // 16
            for j in range(8):
                n2 = 16 * (j // 4) + 4 * g + j % 4
                th = 2 * np.pi * ((n2 * k2) % 32) / 32
                out[mt, 0, l, j] = np.cos(th); out[mt, 1, l, j] = np.sin(th); out[mt, 2, l, j] = -np.sin(th)
    return rb(out)
def const_T2048():
    out = np.zeros((4, 4, 64, 4), np.float32)
    for w in range(4):
        for l in range(64):
            k1 = 16 * w + l % 16; g = l // 16
            for mt in range(2):
                for r in range(4):
                    n2 = 16 * mt + 4 * g + r
                    th = 2 * np.pi * (n2 * k1) / 2048
                    out[w, 2 * mt + r // 2, l, 2 * (r % 2)] = np.cos(th); out[w, 2 * mt + r // 2, l, 2 * (r % 2) + 1] = -np.sin(th)
    return out
def const_G56():
    out = np.zeros((2, 4, 64, 8))
    cc = 1.0 / (S * D)
    for nu in range(2):
        for ks in range(4):
            for l in range(64):
                m = 32 * nu + l % 32; hf = l // 32
                for j in range(8):
                    kap = 8 * ks + 4 * hf + j // 2; c = j % 2
                    if m < 56 and kap <= 28:
                        wk = 1.0 if kap in (0, 28) else 2.0
                        th = 2 * np.pi * ((kap * m) % 56) / 56
                        out[nu, ks, l, j] = cc * wk * (np.cos(th) if c == 0 else -np.sin(th))
    return rb(out)

def rowdft_stage(x):
    F = const_F56().astype(np.float64)
    Fc = np.zeros((32, 64)); Fs = np.zeros((32, 64))
    for kb in range(2):
        for u in range(2):
            for l in range(64):
                for j in range(8):
                    Fc[16 * kb + l % 16, 32 * u + 8 * (l // 16) + j] = F[kb, 0, u, l, j]
                    Fs[16 * kb + l % 16, 32 * u + 8 * (l // 16) + j] = F[kb, 1, u, l, j]
    xx = x.astype(np.float64).reshape(S, 56, 8)
    Dj = np.einsum('km,smj->skj', Fc[:29, :56] + 1j * Fs[:29, :56], xx)
    tw = const_TW448().astype(np.float64)
    T = np.ones((29, 8), complex)
    for j in range(1, 8):
        T[:, j] = tw[:29, 2 * (j - 1)] + 1j * tw[:29, 2 * (j - 1) + 1]
    P = Dj * T[None]
    w8 = np.exp(-2j * np.pi * np.outer(np.arange(8), np.arange(8)) / 8)
    Xt = np.einsum('tj,skj->skt', w8, P)
    X = np.zeros((S, 225), complex)
    kap = np.arange(29)
    for t in range(4):
        X[:, kap + 56 * t] = Xt[:, :, t]
    for t in range(4, 8):
        X[:, 56 * (8 - t) - kap] = np.conj(Xt[:, :, t])
    return pack_X1(X)
def pack_X1(X):
    out = np.zeros((225, 2, 4, 64, 8))
    for mt in range(2):
        for ks in range(4):
            for l in range(64):
                for j in range(8):
                    n2 = 16 * mt + l % 16; n1 = 16 * ks + 4 * (l // 16) + j // 2
                    s = 32 * n1 + n2
                    out[:, mt, ks, l, j] = X[s].real if j % 2 == 0 else X[s].imag
    return rb(out)
def unpack_X1(X1):
    X = np.zeros((S, 225), complex)
    for mt in range(2):
        for ks in range(4):
            for l in range(64):
                for j in range(0, 8, 2):
                    n2 = 16 * mt + l % 16; n1 = 16 * ks + 4 * (l // 16) + j // 2
                    X[32 * n1 + n2] = X1[:, mt, ks, l, j] + 1j * X1[:, mt, ks, l, j + 1]
    return X

def wt_stage(w_r, w_i):
    k2 = (16 * np.arange(2)[:, None, None] + 4 * np.arange(4)[None, :, None] + np.arange(4)[None, None, :])
    k = np.arange(64)[None, None, :, None] + 64 * k2[:, :, None, :]
    out = np.stack([w_r[k], w_i[k]], axis=-1)
    return np.ascontiguousarray(out.transpose(4, 0, 1, 2, 3, 5)).astype(np.float32)

def crb(z):
    return rb(z.real).astype(np.float64) + 1j * rb(z.imag).astype(np.float64)

def colfft_stage(X1, WT):
    X = unpack_X1(X1)
    u = X.reshape(64, 32, 225)
    F64 = crb(np.exp(-2j * np.pi * (np.outer(np.arange(64), np.arange(64)) % 64) / 64))
    F32 = crb(np.exp(-2j * np.pi * (np.outer(np.arange(32), np.arange(32)) % 32) / 32))
    T = np.exp(-2j * np.pi * np.outer(np.arange(64), np.arange(32)) / 2048)
    A = np.einsum('kn,nmc->kmc', F64, u)
    B = crb(A * T[:, :, None])
    U = np.einsum('pm,kmc->kpc', F32, B)
    W = np.zeros((64, 32, 225), complex)
    Wc = WT[..., 0].astype(np.float64) + 1j * WT[..., 1].astype(np.float64)
    W = Wc.transpose(3, 1, 2, 4, 0).reshape(64, 32, 225)
    V = crb(np.conj(U * W))
    D3 = np.einsum('mp,kpc->kmc', F32, V)
    E = crb(D3 * T[:, :, None])
    Zb = np.einsum('nk,kmc->nmc', F64, E)
    return crb(Zb.reshape(S, 225))
def pack_ZB(Zb):
    out = np.zeros((256, ZSTRIDE // 2), np.float32)
    z = np.stack([Zb.real, Zb.imag], axis=-1).reshape(256, 8, 225, 2).transpose(0, 2, 1, 3)
    out[:, :225 * 16] = z.reshape(256, 225 * 16)
    return out
def unpack_ZB(ZB):
    z = ZB[:, :225 * 16].reshape(256, 225, 8, 2).transpose(0, 2, 1, 3).reshape(S, 225, 2).astype(np.float64)
    return z[..., 0] + 1j * z[..., 1]

def rowidft_stage(Zb):
    Z = np.conj(Zb)
    kap = np.arange(29)
    Hh = np.zeros((S, 29, 8), complex)
    for t in range(4):
        Hh[:, :, t] = Z[:, kap + 56 * t]
    for t in range(4, 8):
        Hh[:, :, t] = np.conj(Z[:, 56 * (8 - t) - kap])
    w8 = np.exp(2j * np.pi * np.outer(np.arange(8), np.arange(8)) / 8)
    Q = np.einsum('jt,skt->skj', w8, Hh)
    tw = const_TW448().astype(np.float64)
    T = np.ones((29, 8), complex)
    for j in range(1, 8):
        T[:, j] = tw[:29, 2 * (j - 1)] - 1j * tw[:29, 2 * (j - 1) + 1]
    Q = crb(Q * T[None])
    G = const_G56().astype(np.float64)
    Gr = np.zeros((32, 64)); Gi = np.zeros((32, 64))
    for nu in range(2):
        for ks in range(4):
            for l in range(64):
                for j in range(8):
                    kp = 8 * ks + 4 * (l // 32) + j // 2
                    (Gr if j % 2 == 0 else Gi)[kp, 32 * nu + l % 32] = G[nu, ks, l, j]
    y = np.einsum('skj,km->smj', Q.real, Gr[:29, :56]) + np.einsum('skj,km->smj', Q.imag, Gi[:29, :56])
    return rb(y.reshape(S, 448))

def reference(A_x, wqkv, wo, B_x, w_r, w_i):
    x = A_x.astype(np.float64)
    qkv = rb(x @ wqkv.astype(np.float64)).astype(np.float64)
    q = qkv[:, :448].reshape(S, H, DH); k = qkv[:, 448:896].reshape(S, H, DH); v = qkv[:, 896:].reshape(S, H, DH)
    o = np.zeros((S, H, DH))
    for h in range(H):
        s = rb(rb(q[:, h] @ k[:, h].T) * np.float32(DH ** -0.5)).astype(np.float64)
        p = np.exp(s - s.max(axis=1, keepdims=True)); p = rb(p / p.sum(axis=1, keepdims=True)).astype(np.float64)
        o[:, h] = rb(p @ v[:, h])
    a = rb(o.reshape(S, D) @ wo.astype(np.float64))
    X = np.fft.rfft2(B_x.astype(np.float64))
    y = np.fft.irfft2(X * (w_r.astype(np.float64) + 1j * w_i.astype(np.float64)), s=(S, D))
    return a, rb(y)

def make_inputs(seed=0):
    rng = np.random.default_rng(seed)
    r = lambda *s: rb(rng.standard_normal(s))
    return dict(A_x=rb(r(S, D) * 0.2), wqkv=rb(r(D, 3 * D) * 0.2), wo=rb(r(D, D) * 0.05), B_x=rb(r(S, D) * 0.05),
                w_r=rb(rb(r(S, 225) * 6.4) * 0.02), w_i=rb(rb(r(S, 225) * 6.4) * 0.02))

if __name__ == "__main__":
    I = make_inputs()
    ra, rbb = reference(**I)
    QF, KF, VF = qkv_stage(I['A_x'], I['wqkv'])
    OF = attn_stage(QF, KF, VF)
    a = outproj_stage(OF, I['wo'])
    print("A: max|ref|", np.abs(ra).max(), "maxerr", np.abs(a - ra).max(), "rel l2", np.linalg.norm(a - ra) / np.linalg.norm(ra))
    X1 = rowdft_stage(I['B_x'])
    Xref = np.fft.rfft(I['B_x'].astype(np.float64), axis=1)
    print("X1 rel", np.linalg.norm(unpack_X1(X1) - Xref) / np.linalg.norm(Xref))
    WT = wt_stage(I['w_r'], I['w_i'])
    Zb = colfft_stage(X1, WT)
    y = rowidft_stage(unpack_ZB(pack_ZB(Zb)))
    print("B: max|ref|", np.abs(rbb).max(), "maxerr", np.abs(y - rbb).max(), "rel l2", np.linalg.norm(y - rbb) / np.linalg.norm(rbb))
```

```python
import sys
from asmlib import *
import model as M
import k2

HDR = open('concat_heads__mha_block__spectral_gfnet__prompt.s.ref').read().split("; Override launch")[0]

def build(kernels, path):
    launches = []; bodies = []
    for kname in kernels:
        if kname == 'k1':
            import k1
            t, nv = k1.gen_k1(); launches.append(f"; @launch kernel=k1_kernel grid=(256,1,1) block=(512,1,1) lds={k1.K1_LDS}")
        elif kname == 'k2':
            t, nv = k2.gen_k2(); launches.append(f"; @launch kernel=k2_kernel grid=(256,1,1) block=(512,1,1) lds={k2.K2_LDS}")
        elif kname == 'k3':
            import k3
            t, nv = k3.gen_k3(); launches.append(f"; @launch kernel=k3_kernel grid=(256,1,1) block=(512,1,1) lds={k3.K3_LDS}")
        print(kname, "vgprs", nv, file=sys.stderr)
        bodies.append(t)
    out = HDR + "\n".join(launches) + "\n" + '.amdgcn_target "amdgcn-amd-amdhsa--gfx950"\n.text\n' + "".join(bodies)
    out += '.section .rodata,"a"\n.p2align 8\n.type ctab,@object\nctab:\n' + data_lines(k2.const_table()) + f".size ctab, {k2.CT_SIZE}\n.text\n"
    open(path, 'w').write(out)

if __name__ == "__main__":
    build(sys.argv[2:], sys.argv[1])
```

```python
from asmlib import *
import model as M
from k2 import CT_F56, CT_TW448, srd_consts, cmul, stamp, stamp_rt, stamp_begin, stamp_end
from dft8 import *

K1_LDS = 131072
NS = 4

def gen_k1(name="k1_kernel"):
    a = Asm()
    a.raw(f".globl {name}\n.p2align 8\n.type {name},@function\n{name}:")
    SX, SWQ, SWS, SC_, SWI = 8, 12, 16, 20, 24
    sW, sXc, sSlot, sTb, sG = 28, 29, 30, 31, 32
    sT0, sT1, sT2, sC, sSl, sXo, sWo, sOfs = 33, 34, 35, 36, 37, 38, 39, 48
    sHi = 50; sMsk = 52; sScale = 54; sPadv = 55; sTt = 64
    a(f"s_cmp_ge_u32 s2, 256")
    a(f"s_cbranch_scc1 {name}_end")
    stamp_begin(a)
    a(f"s_load_dwordx4 s[4:7], s[0:1], 0")
    a(f"s_load_dwordx2 {s(SWS,2)}, s[0:1], 64")
    a(f"v_lshrrev_b32 v1, 6, v0")
    a(f"v_and_b32 v0, 63, v0")
    a(f"s_and_b32 {s(sXc)}, s2, 7")
    a(f"v_readfirstlane_b32 {s(sW)}, v1")
    a(f"s_lshr_b32 {s(sSlot)}, s2, 3")
    a(f"v_lshlrev_b32 v1, 4, v0")
    a(f"s_mov_b32 {s(SWS+2)}, {M.WS_END}")
    a(f"s_mov_b32 {s(SWS+3)}, 0x20000")
    a(f"s_cmp_ge_u32 {s(sSlot)}, 24")
    a(f"s_cbranch_scc1 {name}_bwg")
    a(f"s_mul_i32 {s(sT0)}, {s(sSlot)}, 43")
    a(f"s_lshr_b32 {s(sT0)}, {s(sT0)}, 8")
    a(f"s_mul_i32 {s(sT1)}, {s(sT0)}, 6")
    a(f"s_sub_u32 {s(sT1)}, {s(sSlot)}, {s(sT1)}")
    a(f"s_lshr_b32 {s(sTb)}, {s(sXc)}, 1")
    a(f"s_lshl_b32 {s(sTb)}, {s(sTb)}, 2")
    a(f"s_add_u32 {s(sTb)}, {s(sTb)}, {s(sT0)}")
    a(f"s_and_b32 {s(sG)}, {s(sXc)}, 1")
    a(f"s_mul_i32 {s(sG)}, {s(sG)}, 6")
    a(f"s_add_u32 {s(sG)}, {s(sG)}, {s(sT1)}")
    a(f"s_and_b32 {s(sOfs)}, {s(sG)}, 1")
    a(f"s_lshl_b32 {s(sOfs)}, {s(sOfs)}, 5")
    a(f"s_cmp_lt_u32 {s(sW)}, 4")
    a(f"s_cbranch_scc1 {name}_t1c")
    a(f"s_sub_u32 {s(sW)}, {s(sW)}, 4")
    vX0, vX1, vWw, vt = 2, 3, 4, 5
    a(f"v_lshrrev_b32 {v(vt)}, 3, v0")
    a(f"v_mul_u32_u24 {v(vX0)}, 896, {v(vt)}")
    a(f"v_and_b32 {v(vt)}, 7, v0")
    a(f"v_lshrrev_b32 {v(vt+1)}, 4, v0")
    a(f"v_xor_b32 {v(vt)}, {v(vt)}, {v(vt+1)}")
    a(f"v_xor_b32 {v(vt+2)}, 4, {v(vt)}")
    a(f"v_lshl_add_u32 {v(vX1)}, {v(vt+2)}, 4, {v(vX0)}")
    a(f"v_lshl_add_u32 {v(vX0)}, {v(vt)}, 4, {v(vX0)}")
    a(f"v_mul_u32_u24 {v(vWw)}, 2688, {v(vt+1)}")
    a(f"v_lshrrev_b32 {v(vt)}, 2, v0")
    a(f"v_sub_u32 {v(vt)}, {v(vt)}, {v(vt+1)}")
    a(f"v_and_b32 {v(vt)}, 3, {v(vt)}")
    a(f"v_lshl_add_u32 {v(vWw)}, {v(vt)}, 6, {v(vWw)}")
    a(f"v_and_b32 {v(vt)}, 3, v0")
    a(f"v_lshl_add_u32 {v(vWw)}, {v(vt)}, 4, {v(vWw)}")
    a(f"s_lshl_b32 {s(sT0)}, {s(sTb)}, 2")
    a(f"s_add_u32 {s(sT0)}, {s(sT0)}, {s(sW)}")
    a(f"s_mul_i32 {s(sXo)}, {s(sT0)}, {32*896}")
    a(f"s_mul_i32 {s(sWo)}, {s(sW)}, {16*2688}")
    a(f"s_mul_i32 {s(sT0)}, {s(sG)}, 224")
    a(f"s_add_u32 {s(sWo)}, {s(sWo)}, {s(sT0)}")
    a(f"s_sub_u32 {s(sWo)}, {s(sWo)}, {s(sOfs)}")
    a(f"s_lshl_b32 {s(sSl)}, {s(sW)}, 12")
    a(f"s_waitcnt lgkmcnt(0)")
    a(f"s_mov_b32 {s(SX)}, s4\ns_mov_b32 {s(SX+1)}, s5\ns_mov_b32 {s(SX+2)}, {2048*896}\ns_mov_b32 {s(SX+3)}, 0x20000")
    a(f"s_mov_b32 {s(SWQ)}, s6\ns_mov_b32 {s(SWQ+1)}, s7\ns_mov_b32 {s(SWQ+2)}, {448*2688}\ns_mov_b32 {s(SWQ+3)}, 0x20000")
    def issue(c):
        base = (c % NS) * 32768
        for i in range(4):
            a(f"s_add_u32 m0, {s(sSl)}, {base + 1024*i}")
            a(f"s_add_u32 {s(sT0)}, {s(sXo)}, {8*i*896 + 128*c}")
            a(f"buffer_load_dwordx4 {v(vX1 if i % 2 else vX0)}, {s(SX,4)}, {s(sT0)} offen lds")
            a(f"s_add_u32 m0, {s(sSl)}, {base + 16384 + 1024*i}")
            a(f"s_add_u32 {s(sT0)}, {s(sWo)}, {(64*c + 4*i)*2688}")
            a(f"buffer_load_dwordx4 {v(vWw)}, {s(SWQ,4)}, {s(sT0)} offen lds")
    for c in range(NS):
        issue(c)
    issued = NS
    for c in range(7):
        a(f"s_waitcnt vmcnt({8*(issued-1-c)})")
        stamp(a, 2 + c)
        a("s_barrier")
        if c >= 1 and issued < 7:
            issue(issued); issued += 1
    stamp_end(a, 0, SWS, (sW, 4), 6)
    a("s_endpgm")
    a.label(f"{name}_t1c")
    va = VAlloc(2)
    ACC = [[va(16) for hp in range(2)] for tt in range(2)]
    XF = [[va(4) for tt in range(2)] for b in range(2)]
    WF = [[va(4) for hp in range(2)] for b in range(2)]
    bX = [va(1) for i in range(4)]; bW = [va(1) for hp in range(2)]
    aX = [va(1) for i in range(4)]; aW = [va(1) for hp in range(2)]
    t = [va(1) for i in range(6)]
    PK = va(8); vPad = va(1)
    a(f"v_and_b32 {v(t[0])}, 31, v0")
    a(f"v_lshrrev_b32 {v(t[1])}, 5, v0")
    a(f"v_bfe_u32 {v(t[2])}, v0, 1, 3")
    a(f"v_xor_b32 {v(t[2])}, {v(t[2])}, {v(t[1])}")
    a(f"s_lshr_b32 {s(sT0)}, {s(sW)}, 1")
    a(f"s_lshl_b32 {s(sT0)}, {s(sT0)}, 13")
    a(f"v_lshl_add_u32 {v(t[3])}, {v(t[0])}, 7, {s(sT0)}")
    for i in range(4):
        a(f"v_xor_b32 {v(t[4])}, {2*i}, {v(t[2])}")
        a(f"v_lshl_add_u32 {v(bX[i])}, {v(t[4])}, 4, {v(t[3])}")
    a(f"v_bfe_u32 {v(t[0])}, v0, 2, 2")
    a(f"v_lshl_add_u32 {v(t[2])}, {v(t[1])}, 3, {v(t[0])}")
    a(f"v_lshlrev_b32 {v(t[2])}, 8, {v(t[2])}")
    a(f"v_bfe_u32 {v(t[3])}, v0, 4, 1")
    a(f"v_lshlrev_b32 {v(t[3])}, 5, {v(t[3])}")
    a(f"v_lshl_add_u32 {v(t[3])}, {v(t[0])}, 6, {v(t[3])}")
    a(f"v_and_b32 {v(t[4])}, 3, v0")
    a(f"v_lshl_add_u32 {v(t[3])}, {v(t[4])}, 3, {v(t[3])}")
    a(f"s_and_b32 {s(sT0)}, {s(sW)}, 1")
    a(f"s_mul_i32 {s(sT0)}, {s(sT0)}, 112")
    a(f"s_add_u32 {s(sT0)}, {s(sT0)}, {s(sOfs)}")
    for hp in range(2):
        a(f"s_add_u32 {s(sT1)}, {s(sT0)}, {56*hp}")
        a(f"v_add_u32 {v(t[4])}, {s(sT1)}, {v(t[3])}")
        a(f"v_and_b32 {v(t[4])}, 255, {v(t[4])}")
        a(f"v_add_u32 {v(bW[hp])}, {v(t[4])}, {v(t[2])}")
    for tt in range(2):
        for hp in range(2):
            for r in range(16):
                a(f"v_mov_b32 {v(ACC[tt][hp]+r)}, 0")
    a(f"s_mov_b32 {s(sC)}, 0")
    a("s_waitcnt lgkmcnt(0)")
    a(f"s_cmp_ge_u32 {s(sG)}, 8")
    a(f"s_cbranch_scc1 {name}_t1v")
    def reads(i, b):
        for tt in range(2):
            a(f"ds_read_b128 {v(XF[b][tt],4)}, {v(aX[i])} offset:{4096*tt}")
        for hp in range(2):
            for jj in range(2):
                a(f"ds_read_b64_tr_b16 {v(WF[b][hp]+2*jj,2)}, {v(aW[hp])} offset:{16384+(16*i+4*jj)*256}")
    def kloop(lbl, vmode):
        a.label(lbl)
        a(f"s_and_b32 {s(sT0)}, {s(sC)}, {NS-1}")
        a(f"s_lshl_b32 {s(sT0)}, {s(sT0)}, 15")
        for i in range(4):
            a(f"v_add_u32 {v(aX[i])}, {s(sT0)}, {v(bX[i])}")
        for hp in range(2):
            a(f"v_add_u32 {v(aW[hp])}, {s(sT0)}, {v(bW[hp])}")
        a("s_barrier")
        reads(0, 0)
        for i in range(4):
            b = i % 2
            if i < 3:
                reads(i + 1, 1 - b)
                a("s_waitcnt lgkmcnt(6)")
            else:
                a("s_waitcnt lgkmcnt(0)")
            for tt in range(2):
                for hp in range(2):
                    if vmode: a(mfma32(ACC[tt][hp], XF[b][tt], WF[b][hp], ACC[tt][hp]))
                    else:     a(mfma32(ACC[tt][hp], WF[b][hp], XF[b][tt], ACC[tt][hp]))
        a(f"s_add_u32 {s(sC)}, {s(sC)}, 1")
        a(f"s_cmp_lt_u32 {s(sC)}, 7")
        a(f"s_cbranch_scc1 {lbl}")
    def dest():
        a(f"s_lshr_b32 {s(sT0)}, {s(sG)}, 2")
        a(f"s_lshl_b32 {s(sT2)}, {s(sT0)}, 21")
        a(f"s_and_b32 {s(sT0)}, {s(sG)}, 3")
        a(f"s_lshl_b32 {s(sT0)}, {s(sT0)}, 19")
        a(f"s_add_u32 {s(sT2)}, {s(sT2)}, {s(sT0)}")
        a(f"s_and_b32 {s(sT0)}, {s(sW)}, 1")
        a(f"s_lshl_b32 {s(sT0)}, {s(sT0)}, 18")
        a(f"s_add_u32 {s(sT2)}, {s(sT2)}, {s(sT0)}")
        a(f"s_lshl_b32 {s(sT0)}, {s(sTb)}, 13")
        a(f"s_add_u32 {s(sT2)}, {s(sT2)}, {s(sT0)}")
        a(f"s_lshr_b32 {s(sT0)}, {s(sW)}, 1")
        a(f"s_lshl_b32 {s(sT0)}, {s(sT0)}, 12")
        a(f"s_add_u32 {s(sT2)}, {s(sT2)}, {s(sT0)}")
        a(f"s_add_u32 {s(sT1)}, {s(sT2)}, {64*2048}")
    kloop(f"{name}_qk_loop", False)
    stamp(a, 2)
    dest()
    a(f"s_mov_b32 {s(sHi)}, 0\ns_mov_b32 {s(sHi+1)}, -1")
    a(f"s_cmp_lt_u32 {s(sG)}, 4")
    a(f"s_cselect_b32 {s(sScale)}, {f32hex(M.SC)}, 1.0")
    a(f"s_cselect_b32 {s(sPadv)}, 0, 0x3f803f80")
    a("s_waitcnt lgkmcnt(0)")
    a("s_nop 7")
    for hp in range(2):
        for tt in range(2):
            A_ = ACC[tt][hp]
            for r in range(16):
                a(f"v_mul_f32 {v(A_+r)}, {s(sScale)}, {v(A_+r)}")
            for k in range(8):
                a(f"v_cvt_pk_bf16_f32 {v(A_+k)}, {v(A_+2*k)}, {v(A_+2*k+1)}")
            a(f"s_mov_b64 exec, {s(sHi,2)}")
            a(f"v_mov_b32 {v(A_+6)}, {s(sPadv)}")
            a(f"v_mov_b32 {v(A_+7)}, 0")
            a(f"s_mov_b64 exec, -1")
            for t_ in range(2):
                a(f"buffer_store_dwordx4 {v(A_+4*t_,4)}, v1, {s(SWS,4)}, {s(sT1 if hp else sT2)} offen offset:{2048*tt+1024*t_}")
    stamp_end(a, 0, SWS, (sW, 0), t[0])
    a("s_endpgm")
    a.label(f"{name}_t1v")
    kloop(f"{name}_v_loop", True)
    stamp(a, 2)
    dest()
    a(f"s_mov_b32 {s(sMsk)}, 0xf0000000\ns_mov_b32 {s(sMsk+1)}, 0xf0000000")
    a(f"v_and_b32 {v(t[0])}, 31, v0")
    a(f"v_mov_b32 {v(vPad)}, 0")
    a(f"v_mov_b32 {v(t[1])}, 0x3f803f80")
    a(f"v_cmp_eq_u32 vcc, 28, {v(t[0])}")
    a("s_nop 1")
    a(f"v_cndmask_b32 {v(vPad)}, {v(vPad)}, {v(t[1])}, vcc")
    a("s_waitcnt lgkmcnt(0)")
    a("s_nop 7")
    for hp in range(2):
        for tt in range(2):
            A_ = ACC[tt][hp]
            for k in range(8):
                a(f"v_cvt_pk_bf16_f32 {v(A_+k)}, {v(A_+2*k)}, {v(A_+2*k+1)}")
            a(f"s_mov_b64 exec, {s(sMsk,2)}")
            for k in range(8):
                a(f"v_mov_b32 {v(A_+k)}, {v(vPad)}")
            a(f"s_mov_b64 exec, -1")
            for t_ in range(2):
                a(f"buffer_store_dwordx4 {v(A_+4*t_,4)}, v1, {s(SWS,4)}, {s(sT1 if hp else sT2)} offen offset:{2048*tt+1024*t_}")
    stamp_end(a, 0, SWS, (sW, 0), t[0])
    a("s_endpgm")
    hi1 = va.hi
    a.label(f"{name}_bwg")
    sB = sTb
    a(f"s_load_dwordx2 {s(SX,2)}, s[0:1], 24")
    a(f"s_load_dwordx4 s[72:75], s[0:1], 32")
    a(f"s_sub_u32 {s(sB)}, s2, 192")
    a(f"s_cmp_ge_u32 {s(sW)}, 4")
    a(f"s_cbranch_scc1 {name}_t3")
    srd_consts(a, SC_)
    a(f"s_mov_b32 {s(SX+2)}, {2048*896}\ns_mov_b32 {s(SX+3)}, 0x20000")
    va = VAlloc(2)
    RAW = [va(32), va(32)]
    XFc = [va(4) for j in range(8)]
    AC = [[va(4) for cs in range(2)] for j in range(8)]
    FC = [[va(4) for u in range(2)] for cs in range(2)]
    TWv = va(56)
    t = [va(1) for i in range(8)]
    vP = [va(1) for r in range(4)]; vM = [va(1) for r in range(4)]
    aR = [va(1), va(1)]
    sGq, sO = sG, sC
    a(f"s_lshr_b32 {s(sGq)}, {s(sB)}, 2")
    a(f"s_and_b32 {s(sO)}, {s(sB)}, 3")
    a(f"s_lshl_b32 {s(sT0)}, {s(sGq)}, 2")
    a(f"s_add_u32 {s(sT0)}, {s(sT0)}, {s(sW)}")
    a(f"s_lshl_b32 {s(sT0)}, {s(sT0)}, 2")
    a(f"s_add_u32 {s(sT0)}, {s(sT0)}, {s(sO)}")
    a(f"s_mul_i32 {s(sXo)}, {s(sT0)}, {8*896}")
    a(f"s_mul_i32 {s(sSl)}, {s(sW)}, 7168")
    a(f"v_lshrrev_b32 {v(t[0])}, 3, v0")
    a(f"v_and_b32 {v(t[1])}, 7, v0")
    a(f"v_xor_b32 {v(t[1])}, {s(sW)}, {v(t[1])}")
    a(f"v_lshlrev_b32 {v(t[2])}, 7, {v(t[0])}")
    a(f"s_waitcnt lgkmcnt(0)")
    for i in range(7):
        a(f"v_add_u32 {v(t[3])}, {i+1}, {v(t[0])}")
        a(f"v_lshrrev_b32 {v(t[3])}, 3, {v(t[3])}")
        a(f"v_add_u32 {v(t[3])}, {i}, {v(t[3])}")
        a(f"v_and_b32 {v(t[3])}, 1, {v(t[3])}")
        a(f"v_lshlrev_b32 {v(t[3])}, 2, {v(t[3])}")
        a(f"v_xor_b32 {v(t[3])}, {v(t[3])}, {v(t[1])}")
        a(f"v_lshl_add_u32 {v(t[4])}, {v(t[3])}, 4, {v(t[2])}")
        a(f"s_add_u32 m0, {s(sSl)}, {1024*i}")
        a(f"s_add_u32 {s(sT0)}, {s(sXo)}, {1024*i}")
        a(f"buffer_load_dwordx4 {v(t[4])}, {s(SX,4)}, {s(sT0)} offen lds")
    a(f"s_and_b32 {s(sT1)}, {s(sW)}, 1")
    a(f"s_lshl_b32 {s(sT0)}, {s(sT1)}, 12")
    a(f"s_add_u32 {s(sT0)}, {s(sT0)}, {CT_F56}")
    for cs in range(2):
        for u in range(2):
            a(f"buffer_load_dwordx4 {v(FC[cs][u],4)}, v1, {s(SC_,4)}, {s(sT0)} offen offset:{2048*cs+1024*u}")
    a(f"v_lshrrev_b32 {v(t[5])}, 4, v0")
    a(f"v_lshlrev_b32 {v(t[6])}, 8, {v(t[5])}")
    a(f"s_lshl_b32 {s(sT0)}, {s(sT1)}, 10")
    a(f"s_add_u32 {s(sT0)}, {s(sT0)}, {CT_TW448}")
    for rr in range(4):
        b_ = TWv + 14 * rr
        for q in range(3):
            a(f"buffer_load_dwordx4 {v(b_+4*q,4)}, {v(t[6])}, {s(SC_,4)}, {s(sT0)} offen offset:{64*rr+16*q}")
        a(f"buffer_load_dwordx2 {v(b_+12,2)}, {v(t[6])}, {s(SC_,4)}, {s(sT0)} offen offset:{64*rr+48}")
    a(f"v_and_b32 {v(t[0])}, 3, v0")
    a(f"v_bfe_u32 {v(t[1])}, v0, 2, 2")
    a(f"s_lshr_b32 {s(sT2)}, {s(sW)}, 1")
    a(f"s_lshl_b32 {s(sT0)}, {s(sT2)}, 2")
    a(f"v_lshl_add_u32 {v(t[2])}, {v(t[0])}, 3, {v(t[1])}")
    a(f"v_add_u32 {v(t[2])}, {s(sT0)}, {v(t[2])}")
    a(f"v_mul_u32_u24 {v(t[2])}, 896, {v(t[2])}")
    a(f"v_and_b32 {v(t[1])}, 1, {v(t[1])}")
    a(f"v_lshl_add_u32 {v(t[3])}, {v(t[1])}, 2, {v(t[0])}")
    a(f"v_lshlrev_b32 {v(t[3])}, 4, {v(t[3])}")
    a(f"v_lshl_add_u32 {v(aR[0])}, {v(t[5])}, 7, {v(t[2])}")
    a(f"v_min_u32 {v(t[4])}, 2, {v(t[5])}")
    a(f"v_lshl_add_u32 {v(aR[1])}, {v(t[4])}, 7, {v(t[2])}")
    a(f"v_add_u32 {v(aR[1])}, 512, {v(aR[1])}")
    a(f"v_and_b32 {v(t[0])}, 15, v0")
    a(f"v_lshlrev_b32 {v(t[0])}, 2, {v(t[0])}")
    a(f"s_lshl_b32 {s(sT0)}, {s(sT1)}, 4")
    a(f"v_lshl_add_u32 {v(t[1])}, {v(t[5])}, 2, {s(sT0)}")
    a(f"v_mov_b32 {v(t[7])}, 0x7f000000")
    for rr in range(4):
        a(f"v_add_u32 {v(t[2])}, {rr}, {v(t[1])}")
        a(f"v_lshl_add_u32 {v(vP[rr])}, {v(t[2])}, 13, {v(t[0])}")
        a(f"v_sub_u32 {v(t[4])}, 28, {v(t[2])}")
        a(f"v_lshl_add_u32 {v(vM[rr])}, {v(t[4])}, 13, {v(t[0])}")
        a(f"v_cmp_lt_u32 vcc, 28, {v(t[2])}")
        a("s_nop 1")
        a(f"v_cndmask_b32 {v(vP[rr])}, {v(vP[rr])}, {v(t[7])}, vcc")
        a(f"v_cndmask_b32 {v(vM[rr])}, {v(vM[rr])}, {v(t[7])}, vcc")
    a(f"s_lshr_b32 {s(sT0)}, {s(sO)}, 1")
    a(f"s_lshl_b32 {s(sT0)}, {s(sT0)}, 12")
    a(f"s_lshl_b32 {s(sT1)}, {s(sGq)}, 8")
    a(f"s_add_u32 {s(sT0)}, {s(sT0)}, {s(sT1)}")
    a(f"s_and_b32 {s(sT1)}, {s(sO)}, 1")
    a(f"s_lshl_b32 {s(sT1)}, {s(sT1)}, 7")
    a(f"s_add_u32 {s(sT0)}, {s(sT0)}, {s(sT1)}")
    a(f"s_lshl_b32 {s(sT1)}, {s(sT2)}, 6")
    a(f"s_add_u32 {s(sT0)}, {s(sT0)}, {s(sT1)}")
    for tt_ in range(8):
        col = 56 * tt_ if tt_ < 4 else 56 * (8 - tt_) - 28
        a(f"s_add_u32 {s(sTt+tt_)}, {s(sT0)}, {M.WS_X1 + col*8192}")
    a(f"s_mov_b32 {s(sScale)}, {f32hex(0.5**0.5)}")
    a(f"s_mov_b32 {s(sMsk)}, 0x05040100")
    a(f"s_mov_b32 {s(sMsk+1)}, 0x07060302")
    a("s_waitcnt vmcnt(20)")
    stamp(a, 2)
    a("s_barrier")
    stamp(a, 3)
    for u in range(2):
        for e in range(8):
            a(f"v_xor_b32 {v(t[e%2])}, {16*e}, {v(t[3])}")
            a(f"v_add_u32 {v(t[e%2])}, {v(t[e%2])}, {v(aR[u])}")
            a(f"ds_read_b128 {v(RAW[u]+4*e,4)}, {v(t[e%2])}")
    a("s_waitcnt vmcnt(16)")
    for u in range(2):
        a(f"s_waitcnt lgkmcnt({8 if u == 0 else 0})")
        for j in range(8):
            for q in range(4):
                lo = RAW[u] + 8 * q + j // 2; hi = RAW[u] + 8 * q + 4 + j // 2
                a(f"v_perm_b32 {v(XFc[j]+q)}, {v(hi)}, {v(lo)}, {s(sMsk + j % 2)}")
            if j >= 1:
                for cs in range(2):
                    a(mfma16(AC[j-1][cs], FC[cs][u], XFc[j-1], None if u == 0 else AC[j-1][cs]))
        a("s_nop 1")
        for cs in range(2):
            a(mfma16(AC[7][cs], FC[cs][u], XFc[7], None if u == 0 else AC[7][cs]))
    a("s_waitcnt vmcnt(0)")
    a("s_nop 7")
    stamp(a, 4)
    for rr in range(4):
        pool = Pool([RAW[0] + i for i in range(12)])
        for j in range(1, 8):
            tw = TWv + 14 * rr + 2 * (j - 1)
            cmul(a, AC[j][0] + rr, AC[j][1] + rr, AC[j][0] + rr, AC[j][1] + rr, tw, tw + 1, t[2 * (j % 2)])
        X = dft8(a, pool, [((AC[j][0] + rr, 1), (AC[j][1] + rr, 1)) for j in range(8)], -1, sScale)
        for tt_ in range(8):
            re, im = X[tt_]
            if tt_ >= 4: im = neg(im)
            o_ = RAW[1] + 8 * rr + tt_
            a(f"v_cvt_pk_bf16_f32 {v(o_)}, {sv(re)}, {sv(im)}")
            a(f"buffer_store_dword {v(o_)}, {v(vP[rr] if tt_ < 4 else vM[rr])}, {s(SWS,4)}, {s(sTt+tt_)} offen")
    stamp_end(a, 0, SWS, (sW, 0), t[0])
    a("s_endpgm")
    hi2 = va.hi
    a.label(f"{name}_t3")
    a(f"s_sub_u32 {s(sW)}, {s(sW)}, 4")
    a(f"s_lshr_b32 {s(sG)}, {s(sB)}, 3")
    a(f"s_and_b32 {s(sC)}, {s(sB)}, 7")
    a(f"s_lshl_b32 {s(sT0)}, {s(sG)}, 2")
    a(f"s_add_u32 {s(sT0)}, {s(sT0)}, {s(sW)}")
    a(f"s_lshl_b32 {s(sT0)}, {s(sT0)}, 3")
    a(f"s_add_u32 {s(sT0)}, {s(sT0)}, {s(sC)}")
    a(f"s_mul_i32 {s(sXo)}, {s(sT0)}, 3600")
    a(f"s_lshl_b32 {s(sSl)}, {s(sW)}, 12")
    a(f"s_waitcnt lgkmcnt(0)")
    a(f"s_mov_b32 {s(SWQ)}, s72\ns_mov_b32 {s(SWQ+1)}, s73\ns_mov_b32 {s(SWQ+2)}, {2048*450}\ns_mov_b32 {s(SWQ+3)}, 0x20000")
    a(f"s_mov_b32 {s(SWI)}, s74\ns_mov_b32 {s(SWI+1)}, s75\ns_mov_b32 {s(SWI+2)}, {2048*450}\ns_mov_b32 {s(SWI+3)}, 0x20000")
    for arr in range(2):
        a(f"s_add_u32 m0, {s(sSl)}, {32768 + 16384*arr}")
        a("s_nop 0")
        for i in range(4):
            a(f"buffer_load_dwordx4 v1, {s(SWI if arr else SWQ,4)}, {s(sXo)} offen offset:{1024*i} lds")
    a(f"v_and_b32 v2, 7, v0")
    a(f"v_lshrrev_b32 v3, 3, v0")
    a(f"s_lshl_b32 {s(sT0)}, {s(sW)}, 3")
    a(f"v_add_u32 v3, {s(sT0)}, v3")
    a(f"v_mul_u32_u24 v4, 450, v2")
    a(f"v_lshl_add_u32 v4, v3, 1, v4")
    a(f"v_lshlrev_b32 v5, 13, v3")
    a(f"v_lshl_add_u32 v5, v2, 4, v5")
    a(f"s_lshl_b32 {s(sT0)}, {s(sG)}, 10")
    a(f"s_lshl_b32 {s(sT1)}, {s(sC)}, 7")
    a(f"s_add_u32 {s(sT0)}, {s(sT0)}, {s(sT1)}")
    a(f"s_add_u32 {s(sT0)}, {s(sT0)}, {M.WS_WT}")
    a("s_waitcnt vmcnt(0)")
    a("s_barrier")
    D0 = 8
    def t3_reads(it):
        for r in range(4):
            a(f"ds_read_u16 {v(D0+4*it+r)}, v4 offset:{32768+4096*r+64*it}")
            a(f"ds_read_u16 {v(D0+32+4*(it%2)+r)}, v4 offset:{32768+16384+4096*r+64*it}")
    t3_reads(0)
    for it in range(8):
        if it < 7:
            t3_reads(it + 1)
            a("s_waitcnt lgkmcnt(8)")
        else:
            a("s_waitcnt lgkmcnt(0)")
        for r in range(4):
            a(f"v_lshl_or_b32 {v(D0+4*it+r)}, {v(D0+32+4*(it%2)+r)}, 16, {v(D0+4*it+r)}")
        a(f"buffer_store_dwordx4 {v(D0+4*it,4)}, v5, {s(SWS,4)}, {s(sT0)} offen")
        a(f"s_add_u32 {s(sT0)}, {s(sT0)}, {32*8192}")
    stamp_end(a, 0, SWS, (sW, 4), 2)
    a.label(f"{name}_end")
    a("s_endpgm")
    nv = max(hi1, hi2, 48)
    return a.text() + kernel_desc(name, nv, 100), nv
```

```python
from asmlib import *
import model as M

CT_F64 = 0
CT_F32 = 32768
CT_T2048 = CT_F32 + 6144
CT_F56 = CT_T2048 + 16384
CT_TW448 = CT_F56 + 8192
CT_G56 = CT_TW448 + 2048
CT_SIZE = CT_G56 + 8192

def const_table():
    parts = [M.bf16_bits(M.const_F64()).tobytes(), M.bf16_bits(M.const_F32()).tobytes(), M.const_T2048().tobytes(),
             M.bf16_bits(M.const_F56()).tobytes(), M.const_TW448().tobytes(), M.bf16_bits(M.const_G56()).tobytes()]
    raw = b"".join(parts)
    assert len(raw) == CT_SIZE
    return raw

LDS_RING = 0
LDS_FFT = 131072
K2_LDS = LDS_FFT + 32 * 272

def srd_consts(a, sd):
    a(f"s_getpc_b64 {s(sd,2)}")
    a(f"s_add_u32 {s(sd)}, {s(sd)}, ctab@rel32@lo+4")
    a(f"s_addc_u32 {s(sd+1)}, {s(sd+1)}, ctab@rel32@hi+12")
    a(f"s_mov_b32 {s(sd+2)}, {CT_SIZE}")
    a(f"s_mov_b32 {s(sd+3)}, 0x20000")

def cmul(a, outr, outi, ar, ai, br, bi, t, conj_out=False):
    a(f"v_mul_f32 {v(t)}, {v(ai)}, {v(bi)}")
    a(f"v_mul_f32 {v(t+1)}, {v(ai)}, {v(br)}")
    if not conj_out:
        a(f"v_fma_f32 {v(outi)}, {v(ar)}, {v(bi)}, {v(t+1)}")
    else:
        a(f"v_fma_f32 {v(outi)}, -{v(ar)}, {v(bi)}, -{v(t+1)}")
    a(f"v_fma_f32 {v(outr)}, {v(ar)}, {v(br)}, -{v(t)}")

import os
INSTR = os.environ.get("INSTR", "0") == "1"
SB = 80
def stamp(a, idx):
    if INSTR:
        a(f"s_memtime s[96:97]")
        a(f"s_waitcnt lgkmcnt(0)")
        a(f"s_mov_b32 s{SB+idx}, s96")
def stamp_rt(a, idx):
    if INSTR:
        a(f"s_memrealtime s[96:97]")
        a(f"s_waitcnt lgkmcnt(0)")
        a(f"s_mov_b32 s{SB+idx}, s96")
def stamp_begin(a):
    if INSTR:
        for i in range(16):
            a(f"s_mov_b32 s{SB+i}, 0")
        stamp_rt(a, 0); stamp(a, 1)
def stamp_end(a, kidx, SRD, wave_expr, vt):
    if INSTR:
        a("s_waitcnt vmcnt(0)")
        stamp(a, 14); stamp_rt(a, 15)
        a(f"s_lshl_b32 s96, s2, 9")
        a(f"s_add_u32 s97, {s(wave_expr[0])}, {wave_expr[1]}")
        a(f"s_lshl_b32 s97, s97, 6")
        a(f"s_add_u32 s96, s96, s97")
        a(f"s_add_u32 s96, s96, {M.WS_DBG + kidx * 131072}")
        a(f"v_mov_b32 {v(vt)}, 0")
        for i in range(16):
            a(f"v_mov_b32 {v(vt+1)}, s{SB+i}")
            a(f"buffer_store_dword {v(vt+1)}, {v(vt)}, {s(SRD,4)}, s96 offen offset:{4*i}")
            a("s_nop 1")
def dump_stamps(*a): pass

def gen_k2(name="k2_kernel"):
    a = Asm()
    a.raw(f".globl {name}\n.p2align 8\n.type {name},@function\n{name}:")
    SRD = 8; SRDC = 12
    sW, sX, sSlot, sHead, sQb, sCol = 16, 17, 18, 19, 20, 21
    sK, sV, sIt, sPass, sT0, sT1 = 22, 23, 24, 25, 26, 27
    sHi = 28
    sK0, sV0, sJ, sM, sDK = 30, 31, 32, 33, 34
    a(f"s_cmp_ge_u32 s2, 256")
    a(f"s_cbranch_scc1 {name}_end")
    a(f"s_load_dwordx2 {s(SRD,2)}, s[0:1], 64")
    stamp_begin(a)
    a(f"v_lshrrev_b32 v1, 6, v0")
    a(f"v_and_b32 v0, 63, v0")
    a(f"s_and_b32 {s(sX)}, s2, 7")
    a(f"v_readfirstlane_b32 {s(sW)}, v1")
    a(f"s_lshr_b32 {s(sSlot)}, s2, 3")
    a(f"v_lshlrev_b32 v1, 4, v0")
    a(f"s_mov_b32 {s(SRD+2)}, {M.WS_END}")
    a(f"s_mov_b32 {s(SRD+3)}, 0x20000")
    a(f"s_lshr_b32 {s(sHead)}, {s(sSlot)}, 4")
    a(f"s_lshl_b32 {s(sT0)}, {s(sX)}, 1")
    a(f"s_add_u32 {s(sHead)}, {s(sHead)}, {s(sT0)}")
    a(f"s_lshl_b32 {s(sT0)}, {s(sHead)}, 17")
    a(f"s_add_u32 {s(sK0)}, {s(sT0)}, {M.WS_KF}")
    a(f"s_cmp_ge_u32 {s(sW)}, 4")
    a(f"s_cbranch_scc1 {name}_fft")
    va = VAlloc(2)
    Q = [va(4), va(4)]
    O = va(16)
    S_ = [va(16), va(16)]
    P_ = [va(8), va(8)]
    Kb = [va(8), va(8)]
    Vb = [va(8), va(8)]
    Cc = va(1); Mx = va(1); T = [va(1) for i in range(4)]
    vA = va(1); vB = va(1)
    def ld(dst, so, off):
        a(f"buffer_load_dwordx4 {v(dst,4)}, v1, {s(SRD,4)}, {s(so)} offen offset:{off}")
    a(f"s_and_b32 {s(sQb)}, {s(sSlot)}, 15")
    a(f"s_lshl_b32 {s(sQb)}, {s(sQb)}, 2")
    a(f"s_add_u32 {s(sQb)}, {s(sQb)}, {s(sW)}")
    a(f"s_lshl_b32 {s(sT1)}, {s(sQb)}, 11")
    a(f"s_add_u32 {s(sT0)}, {s(sT0)}, {s(sT1)}")
    a(f"s_waitcnt lgkmcnt(0)")
    for t in range(2): ld(Kb[0] + 4 * t, sK0, 1024 * t)
    for t in range(2): ld(Q[t], sT0, 1024 * t)
    a(f"s_mov_b32 {s(sHi)}, 0")
    a(f"s_mov_b32 {s(sHi+1)}, -1")
    a(f"v_mov_b32 {v(Mx)}, 0xff800000")
    for r in range(16): a(f"v_mov_b32 {v(O+r)}, 0")
    for r in range(8): a(f"v_mov_b32 {v(P_[1]+r)}, 0")
    for r in range(8): a(f"v_mov_b32 {v(Vb[1]+r)}, 0")
    if os.environ.get("XNORD"):
        for r in range(8): a(f"v_mov_b32 {v(Vb[0]+r)}, 0")
    a(f"v_mov_b32 {v(vA)}, v1")
    a(f"v_add_u32 {v(vB)}, 0x8000, v1")
    a(f"s_lshl_b32 {s(sJ)}, {s(sQb)}, 4")
    a(f"s_add_u32 {s(sJ)}, {s(sJ)}, {s(sHead)}")
    a(f"s_lshl_b32 {s(sJ)}, {s(sJ)}, 11")
    a(f"s_add_u32 {s(sJ)}, {s(sJ)}, {M.WS_OF}")
    a(f"s_mov_b32 {s(sIt)}, 0")
    a("s_waitcnt vmcnt(0)")
    stamp(a, 2)
    def maxstep():
        a(mfma32(S_[1], Kb[0], Q[0], None))
        a(mfma32(S_[1], Kb[0] + 4, Q[1], S_[1]))
        a("s_nop 7\ns_nop 3")
        for r in range(0, 16, 2):
            a(f"v_max3_f32 {v(Mx)}, {v(S_[1]+r)}, {v(S_[1]+r+1)}, {v(Mx)}")
    def finalize():
        a(f"v_mov_b32 {v(T[0])}, {v(Mx)}\nv_mov_b32 {v(T[1])}, {v(Mx)}\ns_nop 1")
        a(f"v_permlane32_swap_b32 {v(T[0])}, {v(T[1])}\ns_nop 0")
        a(f"v_max_f32 {v(Mx)}, {v(T[0])}, {v(T[1])}")
        a(f"v_cvt_pk_bf16_f32 {v(T[0])}, {v(Mx)}, {v(Mx)}")
        a(f"v_and_b32 {v(T[0])}, 0xffff0000, {v(T[0])}")
        a(f"v_sub_f32 {v(T[1])}, {v(Mx)}, {v(T[0])}")
        a(f"s_mov_b64 exec, {s(sHi,2)}")
        a(f"v_cvt_pk_bf16_f32 {v(Q[1]+2)}, -{v(T[0])}, -{v(T[1])}")
        a(f"s_mov_b64 exec, -1")
    maxstep()
    finalize()
    a(mfma32(S_[0], Kb[0], Q[0], None))
    a("s_barrier")
    a(mfma32(S_[0], Kb[0] + 4, Q[1], S_[0]))
    for t in range(2):
        a(f"ds_read_b128 {v(Kb[1]+4*t,4)}, {v(vA)} offset:{4096+1024*t}")
    a("s_nop 7")
    a("s_waitcnt lgkmcnt(0)")
    stamp(a, 3)
    a.raw(".p2align 6")
    a.label(f"{name}_loop")
    for u in range(8):
        p = u % 2; q = 1 - p
        sb = S_[p]; pb = P_[p]; sn = S_[q]; pp = P_[q]
        e = lambda r: a(f"v_exp_f32 {v(sb+r)}, {v(sb+r)}")
        c = lambda k: a(f"v_cvt_pk_bf16_f32 {v(pb+k)}, {v(sb+2*k)}, {v(sb+2*k+1)}")
        def rdK(t):
            if os.environ.get("XNORD"): return
            if u < 6: a(f"ds_read_b128 {v(Kb[p]+4*t,4)}, {v(vA)} offset:{4096*(u+2)+1024*t}")
            else:     a(f"ds_read_b128 {v(Kb[p]+4*t,4)}, {v(vB)} offset:{4096*(u-6)+1024*t}")
        def rdV(t):
            if os.environ.get("XNORD"): return
            a(f"ds_read_b128 {v(Vb[p]+4*t,4)}, {v(vA)} offset:{4096*u+2048+1024*t}")
        a("s_waitcnt lgkmcnt(2)")
        a(mfma32(sn, Kb[q], Q[0], None))
        if u == 6: a("s_barrier")
        rdK(0)
        e(0); e(1); e(2); e(3)
        a(mfma32(sn, Kb[q] + 4, Q[1], sn))
        rdK(1)
        e(4); e(5); c(0); e(6); e(7); c(1)
        a("s_waitcnt lgkmcnt(2)")
        a(mfma32(O, Vb[q], pp, O))
        rdV(0)
        e(8); e(9); c(2); e(10); e(11); c(3)
        a(mfma32(O, Vb[q] + 4, pp + 4, O))
        rdV(1)
        e(12)
        if u == 7:
            a(f"s_add_u32 {s(sIt)}, {s(sIt)}, 1")
        e(13); c(4); e(14)
        if u == 7:
            a(f"s_cmp_lt_u32 {s(sIt)}, 8")
        e(15)
        c(5); c(6); c(7)
        if u == 7:
            a(f"v_mov_b32 {v(vA)}, {v(vB)}")
            a(f"v_add_u32 {v(vB)}, 0x8000, {v(vB)}")
            a(f"v_and_b32 {v(vB)}, 0x1ffff, {v(vB)}")
    a(f"s_cbranch_scc1 {name}_loop")
    stamp(a, 4)
    a("s_waitcnt lgkmcnt(0)")
    a(mfma32(O, Vb[1], P_[1], O))
    a(mfma32(O, Vb[1] + 4, P_[1] + 4, O))
    a(f"s_mov_b32 {s(sT1)}, 0x5d800000")
    a("s_nop 7\ns_nop 3")
    a(f"v_cmp_nge_f32 vcc, {s(sT1)}, {v(O+12)}")
    a(f"v_mov_b32 {v(T[0])}, {v(O+12)}")
    a(f"v_mov_b32 {v(T[1])}, {v(O+12)}")
    a(f"s_cmp_lg_u32 vcc_hi, 0")
    a(f"s_cbranch_scc1 {name}_redo")
    a.label(f"{name}_epi")
    a(f"v_permlane32_swap_b32 {v(T[0])}, {v(T[1])}")
    a("s_nop 1")
    a(f"v_rcp_f32 {v(T[2])}, {v(T[1])}")
    a("s_nop 0")
    assert T[2] % 2 == 0
    for r in range(0, 16, 2):
        a(f"v_pk_mul_f32 {v(O+r,2)}, {v(O+r,2)}, {v(T[2],2)} op_sel_hi:[1,0]")
    for k in range(8):
        a(f"v_cvt_pk_bf16_f32 {v(S_[0]+k)}, {v(O+2*k)}, {v(O+2*k+1)}")
    a(f"s_mov_b64 exec, {s(sHi,2)}")
    a(f"v_mov_b32 {v(S_[0]+6)}, 0")
    a(f"v_mov_b32 {v(S_[0]+7)}, 0")
    a(f"s_mov_b64 exec, -1")
    a(f"buffer_store_dwordx4 {v(S_[0],4)}, v1, {s(SRD,4)}, {s(sJ)} offen")
    a(f"buffer_store_dwordx4 {v(S_[0]+4,4)}, v1, {s(SRD,4)}, {s(sJ)} offen offset:1024")
    stamp_end(a, 1, SRD, (sW, 0), T[0])
    a("s_endpgm")
    a.label(f"{name}_redo")
    a(f"s_mov_b64 exec, {s(sHi,2)}")
    a(f"v_mov_b32 {v(Q[1]+2)}, 0")
    a(f"s_mov_b64 exec, -1")
    a(f"s_mov_b32 {s(sK)}, {s(sK0)}")
    a(f"s_mov_b32 {s(sIt)}, 0")
    a.label(f"{name}_redo1")
    for t in range(2): ld(Kb[0] + 4 * t, sK, 1024 * t)
    a("s_waitcnt vmcnt(0)")
    maxstep()
    a(f"s_add_u32 {s(sK)}, {s(sK)}, 2048")
    a(f"s_add_u32 {s(sIt)}, {s(sIt)}, 1")
    a(f"s_cmp_lt_u32 {s(sIt)}, 64")
    a(f"s_cbranch_scc1 {name}_redo1")
    finalize()
    for r in range(16): a(f"v_mov_b32 {v(O+r)}, 0")
    a(f"s_mov_b32 {s(sK)}, {s(sK0)}")
    a(f"s_mov_b32 {s(sIt)}, 0")
    a.label(f"{name}_redo2")
    a(f"s_add_u32 {s(sV)}, {s(sK)}, {M.WS_VF - M.WS_KF}")
    for t in range(2): ld(Kb[0] + 4 * t, sK, 1024 * t)
    for t in range(2): ld(Vb[0] + 4 * t, sV, 1024 * t)
    a("s_waitcnt vmcnt(0)")
    a(mfma32(S_[0], Kb[0], Q[0], None))
    a(mfma32(S_[0], Kb[0] + 4, Q[1], S_[0]))
    a("s_nop 7\ns_nop 3")
    for r in range(16): a(f"v_exp_f32 {v(S_[0]+r)}, {v(S_[0]+r)}")
    a("s_nop 0")
    for k in range(8): a(f"v_cvt_pk_bf16_f32 {v(P_[0]+k)}, {v(S_[0]+2*k)}, {v(S_[0]+2*k+1)}")
    a("s_nop 1")
    a(mfma32(O, Vb[0], P_[0], O))
    a(mfma32(O, Vb[0] + 4, P_[0] + 4, O))
    a(f"s_add_u32 {s(sK)}, {s(sK)}, 2048")
    a(f"s_add_u32 {s(sIt)}, {s(sIt)}, 1")
    a(f"s_cmp_lt_u32 {s(sIt)}, 64")
    a("s_nop 7")
    a(f"s_cbranch_scc1 {name}_redo2")
    a("s_nop 7")
    a(f"v_mov_b32 {v(T[0])}, {v(O+12)}")
    a(f"v_mov_b32 {v(T[1])}, {v(O+12)}")
    a("s_nop 1")
    a(f"s_branch {name}_epi")
    attn_hi = va.hi
    a.label(f"{name}_fft")
    a(f"s_sub_u32 {s(sW)}, {s(sW)}, 4")
    a(f"s_lshl_b32 {s(sCol)}, {s(sX)}, 5")
    a(f"s_add_u32 {s(sCol)}, {s(sCol)}, {s(sSlot)}")
    a(f"s_lshl_b32 {s(sT0)}, {s(sW)}, 12")
    a(f"s_add_u32 {s(sDK)}, {s(sK0)}, {s(sT0)}")
    a(f"s_lshl_b32 {s(sM)}, {s(sW)}, 13")
    q_ = []
    def epoch(e_):
        for tl in range(2):
            lds = (e_ % 4) * 32768 + tl * 4096
            src = e_ * 16384 + tl * 2048
            a(f"s_add_u32 m0, {s(sM)}, {lds}")
            a(f"s_add_u32 {s(sT0)}, {s(sDK)}, {src}")
            a(f"buffer_load_dwordx4 v1, {s(SRD,4)}, {s(sT0)} offen lds")
            a(f"buffer_load_dwordx4 v1, {s(SRD,4)}, {s(sT0)} offen offset:1024 lds")
            a(f"s_add_u32 m0, {s(sM)}, {lds + 2048}")
            a(f"s_add_u32 {s(sT0)}, {s(sDK)}, {src + M.WS_VF - M.WS_KF}")
            a(f"buffer_load_dwordx4 v1, {s(SRD,4)}, {s(sT0)} offen lds")
            a(f"buffer_load_dwordx4 v1, {s(SRD,4)}, {s(sT0)} offen offset:1024 lds")
            q_.extend([f"E{e_}"] * 4)
    def wait_for(tag):
        last = max(i for i, t_ in enumerate(q_) if t_ == tag)
        n = len(q_) - 1 - last
        assert n <= 63
        a(f"s_waitcnt vmcnt({n})")
    a(f"s_waitcnt lgkmcnt(0)")
    epoch(0); epoch(1)
    a(f"s_cmp_ge_u32 {s(sCol)}, 225")
    a(f"s_cbranch_scc1 {name}_dma_only")
    q_fork = list(q_)
    a("s_setprio 2")
    srd_consts(a, SRDC)
    va = VAlloc(2)
    DA = [[va(4) for ks in range(4)] for mt in range(2)]
    F64 = [[va(4) for ks in range(4)] for c in range(2)]
    F32 = [[va(4) for k in range(3)] for mt in range(2)]
    TW = va(16); Wv = [va(4), va(4)]
    AC = [[va(4) for c in range(2)] for mt in range(2)]
    BF = [va(4), va(4)]
    T = va(4); WR = va(1); WI = va(1)
    vL16 = va(1); vG = va(1); vA = va(1); vB = va(1); vC = va(1); vD = va(1)
    def fl(txt, tag):
        a(txt); q_.append(tag)
    a(f"v_and_b32 {v(vL16)}, 15, v0")
    a(f"v_lshrrev_b32 {v(vG)}, 4, v0")
    a(f"s_lshl_b32 {s(sIt)}, {s(sCol)}, 13")
    a(f"s_add_u32 {s(sT1)}, {s(sIt)}, {M.WS_X1}")
    a(f"s_add_u32 {s(sJ)}, {s(sT1)}, 4096")
    a(f"s_lshl_b32 {s(sK)}, {s(sW)}, 13")
    a(f"s_add_u32 {s(sV)}, {s(sK)}, 4096")
    a(f"v_lshlrev_b32 {v(vA)}, 10, {v(vG)}")
    a(f"v_lshl_add_u32 {v(vA)}, {v(vL16)}, 4, {v(vA)}")
    a(f"v_mul_u32_u24 {v(vB)}, {4*272}, {v(vG)}")
    a(f"v_lshl_add_u32 {v(vB)}, {v(vL16)}, 2, {v(vB)}")
    a(f"s_lshl_b32 {s(sT0)}, {s(sW)}, 6")
    a(f"s_add_u32 {s(sT0)}, {s(sT0)}, {LDS_FFT}")
    a(f"v_add_u32 {v(vB)}, {s(sT0)}, {v(vB)}")
    a(f"v_mul_u32_u24 {v(vC)}, 272, {v(vL16)}")
    a(f"v_lshl_add_u32 {v(vC)}, {v(vG)}, 4, {v(vC)}")
    a(f"v_add_u32 {v(vC)}, {LDS_FFT}, {v(vC)}")
    a(f"v_lshlrev_b32 {v(vD)}, 2, {v(vL16)}")
    a(f"v_lshrrev_b32 {v(T)}, 1, {v(vG)}")
    a(f"v_add_u32 {v(vD)}, {v(vD)}, {v(T)}")
    a(f"v_mul_u32_u24 {v(vD)}, {M.ZSTRIDE}, {v(vD)}")
    a(f"v_and_b32 {v(T)}, 1, {v(vG)}")
    a(f"v_lshl_add_u32 {v(vD)}, {v(T)}, 4, {v(vD)}")
    def s1_loads(ks):
        fl(f"buffer_load_dwordx4 {v(DA[0][ks],4)}, v1, {s(SRD,4)}, {s(sT1)} offen offset:{1024*ks}", f"S1_{ks}")
        fl(f"buffer_load_dwordx4 {v(DA[1][ks],4)}, v1, {s(SRD,4)}, {s(sJ)} offen offset:{1024*ks}", f"S1_{ks}")
        fl(f"buffer_load_dwordx4 {v(F64[0][ks],4)}, v1, {s(SRDC,4)}, {s(sK)} offen offset:{1024*ks}", f"S1_{ks}")
        fl(f"buffer_load_dwordx4 {v(F64[1][ks],4)}, v1, {s(SRDC,4)}, {s(sV)} offen offset:{1024*ks}", f"S1_{ks}")
    wait_for("E0"); a("s_barrier")
    epoch(2); s1_loads(0); s1_loads(1)
    wait_for("E1"); a("s_barrier")
    epoch(3); s1_loads(2); s1_loads(3)
    a(f"s_lshl_b32 {s(sK)}, {s(sW)}, 12")
    a(f"s_add_u32 {s(sK)}, {s(sK)}, {CT_T2048}")
    for q in range(4):
        fl(f"buffer_load_dwordx4 {v(TW+4*q,4)}, v1, {s(SRDC,4)}, {s(sK)} offen offset:{1024*q}", "TW")
    wait_for("E2"); a("s_barrier")
    epoch(4)
    a(f"s_mov_b32 {s(sK)}, {CT_F32}")
    a(f"s_mov_b32 {s(sV)}, {CT_F32+3072}")
    for k in range(3):
        fl(f"buffer_load_dwordx4 {v(F32[0][k],4)}, v1, {s(SRDC,4)}, {s(sK)} offen offset:{1024*k}", "F32")
        fl(f"buffer_load_dwordx4 {v(F32[1][k],4)}, v1, {s(SRDC,4)}, {s(sV)} offen offset:{1024*k}", "F32")
    a(f"s_lshl_b32 {s(sK)}, {s(sW)}, 8")
    a(f"s_add_u32 {s(sK)}, {s(sK)}, {s(sIt)}")
    a(f"s_add_u32 {s(sK)}, {s(sK)}, {M.WS_WT}")
    a(f"s_add_u32 {s(sV)}, {s(sK)}, 4096")
    fl(f"buffer_load_dwordx4 {v(Wv[0],4)}, {v(vA)}, {s(SRD,4)}, {s(sK)} offen", "W")
    fl(f"buffer_load_dwordx4 {v(Wv[1],4)}, {v(vA)}, {s(SRD,4)}, {s(sV)} offen", "W")
    a(f"s_mul_i32 {s(sK)}, {s(sW)}, {64*M.ZSTRIDE}")
    a(f"s_lshl_b32 {s(sT1)}, {s(sCol)}, 5")
    a(f"s_add_u32 {s(sK)}, {s(sK)}, {s(sT1)}")
    a(f"s_add_u32 {s(sK)}, {s(sK)}, {M.WS_ZB}")
    a(f"s_add_u32 {s(sV)}, {s(sK)}, {2*M.ZSTRIDE}")
    def stage64(waits):
        for ks in range(4):
            waits(ks)
            for mt in range(2):
                for c in range(2):
                    a(mfma16(AC[mt][c], DA[mt][ks], F64[c][ks], None if ks == 0 else AC[mt][c]))
        a("s_nop 7")
    def twiddle():
        for mt in range(2):
            for r in range(4):
                tw = TW + 4 * (2 * mt + r // 2) + 2 * (r % 2)
                cmul(a, AC[mt][0] + r, AC[mt][1] + r, AC[mt][0] + r, AC[mt][1] + r, tw, tw + 1, T + 2 * (r % 2))
    def pack_sep():
        for c in range(2):
            for mt in range(2):
                for h in range(2):
                    a(f"v_cvt_pk_bf16_f32 {v(BF[c]+2*mt+h)}, {v(AC[mt][c]+2*h)}, {v(AC[mt][c]+2*h+1)}")
        a("s_nop 1")
    def stage32():
        for mt in range(2):
            a(mfma16(AC[mt][0], F32[mt][0], BF[0], None))
            a(mfma16(AC[mt][1], F32[mt][2], BF[0], None))
        for mt in range(2):
            a(mfma16(AC[mt][0], F32[mt][1], BF[1], AC[mt][0]))
            a(mfma16(AC[mt][1], F32[mt][0], BF[1], AC[mt][1]))
        a("s_nop 7")
    stamp(a, 2)
    wait_for("TW")
    stage64(lambda ks: None)
    twiddle()
    pack_sep()
    stamp(a, 3)
    a("s_barrier")
    epoch(5)
    stamp(a, 4)
    wait_for("W")
    stage32()
    for mt in range(2):
        for r in range(4):
            a(f"v_lshlrev_b32 {v(WR)}, 16, {v(Wv[mt]+r)}")
            a(f"v_and_b32 {v(WI)}, 0xffff0000, {v(Wv[mt]+r)}")
            cmul(a, AC[mt][0] + r, AC[mt][1] + r, AC[mt][0] + r, AC[mt][1] + r, WR, WI, T + 2 * (r % 2), conj_out=True)
    pack_sep()
    stage32()
    twiddle()
    for mt in range(2):
        for r in range(4):
            a(f"v_cvt_pk_bf16_f32 {v(BF[mt]+r)}, {v(AC[mt][0]+r)}, {v(AC[mt][1]+r)}")
    for mt in range(2):
        for r in range(4):
            a(f"ds_write_b32 {v(vB)}, {v(BF[mt]+r)} offset:{(16*mt+r)*272}")
    a("s_waitcnt lgkmcnt(0)")
    stamp(a, 5)
    a("s_barrier")
    epoch(6)
    stamp(a, 6)
    for ks in range(4):
        for mt in range(2):
            a(f"ds_read_b128 {v(DA[mt][ks],4)}, {v(vC)} offset:{16*mt*272+64*ks}")
    stage64(lambda ks: a(f"s_waitcnt lgkmcnt({2*(3-ks)})"))
    for mt in range(2):
        for r in range(4):
            a(f"v_cvt_pk_bf16_f32 {v(BF[mt]+r)}, {v(AC[mt][0]+r)}, {v(AC[mt][1]+r)}")
    fl(f"buffer_store_dwordx4 {v(BF[0],4)}, {v(vD)}, {s(SRD,4)}, {s(sK)} offen", "ST")
    fl(f"buffer_store_dwordx4 {v(BF[1],4)}, {v(vD)}, {s(SRD,4)}, {s(sV)} offen", "ST")
    stamp(a, 7)
    def tail(first):
        for e_ in range(first, 8):
            wait_for(f"E{e_}"); a("s_barrier")
            if e_ >= 2 and e_ + 2 < 8: epoch(e_ + 2)
    tail(5)
    stamp_end(a, 1, SRD, (sW, 4), T)
    a("s_endpgm")
    a.label(f"{name}_dma_only")
    q_[:] = q_fork
    wait_for("E0"); a("s_barrier")
    epoch(2)
    wait_for("E1"); a("s_barrier")
    epoch(3)
    tail(2)
    a.label(f"{name}_end")
    a("s_endpgm")
    nv = max(attn_hi, va.hi)
    return a.text() + kernel_desc(name, nv, 100), nv
```

```python
from asmlib import *
import model as M
from k2 import CT_G56, CT_TW448, srd_consts, stamp, stamp_rt, stamp_begin, stamp_end
from dft8 import *

L_WO = 0
L_O = 61440
L_EX = L_O + 65536
L_TR = L_EX + 9472
K3_LDS = L_TR + 4 * 2560
PRE = 4

def gen_k3(name="k3_kernel"):
    a = Asm()
    a.raw(f".globl {name}\n.p2align 8\n.type {name},@function\n{name}:")
    SWO, SWS, SC_, SOUT = 8, 12, 16, 20
    sW, sXc, sSlot, sTb, sCg = 28, 29, 30, 31, 32
    sT0, sT1, sT2, sC, sOo, sWo, sMo, sMw, sK, sZ = 33, 34, 35, 36, 37, 38, 39, 48, 49, 50
    a(f"s_cmp_ge_u32 s2, 256")
    a(f"s_cbranch_scc1 {name}_end")
    stamp_begin(a)
    a(f"s_load_dwordx2 {s(SWO,2)}, s[0:1], 16")
    a(f"s_load_dwordx2 {s(SOUT,2)}, s[0:1], 48")
    a(f"s_load_dwordx2 {s(SWS,2)}, s[0:1], 64")
    a(f"v_lshrrev_b32 v1, 6, v0")
    a(f"v_and_b32 v0, 63, v0")
    a(f"s_and_b32 {s(sXc)}, s2, 7")
    a(f"v_readfirstlane_b32 {s(sW)}, v1")
    a(f"s_lshr_b32 {s(sSlot)}, s2, 3")
    a(f"v_lshlrev_b32 v1, 4, v0")
    a(f"s_mov_b32 {s(SWS+2)}, {M.WS_END}\ns_mov_b32 {s(SWS+3)}, 0x20000")
    a(f"s_mov_b32 {s(SWO+2)}, {448*896}\ns_mov_b32 {s(SWO+3)}, 0x20000")
    a(f"s_mov_b32 {s(SOUT+2)}, {2048*1792}\ns_mov_b32 {s(SOUT+3)}, 0x20000")
    a(f"s_mul_i32 {s(sT0)}, {s(sSlot)}, 37")
    a(f"s_lshr_b32 {s(sT0)}, {s(sT0)}, 8")
    a(f"s_mul_i32 {s(sT1)}, {s(sT0)}, 7")
    a(f"s_sub_u32 {s(sCg)}, {s(sSlot)}, {s(sT1)}")
    a(f"s_lshl_b32 {s(sTb)}, {s(sXc)}, 2")
    a(f"s_add_u32 {s(sTb)}, {s(sTb)}, {s(sT0)}")
    a(f"s_cmp_lt_u32 {s(sW)}, 4")
    a(f"s_cbranch_scc1 {name}_c")
    a(f"s_cmp_ge_u32 {s(sSlot)}, 28")
    a(f"s_cbranch_scc1 {name}_end")
    a(f"s_sub_u32 {s(sW)}, {s(sW)}, 4")
    a(f"v_lshrrev_b32 v2, 4, v0")
    a(f"v_bfe_u32 v3, v0, 2, 1")
    a(f"v_lshl_add_u32 v3, v2, 1, v3")
    a(f"v_mul_u32_u24 v3, 896, v3")
    a(f"v_lshrrev_b32 v4, 3, v0")
    a(f"v_xor_b32 v4, v4, v2")
    a(f"v_and_b32 v4, 1, v4")
    a(f"v_lshl_add_u32 v3, v4, 6, v3")
    a(f"v_and_b32 v4, 3, v0")
    a(f"v_lshl_add_u32 v3, v4, 4, v3")
    a(f"s_lshr_b32 {s(sT0)}, {s(sW)}, 1")
    a(f"s_lshl_b32 {s(sT0)}, {s(sT0)}, 15")
    a(f"s_and_b32 {s(sT1)}, {s(sW)}, 1")
    a(f"s_lshl_b32 {s(sT1)}, {s(sT1)}, 11")
    a(f"s_add_u32 {s(sMo)}, {s(sT0)}, {s(sT1)}")
    a(f"s_lshl_b32 {s(sOo)}, {s(sTb)}, 16")
    a(f"s_add_u32 {s(sOo)}, {s(sOo)}, {s(sMo)}")
    a(f"s_add_u32 {s(sOo)}, {s(sOo)}, {M.WS_OF}")
    a(f"s_add_u32 {s(sMo)}, {s(sMo)}, {L_O}")
    a(f"s_mul_i32 {s(sWo)}, {s(sW)}, {16*896}")
    a(f"s_lshl_b32 {s(sT0)}, {s(sCg)}, 7")
    a(f"s_add_u32 {s(sWo)}, {s(sWo)}, {s(sT0)}")
    a(f"s_lshl_b32 {s(sMw)}, {s(sW)}, 11")
    a(f"s_waitcnt lgkmcnt(0)")
    cnt = []
    def issue(c):
        n = 0
        if c < 7:
            for i in range(2):
                a(f"s_add_u32 m0, {s(sMw)}, {L_WO + 8192*c + 1024*i}")
                a(f"s_add_u32 {s(sT0)}, {s(sWo)}, {(64*c + 8*i)*896}")
                a(f"buffer_load_dwordx4 v3, {s(SWO,4)}, {s(sT0)} offen lds"); n += 1
        else:
            a(f"s_lshr_b32 {s(sT1)}, {s(sMw)}, 1")
            a(f"s_add_u32 m0, {s(sT1)}, {L_WO + 8192*7}")
            a(f"s_mov_b32 {s(sT0)}, {448*896}")
            a(f"buffer_load_dwordx4 v3, {s(SWO,4)}, {s(sT0)} offen lds"); n += 1
        a(f"s_add_u32 m0, {s(sMo)}, {4096*c}")
        a(f"s_add_u32 {s(sT0)}, {s(sOo)}, {4096*c}")
        a(f"buffer_load_dwordx4 v1, {s(SWS,4)}, {s(sT0)} offen lds")
        a(f"buffer_load_dwordx4 v1, {s(SWS,4)}, {s(sT0)} offen offset:1024 lds"); n += 2
        cnt.append(n)
    for c in range(PRE):
        issue(c)
    for c in range(8):
        a(f"s_waitcnt vmcnt({sum(cnt[c+1:])})")
        stamp(a, 2 + c)
        a("s_barrier")
        if len(cnt) < 8:
            issue(len(cnt))
    stamp_end(a, 2, SWS, (sW, 4), 5)
    a("s_endpgm")
    a.label(f"{name}_c")
    srd_consts(a, SC_)
    va = VAlloc(2)
    ACC = va(16); D5 = va(16)
    OFr = [va(4) for i in range(4)]; WFr = [va(4) for i in range(4)]
    Zr = va(8); Hh = va(16); TWv = va(16); GF = [va(4) for ks in range(4)]; AF = [va(4) for ks in range(4)]
    PL = va(8); t = [va(1) for i in range(8)]
    vP, vM, vEw, vEr, vY, aO, aW, vTw, vTr, vSt = [va(1) for i in range(10)]
    a(f"v_lshlrev_b32 {v(vP)}, 2, v0")
    a(f"v_lshrrev_b32 {v(t[0])}, 3, v0")
    a(f"v_and_b32 {v(t[1])}, 7, v0")
    a(f"v_sub_u32 {v(t[2])}, 7, {v(t[0])}")
    a(f"v_lshlrev_b32 {v(t[2])}, 5, {v(t[2])}")
    a(f"v_lshl_add_u32 {v(vM)}, {v(t[1])}, 2, {v(t[2])}")
    a(f"s_mul_i32 {s(sZ)}, s2, {M.ZSTRIDE}")
    a(f"s_add_u32 {s(sZ)}, {s(sZ)}, {M.WS_ZB}")
    a(f"s_lshl_b32 {s(sT2)}, {s(sW)}, 8")
    a(f"s_add_u32 {s(sT0)}, {s(sZ)}, {s(sT2)}")
    a(f"s_sub_u32 {s(sT1)}, {s(sZ)}, {s(sT2)}")
    a(f"v_lshlrev_b32 {v(t[3])}, 6, {v(t[0])}")
    a(f"s_lshl_b32 {s(sT2)}, {s(sW)}, 9")
    a(f"s_add_u32 {s(sT2)}, {s(sT2)}, {CT_TW448}")
    a(f"s_waitcnt lgkmcnt(0)")
    for tt_ in range(8):
        if tt_ < 4:
            a(f"s_add_u32 {s(sK)}, {s(sT0)}, {56*tt_*32}")
            a(f"buffer_load_dword {v(Zr+tt_)}, {v(vP)}, {s(SWS,4)}, {s(sK)} offen")
        else:
            a(f"s_add_u32 {s(sK)}, {s(sT1)}, {(56*(8-tt_)-7)*32}")
            a(f"buffer_load_dword {v(Zr+tt_)}, {v(vM)}, {s(SWS,4)}, {s(sK)} offen")
    for q in range(4):
        a(f"buffer_load_dwordx4 {v(TWv+4*q,4)}, {v(t[3])}, {s(SC_,4)}, {s(sT2)} offen offset:{16*q}")
    a(f"s_and_b32 {s(sT0)}, {s(sW)}, 1")
    a(f"s_lshl_b32 {s(sT1)}, {s(sT0)}, 12")
    a(f"s_add_u32 {s(sT1)}, {s(sT1)}, {CT_G56}")
    for ks in range(4):
        a(f"buffer_load_dwordx4 {v(GF[ks],4)}, v1, {s(SC_,4)}, {s(sT1)} offen offset:{1024*ks}")
    a(f"v_mul_u32_u24 {v(vEw)}, 1168, {v(t[1])}")
    a(f"v_lshl_add_u32 {v(vEw)}, {v(t[0])}, 2, {v(vEw)}")
    a(f"s_lshl_b32 {s(sT1)}, {s(sW)}, 5")
    a(f"v_add_u32 {v(vEw)}, {s(sT1)}, {v(vEw)}")
    a(f"v_and_b32 {v(t[4])}, 31, v0")
    a(f"v_lshrrev_b32 {v(t[5])}, 5, v0")
    a(f"v_mul_u32_u24 {v(vEr)}, 144, {v(t[4])}")
    a(f"v_lshrrev_b32 {v(t[6])}, 3, {v(t[4])}")
    a(f"v_add_u32 {v(t[6])}, {v(t[6])}, {v(t[5])}")
    a(f"v_lshl_add_u32 {v(vEr)}, {v(t[6])}, 4, {v(vEr)}")
    a(f"s_lshr_b32 {s(sT2)}, {s(sW)}, 1")
    a(f"s_mul_i32 {s(sT1)}, {s(sT2)}, {4*1168}")
    a(f"v_add_u32 {v(vEr)}, {s(sT1)}, {v(vEr)}")
    a(f"s_lshl_b32 {s(sT1)}, {s(sT0)}, 5")
    a(f"v_add_u32 {v(t[6])}, {s(sT1)}, {v(t[4])}")
    a(f"v_lshlrev_b32 {v(vY)}, 4, {v(t[6])}")
    a(f"v_lshl_add_u32 {v(vY)}, {v(t[5])}, 3, {v(vY)}")
    a(f"v_mov_b32 {v(t[7])}, 0x7f000000")
    a(f"v_cmp_lt_u32 vcc, 55, {v(t[6])}")
    a("s_nop 1")
    a(f"v_cndmask_b32 {v(vY)}, {v(vY)}, {v(t[7])}, vcc")
    a(f"s_lshl_b32 {s(sT1)}, {s(sT2)}, 15")
    a(f"s_add_u32 {s(sT1)}, {s(sT1)}, {L_O}")
    a(f"v_add_u32 {v(aO)}, {s(sT1)}, v1")
    a(f"v_bfe_u32 {v(t[6])}, v0, 3, 1")
    a(f"v_lshlrev_b32 {v(aW)}, 9, {v(t[5])}")
    a(f"v_lshl_add_u32 {v(aW)}, {v(t[6])}, 8, {v(aW)}")
    a(f"v_xor_b32 {v(t[6])}, {s(sT0)}, {v(t[6])}")
    a(f"v_lshl_add_u32 {v(aW)}, {v(t[6])}, 7, {v(aW)}")
    a(f"v_bfe_u32 {v(t[6])}, v0, 2, 1")
    a(f"v_lshl_add_u32 {v(aW)}, {v(t[6])}, 6, {v(aW)}")
    a(f"v_bfe_u32 {v(t[6])}, v0, 4, 1")
    a(f"v_lshl_add_u32 {v(aW)}, {v(t[6])}, 5, {v(aW)}")
    a(f"v_and_b32 {v(t[6])}, 3, v0")
    a(f"v_lshl_add_u32 {v(aW)}, {v(t[6])}, 3, {v(aW)}")
    a(f"s_mul_i32 {s(sT1)}, {s(sW)}, 2560")
    a(f"s_add_u32 {s(sT1)}, {s(sT1)}, {L_TR}")
    a(f"v_mul_u32_u24 {v(vTw)}, 80, {v(t[4])}")
    a(f"v_lshl_add_u32 {v(vTw)}, {v(t[5])}, 3, {v(vTw)}")
    a(f"v_add_u32 {v(vTw)}, {s(sT1)}, {v(vTw)}")
    a(f"v_lshrrev_b32 {v(t[7])}, 2, v0")
    a(f"v_mul_u32_u24 {v(vTr)}, 80, {v(t[7])}")
    a(f"v_lshl_add_u32 {v(vTr)}, {v(t[6])}, 4, {v(vTr)}")
    a(f"v_add_u32 {v(vTr)}, {s(sT1)}, {v(vTr)}")
    a(f"v_mul_u32_u24 {v(vSt)}, 1792, {v(t[7])}")
    a(f"v_lshl_add_u32 {v(vSt)}, {v(t[6])}, 4, {v(vSt)}")
    a(f"s_mov_b32 {s(sK)}, {f32hex(0.5**0.5)}")
    a("s_waitcnt vmcnt(8)")
    stamp(a, 2)
    for tt_ in range(8):
        a(f"v_lshlrev_b32 {v(Hh+2*tt_)}, 16, {v(Zr+tt_)}")
        a(f"v_and_b32 {v(Hh+2*tt_+1)}, 0xffff0000, {v(Zr+tt_)}")
    pool = Pool([PL + i for i in range(8)])
    X = dft8(a, pool, [((Hh + 2 * tt_, 1), (Hh + 2 * tt_ + 1, -1 if tt_ < 4 else 1)) for tt_ in range(8)], +1, sK)
    a("s_waitcnt vmcnt(4)")
    for j in range(8):
        xr, xi = X[j]
        o_ = Zr + j
        if j == 0:
            a(f"v_cvt_pk_bf16_f32 {v(o_)}, {sv(xr)}, {sv(xi)}")
        else:
            tr = TWv + 2 * (j - 1); ti = tr + 1
            p, q = t[2 * (j % 2)], t[2 * (j % 2) + 1]
            a(f"v_mul_f32_e64 {v(p)}, {sv(xi)}, {v(ti)}")
            a(f"v_mul_f32_e64 {v(q)}, {sv(xi)}, {v(tr)}")
            a(f"v_fma_f32 {v(p)}, {sv(xr)}, {v(tr)}, {v(p)}")
            a(f"v_fma_f32 {v(q)}, {sv(neg(xr))}, {v(ti)}, {v(q)}")
            a(f"v_cvt_pk_bf16_f32 {v(o_)}, {v(p)}, {v(q)}")
        a(f"ds_write_b32 {v(vEw)}, {v(o_)} offset:{144*j}" .replace(f"offset:{144*j}", f"offset:{144*j}"))
    a("s_waitcnt lgkmcnt(0)")
    stamp(a, 3)
    def chunk_body(first):
        a("s_barrier")
        for i in range(4):
            h2, t_ = i // 2, i % 2
            a(f"ds_read_b128 {v(OFr[i],4)}, {v(aO)} offset:{1024*i}")
            for jj in range(2):
                a(f"ds_read_b64_tr_b16 {v(WFr[i]+2*jj,2)}, {v(aW)} offset:{L_WO+(28*h2+16*t_+8*jj)*128}")
        for i in range(4):
            a(f"s_waitcnt lgkmcnt({3*(3-i)})")
            a(mfma32(ACC, WFr[i], OFr[i], None if (first and i == 0) else ACC))
        a(f"v_add_u32 {v(aO)}, 4096, {v(aO)}")
        a(f"v_add_u32 {v(aW)}, {56*128}, {v(aW)}")
    def t5_part2():
        for ks in range(4):
            a(f"ds_read_b128 {v(AF[ks],4)}, {v(vEr)} offset:{32*ks}")
        a(f"s_lshl_b32 {s(sT1)}, s2, 3")
        a(f"s_lshl_b32 {s(sC)}, {s(sT2)}, 2")
        a(f"s_add_u32 {s(sT1)}, {s(sT1)}, {s(sC)}")
        a(f"s_mul_i32 {s(sT1)}, {s(sT1)}, 1792")
        a(f"s_add_u32 {s(sT1)}, {s(sT1)}, 896")
        a(f"s_add_u32 {s(sZ)}, {s(sT1)}, 3584")
        a("s_waitcnt vmcnt(0)")
        for ks in range(4):
            a(f"s_waitcnt lgkmcnt({3-ks})")
            a(mfma32(D5, AF[ks], GF[ks], None if ks == 0 else D5))
        a("s_nop 7\ns_nop 3")
        for k in range(8):
            a(f"v_cvt_pk_bf16_f32 {v(Hh+k)}, {v(D5+2*k)}, {v(D5+2*k+1)}")
        for q in range(4):
            a(f"buffer_store_dwordx2 {v(Hh+2*q,2)}, {v(vY)}, {s(SOUT,4)}, {s(sT1 if q < 2 else sZ)} offen offset:{1792*(q%2)}")
    a(f"s_cmp_lt_u32 {s(sSlot)}, 28")
    a(f"s_cbranch_scc1 {name}_t4")
    a("s_barrier")
    t5_part2()
    stamp_end(a, 2, SWS, (sW, 0), t[0])
    a("s_endpgm")
    a.label(f"{name}_t4")
    chunk_body(True)
    t5_part2()
    stamp(a, 4)
    a(f"s_mov_b32 {s(sC)}, 1")
    a.label(f"{name}_loop")
    chunk_body(False)
    a(f"s_add_u32 {s(sC)}, {s(sC)}, 1")
    a(f"s_cmp_lt_u32 {s(sC)}, 8")
    a(f"s_cbranch_scc1 {name}_loop")
    stamp(a, 5)
    a(f"s_lshl_b32 {s(sT1)}, {s(sTb)}, 1")
    a(f"s_add_u32 {s(sT1)}, {s(sT1)}, {s(sT2)}")
    a(f"s_mul_i32 {s(sT1)}, {s(sT1)}, {32*1792}")
    a(f"s_lshl_b32 {s(sC)}, {s(sCg)}, 7")
    a(f"s_add_u32 {s(sT1)}, {s(sT1)}, {s(sC)}")
    a(f"s_lshl_b32 {s(sC)}, {s(sT0)}, 6")
    a(f"s_add_u32 {s(sT1)}, {s(sT1)}, {s(sC)}")
    a(f"s_add_u32 {s(sZ)}, {s(sT1)}, {16*1792}")
    a("s_nop 7")
    for k in range(8):
        a(f"v_cvt_pk_bf16_f32 {v(D5+k)}, {v(ACC+2*k)}, {v(ACC+2*k+1)}")
    for q in range(4):
        a(f"ds_write_b64 {v(vTw)}, {v(D5+2*q,2)} offset:{16*q}")
    a("s_waitcnt lgkmcnt(0)")
    a(f"ds_read_b128 {v(OFr[0],4)}, {v(vTr)}")
    a(f"ds_read_b128 {v(OFr[1],4)}, {v(vTr)} offset:{16*80}")
    a("s_waitcnt lgkmcnt(1)")
    a(f"buffer_store_dwordx4 {v(OFr[0],4)}, {v(vSt)}, {s(SOUT,4)}, {s(sT1)} offen")
    a("s_waitcnt lgkmcnt(0)")
    a(f"buffer_store_dwordx4 {v(OFr[1],4)}, {v(vSt)}, {s(SOUT,4)}, {s(sZ)} offen")
    stamp_end(a, 2, SWS, (sW, 0), t[0])
    a.label(f"{name}_end")
    a("s_endpgm")
    txt = a.text()
    txt = txt.replace(f"    s_lshl_b32 {s(sT1)}, {s(sW)}, 5\n    v_add_u32 {v(vEw)}, {s(sT1)}, {v(vEw)}",
                      f"    s_lshl_b32 {s(sT1)}, {s(sW)}, 5\n    s_add_u32 {s(sT1)}, {s(sT1)}, {L_EX}\n    v_add_u32 {v(vEw)}, {s(sT1)}, {v(vEw)}")
    txt = txt.replace(f"    s_mul_i32 {s(sT1)}, {s(sT2)}, {4*1168}\n",
                      f"    s_mul_i32 {s(sT1)}, {s(sT2)}, {4*1168}\n    s_add_u32 {s(sT1)}, {s(sT1)}, {L_EX}\n")
    nv = max(va.hi, 8)
    return txt + kernel_desc(name, nv, 100), nv
```

```python
from asmlib import *
from dft8 import Pool, neg, mul_i

def padd(a, pool, x, y, di=None):
    d = pool.get() if di is None else di
    (rx, sx), (ry, sy) = x, y
    if sx < 0 and sy < 0:
        a(f"v_pk_add_f32 {v(d,2)}, {v(rx,2)}, {v(ry,2)}"); return (d, -1)
    mod = ""
    if sx < 0 or sy < 0:
        n = f"[{1 if sx < 0 else 0},{1 if sy < 0 else 0}]"
        mod = f" neg_lo:{n} neg_hi:{n}"
    a(f"v_pk_add_f32 {v(d,2)}, {v(rx,2)}, {v(ry,2)}{mod}"); return (d, 1)
def bfly(a, pool, p, q):
    sr = padd(a, pool, p[0], q[0]); si = padd(a, pool, p[1], q[1])
    dr = padd(a, pool, p[0], neg(q[0]), di=q[0][0]); di = padd(a, pool, p[1], neg(q[1]), di=q[1][0])
    pool.put(p[0][0]); pool.put(p[1][0])
    return (sr, si), (dr, di)
def rot45(a, pool, z, sgn, sK):
    x, y = z
    r = padd(a, pool, x, (y[0], -sgn * y[1]))
    i = padd(a, pool, y, (x[0], sgn * x[1]), di=y[0])
    pool.put(x[0])
    a(f"v_pk_mul_f32 {v(r[0],2)}, {v(r[0],2)}, {s(sK,2)}")
    a(f"v_pk_mul_f32 {v(i[0],2)}, {v(i[0],2)}, {s(sK,2)}")
    return (r, i)
def dft4(a, pool, b, sgn):
    c0, c1 = bfly(a, pool, b[0], b[2])
    c2, c3 = bfly(a, pool, b[1], b[3])
    c3 = mul_i(c3, sgn)
    y0, y2 = bfly(a, pool, c0, c2)
    y1, y3 = bfly(a, pool, c1, c3)
    return [y0, y1, y2, y3]
def dft8(a, pool, x, sgn, sK):
    u = [None] * 4; w = [None] * 4
    for j in range(4):
        u[j], w[j] = bfly(a, pool, x[j], x[j + 4])
    w[1] = rot45(a, pool, w[1], sgn, sK)
    w[2] = mul_i(w[2], sgn)
    w[3] = mul_i(rot45(a, pool, w[3], sgn, sK), sgn)
    E = dft4(a, pool, u, sgn); Od = dft4(a, pool, w, sgn)
    X = [None] * 8
    for t in range(4):
        X[2 * t] = E[t]; X[2 * t + 1] = Od[t]
    return X
def pcmul(a, ar, ai, br, bi, t):
    a(f"v_pk_mul_f32 {v(t,2)}, {v(ai,2)}, {v(bi,2)}")
    a(f"v_pk_mul_f32 {v(t+2,2)}, {v(ai,2)}, {v(br,2)}")
    a(f"v_pk_fma_f32 {v(ai,2)}, {v(ar,2)}, {v(bi,2)}, {v(t+2,2)}")
    a(f"v_pk_fma_f32 {v(ar,2)}, {v(ar,2)}, {v(br,2)}, {v(t,2)} neg_lo:[0,0,1] neg_hi:[0,0,1]")
```

```python
from asmlib import *
import model as M
from k2 import CT_F56, CT_TW448, CT_TW448B, srd_consts, cmul, stamp, stamp_rt, stamp_begin, stamp_end
from dft8 import *
import dft8pk as PK8
import os

K1_LDS = 131072
NS = 4

def gen_k1(name="k1_kernel"):
    a = Asm()
    a.raw(f".globl {name}\n.p2align 8\n.type {name},@function\n{name}:")
    SX, SWQ, SWS, SC_, SWI = 8, 12, 16, 20, 24
    sW, sXc, sSlot, sTb, sG = 28, 29, 30, 31, 32
    sT0, sT1, sT2, sC, sSl, sXo, sWo, sOfs = 33, 34, 35, 36, 37, 38, 39, 48
    sHi = 50; sMsk = 52; sScale = 54; sPadv = 55; sTt = 64
    a(f"s_cmp_ge_u32 s2, 256")
    a(f"s_cbranch_scc1 {name}_end")
    stamp_begin(a)
    a(f"s_load_dwordx4 s[4:7], s[0:1], 0")
    a(f"s_load_dwordx2 s[76:77], s[0:1], 24")
    a(f"s_load_dwordx4 s[72:75], s[0:1], 32")
    a(f"s_load_dwordx2 {s(SWS,2)}, s[0:1], 64")
    a(f"v_lshrrev_b32 v1, 6, v0")
    a(f"v_and_b32 v0, 63, v0")
    a(f"s_and_b32 {s(sXc)}, s2, 7")
    a(f"v_readfirstlane_b32 {s(sW)}, v1")
    a(f"s_lshr_b32 {s(sSlot)}, s2, 3")
    a(f"v_lshlrev_b32 v1, 4, v0")
    a(f"s_mov_b32 {s(SWS+2)}, {M.WS_END}")
    a(f"s_mov_b32 {s(SWS+3)}, 0x20000")
    SP = 60; sN, sCh, sA, sB2 = 56, 57, 58, 59
    C0 = int(os.environ.get("PFC0", "2"))
    a(f"s_lshl_b32 {s(sN)}, {s(sSlot)}, 2")
    a(f"s_add_u32 {s(sN)}, {s(sN)}, {s(sW)}")
    if os.environ.get("BPA", "1") == "0":
        a(f"s_sub_u32 {s(sN)}, {s(sN)}, 28")
    a(f"s_mov_b32 {s(SP+3)}, 0x20000")
    a(f"s_cmp_ge_u32 {s(sW)}, 4")
    a(f"s_cbranch_scc1 {name}_pf_end")
    a(f"s_cmp_ge_u32 {s(sN)}, {20*(7-C0)}")
    a(f"s_cbranch_scc1 {name}_pf_end")
    a(f"s_mul_i32 {s(sCh)}, {s(sN)}, 205")
    a(f"s_lshr_b32 {s(sCh)}, {s(sCh)}, 12")
    a(f"s_mul_i32 {s(sA)}, {s(sCh)}, 20")
    a(f"s_sub_u32 {s(sA)}, {s(sN)}, {s(sA)}")
    a(f"s_add_u32 {s(sCh)}, {s(sCh)}, {C0}")
    a(f"s_cmp_lt_u32 {s(sA)}, 8")
    a(f"s_cbranch_scc1 {name}_pf_x")
    a(f"s_sub_u32 {s(sA)}, {s(sA)}, 8")
    a(f"s_lshl_b32 {s(sA)}, {s(sA)}, 6")
    a(f"v_add_u32 v3, {s(sA)}, v0")
    a(f"v_mul_u32_u24 v4, 43691, v3")
    a(f"v_lshrrev_b32 v4, 19, v4")
    a(f"v_mul_u32_u24 v5, 12, v4")
    a(f"v_sub_u32 v5, v3, v5")
    a(f"v_mul_u32_u24 v4, 2688, v4")
    a(f"v_lshl_add_u32 v4, v5, 7, v4")
    a(f"s_and_b32 {s(sA)}, {s(sXc)}, 1")
    a(f"s_mul_i32 {s(sA)}, {s(sA)}, 1280")
    a(f"s_mul_i32 {s(sB2)}, {s(sCh)}, {64*2688}")
    a(f"s_add_u32 {s(sA)}, {s(sA)}, {s(sB2)}")
    a(f"s_waitcnt lgkmcnt(0)")
    a(f"s_mov_b32 {s(SP)}, s6\ns_mov_b32 {s(SP+1)}, s7\ns_mov_b32 {s(SP+2)}, {448*2688}")
    a(f"buffer_load_dword v6, v4, {s(SP,4)}, {s(sA)} offen")
    a(f"s_branch {name}_pf_end")
    a.label(f"{name}_pf_x")
    a(f"v_mul_u32_u24 v4, 896, v0")
    a(f"s_lshr_b32 {s(sB2)}, {s(sXc)}, 1")
    a(f"s_lshl_b32 {s(sB2)}, {s(sB2)}, 3")
    a(f"s_add_u32 {s(sB2)}, {s(sB2)}, {s(sA)}")
    a(f"s_mul_i32 {s(sB2)}, {s(sB2)}, {64*896}")
    a(f"s_lshl_b32 {s(sA)}, {s(sCh)}, 7")
    a(f"s_add_u32 {s(sB2)}, {s(sB2)}, {s(sA)}")
    a(f"s_waitcnt lgkmcnt(0)")
    a(f"s_mov_b32 {s(SP)}, s4\ns_mov_b32 {s(SP+1)}, s5\ns_mov_b32 {s(SP+2)}, {2048*896}")
    a(f"buffer_load_dword v6, v4, {s(SP,4)}, {s(sB2)} offen")
    a.label(f"{name}_pf_end")
    def phaseB_setup():
        a(f"s_sub_u32 {s(sN)}, {s(sN)}, 32")
        a(f"v_lshlrev_b32 v2, 7, v0")
        a(f"s_cmp_lt_u32 {s(sN)}, 43")
        a(f"s_cselect_b32 {s(SP)}, s72, s74")
        a(f"s_cselect_b32 {s(SP+1)}, s73, s75")
        a(f"s_cselect_b32 {s(sB2)}, 28, 43")
        a(f"s_mov_b32 {s(SP+2)}, {2048*450}")
        a(f"s_mul_i32 {s(sA)}, {s(sXc)}, {256*450}")
        a(f"s_cmp_lt_u32 {s(sN)}, 28")
        a(f"s_cselect_b32 {s(SP)}, s76, {s(SP)}")
        a(f"s_cselect_b32 {s(SP+1)}, s77, {s(SP+1)}")
        a(f"s_cselect_b32 {s(sB2)}, 0, {s(sB2)}")
        a(f"s_cselect_b32 {s(SP+2)}, {2048*896}, {s(SP+2)}")
        a(f"s_mul_i32 {s(sCh)}, {s(sXc)}, {256*896}")
        a(f"s_cselect_b32 {s(sA)}, {s(sCh)}, {s(sA)}")
        a(f"s_sub_u32 {s(sB2)}, {s(sN)}, {s(sB2)}")
        a(f"s_lshl_b32 {s(sB2)}, {s(sB2)}, 13")
        a(f"s_add_u32 {s(sA)}, {s(sA)}, {s(sB2)}")
        a(f"s_cmp_lt_u32 {s(sN)}, 58")
        a(f"s_cselect_b32 {s(SP+2)}, {s(SP+2)}, 0")
    def phaseB_issue():
        if os.environ.get("PHB", "0") == "1":
            a(f"buffer_load_dword v7, v2, {s(SP,4)}, {s(sA)} offen")
    a(f"s_cmp_lt_u32 {s(sSlot)}, 8")
    a(f"s_cbranch_scc1 {name}_bwg")
    a(f"s_sub_u32 {s(sSlot)}, {s(sSlot)}, 8")
    a(f"s_mul_i32 {s(sT0)}, {s(sSlot)}, 43")
    a(f"s_lshr_b32 {s(sT0)}, {s(sT0)}, 8")
    a(f"s_mul_i32 {s(sT1)}, {s(sT0)}, 6")
    a(f"s_sub_u32 {s(sT1)}, {s(sSlot)}, {s(sT1)}")
    a(f"s_lshr_b32 {s(sTb)}, {s(sXc)}, 1")
    a(f"s_lshl_b32 {s(sTb)}, {s(sTb)}, 2")
    a(f"s_add_u32 {s(sTb)}, {s(sTb)}, {s(sT0)}")
    a(f"s_and_b32 {s(sG)}, {s(sXc)}, 1")
    a(f"s_mul_i32 {s(sG)}, {s(sG)}, 6")
    a(f"s_add_u32 {s(sG)}, {s(sG)}, {s(sT1)}")
    a(f"s_and_b32 {s(sOfs)}, {s(sG)}, 1")
    a(f"s_lshl_b32 {s(sOfs)}, {s(sOfs)}, 5")
    a(f"s_cmp_lt_u32 {s(sW)}, 4")
    a(f"s_cbranch_scc1 {name}_t1c")
    a(f"s_sub_u32 {s(sW)}, {s(sW)}, 4")
    vX0, vX1, vWw, vt = 2, 3, 4, 5
    a(f"v_lshrrev_b32 {v(vt)}, 3, v0")
    a(f"v_mul_u32_u24 {v(vX0)}, 896, {v(vt)}")
    a(f"v_and_b32 {v(vt)}, 7, v0")
    a(f"v_lshrrev_b32 {v(vt+1)}, 4, v0")
    a(f"v_xor_b32 {v(vt)}, {v(vt)}, {v(vt+1)}")
    a(f"v_xor_b32 {v(vt+2)}, 4, {v(vt)}")
    a(f"v_lshl_add_u32 {v(vX1)}, {v(vt+2)}, 4, {v(vX0)}")
    a(f"v_lshl_add_u32 {v(vX0)}, {v(vt)}, 4, {v(vX0)}")
    a(f"v_mul_u32_u24 {v(vWw)}, 2688, {v(vt+1)}")
    a(f"v_lshrrev_b32 {v(vt)}, 2, v0")
    a(f"v_sub_u32 {v(vt)}, {v(vt)}, {v(vt+1)}")
    a(f"v_and_b32 {v(vt)}, 3, {v(vt)}")
    a(f"v_lshl_add_u32 {v(vWw)}, {v(vt)}, 6, {v(vWw)}")
    a(f"v_and_b32 {v(vt)}, 3, v0")
    a(f"v_lshl_add_u32 {v(vWw)}, {v(vt)}, 4, {v(vWw)}")
    a(f"s_lshl_b32 {s(sT0)}, {s(sTb)}, 2")
    a(f"s_add_u32 {s(sT0)}, {s(sT0)}, {s(sW)}")
    a(f"s_mul_i32 {s(sXo)}, {s(sT0)}, {32*896}")
    a(f"s_mul_i32 {s(sWo)}, {s(sW)}, {16*2688}")
    a(f"s_mul_i32 {s(sT0)}, {s(sG)}, 224")
    a(f"s_add_u32 {s(sWo)}, {s(sWo)}, {s(sT0)}")
    a(f"s_sub_u32 {s(sWo)}, {s(sWo)}, {s(sOfs)}")
    a(f"s_lshl_b32 {s(sSl)}, {s(sW)}, 12")
    a(f"s_waitcnt lgkmcnt(0)")
    a(f"s_mov_b32 {s(SX)}, s4\ns_mov_b32 {s(SX+1)}, s5\ns_mov_b32 {s(SX+2)}, {2048*896}\ns_mov_b32 {s(SX+3)}, 0x20000")
    a(f"s_mov_b32 {s(SWQ)}, s6\ns_mov_b32 {s(SWQ+1)}, s7\ns_mov_b32 {s(SWQ+2)}, {448*2688}\ns_mov_b32 {s(SWQ+3)}, 0x20000")
    def issue(c):
        base = (c % NS) * 32768
        for i in range(4):
            a(f"s_add_u32 m0, {s(sSl)}, {base + 1024*i}")
            a(f"s_add_u32 {s(sT0)}, {s(sXo)}, {8*i*896 + 128*c}")
            a(f"buffer_load_dwordx4 {v(vX1 if i % 2 else vX0)}, {s(SX,4)}, {s(sT0)} offen lds")
            a(f"s_add_u32 m0, {s(sSl)}, {base + 16384 + 1024*i}")
            a(f"s_add_u32 {s(sT0)}, {s(sWo)}, {(64*c + 4*i)*2688}")
            a(f"buffer_load_dwordx4 {v(vWw)}, {s(SWQ,4)}, {s(sT0)} offen lds")
    issue(0); issue(1)
    issued = 2
    for c in range(7):
        a(f"s_waitcnt vmcnt({8*(issued-1-c)})")
        stamp(a, 2 + c)
        a("s_barrier")
        for k in range(2 if c == int(os.environ.get("LD2", "0")) else 1):
            if issued < 7:
                issue(issued); issued += 1
    stamp_end(a, 0, SWS, (sW, 4), 6)
    a("s_endpgm")
    a.label(f"{name}_t1c")
    va = VAlloc(8)
    ACC = [[va(16) for hp in range(2)] for tt in range(2)]
    XF = [[va(4) for tt in range(2)] for b in range(2)]
    WF = [[va(4) for hp in range(2)] for b in range(2)]
    bX = [va(1) for i in range(4)]; bW = [va(1) for hp in range(2)]
    aX = [va(1) for i in range(4)]; aW = [va(1) for hp in range(2)]
    t = [va(1) for i in range(6)]
    PK = va(8); vPad = va(1)
    sPc, sPk, sPx, sPw = 56, 57, 58, 59
    vPx, vPw = va(1), va(1)
    PF = False
    def prefetch(c0, nch, tag):
        if not PF: return
        a(f"s_cmp_ge_u32 {s(sPc)}, {nch}")
        a(f"s_cbranch_scc1 {name}_pf{tag}_done")
        a(f"s_cmp_lt_u32 {s(sPk)}, 8")
        a(f"s_cbranch_scc1 {name}_pf{tag}_x")
        a(f"s_add_u32 {s(sT0)}, {s(sPw)}, {c0*64*2688}")
        a(f"buffer_load_dword {v(vPad)}, {v(vPw)}, {s(SWQ,4)}, {s(sT0)} offen")
        a(f"s_branch {name}_pf{tag}_done")
        a.label(f"{name}_pf{tag}_x")
        a(f"s_add_u32 {s(sT0)}, {s(sPx)}, {c0*128}")
        a(f"buffer_load_dword {v(vPad)}, {v(vPx)}, {s(SX,4)}, {s(sT0)} offen")
        a.label(f"{name}_pf{tag}_done")
    if PF:
        a(f"s_lshl_b32 {s(sT0)}, {s(sSlot)}, 2")
        a(f"s_add_u32 {s(sT0)}, {s(sT0)}, {s(sW)}")
        a(f"s_mul_i32 {s(sPc)}, {s(sT0)}, 205")
        a(f"s_lshr_b32 {s(sPc)}, {s(sPc)}, 12")
        a(f"s_mul_i32 {s(sT1)}, {s(sPc)}, 20")
        a(f"s_sub_u32 {s(sPk)}, {s(sT0)}, {s(sT1)}")
        a(f"v_mul_u32_u24 {v(vPx)}, 896, v0")
        a(f"s_lshr_b32 {s(sT2)}, {s(sXc)}, 1")
        a(f"s_lshl_b32 {s(sT2)}, {s(sT2)}, 3")
        a(f"s_add_u32 {s(sT2)}, {s(sT2)}, {s(sPk)}")
        a(f"s_mul_i32 {s(sPx)}, {s(sT2)}, {64*896}")
        a(f"s_lshl_b32 {s(sT1)}, {s(sPc)}, 7")
        a(f"s_add_u32 {s(sPx)}, {s(sPx)}, {s(sT1)}")
        a(f"s_sub_u32 {s(sT1)}, {s(sPk)}, 8")
        a(f"s_lshl_b32 {s(sT1)}, {s(sT1)}, 6")
        a(f"s_and_b32 {s(sT1)}, {s(sT1)}, 0x3ff")
        a(f"v_add_u32 {v(t[0])}, {s(sT1)}, v0")
        a(f"v_mul_u32_u24 {v(t[1])}, 43691, {v(t[0])}")
        a(f"v_lshrrev_b32 {v(t[1])}, 19, {v(t[1])}")
        a(f"v_mul_u32_u24 {v(t[2])}, 12, {v(t[1])}")
        a(f"v_sub_u32 {v(t[2])}, {v(t[0])}, {v(t[2])}")
        a(f"v_mul_u32_u24 {v(t[1])}, 2688, {v(t[1])}")
        a(f"v_lshl_add_u32 {v(vPw)}, {v(t[2])}, 7, {v(t[1])}")
        a(f"s_and_b32 {s(sT1)}, {s(sXc)}, 1")
        a(f"s_mul_i32 {s(sPw)}, {s(sT1)}, 1280")
        a(f"s_mul_i32 {s(sT1)}, {s(sPc)}, {64*2688}")
        a(f"s_add_u32 {s(sPw)}, {s(sPw)}, {s(sT1)}")
        a(f"s_waitcnt lgkmcnt(0)")
        a(f"s_mov_b32 {s(SX)}, s4\ns_mov_b32 {s(SX+1)}, s5\ns_mov_b32 {s(SX+2)}, {2048*896}\ns_mov_b32 {s(SX+3)}, 0x20000")
        a(f"s_mov_b32 {s(SWQ)}, s6\ns_mov_b32 {s(SWQ+1)}, s7\ns_mov_b32 {s(SWQ+2)}, {448*2688}\ns_mov_b32 {s(SWQ+3)}, 0x20000")
        PFA = os.environ.get("PFA", "2,2,4,3").split(",")
        prefetch(int(PFA[0]), int(PFA[1]), "a")
    a(f"v_and_b32 {v(t[0])}, 31, v0")
    a(f"v_lshrrev_b32 {v(t[1])}, 5, v0")
    a(f"v_bfe_u32 {v(t[2])}, v0, 1, 3")
    a(f"v_xor_b32 {v(t[2])}, {v(t[2])}, {v(t[1])}")
    a(f"s_lshr_b32 {s(sT0)}, {s(sW)}, 1")
    a(f"s_lshl_b32 {s(sT0)}, {s(sT0)}, 13")
    a(f"v_lshl_add_u32 {v(t[3])}, {v(t[0])}, 7, {s(sT0)}")
    for i in range(4):
        a(f"v_xor_b32 {v(t[4])}, {2*i}, {v(t[2])}")
        a(f"v_lshl_add_u32 {v(bX[i])}, {v(t[4])}, 4, {v(t[3])}")
    a(f"v_bfe_u32 {v(t[0])}, v0, 2, 2")
    a(f"v_lshl_add_u32 {v(t[2])}, {v(t[1])}, 3, {v(t[0])}")
    a(f"v_lshlrev_b32 {v(t[2])}, 8, {v(t[2])}")
    a(f"v_bfe_u32 {v(t[3])}, v0, 4, 1")
    a(f"v_lshlrev_b32 {v(t[3])}, 5, {v(t[3])}")
    a(f"v_lshl_add_u32 {v(t[3])}, {v(t[0])}, 6, {v(t[3])}")
    a(f"v_and_b32 {v(t[4])}, 3, v0")
    a(f"v_lshl_add_u32 {v(t[3])}, {v(t[4])}, 3, {v(t[3])}")
    a(f"s_and_b32 {s(sT0)}, {s(sW)}, 1")
    a(f"s_mul_i32 {s(sT0)}, {s(sT0)}, 112")
    a(f"s_add_u32 {s(sT0)}, {s(sT0)}, {s(sOfs)}")
    for hp in range(2):
        a(f"s_add_u32 {s(sT1)}, {s(sT0)}, {56*hp}")
        a(f"v_add_u32 {v(t[4])}, {s(sT1)}, {v(t[3])}")
        a(f"v_and_b32 {v(t[4])}, 255, {v(t[4])}")
        a(f"v_add_u32 {v(bW[hp])}, {v(t[4])}, {v(t[2])}")
    for tt in range(2):
        for hp in range(2):
            for r in range(16):
                a(f"v_mov_b32 {v(ACC[tt][hp]+r)}, 0")
    a(f"s_mov_b32 {s(sC)}, 0")
    a("s_waitcnt lgkmcnt(0)")
    phaseB_setup()
    if PF and os.environ.get("PFB", "wait") == "wait":
        a("s_waitcnt vmcnt(0)")
    if PF: prefetch(int(PFA[2]), int(PFA[3]), "b")
    a(f"s_cmp_ge_u32 {s(sG)}, 8")
    a(f"s_cbranch_scc1 {name}_t1v")
    def reads(i, b):
        for tt in range(2):
            a(f"ds_read_b128 {v(XF[b][tt],4)}, {v(aX[i])} offset:{4096*tt}")
        for hp in range(2):
            for jj in range(2):
                a(f"ds_read_b64_tr_b16 {v(WF[b][hp]+2*jj,2)}, {v(aW[hp])} offset:{16384+(16*i+4*jj)*256}")
    def setaddr(nxt):
        a(f"s_add_u32 {s(sT0)}, {s(sC)}, {nxt}")
        a(f"s_and_b32 {s(sT0)}, {s(sT0)}, {NS-1}")
        a(f"s_lshl_b32 {s(sT0)}, {s(sT0)}, 15")
        for i in range(4):
            a(f"v_add_u32 {v(aX[i])}, {s(sT0)}, {v(bX[i])}")
        for hp in range(2):
            a(f"v_add_u32 {v(aW[hp])}, {s(sT0)}, {v(bW[hp])}")
    def rd_list(i, b):
        L = []
        for tt in range(2):
            L.append(f"ds_read_b128 {v(XF[b][tt],4)}, {v(aX[i])} offset:{4096*tt}")
        for hp in range(2):
            for jj in range(2):
                L.append(f"ds_read_b64_tr_b16 {v(WF[b][hp]+2*jj,2)}, {v(aW[hp])} offset:{16384+(16*i+4*jj)*256}")
        return [L[0], L[2], L[3], L[4], L[5], L[1]]
    def kloop(lbl, vmode):
        setaddr(0)
        a("s_barrier")
        for r_ in rd_list(0, 0): a(r_)
        phaseB_issue()
        a.label(lbl)
        for i in range(4):
            b = i % 2
            mm = []
            for tt in range(2):
                for hp in range(2):
                    mm.append(mfma32(ACC[tt][hp], XF[b][tt], WF[b][hp], ACC[tt][hp]) if vmode else mfma32(ACC[tt][hp], WF[b][hp], XF[b][tt], ACC[tt][hp]))
            a("s_waitcnt lgkmcnt(0)")
            if i < 3:
                R = rd_list(i + 1, 1 - b)
                a(mm[0]); a(R[0]); a(R[1]); a(mm[1]); a(R[2]); a(R[3]); a(mm[2]); a(R[4]); a(R[5]); a(mm[3])
            else:
                R = rd_list(0, 0)
                a(mm[0])
                a(f"s_cmp_eq_u32 {s(sC)}, 6")
                a(f"s_cbranch_scc1 {lbl}_last")
                setaddr(1)
                a(mm[1])
                a("s_barrier")
                a(R[0]); a(R[1]); a(R[2]); a(mm[2]); a(R[3]); a(R[4]); a(R[5]); a(mm[3])
                a(f"s_add_u32 {s(sC)}, {s(sC)}, 1")
                a(f"s_branch {lbl}")
                a.label(f"{lbl}_last")
                a(mm[1]); a(mm[2]); a(mm[3])
        a("s_waitcnt vmcnt(0)")
    def dest():
        a(f"s_lshr_b32 {s(sT0)}, {s(sG)}, 2")
        a(f"s_lshl_b32 {s(sT2)}, {s(sT0)}, 21")
        a(f"s_and_b32 {s(sT0)}, {s(sG)}, 3")
        a(f"s_lshl_b32 {s(sT0)}, {s(sT0)}, 19")
        a(f"s_add_u32 {s(sT2)}, {s(sT2)}, {s(sT0)}")
        a(f"s_and_b32 {s(sT0)}, {s(sW)}, 1")
        a(f"s_lshl_b32 {s(sT0)}, {s(sT0)}, 18")
        a(f"s_add_u32 {s(sT2)}, {s(sT2)}, {s(sT0)}")
        a(f"s_lshl_b32 {s(sT0)}, {s(sTb)}, 13")
        a(f"s_add_u32 {s(sT2)}, {s(sT2)}, {s(sT0)}")
        a(f"s_lshr_b32 {s(sT0)}, {s(sW)}, 1")
        a(f"s_lshl_b32 {s(sT0)}, {s(sT0)}, 12")
        a(f"s_add_u32 {s(sT2)}, {s(sT2)}, {s(sT0)}")
        a(f"s_add_u32 {s(sT1)}, {s(sT2)}, {64*2048}")
    kloop(f"{name}_qk_loop", False)
    stamp(a, 2)
    dest()
    a(f"s_mov_b32 {s(sHi)}, 0\ns_mov_b32 {s(sHi+1)}, -1")
    a(f"s_cmp_lt_u32 {s(sG)}, 4")
    a(f"s_cselect_b32 {s(sScale)}, {f32hex(M.SC)}, 1.0")
    a(f"s_cselect_b32 {s(sPadv)}, 0, 0x3f803f80")
    a("s_waitcnt lgkmcnt(0)")
    a("s_nop 7")
    for hp in range(2):
        for tt in range(2):
            A_ = ACC[tt][hp]
            for r in range(16):
                a(f"v_mul_f32 {v(A_+r)}, {s(sScale)}, {v(A_+r)}")
            for k in range(8):
                a(f"v_cvt_pk_bf16_f32 {v(A_+k)}, {v(A_+2*k)}, {v(A_+2*k+1)}")
            a(f"s_mov_b64 exec, {s(sHi,2)}")
            a(f"v_mov_b32 {v(A_+6)}, {s(sPadv)}")
            a(f"v_mov_b32 {v(A_+7)}, 0")
            a(f"s_mov_b64 exec, -1")
            for t_ in range(2):
                a(f"buffer_store_dwordx4 {v(A_+4*t_,4)}, v1, {s(SWS,4)}, {s(sT1 if hp else sT2)} offen offset:{2048*tt+1024*t_}")
    stamp_end(a, 0, SWS, (sW, 0), t[0])
    a("s_endpgm")
    a.label(f"{name}_t1v")
    kloop(f"{name}_v_loop", True)
    stamp(a, 2)
    dest()
    a(f"s_mov_b32 {s(sMsk)}, 0xf0000000\ns_mov_b32 {s(sMsk+1)}, 0xf0000000")
    a(f"v_and_b32 {v(t[0])}, 31, v0")
    a(f"v_mov_b32 {v(vPad)}, 0")
    a(f"v_mov_b32 {v(t[1])}, 0x3f803f80")
    a(f"v_cmp_eq_u32 vcc, 28, {v(t[0])}")
    a("s_nop 1")
    a(f"v_cndmask_b32 {v(vPad)}, {v(vPad)}, {v(t[1])}, vcc")
    a("s_waitcnt lgkmcnt(0)")
    a("s_nop 7")
    for hp in range(2):
        for tt in range(2):
            A_ = ACC[tt][hp]
            for k in range(8):
                a(f"v_cvt_pk_bf16_f32 {v(A_+k)}, {v(A_+2*k)}, {v(A_+2*k+1)}")
            a(f"s_mov_b64 exec, {s(sMsk,2)}")
            for k in range(8):
                a(f"v_mov_b32 {v(A_+k)}, {v(vPad)}")
            a(f"s_mov_b64 exec, -1")
            for t_ in range(2):
                a(f"buffer_store_dwordx4 {v(A_+4*t_,4)}, v1, {s(SWS,4)}, {s(sT1 if hp else sT2)} offen offset:{2048*tt+1024*t_}")
    stamp_end(a, 0, SWS, (sW, 0), t[0])
    a("s_endpgm")
    hi1 = va.hi
    a.label(f"{name}_bwg")
    sB = sTb
    a(f"s_lshl_b32 {s(sB)}, {s(sXc)}, 3")
    a(f"s_add_u32 {s(sB)}, {s(sB)}, {s(sSlot)}")
    def t1_prefetch(tagp, base, nit, vt):
        SPX, SPW = 76, 60
        a(f"s_mov_b32 {s(SPX)}, s4\ns_mov_b32 {s(SPX+1)}, s5\ns_mov_b32 {s(SPX+2)}, {2048*896}\ns_mov_b32 {s(SPX+3)}, 0x20000")
        a(f"s_mov_b32 {s(SPW)}, s6\ns_mov_b32 {s(SPW+1)}, s7\ns_mov_b32 {s(SPW+2)}, {448*2688}\ns_mov_b32 {s(SPW+3)}, 0x20000")
        sN, sCh, sA, sB2 = 56, 57, 58, 59
        a(f"s_lshl_b32 {s(sN)}, {s(sSlot)}, 2")
        a(f"s_and_b32 {s(sA)}, {s(sW)}, 3")
        a(f"s_add_u32 {s(sN)}, {s(sN)}, {s(sA)}")
        a(f"s_add_u32 {s(sN)}, {s(sN)}, {base}")
        a(f"v_mul_u32_u24 {v(vt)}, 896, v0")
        C0 = int(os.environ.get("PFC0", "2"))
        for it in range(nit):
            tg = f"{name}_bpf{tagp}{it}"
            a(f"s_mul_i32 {s(sCh)}, {s(sN)}, 205")
            a(f"s_lshr_b32 {s(sCh)}, {s(sCh)}, 12")
            a(f"s_mul_i32 {s(sA)}, {s(sCh)}, 20")
            a(f"s_sub_u32 {s(sA)}, {s(sN)}, {s(sA)}")
            a(f"s_add_u32 {s(sCh)}, {s(sCh)}, {C0}")
            a(f"s_cmp_lt_u32 {s(sCh)}, 7")
            a(f"s_cselect_b32 {s(sA)}, {s(sA)}, 8")
            a(f"s_cmp_lt_u32 {s(sA)}, 8")
            a(f"s_cbranch_scc1 {tg}_x")
            a(f"s_sub_u32 {s(sA)}, {s(sA)}, 8")
            a(f"s_lshl_b32 {s(sA)}, {s(sA)}, 6")
            a(f"v_add_u32 {v(vt+1)}, {s(sA)}, v0")
            a(f"v_mul_u32_u24 {v(vt+2)}, 43691, {v(vt+1)}")
            a(f"v_lshrrev_b32 {v(vt+2)}, 19, {v(vt+2)}")
            a(f"v_mul_u32_u24 {v(vt+3)}, 12, {v(vt+2)}")
            a(f"v_sub_u32 {v(vt+3)}, {v(vt+1)}, {v(vt+3)}")
            a(f"v_mul_u32_u24 {v(vt+2)}, 2688, {v(vt+2)}")
            a(f"v_lshl_add_u32 {v(vt+2)}, {v(vt+3)}, 7, {v(vt+2)}")
            a(f"s_and_b32 {s(sA)}, {s(sXc)}, 1")
            a(f"s_mul_i32 {s(sA)}, {s(sA)}, 1280")
            a(f"s_mul_i32 {s(sB2)}, {s(sCh)}, {64*2688}")
            a(f"s_add_u32 {s(sA)}, {s(sA)}, {s(sB2)}")
            a(f"buffer_load_dword {v(vt+4)}, {v(vt+2)}, {s(SPW,4)}, {s(sA)} offen")
            a(f"s_branch {tg}_done")
            a.label(f"{tg}_x")
            a(f"s_lshr_b32 {s(sB2)}, {s(sXc)}, 1")
            a(f"s_lshl_b32 {s(sB2)}, {s(sB2)}, 3")
            a(f"s_add_u32 {s(sB2)}, {s(sB2)}, {s(sA)}")
            a(f"s_mul_i32 {s(sB2)}, {s(sB2)}, {64*896}")
            a(f"s_lshl_b32 {s(sA)}, {s(sCh)}, 7")
            a(f"s_add_u32 {s(sB2)}, {s(sB2)}, {s(sA)}")
            a(f"buffer_load_dword {v(vt+4)}, {v(vt)}, {s(SPX,4)}, {s(sB2)} offen")
            a.label(f"{tg}_done")
            a(f"s_add_u32 {s(sN)}, {s(sN)}, 32")
    a(f"s_cmp_ge_u32 {s(sW)}, 4")
    a(f"s_cbranch_scc1 {name}_t3")
    srd_consts(a, SC_)
    a(f"s_mov_b32 {s(SX+2)}, {2048*896}\ns_mov_b32 {s(SX+3)}, 0x20000")
    va = VAlloc(2)
    RAW = [va(32), va(32)]
    XFc = [va(4) for j in range(8)]
    AC = [[va(4) for cs in range(2)] for j in range(8)]
    FC = [[va(4) for u in range(2)] for cs in range(2)]
    TWv = va(56)
    t = [va(1) for i in range(8)]
    vP = [va(1) for r in range(4)]; vM = [va(1) for r in range(4)]
    aR = [va(1), va(1)]
    sGq, sO = sG, sC
    a(f"s_lshr_b32 {s(sGq)}, {s(sB)}, 2")
    a(f"s_and_b32 {s(sO)}, {s(sB)}, 3")
    a(f"s_and_b32 {s(sT1)}, {s(sW)}, 1")
    a(f"s_lshl_b32 {s(sT0)}, {s(sT1)}, 12")
    a(f"s_add_u32 {s(sT0)}, {s(sT0)}, {CT_F56}")
    for cs in range(2):
        for u in range(2):
            a(f"buffer_load_dwordx4 {v(FC[cs][u],4)}, v1, {s(SC_,4)}, {s(sT0)} offen offset:{2048*cs+1024*u}")
    a(f"v_lshrrev_b32 {v(t[5])}, 4, v0")
    a(f"v_lshlrev_b32 {v(t[6])}, 8, {v(t[5])}")
    a(f"s_lshl_b32 {s(sT0)}, {s(sT1)}, 10")
    a(f"s_add_u32 {s(sT0)}, {s(sT0)}, {CT_TW448B}")
    for q in range(14):
        a(f"buffer_load_dwordx4 {v(TWv+4*q,4)}, {v(t[6])}, {s(SC_,4)}, {s(sT0)} offen offset:{16*q}")
    a(f"s_waitcnt lgkmcnt(0)")
    a(f"s_mov_b32 {s(SX)}, s76\ns_mov_b32 {s(SX+1)}, s77")
    if os.environ.get("T2P", "all") == "all": a("s_waitcnt vmcnt(0)")
    stamp(a, 6)
    a(f"s_lshr_b32 {s(sT2)}, {s(sW)}, 1")
    a(f"s_lshl_b32 {s(sT0)}, {s(sGq)}, 5")
    a(f"s_lshl_b32 {s(sT1)}, {s(sO)}, 1")
    a(f"s_add_u32 {s(sT0)}, {s(sT0)}, {s(sT1)}")
    a(f"s_add_u32 {s(sT0)}, {s(sT0)}, {s(sT2)}")
    a(f"s_mul_i32 {s(sXo)}, {s(sT0)}, {4*896}")
    a(f"s_mul_i32 {s(sSl)}, {s(sW)}, 14336")
    a(f"v_lshrrev_b32 {v(t[0])}, 3, v0")
    a(f"v_and_b32 {v(t[1])}, 7, v0")
    for i in range(14):
        a(f"v_add_u32 {v(t[2])}, {8*i}, {v(t[0])}")
        a(f"v_mul_u32_u24 {v(t[3])}, 147, {v(t[2])}")
        a(f"v_lshrrev_b32 {v(t[3])}, 10, {v(t[3])}")
        a(f"v_lshrrev_b32 {v(t[4])}, 2, {v(t[3])}")
        a(f"v_and_b32 {v(t[3])}, 1, {v(t[3])}")
        a(f"v_lshl_add_u32 {v(t[3])}, {v(t[3])}, 2, {v(t[4])}")
        a(f"v_xor_b32 {v(t[3])}, {v(t[3])}, {v(t[1])}")
        a(f"v_mul_u32_u24 {v(t[4])}, {32*896-3584}, {v(t[4])}")
        a(f"v_lshl_add_u32 {v(t[4])}, {v(t[2])}, 7, {v(t[4])}")
        a(f"v_lshl_add_u32 {v(t[4])}, {v(t[3])}, 4, {v(t[4])}")
        a(f"s_add_u32 m0, {s(sSl)}, {1024*i}")
        a("s_nop 0")
        a(f"buffer_load_dwordx4 {v(t[4])}, {s(SX,4)}, {s(sXo)} offen lds")
    a(f"s_and_b32 {s(sT1)}, {s(sW)}, 1")
    a(f"v_and_b32 {v(t[0])}, 3, v0")
    a(f"v_bfe_u32 {v(t[1])}, v0, 2, 2")
    a(f"v_lshl_add_u32 {v(t[2])}, {v(t[0])}, 2, {v(t[1])}")
    a(f"v_mul_u32_u24 {v(t[2])}, 896, {v(t[2])}")
    a(f"v_add_u32 {v(t[2])}, {s(sSl)}, {v(t[2])}")
    a(f"v_and_b32 {v(t[1])}, 1, {v(t[1])}")
    a(f"v_lshl_add_u32 {v(t[3])}, {v(t[1])}, 2, {v(t[0])}")
    a(f"v_lshlrev_b32 {v(t[3])}, 4, {v(t[3])}")
    a(f"v_lshl_add_u32 {v(aR[0])}, {v(t[5])}, 7, {v(t[2])}")
    a(f"v_min_u32 {v(t[4])}, 2, {v(t[5])}")
    a(f"v_lshl_add_u32 {v(aR[1])}, {v(t[4])}, 7, {v(t[2])}")
    a(f"v_add_u32 {v(aR[1])}, 512, {v(aR[1])}")
    a(f"v_and_b32 {v(t[0])}, 15, v0")
    a(f"v_lshlrev_b32 {v(t[0])}, 2, {v(t[0])}")
    a(f"s_lshl_b32 {s(sT0)}, {s(sT1)}, 4")
    a(f"v_lshl_add_u32 {v(t[1])}, {v(t[5])}, 2, {s(sT0)}")
    a(f"v_mov_b32 {v(t[7])}, 0x7f000000")
    for rr in range(4):
        a(f"v_add_u32 {v(t[2])}, {rr}, {v(t[1])}")
        a(f"v_lshl_add_u32 {v(vP[rr])}, {v(t[2])}, 13, {v(t[0])}")
        a(f"v_sub_u32 {v(t[4])}, 28, {v(t[2])}")
        a(f"v_lshl_add_u32 {v(vM[rr])}, {v(t[4])}, 13, {v(t[0])}")
        a(f"v_cmp_lt_u32 vcc, 28, {v(t[2])}")
        a("s_nop 1")
        a(f"v_cndmask_b32 {v(vP[rr])}, {v(vP[rr])}, {v(t[7])}, vcc")
        a(f"v_cndmask_b32 {v(vM[rr])}, {v(vM[rr])}, {v(t[7])}, vcc")
    a(f"s_lshr_b32 {s(sT0)}, {s(sO)}, 1")
    a(f"s_lshl_b32 {s(sT0)}, {s(sT0)}, 12")
    a(f"s_lshl_b32 {s(sT1)}, {s(sGq)}, 8")
    a(f"s_add_u32 {s(sT0)}, {s(sT0)}, {s(sT1)}")
    a(f"s_and_b32 {s(sT1)}, {s(sO)}, 1")
    a(f"s_lshl_b32 {s(sT1)}, {s(sT1)}, 7")
    a(f"s_add_u32 {s(sT0)}, {s(sT0)}, {s(sT1)}")
    a(f"s_lshl_b32 {s(sT1)}, {s(sT2)}, 6")
    a(f"s_add_u32 {s(sT0)}, {s(sT0)}, {s(sT1)}")
    for tt_ in range(8):
        col = 56 * tt_ if tt_ < 4 else 56 * (8 - tt_) - 28
        a(f"s_add_u32 {s(sTt+tt_)}, {s(sT0)}, {M.WS_X1 + col*8192}")
    a(f"s_mov_b32 {s(sScale)}, {f32hex(0.5**0.5)}")
    a(f"s_mov_b32 {s(sScale+1)}, {f32hex(0.5**0.5)}")
    a(f"s_mov_b32 {s(sMsk)}, 0x05040100")
    a(f"s_mov_b32 {s(sMsk+1)}, 0x07060302")
    a("s_waitcnt vmcnt(0)")
    stamp(a, 2)
    for u in range(2):
        for e in range(8):
            a(f"v_xor_b32 {v(t[e%2])}, {16*e}, {v(t[3])}")
            a(f"v_add_u32 {v(t[e%2])}, {v(t[e%2])}, {v(aR[u])}")
            a(f"ds_read_b128 {v(RAW[u]+4*e,4)}, {v(t[e%2])}")
    for u in range(2):
        a(f"s_waitcnt lgkmcnt({8 if u == 0 else 0})")
        for j in range(8):
            for q in range(4):
                lo = RAW[u] + 8 * q + j // 2; hi = RAW[u] + 8 * q + 4 + j // 2
                a(f"v_perm_b32 {v(XFc[j]+q)}, {v(hi)}, {v(lo)}, {s(sMsk + j % 2)}")
            if j >= 1:
                for cs in range(2):
                    a(mfma16(AC[j-1][cs], FC[cs][u], XFc[j-1], None if u == 0 else AC[j-1][cs]))
        a("s_nop 1")
        for cs in range(2):
            a(mfma16(AC[7][cs], FC[cs][u], XFc[7], None if u == 0 else AC[7][cs]))
    a("s_waitcnt vmcnt(0)")
    a("s_nop 7")
    stamp(a, 4)
    for rp in range(2):
        pool = Pool([RAW[0] + 8 + 2 * i for i in range(8)])
        for j in range(1, 8):
            tw = TWv + 8 * (j - 1) + 2 * rp
            PK8.pcmul(a, AC[j][0] + 2 * rp, AC[j][1] + 2 * rp, tw, tw + 4, RAW[0] + 4 * (j % 2))
        X = PK8.dft8(a, pool, [((AC[j][0] + 2 * rp, 1), (AC[j][1] + 2 * rp, 1)) for j in range(8)], -1, sScale)
        for tt_ in range(8):
            re, im = X[tt_]
            if tt_ >= 4: im = neg(im)
            for h in range(2):
                rr = 2 * rp + h
                o_ = RAW[1] + 8 * rr + tt_
                a(f"v_cvt_pk_bf16_f32 {v(o_)}, {sv((re[0]+h, re[1]))}, {sv((im[0]+h, im[1]))}")
                a(f"buffer_store_dword {v(o_)}, {v(vP[rr] if tt_ < 4 else vM[rr])}, {s(SWS,4)}, {s(sTt+tt_)} offen")
    stamp_end(a, 0, SWS, (sW, 0), t[0])
    a("s_endpgm")
    hi2 = va.hi
    a.label(f"{name}_t3")
    a(f"s_sub_u32 {s(sW)}, {s(sW)}, 4")
    a(f"s_lshr_b32 {s(sG)}, {s(sB)}, 3")
    a(f"s_and_b32 {s(sC)}, {s(sB)}, 7")
    a(f"s_lshl_b32 {s(sT0)}, {s(sG)}, 7")
    a(f"s_lshl_b32 {s(sT1)}, {s(sC)}, 2")
    a(f"s_add_u32 {s(sT0)}, {s(sT0)}, {s(sT1)}")
    a(f"s_add_u32 {s(sT0)}, {s(sT0)}, {s(sW)}")
    a(f"s_mul_i32 {s(sXo)}, {s(sT0)}, 900")
    a(f"s_lshl_b32 {s(sSl)}, {s(sW)}, 13")
    a(f"s_add_u32 {s(sSl)}, {s(sSl)}, 65536")
    srd_consts(a, SC_)
    a(f"v_lshlrev_b32 v2, 7, v0")
    a(f"s_lshl_b32 {s(sT1)}, {s(sSlot)}, 13")
    NR = int(os.environ.get("T3R", "2"))
    a(f"s_lshl_b32 {s(sT2)}, {s(sW)}, 4")
    a(f"v_cmp_gt_u32 vcc, 16, v0")
    for rnd in range(NR):
        a(f"buffer_load_dword v3, v2, {s(SC_,4)}, {s(sT1)} offen")
        a("s_waitcnt vmcnt(0)")
        a(f"s_add_u32 {s(sT1)}, {s(sT1)}, {65536 if rnd == 0 else 0}")
    stamp(a, 6)
    a(f"s_waitcnt lgkmcnt(0)")

    a(f"s_mov_b32 {s(SWQ)}, s72\ns_mov_b32 {s(SWQ+1)}, s73\ns_mov_b32 {s(SWQ+2)}, {2048*450}\ns_mov_b32 {s(SWQ+3)}, 0x20000")
    a(f"s_mov_b32 {s(SWI)}, s74\ns_mov_b32 {s(SWI+1)}, s75\ns_mov_b32 {s(SWI+2)}, {2048*450}\ns_mov_b32 {s(SWI+3)}, 0x20000")
    for r in range(4):
        for arr in range(2):
            a(f"s_add_u32 m0, {s(sSl)}, {4096*arr + 1024*r}")
            a(f"s_add_u32 {s(sT0)}, {s(sXo)}, {64*450*r}")
            a(f"buffer_load_dwordx4 v1, {s(SWI if arr else SWQ,4)}, {s(sT0)} offen lds")
    a(f"v_and_b32 v2, 1, v0")
    a(f"v_lshrrev_b32 v3, 1, v0")
    a(f"v_mul_u32_u24 v4, 450, v2")
    a(f"v_lshl_add_u32 v4, v3, 1, v4")
    a(f"v_add_u32 v4, {s(sSl)}, v4")
    a(f"v_lshlrev_b32 v5, 13, v3")
    a(f"v_lshl_add_u32 v5, v2, 4, v5")
    a(f"s_lshl_b32 {s(sT0)}, {s(sG)}, 10")
    a(f"s_lshl_b32 {s(sT1)}, {s(sC)}, 7")
    a(f"s_add_u32 {s(sT0)}, {s(sT0)}, {s(sT1)}")
    a(f"s_lshl_b32 {s(sT1)}, {s(sW)}, 5")
    a(f"s_add_u32 {s(sT0)}, {s(sT0)}, {s(sT1)}")
    a(f"s_add_u32 {s(sT0)}, {s(sT0)}, {M.WS_WT}")
    a("s_waitcnt vmcnt(0)")
    stamp(a, 2)
    D0 = 8
    def t3_reads(it):
        for r in range(4):
            a(f"ds_read_u16 {v(D0+4*it+r)}, v4 offset:{1024*r+64*it}")
            a(f"ds_read_u16 {v(D0+32+4*(it%2)+r)}, v4 offset:{4096+1024*r+64*it}")
    t3_reads(0)
    for it in range(8):
        if it < 7:
            t3_reads(it + 1)
            a("s_waitcnt lgkmcnt(8)")
        else:
            a("s_waitcnt lgkmcnt(0)")
        for r in range(4):
            a(f"v_lshl_or_b32 {v(D0+4*it+r)}, {v(D0+32+4*(it%2)+r)}, 16, {v(D0+4*it+r)}")
        a(f"buffer_store_dwordx4 {v(D0+4*it,4)}, v5, {s(SWS,4)}, {s(sT0)} offen")
        a(f"s_add_u32 {s(sT0)}, {s(sT0)}, {32*8192}")
    stamp_end(a, 0, SWS, (sW, 4), 2)
    a.label(f"{name}_end")
    a("s_endpgm")
    nv = max(hi1, hi2, 48)
    return a.text() + kernel_desc(name, nv, 100), nv
```

```python
from asmlib import *
import model as M

CT_F64 = 0
CT_F32 = 32768
CT_T2048 = CT_F32 + 6144
CT_F56 = CT_T2048 + 16384
CT_TW448 = CT_F56 + 8192
CT_G56 = CT_TW448 + 2048
CT_TW448B = CT_G56 + 8192
CT_SIZE = CT_TW448B + 2048

def const_table():
    parts = [M.bf16_bits(M.const_F64()).tobytes(), M.bf16_bits(M.const_F32()).tobytes(), M.const_T2048().tobytes(),
             M.bf16_bits(M.const_F56()).tobytes(), M.const_TW448().tobytes(), M.bf16_bits(M.const_G56()).tobytes(), M.const_TW448B().tobytes()]
    raw = b"".join(parts)
    assert len(raw) == CT_SIZE
    return raw

LDS_RING = 0
LDS_FFT = 131072
K2_LDS = LDS_FFT + 32 * 272

def srd_consts(a, sd):
    a(f"s_getpc_b64 {s(sd,2)}")
    a(f"s_add_u32 {s(sd)}, {s(sd)}, ctab@rel32@lo+4")
    a(f"s_addc_u32 {s(sd+1)}, {s(sd+1)}, ctab@rel32@hi+12")
    a(f"s_mov_b32 {s(sd+2)}, {CT_SIZE}")
    a(f"s_mov_b32 {s(sd+3)}, 0x20000")

def cmul(a, outr, outi, ar, ai, br, bi, t, conj_out=False):
    a(f"v_mul_f32 {v(t)}, {v(ai)}, {v(bi)}")
    a(f"v_mul_f32 {v(t+1)}, {v(ai)}, {v(br)}")
    if not conj_out:
        a(f"v_fma_f32 {v(outi)}, {v(ar)}, {v(bi)}, {v(t+1)}")
    else:
        a(f"v_fma_f32 {v(outi)}, -{v(ar)}, {v(bi)}, -{v(t+1)}")
    a(f"v_fma_f32 {v(outr)}, {v(ar)}, {v(br)}, -{v(t)}")

import os
INSTR = os.environ.get("INSTR", "0") == "1"
SB = 80
def stamp(a, idx):
    if INSTR:
        a(f"s_memtime s[96:97]")
        a(f"s_waitcnt lgkmcnt(0)")
        a(f"s_mov_b32 s{SB+idx}, s96")
def stamp_rt(a, idx):
    if INSTR:
        a(f"s_memrealtime s[96:97]")
        a(f"s_waitcnt lgkmcnt(0)")
        a(f"s_mov_b32 s{SB+idx}, s96")
def stamp_begin(a):
    if INSTR:
        for i in range(16):
            a(f"s_mov_b32 s{SB+i}, 0")
        stamp_rt(a, 0); stamp(a, 1)
def stamp_end(a, kidx, SRD, wave_expr, vt):
    if INSTR:
        a("s_waitcnt vmcnt(0)")
        stamp(a, 14); stamp_rt(a, 15)
        a(f"s_lshl_b32 s96, s2, 9")
        a(f"s_add_u32 s97, {s(wave_expr[0])}, {wave_expr[1]}")
        a(f"s_lshl_b32 s97, s97, 6")
        a(f"s_add_u32 s96, s96, s97")
        a(f"s_add_u32 s96, s96, {M.WS_DBG + kidx * 131072}")
        a(f"v_mov_b32 {v(vt)}, 0")
        for i in range(16):
            a(f"v_mov_b32 {v(vt+1)}, s{SB+i}")
            a(f"buffer_store_dword {v(vt+1)}, {v(vt)}, {s(SRD,4)}, s96 offen offset:{4*i}")
            a("s_nop 1")
def dump_stamps(*a): pass

def gen_k2(name="k2_kernel"):
    a = Asm()
    a.raw(f".globl {name}\n.p2align 8\n.type {name},@function\n{name}:")
    SRD = 8; SRDC = 12
    sW, sX, sSlot, sHead, sQb, sCol = 16, 17, 18, 19, 20, 21
    sK, sV, sIt, sPass, sT0, sT1 = 22, 23, 24, 25, 26, 27
    sHi = 28
    sK0, sV0, sJ, sM, sDK = 30, 31, 32, 33, 34
    a(f"s_cmp_ge_u32 s2, 256")
    a(f"s_cbranch_scc1 {name}_end")
    a(f"s_load_dwordx2 {s(SRD,2)}, s[0:1], 64")
    stamp_begin(a)
    a(f"v_lshrrev_b32 v1, 6, v0")
    a(f"v_and_b32 v0, 63, v0")
    a(f"s_and_b32 {s(sX)}, s2, 7")
    a(f"v_readfirstlane_b32 {s(sW)}, v1")
    a(f"s_lshr_b32 {s(sSlot)}, s2, 3")
    a(f"v_lshlrev_b32 v1, 4, v0")
    a(f"s_mov_b32 {s(SRD+2)}, {M.WS_END}")
    a(f"s_mov_b32 {s(SRD+3)}, 0x20000")
    a(f"s_lshr_b32 {s(sHead)}, {s(sSlot)}, 4")
    a(f"s_lshl_b32 {s(sT0)}, {s(sX)}, 1")
    a(f"s_add_u32 {s(sHead)}, {s(sHead)}, {s(sT0)}")
    a(f"s_lshl_b32 {s(sT0)}, {s(sHead)}, 17")
    a(f"s_add_u32 {s(sK0)}, {s(sT0)}, {M.WS_KF}")
    a(f"s_cmp_ge_u32 {s(sW)}, 4")
    a(f"s_cbranch_scc1 {name}_fft")
    va = VAlloc(2)
    Q = [va(4), va(4)]
    O = va(16)
    S_ = [va(16), va(16)]
    P_ = [va(8), va(8)]
    Kb = [va(8), va(8)]
    Vb = [va(8), va(8)]
    Cc = va(1); Mx = va(1); T = [va(1) for i in range(4)]
    vA = va(1); vB = va(1)
    def ld(dst, so, off):
        a(f"buffer_load_dwordx4 {v(dst,4)}, v1, {s(SRD,4)}, {s(so)} offen offset:{off}")
    a(f"s_and_b32 {s(sQb)}, {s(sSlot)}, 15")
    a(f"s_lshl_b32 {s(sQb)}, {s(sQb)}, 2")
    a(f"s_add_u32 {s(sQb)}, {s(sQb)}, {s(sW)}")
    a(f"s_lshl_b32 {s(sT1)}, {s(sQb)}, 11")
    a(f"s_add_u32 {s(sT0)}, {s(sT0)}, {s(sT1)}")
    a(f"s_waitcnt lgkmcnt(0)")
    for t in range(2): ld(Kb[0] + 4 * t, sK0, 1024 * t)
    for t in range(2): ld(Q[t], sT0, 1024 * t)
    a(f"s_mov_b32 {s(sHi)}, 0")
    a(f"s_mov_b32 {s(sHi+1)}, -1")
    a(f"v_mov_b32 {v(Mx)}, 0xff800000")
    for r in range(16): a(f"v_mov_b32 {v(O+r)}, 0")
    for r in range(8): a(f"v_mov_b32 {v(P_[1]+r)}, 0")
    for r in range(8): a(f"v_mov_b32 {v(Vb[1]+r)}, 0")
    if os.environ.get("XNORD"):
        for r in range(8): a(f"v_mov_b32 {v(Vb[0]+r)}, 0")
    a(f"v_mov_b32 {v(vA)}, v1")
    a(f"v_add_u32 {v(vB)}, 0x8000, v1")
    a(f"s_lshl_b32 {s(sJ)}, {s(sQb)}, 4")
    a(f"s_add_u32 {s(sJ)}, {s(sJ)}, {s(sHead)}")
    a(f"s_lshl_b32 {s(sJ)}, {s(sJ)}, 11")
    a(f"s_add_u32 {s(sJ)}, {s(sJ)}, {M.WS_OF}")
    a(f"s_mov_b32 {s(sIt)}, 0")
    a("s_waitcnt vmcnt(0)")
    stamp(a, 2)
    def maxstep():
        a(mfma32(S_[1], Kb[0], Q[0], None))
        a(mfma32(S_[1], Kb[0] + 4, Q[1], S_[1]))
        a("s_nop 7\ns_nop 3")
        for r in range(0, 16, 2):
            a(f"v_max3_f32 {v(Mx)}, {v(S_[1]+r)}, {v(S_[1]+r+1)}, {v(Mx)}")
    def finalize():
        a(f"v_mov_b32 {v(T[0])}, {v(Mx)}\nv_mov_b32 {v(T[1])}, {v(Mx)}\ns_nop 1")
        a(f"v_permlane32_swap_b32 {v(T[0])}, {v(T[1])}\ns_nop 0")
        a(f"v_max_f32 {v(Mx)}, {v(T[0])}, {v(T[1])}")
        a(f"v_cvt_pk_bf16_f32 {v(T[0])}, {v(Mx)}, {v(Mx)}")
        a(f"v_and_b32 {v(T[0])}, 0xffff0000, {v(T[0])}")
        a(f"v_sub_f32 {v(T[1])}, {v(Mx)}, {v(T[0])}")
        a(f"s_mov_b64 exec, {s(sHi,2)}")
        a(f"v_cvt_pk_bf16_f32 {v(Q[1]+2)}, -{v(T[0])}, -{v(T[1])}")
        a(f"s_mov_b64 exec, -1")
    maxstep()
    finalize()
    a(mfma32(S_[0], Kb[0], Q[0], None))
    a("s_barrier")
    a(mfma32(S_[0], Kb[0] + 4, Q[1], S_[0]))
    for t in range(2):
        a(f"ds_read_b128 {v(Kb[1]+4*t,4)}, {v(vA)} offset:{4096+1024*t}")
    a("s_nop 7")
    a("s_waitcnt lgkmcnt(0)")
    stamp(a, 3); stamp_rt(a, 12)
    a.raw(".p2align 6")
    a.label(f"{name}_loop")
    for u in range(8):
        p = u % 2; q = 1 - p
        sb = S_[p]; pb = P_[p]; sn = S_[q]; pp = P_[q]
        e = lambda r: a(f"v_exp_f32 {v(sb+r)}, {v(sb+r)}")
        c = lambda k: a(f"v_cvt_pk_bf16_f32 {v(pb+k)}, {v(sb+2*k)}, {v(sb+2*k+1)}")
        def rdK(t):
            if os.environ.get("XNORD"): return
            if u < 6: a(f"ds_read_b128 {v(Kb[p]+4*t,4)}, {v(vA)} offset:{4096*(u+2)+1024*t}")
            else:     a(f"ds_read_b128 {v(Kb[p]+4*t,4)}, {v(vB)} offset:{4096*(u-6)+1024*t}")
        def rdV(t):
            if os.environ.get("XNORD"): return
            a(f"ds_read_b128 {v(Vb[p]+4*t,4)}, {v(vA)} offset:{4096*u+2048+1024*t}")
        a("s_waitcnt lgkmcnt(2)")
        a(mfma32(sn, Kb[q], Q[0], None))
        if u == 6: a("s_barrier")
        rdK(0)
        e(0); e(1); e(2); e(3)
        a(mfma32(sn, Kb[q] + 4, Q[1], sn))
        rdK(1)
        e(4); e(5); c(0); e(6); e(7); c(1)
        a("s_waitcnt lgkmcnt(2)")
        a(mfma32(O, Vb[q], pp, O))
        rdV(0)
        e(8); e(9); c(2); e(10); e(11); c(3)
        a(mfma32(O, Vb[q] + 4, pp + 4, O))
        rdV(1)
        e(12)
        if u == 7:
            a(f"s_add_u32 {s(sIt)}, {s(sIt)}, 1")
        e(13); c(4); e(14)
        if u == 7:
            a(f"s_cmp_lt_u32 {s(sIt)}, 8")
        e(15)
        c(5); c(6); c(7)
        if u == 7:
            a(f"v_mov_b32 {v(vA)}, {v(vB)}")
            a(f"v_add_u32 {v(vB)}, 0x8000, {v(vB)}")
            a(f"v_and_b32 {v(vB)}, 0x1ffff, {v(vB)}")
    a(f"s_cbranch_scc1 {name}_loop")
    stamp(a, 4); stamp_rt(a, 13)
    a("s_waitcnt lgkmcnt(0)")
    a(mfma32(O, Vb[1], P_[1], O))
    a(mfma32(O, Vb[1] + 4, P_[1] + 4, O))
    a(f"s_mov_b32 {s(sT1)}, 0x5d800000")
    a("s_nop 7\ns_nop 3")
    a(f"v_cmp_nge_f32 vcc, {s(sT1)}, {v(O+12)}")
    a(f"v_mov_b32 {v(T[0])}, {v(O+12)}")
    a(f"v_mov_b32 {v(T[1])}, {v(O+12)}")
    a(f"s_cmp_lg_u32 vcc_hi, 0")
    a(f"s_cbranch_scc1 {name}_redo")
    a.label(f"{name}_epi")
    a(f"v_permlane32_swap_b32 {v(T[0])}, {v(T[1])}")
    a("s_nop 1")
    a(f"v_rcp_f32 {v(T[2])}, {v(T[1])}")
    a("s_nop 0")
    assert T[2] % 2 == 0
    for r in range(0, 16, 2):
        a(f"v_pk_mul_f32 {v(O+r,2)}, {v(O+r,2)}, {v(T[2],2)} op_sel_hi:[1,0]")
    for k in range(8):
        a(f"v_cvt_pk_bf16_f32 {v(S_[0]+k)}, {v(O+2*k)}, {v(O+2*k+1)}")
    a(f"s_mov_b64 exec, {s(sHi,2)}")
    a(f"v_mov_b32 {v(S_[0]+6)}, 0")
    a(f"v_mov_b32 {v(S_[0]+7)}, 0")
    a(f"s_mov_b64 exec, -1")
    a(f"buffer_store_dwordx4 {v(S_[0],4)}, v1, {s(SRD,4)}, {s(sJ)} offen")
    a(f"buffer_store_dwordx4 {v(S_[0]+4,4)}, v1, {s(SRD,4)}, {s(sJ)} offen offset:1024")
    stamp_end(a, 1, SRD, (sW, 0), T[0])
    a("s_endpgm")
    a.label(f"{name}_redo")
    a(f"s_mov_b64 exec, {s(sHi,2)}")
    a(f"v_mov_b32 {v(Q[1]+2)}, 0")
    a(f"s_mov_b64 exec, -1")
    a(f"s_mov_b32 {s(sK)}, {s(sK0)}")
    a(f"s_mov_b32 {s(sIt)}, 0")
    a.label(f"{name}_redo1")
    for t in range(2): ld(Kb[0] + 4 * t, sK, 1024 * t)
    a("s_waitcnt vmcnt(0)")
    maxstep()
    a(f"s_add_u32 {s(sK)}, {s(sK)}, 2048")
    a(f"s_add_u32 {s(sIt)}, {s(sIt)}, 1")
    a(f"s_cmp_lt_u32 {s(sIt)}, 64")
    a(f"s_cbranch_scc1 {name}_redo1")
    finalize()
    for r in range(16): a(f"v_mov_b32 {v(O+r)}, 0")
    a(f"s_mov_b32 {s(sK)}, {s(sK0)}")
    a(f"s_mov_b32 {s(sIt)}, 0")
    a.label(f"{name}_redo2")
    a(f"s_add_u32 {s(sV)}, {s(sK)}, {M.WS_VF - M.WS_KF}")
    for t in range(2): ld(Kb[0] + 4 * t, sK, 1024 * t)
    for t in range(2): ld(Vb[0] + 4 * t, sV, 1024 * t)
    a("s_waitcnt vmcnt(0)")
    a(mfma32(S_[0], Kb[0], Q[0], None))
    a(mfma32(S_[0], Kb[0] + 4, Q[1], S_[0]))
    a("s_nop 7\ns_nop 3")
    for r in range(16): a(f"v_exp_f32 {v(S_[0]+r)}, {v(S_[0]+r)}")
    a("s_nop 0")
    for k in range(8): a(f"v_cvt_pk_bf16_f32 {v(P_[0]+k)}, {v(S_[0]+2*k)}, {v(S_[0]+2*k+1)}")
    a("s_nop 1")
    a(mfma32(O, Vb[0], P_[0], O))
    a(mfma32(O, Vb[0] + 4, P_[0] + 4, O))
    a(f"s_add_u32 {s(sK)}, {s(sK)}, 2048")
    a(f"s_add_u32 {s(sIt)}, {s(sIt)}, 1")
    a(f"s_cmp_lt_u32 {s(sIt)}, 64")
    a("s_nop 7")
    a(f"s_cbranch_scc1 {name}_redo2")
    a("s_nop 7")
    a(f"v_mov_b32 {v(T[0])}, {v(O+12)}")
    a(f"v_mov_b32 {v(T[1])}, {v(O+12)}")
    a("s_nop 1")
    a(f"s_branch {name}_epi")
    attn_hi = va.hi
    a.label(f"{name}_fft")
    a(f"s_sub_u32 {s(sW)}, {s(sW)}, 4")
    a(f"s_lshl_b32 {s(sCol)}, {s(sX)}, 5")
    a(f"s_add_u32 {s(sCol)}, {s(sCol)}, {s(sSlot)}")
    a(f"s_lshl_b32 {s(sT0)}, {s(sW)}, 12")
    a(f"s_add_u32 {s(sDK)}, {s(sK0)}, {s(sT0)}")
    a(f"s_lshl_b32 {s(sM)}, {s(sW)}, 13")
    q_ = []
    def epoch(e_):
        for tl in range(2):
            lds = (e_ % 4) * 32768 + tl * 4096
            src = e_ * 16384 + tl * 2048
            a(f"s_add_u32 m0, {s(sM)}, {lds}")
            a(f"s_add_u32 {s(sT0)}, {s(sDK)}, {src}")
            a(f"buffer_load_dwordx4 v1, {s(SRD,4)}, {s(sT0)} offen lds")
            a(f"buffer_load_dwordx4 v1, {s(SRD,4)}, {s(sT0)} offen offset:1024 lds")
            a(f"s_add_u32 m0, {s(sM)}, {lds + 2048}")
            a(f"s_add_u32 {s(sT0)}, {s(sDK)}, {src + M.WS_VF - M.WS_KF}")
            a(f"buffer_load_dwordx4 v1, {s(SRD,4)}, {s(sT0)} offen lds")
            a(f"buffer_load_dwordx4 v1, {s(SRD,4)}, {s(sT0)} offen offset:1024 lds")
            q_.extend([f"E{e_}"] * 4)
    def wait_for(tag):
        last = max(i for i, t_ in enumerate(q_) if t_ == tag)
        n = len(q_) - 1 - last
        assert n <= 63
        a(f"s_waitcnt vmcnt({n})")
    a(f"s_waitcnt lgkmcnt(0)")
    epoch(0); epoch(1)
    a(f"s_cmp_ge_u32 {s(sCol)}, 225")
    a(f"s_cbranch_scc1 {name}_dma_only")
    q_fork = list(q_)
    a("s_setprio 2")
    srd_consts(a, SRDC)
    va = VAlloc(2)
    DA = [[va(4) for ks in range(4)] for mt in range(2)]
    F64 = [[va(4) for ks in range(4)] for c in range(2)]
    F32 = [[va(4) for k in range(3)] for mt in range(2)]
    TW = va(16); Wv = [va(4), va(4)]
    AC = [[va(4) for c in range(2)] for mt in range(2)]
    BF = [va(4), va(4)]
    T = va(4); WR = va(1); WI = va(1)
    vL16 = va(1); vG = va(1); vA = va(1); vB = va(1); vC = va(1); vD = va(1)
    def fl(txt, tag):
        a(txt); q_.append(tag)
    a(f"v_and_b32 {v(vL16)}, 15, v0")
    a(f"v_lshrrev_b32 {v(vG)}, 4, v0")
    a(f"s_lshl_b32 {s(sIt)}, {s(sCol)}, 13")
    a(f"s_add_u32 {s(sT1)}, {s(sIt)}, {M.WS_X1}")
    a(f"s_add_u32 {s(sJ)}, {s(sT1)}, 4096")
    a(f"s_lshl_b32 {s(sK)}, {s(sW)}, 13")
    a(f"s_add_u32 {s(sV)}, {s(sK)}, 4096")
    a(f"v_lshlrev_b32 {v(vA)}, 10, {v(vG)}")
    a(f"v_lshl_add_u32 {v(vA)}, {v(vL16)}, 4, {v(vA)}")
    a(f"v_mul_u32_u24 {v(vB)}, {4*272}, {v(vG)}")
    a(f"v_lshl_add_u32 {v(vB)}, {v(vL16)}, 2, {v(vB)}")
    a(f"s_lshl_b32 {s(sT0)}, {s(sW)}, 6")
    a(f"s_add_u32 {s(sT0)}, {s(sT0)}, {LDS_FFT}")
    a(f"v_add_u32 {v(vB)}, {s(sT0)}, {v(vB)}")
    a(f"v_mul_u32_u24 {v(vC)}, 272, {v(vL16)}")
    a(f"v_lshl_add_u32 {v(vC)}, {v(vG)}, 4, {v(vC)}")
    a(f"v_add_u32 {v(vC)}, {LDS_FFT}, {v(vC)}")
    a(f"v_lshlrev_b32 {v(vD)}, 2, {v(vL16)}")
    a(f"v_lshrrev_b32 {v(T)}, 1, {v(vG)}")
    a(f"v_add_u32 {v(vD)}, {v(vD)}, {v(T)}")
    a(f"v_mul_u32_u24 {v(vD)}, {M.ZSTRIDE}, {v(vD)}")
    a(f"v_and_b32 {v(T)}, 1, {v(vG)}")
    a(f"v_lshl_add_u32 {v(vD)}, {v(T)}, 4, {v(vD)}")
    def s1_loads(ks):
        fl(f"buffer_load_dwordx4 {v(DA[0][ks],4)}, v1, {s(SRD,4)}, {s(sT1)} offen offset:{1024*ks}", f"S1_{ks}")
        fl(f"buffer_load_dwordx4 {v(DA[1][ks],4)}, v1, {s(SRD,4)}, {s(sJ)} offen offset:{1024*ks}", f"S1_{ks}")
        fl(f"buffer_load_dwordx4 {v(F64[0][ks],4)}, v1, {s(SRDC,4)}, {s(sK)} offen offset:{1024*ks}", f"S1_{ks}")
        fl(f"buffer_load_dwordx4 {v(F64[1][ks],4)}, v1, {s(SRDC,4)}, {s(sV)} offen offset:{1024*ks}", f"S1_{ks}")
    wait_for("E0"); a("s_barrier")
    epoch(2); s1_loads(0); s1_loads(1)
    wait_for("E1"); a("s_barrier")
    epoch(3); s1_loads(2); s1_loads(3)
    a(f"s_lshl_b32 {s(sK)}, {s(sW)}, 12")
    a(f"s_add_u32 {s(sK)}, {s(sK)}, {CT_T2048}")
    for q in range(4):
        fl(f"buffer_load_dwordx4 {v(TW+4*q,4)}, v1, {s(SRDC,4)}, {s(sK)} offen offset:{1024*q}", "TW")
    wait_for("E2"); a("s_barrier")
    epoch(4)
    a(f"s_mov_b32 {s(sK)}, {CT_F32}")
    a(f"s_mov_b32 {s(sV)}, {CT_F32+3072}")
    for k in range(3):
        fl(f"buffer_load_dwordx4 {v(F32[0][k],4)}, v1, {s(SRDC,4)}, {s(sK)} offen offset:{1024*k}", "F32")
        fl(f"buffer_load_dwordx4 {v(F32[1][k],4)}, v1, {s(SRDC,4)}, {s(sV)} offen offset:{1024*k}", "F32")
    a(f"s_lshl_b32 {s(sK)}, {s(sW)}, 8")
    a(f"s_add_u32 {s(sK)}, {s(sK)}, {s(sIt)}")
    a(f"s_add_u32 {s(sK)}, {s(sK)}, {M.WS_WT}")
    a(f"s_add_u32 {s(sV)}, {s(sK)}, 4096")
    fl(f"buffer_load_dwordx4 {v(Wv[0],4)}, {v(vA)}, {s(SRD,4)}, {s(sK)} offen", "W")
    fl(f"buffer_load_dwordx4 {v(Wv[1],4)}, {v(vA)}, {s(SRD,4)}, {s(sV)} offen", "W")
    a(f"s_mul_i32 {s(sK)}, {s(sW)}, {64*M.ZSTRIDE}")
    a(f"s_lshl_b32 {s(sT1)}, {s(sCol)}, 5")
    a(f"s_add_u32 {s(sK)}, {s(sK)}, {s(sT1)}")
    a(f"s_add_u32 {s(sK)}, {s(sK)}, {M.WS_ZB}")
    a(f"s_add_u32 {s(sV)}, {s(sK)}, {2*M.ZSTRIDE}")
    def stage64(waits):
        for ks in range(4):
            waits(ks)
            for mt in range(2):
                for c in range(2):
                    a(mfma16(AC[mt][c], DA[mt][ks], F64[c][ks], None if ks == 0 else AC[mt][c]))
        a("s_nop 7")
    def twiddle():
        for mt in range(2):
            for r in range(4):
                tw = TW + 4 * (2 * mt + r // 2) + 2 * (r % 2)
                cmul(a, AC[mt][0] + r, AC[mt][1] + r, AC[mt][0] + r, AC[mt][1] + r, tw, tw + 1, T + 2 * (r % 2))
    def pack_sep():
        for c in range(2):
            for mt in range(2):
                for h in range(2):
                    a(f"v_cvt_pk_bf16_f32 {v(BF[c]+2*mt+h)}, {v(AC[mt][c]+2*h)}, {v(AC[mt][c]+2*h+1)}")
        a("s_nop 1")
    def stage32():
        for mt in range(2):
            a(mfma16(AC[mt][0], F32[mt][0], BF[0], None))
            a(mfma16(AC[mt][1], F32[mt][2], BF[0], None))
        for mt in range(2):
            a(mfma16(AC[mt][0], F32[mt][1], BF[1], AC[mt][0]))
            a(mfma16(AC[mt][1], F32[mt][0], BF[1], AC[mt][1]))
        a("s_nop 7")
    stamp(a, 2)
    wait_for("TW")
    stage64(lambda ks: None)
    twiddle()
    pack_sep()
    stamp(a, 3)
    a("s_barrier")
    epoch(5)
    stamp(a, 4)
    wait_for("W")
    stage32()
    for mt in range(2):
        for r in range(4):
            a(f"v_lshlrev_b32 {v(WR)}, 16, {v(Wv[mt]+r)}")
            a(f"v_and_b32 {v(WI)}, 0xffff0000, {v(Wv[mt]+r)}")
            cmul(a, AC[mt][0] + r, AC[mt][1] + r, AC[mt][0] + r, AC[mt][1] + r, WR, WI, T + 2 * (r % 2), conj_out=True)
    pack_sep()
    stage32()
    twiddle()
    for mt in range(2):
        for r in range(4):
            a(f"v_cvt_pk_bf16_f32 {v(BF[mt]+r)}, {v(AC[mt][0]+r)}, {v(AC[mt][1]+r)}")
    for mt in range(2):
        for r in range(4):
            a(f"ds_write_b32 {v(vB)}, {v(BF[mt]+r)} offset:{(16*mt+r)*272}")
    a("s_waitcnt lgkmcnt(0)")
    stamp(a, 5)
    a("s_barrier")
    epoch(6)
    stamp(a, 6)
    for ks in range(4):
        for mt in range(2):
            a(f"ds_read_b128 {v(DA[mt][ks],4)}, {v(vC)} offset:{16*mt*272+64*ks}")
    stage64(lambda ks: a(f"s_waitcnt lgkmcnt({2*(3-ks)})"))
    for mt in range(2):
        for r in range(4):
            a(f"v_cvt_pk_bf16_f32 {v(BF[mt]+r)}, {v(AC[mt][0]+r)}, {v(AC[mt][1]+r)}")
    fl(f"buffer_store_dwordx4 {v(BF[0],4)}, {v(vD)}, {s(SRD,4)}, {s(sK)} offen", "ST")
    fl(f"buffer_store_dwordx4 {v(BF[1],4)}, {v(vD)}, {s(SRD,4)}, {s(sV)} offen", "ST")
    stamp(a, 7)
    def tail(first):
        for e_ in range(first, 8):
            wait_for(f"E{e_}"); a("s_barrier")
            if e_ >= 2 and e_ + 2 < 8: epoch(e_ + 2)
    tail(5)
    stamp_end(a, 1, SRD, (sW, 4), T)
    a("s_endpgm")
    a.label(f"{name}_dma_only")
    q_[:] = q_fork
    wait_for("E0"); a("s_barrier")
    epoch(2)
    wait_for("E1"); a("s_barrier")
    epoch(3)
    tail(2)
    a.label(f"{name}_end")
    a("s_endpgm")
    nv = max(attn_hi, va.hi)
    return a.text() + kernel_desc(name, nv, 100), nv
```

```python
import numpy as np

S, D, H, DH = 2048, 448, 16, 28
SC = DH ** -0.5 * np.log2(np.e)

def bf16_bits(x):
    x = np.ascontiguousarray(x, dtype=np.float32)
    u = x.view(np.uint32)
    r = ((u + 0x7FFF + ((u >> 16) & 1)) >> 16).astype(np.uint16)
    return r
def bf16_val(b):
    return (b.astype(np.uint32) << 16).view(np.float32)
def rb(x):
    return bf16_val(bf16_bits(x))

WS_QF = 0
WS_KF = 2 << 20
WS_VF = 4 << 20
WS_X1 = 6 << 20
WS_WT = 8 << 20
WS_OF = 10 << 20
WS_ZB = 12 << 20
ZSTRIDE = 7296
WS_DBG = 14 << 20
WS_END = 16 << 20

def feat(t, half, j):
    return 16 * t + 8 * (j // 4) + 4 * half + j % 4

_t, _half, _j = np.meshgrid(np.arange(2), np.arange(2), np.arange(8), indexing='ij')
FEAT = 16 * _t + 8 * (_j // 4) + 4 * _half + _j % 4

def qkv_stage(x, wqkv):
    qkv = x.astype(np.float64) @ wqkv.astype(np.float64)
    q = qkv[:, :448].reshape(S, H, DH); k = qkv[:, 448:896].reshape(S, H, DH); v = qkv[:, 896:].reshape(S, H, DH)
    qp = np.zeros((S, H, 32)); kp = np.zeros((S, H, 32)); vp = np.zeros((S, H, 32))
    qp[:, :, :28] = q * SC; kp[:, :, :28] = k; kp[:, :, 28:30] = 1.0; vp[:, :, :28] = v; vp[:, :, 28] = 1.0
    def tokfrag(a):
        a = a.reshape(64, 32, H, 32)
        out = a[:, :, :, FEAT]
        out = out.transpose(2, 0, 3, 4, 1, 5)
        return rb(out.reshape(H, 64, 2, 64, 8))
    QF = tokfrag(qp); KF = tokfrag(kp)
    a = vp.reshape(64, 32, H, 32)
    out = a[:, FEAT]
    out = out.transpose(4, 0, 1, 2, 5, 3)
    VF = rb(out.reshape(H, 64, 2, 64, 8))
    return QF, KF, VF

def unfrag_tok(F):
    a = F.reshape(H, 64, 2, 2, 32, 8)
    out = np.zeros((64, 32, H, 32), F.dtype)
    for t in range(2):
        for hf in range(2):
            for j in range(8):
                out[:, :, :, FEAT[t, hf, j]] = a[:, :, t, hf, :, j].transpose(1, 2, 0)
    return out.reshape(S, H, 32)
def unfrag_v(F):
    a = F.reshape(H, 64, 2, 2, 32, 8)
    out = np.zeros((64, 32, H, 32), F.dtype)
    for t in range(2):
        for hf in range(2):
            for j in range(8):
                out[:, FEAT[t, hf, j], :, :] = a[:, :, t, hf, :, j].transpose(1, 0, 2)
    return out.reshape(S, H, 32)

def attn_stage(QF, KF, VF):
    q = unfrag_tok(QF).astype(np.float64); k = unfrag_tok(KF).astype(np.float64); v = unfrag_v(VF).astype(np.float64)
    o = np.zeros((S, H, 32))
    for h in range(H):
        s = q[:, h, :28] @ k[:, h, :28].T
        p = rb(np.exp2(s - s.max(axis=1, keepdims=True))).astype(np.float64)
        oo = p @ v[:, h, :]
        o[:, h, :28] = oo[:, :28] / oo[:, 28:29]
    a = o.reshape(64, 32, H, 32)
    out = a[:, :, :, FEAT]
    out = out.transpose(0, 2, 3, 4, 1, 5)
    return rb(out.reshape(64, H, 2, 64, 8))

def outproj_stage(OF, wo):
    a = OF.reshape(64, H, 2, 2, 32, 8)
    o = np.zeros((64, 32, H, 32))
    for t in range(2):
        for hf in range(2):
            for j in range(8):
                o[:, :, :, FEAT[t, hf, j]] = a[:, :, t, hf, :, j].transpose(0, 2, 1)
    o = o.reshape(S, H, 32)[:, :, :28].reshape(S, 448)
    return rb(o @ wo.astype(np.float64))

def const_F56():
    out = np.zeros((2, 2, 2, 64, 8))
    for kb in range(2):
        for u in range(2):
            for l in range(64):
                kap = 16 * kb + l % 16; g = l // 16
                for j in range(8):
                    m = 32 * u + 8 * g + j
                    if m < 56 and kap <= 28:
                        th = 2 * np.pi * ((kap * m) % 56) / 56
                        out[kb, 0, u, l, j] = np.cos(th); out[kb, 1, u, l, j] = -np.sin(th)
    return rb(out)
def const_TW448():
    out = np.zeros((32, 16), np.float32)
    for kap in range(32):
        for j in range(1, 8):
            th = 2 * np.pi * (kap * j) / 448
            out[kap, 2 * (j - 1)] = np.cos(th); out[kap, 2 * (j - 1) + 1] = -np.sin(th)
    return out
def const_TW448B():
    t = const_TW448()
    out = np.zeros((8, 64), np.float32)
    for kq in range(8):
        for j in range(7):
            for c in range(2):
                for rr in range(4):
                    out[kq, (j * 2 + c) * 4 + rr] = t[4 * kq + rr, 2 * j + c]
    return out
def const_F64():
    out = np.zeros((4, 2, 4, 64, 8))
    for w in range(4):
        for ks in range(4):
            for l in range(64):
                k1 = 16 * w + l % 16; g = l // 16
                for j in range(8):
                    n1 = 16 * ks + 4 * g + j // 2; c = j % 2
                    th = 2 * np.pi * ((n1 * k1) % 64) / 64
                    out[w, 0, ks, l, j] = np.cos(th) if c == 0 else np.sin(th)
                    out[w, 1, ks, l, j] = -np.sin(th) if c == 0 else np.cos(th)
    return rb(out)
def const_F32():
    out = np.zeros((2, 3, 64, 8))
    for mt in range(2):
        for l in range(64):
            k2 = 16 * mt + l % 16; g = l // 16
            for j in range(8):
                n2 = 16 * (j // 4) + 4 * g + j % 4
                th = 2 * np.pi * ((n2 * k2) % 32) / 32
                out[mt, 0, l, j] = np.cos(th); out[mt, 1, l, j] = np.sin(th); out[mt, 2, l, j] = -np.sin(th)
    return rb(out)
def const_T2048():
    out = np.zeros((4, 4, 64, 4), np.float32)
    for w in range(4):
        for l in range(64):
            k1 = 16 * w + l % 16; g = l // 16
            for mt in range(2):
                for r in range(4):
                    n2 = 16 * mt + 4 * g + r
                    th = 2 * np.pi * (n2 * k1) / 2048
                    out[w, 2 * mt + r // 2, l, 2 * (r % 2)] = np.cos(th); out[w, 2 * mt + r // 2, l, 2 * (r % 2) + 1] = -np.sin(th)
    return out
def const_G56():
    out = np.zeros((2, 4, 64, 8))
    cc = 1.0 / (S * D)
    for nu in range(2):
        for ks in range(4):
            for l in range(64):
                m = 32 * nu + l % 32; hf = l // 32
                for j in range(8):
                    kap = 8 * ks + 4 * hf + j // 2; c = j % 2
                    if m < 56 and kap <= 28:
                        wk = 1.0 if kap in (0, 28) else 2.0
                        th = 2 * np.pi * ((kap * m) % 56) / 56
                        out[nu, ks, l, j] = cc * wk * (np.cos(th) if c == 0 else -np.sin(th))
    return rb(out)

def rowdft_stage(x):
    F = const_F56().astype(np.float64)
    Fc = np.zeros((32, 64)); Fs = np.zeros((32, 64))
    for kb in range(2):
        for u in range(2):
            for l in range(64):
                for j in range(8):
                    Fc[16 * kb + l % 16, 32 * u + 8 * (l // 16) + j] = F[kb, 0, u, l, j]
                    Fs[16 * kb + l % 16, 32 * u + 8 * (l // 16) + j] = F[kb, 1, u, l, j]
    xx = x.astype(np.float64).reshape(S, 56, 8)
    Dj = np.einsum('km,smj->skj', Fc[:29, :56] + 1j * Fs[:29, :56], xx)
    tw = const_TW448().astype(np.float64)
    T = np.ones((29, 8), complex)
    for j in range(1, 8):
        T[:, j] = tw[:29, 2 * (j - 1)] + 1j * tw[:29, 2 * (j - 1) + 1]
    P = Dj * T[None]
    w8 = np.exp(-2j * np.pi * np.outer(np.arange(8), np.arange(8)) / 8)
    Xt = np.einsum('tj,skj->skt', w8, P)
    X = np.zeros((S, 225), complex)
    kap = np.arange(29)
    for t in range(4):
        X[:, kap + 56 * t] = Xt[:, :, t]
    for t in range(4, 8):
        X[:, 56 * (8 - t) - kap] = np.conj(Xt[:, :, t])
    return pack_X1(X)
def pack_X1(X):
    out = np.zeros((225, 2, 4, 64, 8))
    for mt in range(2):
        for ks in range(4):
            for l in range(64):
                for j in range(8):
                    n2 = 16 * mt + l % 16; n1 = 16 * ks + 4 * (l // 16) + j // 2
                    s = 32 * n1 + n2
                    out[:, mt, ks, l, j] = X[s].real if j % 2 == 0 else X[s].imag
    return rb(out)
def unpack_X1(X1):
    X = np.zeros((S, 225), complex)
    for mt in range(2):
        for ks in range(4):
            for l in range(64):
                for j in range(0, 8, 2):
                    n2 = 16 * mt + l % 16; n1 = 16 * ks + 4 * (l // 16) + j // 2
                    X[32 * n1 + n2] = X1[:, mt, ks, l, j] + 1j * X1[:, mt, ks, l, j + 1]
    return X

def wt_stage(w_r, w_i):
    k2 = (16 * np.arange(2)[:, None, None] + 4 * np.arange(4)[None, :, None] + np.arange(4)[None, None, :])
    k = np.arange(64)[None, None, :, None] + 64 * k2[:, :, None, :]
    out = np.stack([w_r[k], w_i[k]], axis=-1)
    return np.ascontiguousarray(out.transpose(4, 0, 1, 2, 3, 5)).astype(np.float32)

def crb(z):
    return rb(z.real).astype(np.float64) + 1j * rb(z.imag).astype(np.float64)

def colfft_stage(X1, WT):
    X = unpack_X1(X1)
    u = X.reshape(64, 32, 225)
    F64 = crb(np.exp(-2j * np.pi * (np.outer(np.arange(64), np.arange(64)) % 64) / 64))
    F32 = crb(np.exp(-2j * np.pi * (np.outer(np.arange(32), np.arange(32)) % 32) / 32))
    T = np.exp(-2j * np.pi * np.outer(np.arange(64), np.arange(32)) / 2048)
    A = np.einsum('kn,nmc->kmc', F64, u)
    B = crb(A * T[:, :, None])
    U = np.einsum('pm,kmc->kpc', F32, B)
    W = np.zeros((64, 32, 225), complex)
    Wc = WT[..., 0].astype(np.float64) + 1j * WT[..., 1].astype(np.float64)
    W = Wc.transpose(3, 1, 2, 4, 0).reshape(64, 32, 225)
    V = crb(np.conj(U * W))
    D3 = np.einsum('mp,kpc->kmc', F32, V)
    E = crb(D3 * T[:, :, None])
    Zb = np.einsum('nk,kmc->nmc', F64, E)
    return crb(Zb.reshape(S, 225))
def pack_ZB(Zb):
    out = np.zeros((256, ZSTRIDE // 2), np.float32)
    z = np.stack([Zb.real, Zb.imag], axis=-1).reshape(256, 8, 225, 2).transpose(0, 2, 1, 3)
    out[:, :225 * 16] = z.reshape(256, 225 * 16)
    return out
def unpack_ZB(ZB):
    z = ZB[:, :225 * 16].reshape(256, 225, 8, 2).transpose(0, 2, 1, 3).reshape(S, 225, 2).astype(np.float64)
    return z[..., 0] + 1j * z[..., 1]

def rowidft_stage(Zb):
    Z = np.conj(Zb)
    kap = np.arange(29)
    Hh = np.zeros((S, 29, 8), complex)
    for t in range(4):
        Hh[:, :, t] = Z[:, kap + 56 * t]
    for t in range(4, 8):
        Hh[:, :, t] = np.conj(Z[:, 56 * (8 - t) - kap])
    w8 = np.exp(2j * np.pi * np.outer(np.arange(8), np.arange(8)) / 8)
    Q = np.einsum('jt,skt->skj', w8, Hh)
    tw = const_TW448().astype(np.float64)
    T = np.ones((29, 8), complex)
    for j in range(1, 8):
        T[:, j] = tw[:29, 2 * (j - 1)] - 1j * tw[:29, 2 * (j - 1) + 1]
    Q = crb(Q * T[None])
    G = const_G56().astype(np.float64)
    Gr = np.zeros((32, 64)); Gi = np.zeros((32, 64))
    for nu in range(2):
        for ks in range(4):
            for l in range(64):
                for j in range(8):
                    kp = 8 * ks + 4 * (l // 32) + j // 2
                    (Gr if j % 2 == 0 else Gi)[kp, 32 * nu + l % 32] = G[nu, ks, l, j]
    y = np.einsum('skj,km->smj', Q.real, Gr[:29, :56]) + np.einsum('skj,km->smj', Q.imag, Gi[:29, :56])
    return rb(y.reshape(S, 448))

def reference(A_x, wqkv, wo, B_x, w_r, w_i):
    x = A_x.astype(np.float64)
    qkv = rb(x @ wqkv.astype(np.float64)).astype(np.float64)
    q = qkv[:, :448].reshape(S, H, DH); k = qkv[:, 448:896].reshape(S, H, DH); v = qkv[:, 896:].reshape(S, H, DH)
    o = np.zeros((S, H, DH))
    for h in range(H):
        s = rb(rb(q[:, h] @ k[:, h].T) * np.float32(DH ** -0.5)).astype(np.float64)
        p = np.exp(s - s.max(axis=1, keepdims=True)); p = rb(p / p.sum(axis=1, keepdims=True)).astype(np.float64)
        o[:, h] = rb(p @ v[:, h])
    a = rb(o.reshape(S, D) @ wo.astype(np.float64))
    X = np.fft.rfft2(B_x.astype(np.float64))
    y = np.fft.irfft2(X * (w_r.astype(np.float64) + 1j * w_i.astype(np.float64)), s=(S, D))
    return a, rb(y)

def make_inputs(seed=0):
    rng = np.random.default_rng(seed)
    r = lambda *s: rb(rng.standard_normal(s))
    return dict(A_x=rb(r(S, D) * 0.2), wqkv=rb(r(D, 3 * D) * 0.2), wo=rb(r(D, D) * 0.05), B_x=rb(r(S, D) * 0.05),
                w_r=rb(rb(r(S, 225) * 6.4) * 0.02), w_i=rb(rb(r(S, 225) * 6.4) * 0.02))

if __name__ == "__main__":
    I = make_inputs()
    ra, rbb = reference(**I)
    QF, KF, VF = qkv_stage(I['A_x'], I['wqkv'])
    OF = attn_stage(QF, KF, VF)
    a = outproj_stage(OF, I['wo'])
    print("A: max|ref|", np.abs(ra).max(), "maxerr", np.abs(a - ra).max(), "rel l2", np.linalg.norm(a - ra) / np.linalg.norm(ra))
    X1 = rowdft_stage(I['B_x'])
    Xref = np.fft.rfft(I['B_x'].astype(np.float64), axis=1)
    print("X1 rel", np.linalg.norm(unpack_X1(X1) - Xref) / np.linalg.norm(Xref))
    WT = wt_stage(I['w_r'], I['w_i'])
    Zb = colfft_stage(X1, WT)
    y = rowidft_stage(unpack_ZB(pack_ZB(Zb)))
    print("B: max|ref|", np.abs(rbb).max(), "maxerr", np.abs(y - rbb).max(), "rel l2", np.linalg.norm(y - rbb) / np.linalg.norm(rbb))
```

```python
import sys
from asmlib import *
import model as M
import os, importlib
k2 = importlib.import_module(os.environ.get('K2MOD', 'k2'))

HDR = open('concat_heads__mha_block__spectral_gfnet__prompt.s.ref').read().split("; Override launch")[0]

def build(kernels, path):
    launches = []; bodies = []
    for kname in kernels:
        if kname == 'k1':
            import k1
            t, nv = k1.gen_k1(); launches.append(f"; @launch kernel=k1_kernel grid=(256,1,1) block=(512,1,1) lds={k1.K1_LDS}")
        elif kname == 'k2':
            t, nv = k2.gen_k2(); launches.append(f"; @launch kernel=k2_kernel grid=(256,1,1) block=(512,1,1) lds={k2.K2_LDS}")
        elif kname == 'k3':
            import k3
            t, nv = k3.gen_k3(); launches.append(f"; @launch kernel=k3_kernel grid=(256,1,1) block=(512,1,1) lds={k3.K3_LDS}")
        print(kname, "vgprs", nv, file=sys.stderr)
        bodies.append(t)
    out = HDR + "\n".join(launches) + "\n" + '.amdgcn_target "amdgcn-amd-amdhsa--gfx950"\n.text\n' + "".join(bodies)
    out += '.section .rodata,"a"\n.p2align 8\n.type ctab,@object\nctab:\n' + data_lines(k2.const_table()) + f".size ctab, {k2.CT_SIZE}\n.text\n"
    fl = os.environ.get("STFLAG")
    if fl:
        import re
        out = re.sub(r"(buffer_store_dword\w* [^\n]*)", lambda m: m.group(1) + " " + fl, out)
    open(path, 'w').write(out)

if __name__ == "__main__":
    build(sys.argv[2:], sys.argv[1])
```

```python
from asmlib import *
import model as M
import os
from k2 import (CT_F64, CT_F32, CT_T2048, CT_F56, CT_TW448, CT_G56, CT_TW448B, CT_SIZE, srd_consts, cmul)
from dft8 import *
import dft8pk as PK8

INSTR = os.environ.get("INSTR", "0") == "1"
NAME = "concat_heads__mha_block__spectral_gfnet__prompt_kernel"
WS_MB1 = 31 << 19
WS_MB2 = WS_MB1 + 65536
WS_TAG = WS_MB1 + 131072
LDS_X = 131072
F_LDS = LDS_X + 9472
L_RED = 65536
L_TR = 98304
NS = 4
SPIN = 100000
ST = os.environ.get("STF", "sc1")
LD = os.environ.get("LDF", "sc1")
SB = 80

def gen():
    name = "fk"
    a = Asm()
    a.raw(f".globl {NAME}\n.p2align 8\n.type {NAME},@function\n{NAME}:")
    SA, SBv, SWS, SC_, SD = 8, 12, 16, 20, 24
    sW, sXc, sSlot, sTag = 28, 29, 30, 49
    sTb, sG, sT0, sT1, sT2, sC, sSl, sXo, sWo, sOfs = 31, 32, 33, 34, 35, 36, 37, 38, 39, 48
    sHi = 50; sMsk = 52; sScale = 54; sPadv = 55; sTt = 40
    SP = 60; sN, sCh, sA_, sB2 = 56, 57, 58, 59
    def rt(idx):
        if INSTR:
            a("s_memrealtime s[96:97]\ns_waitcnt lgkmcnt(0)")
            a(f"s_mov_b32 s{SB+idx}, s96")
    def dump(wadd, vt):
        if INSTR:
            a("s_waitcnt vmcnt(0)")
            rt(15)
            a(f"s_lshl_b32 s96, s2, 9\ns_add_u32 s97, {s(sW)}, {wadd}\ns_lshl_b32 s97, s97, 6\ns_add_u32 s96, s96, s97\ns_add_u32 s96, s96, {M.WS_DBG}")
            a(f"v_mov_b32 {v(vt)}, 0")
            for i in range(16):
                a(f"v_mov_b32 {v(vt+1)}, s{SB+i}")
                a(f"buffer_store_dword {v(vt+1)}, {v(vt)}, {s(SWS,4)}, s96 offen offset:{4*i}\ns_nop 1")
    uid = [0]
    def poll(load_txt, cmp_txt, execmask):
        uid[0] += 1; L = f"{name}_poll{uid[0]}"
        a(f"s_mov_b64 exec, {execmask}")
        a(f"s_mov_b32 {s(sN)}, 0")
        a.label(L)
        a(load_txt)
        a("s_waitcnt vmcnt(0)")
        a(cmp_txt)
        a(f"s_add_u32 {s(sN)}, {s(sN)}, 1")
        a(f"s_cmp_gt_u32 {s(sN)}, {SPIN}")
        a(f"s_cbranch_scc1 {L}_x")
        a(f"s_cbranch_vccnz {L}")
        a.label(f"{L}_x")
        a("s_mov_b64 exec, -1")
    a(f"s_load_dwordx16 s[64:79], s[0:1], 0")
    a(f"s_cmp_ge_u32 s2, 256")
    a(f"s_cbranch_scc1 {name}_end")
    a(f"v_lshrrev_b32 v1, 6, v0")
    a(f"s_load_dwordx2 {s(SWS,2)}, s[0:1], 64")
    a(f"v_and_b32 v0, 63, v0")
    a(f"s_and_b32 {s(sXc)}, s2, 7")
    a(f"v_readfirstlane_b32 s3, v1")
    a(f"s_lshr_b32 {s(sSlot)}, s2, 3")
    a(f"v_lshlrev_b32 v1, 4, v0")
    if INSTR:
        for i in range(16): a(f"s_mov_b32 s{SB+i}, 0")
        rt(0)
    a(f"s_and_b32 {s(sW)}, s3, 3")
    a(f"s_mov_b32 {s(SWS+2)}, {M.WS_END}")
    a(f"s_mov_b32 {s(SWS+3)}, 0x20000")
    a(f"s_cmp_lt_u32 {s(sSlot)}, 8")
    a(f"s_cbranch_scc1 {name}_bwg")
    a(f"s_sub_u32 {s(sN)}, {s(sSlot)}, 8")
    a(f"s_mul_i32 {s(sT0)}, {s(sN)}, 43")
    a(f"s_lshr_b32 {s(sT0)}, {s(sT0)}, 8")
    a(f"s_mul_i32 {s(sT1)}, {s(sT0)}, 6")
    a(f"s_sub_u32 {s(sT1)}, {s(sN)}, {s(sT1)}")
    a(f"s_lshr_b32 {s(sTb)}, {s(sXc)}, 1")
    a(f"s_lshl_b32 {s(sTb)}, {s(sTb)}, 2")
    a(f"s_add_u32 {s(sTb)}, {s(sTb)}, {s(sT0)}")
    a(f"s_and_b32 {s(sG)}, {s(sXc)}, 1")
    a(f"s_mul_i32 {s(sG)}, {s(sG)}, 6")
    a(f"s_add_u32 {s(sG)}, {s(sG)}, {s(sT1)}")
    a(f"s_and_b32 {s(sOfs)}, {s(sG)}, 1")
    a(f"s_lshl_b32 {s(sOfs)}, {s(sOfs)}, 5")
    a(f"s_mov_b32 {s(SA+2)}, {2048*896}\ns_mov_b32 {s(SA+3)}, 0x20000")
    a(f"s_mov_b32 {s(SBv+2)}, {448*2688}\ns_mov_b32 {s(SBv+3)}, 0x20000")
    a(f"s_cmp_lt_u32 s3, 4")
    a(f"s_cbranch_scc1 {name}_t1c")
    vX0, vX1, vWw, vt = 2, 3, 4, 5
    a(f"v_lshrrev_b32 {v(vt)}, 3, v0")
    a(f"v_mul_u32_u24 {v(vX0)}, 896, {v(vt)}")
    a(f"v_and_b32 {v(vt)}, 7, v0")
    a(f"v_lshrrev_b32 {v(vt+1)}, 4, v0")
    a(f"v_xor_b32 {v(vt)}, {v(vt)}, {v(vt+1)}")
    a(f"v_xor_b32 {v(vt+2)}, 4, {v(vt)}")
    a(f"v_lshl_add_u32 {v(vX1)}, {v(vt+2)}, 4, {v(vX0)}")
    a(f"v_lshl_add_u32 {v(vX0)}, {v(vt)}, 4, {v(vX0)}")
    a(f"v_mul_u32_u24 {v(vWw)}, 2688, {v(vt+1)}")
    a(f"v_lshrrev_b32 {v(vt)}, 2, v0")
    a(f"v_sub_u32 {v(vt)}, {v(vt)}, {v(vt+1)}")
    a(f"v_and_b32 {v(vt)}, 3, {v(vt)}")
    a(f"v_lshl_add_u32 {v(vWw)}, {v(vt)}, 6, {v(vWw)}")
    a(f"v_and_b32 {v(vt)}, 3, v0")
    a(f"v_lshl_add_u32 {v(vWw)}, {v(vt)}, 4, {v(vWw)}")
    a(f"s_lshl_b32 {s(sT0)}, {s(sTb)}, 2")
    a(f"s_add_u32 {s(sT0)}, {s(sT0)}, {s(sW)}")
    a(f"s_mul_i32 {s(sXo)}, {s(sT0)}, {32*896}")
    a(f"s_mul_i32 {s(sWo)}, {s(sW)}, {16*2688}")
    a(f"s_mul_i32 {s(sT0)}, {s(sG)}, 224")
    a(f"s_add_u32 {s(sWo)}, {s(sWo)}, {s(sT0)}")
    a(f"s_sub_u32 {s(sWo)}, {s(sWo)}, {s(sOfs)}")
    a(f"s_lshl_b32 {s(sSl)}, {s(sW)}, 12")
    a(f"s_waitcnt lgkmcnt(0)")
    a(f"s_mov_b32 {s(SA)}, s64\ns_mov_b32 {s(SA+1)}, s65\ns_mov_b32 {s(SBv)}, s66\ns_mov_b32 {s(SBv+1)}, s67")
    def issue(c):
        base = (c % NS) * 32768
        for i in range(4):
            a(f"s_add_u32 m0, {s(sSl)}, {base + 1024*i}")
            a(f"s_add_u32 {s(sT0)}, {s(sXo)}, {8*i*896 + 128*c}")
            a(f"buffer_load_dwordx4 {v(vX1 if i % 2 else vX0)}, {s(SA,4)}, {s(sT0)} offen lds")
            a(f"s_add_u32 m0, {s(sSl)}, {base + 16384 + 1024*i}")
            a(f"s_add_u32 {s(sT0)}, {s(sWo)}, {(64*c + 4*i)*2688}")
            a(f"buffer_load_dwordx4 {v(vWw)}, {s(SBv,4)}, {s(sT0)} offen lds")
    issue(0); issue(1)
    issued = 2
    for c in range(7):
        a(f"s_waitcnt vmcnt({8*(issued-1-c)})")
        if c in (0, 6): rt(1 if c == 0 else 2)
        a("s_barrier")
        for k in range(2 if c == 0 else 1):
            if issued < 7:
                issue(issued); issued += 1
    a(f"s_and_b32 {s(sT0)}, {s(sG)}, 3")
    a(f"s_lshl_b32 {s(sT0)}, {s(sT0)}, 2")
    a(f"v_lshrrev_b32 v2, 4, v0")
    a(f"v_add_u32 v2, {s(sT0)}, v2")
    a(f"v_and_b32 v3, 15, v0")
    a(f"s_lshr_b32 {s(sT1)}, {s(sG)}, 2")
    a(f"s_cmp_eq_u32 {s(sT1)}, 0")
    a(f"s_cbranch_scc0 {name}_sig_kv")
    a(f"v_mov_b32 v3, {s(sTb)}")
    a.label(f"{name}_sig_kv")
    a(f"v_and_b32 v4, 1, v2")
    a(f"v_lshl_add_u32 v4, v4, 4, v3")
    a(f"v_lshrrev_b32 v2, 1, v2")
    a(f"v_lshl_add_u32 v2, v4, 3, v2")
    a(f"v_lshlrev_b32 v2, 8, v2")
    a(f"s_lshl_b32 {s(sT0)}, {s(sT1)}, 4")
    a(f"s_add_u32 {s(sT0)}, {s(sT0)}, {s(sTb)}")
    a(f"s_sub_u32 {s(sT0)}, {s(sT0)}, 16")
    a(f"s_cmp_eq_u32 {s(sT1)}, 0")
    a(f"s_cselect_b32 {s(sT0)}, 32, {s(sT0)}")
    a(f"s_lshl_b32 {s(sT0)}, {s(sT0)}, 2")
    a(f"s_add_u32 {s(sXo)}, {s(sT0)}, {WS_MB1}")
    a(f"s_mov_b32 {s(sWo)}, 0")
    a(f"s_branch {name}_h_p1")
    a.label(f"{name}_t1c")
    va = VAlloc(8)
    ACC = [[va(16) for hp in range(2)] for tt in range(2)]
    XF = [[va(4) for tt in range(2)] for b in range(2)]
    WF = [[va(4) for hp in range(2)] for b in range(2)]
    bX = [va(1) for i in range(4)]; bW = [va(1) for hp in range(2)]
    aX = [va(1) for i in range(4)]; aW = [va(1) for hp in range(2)]
    t = [va(1) for i in range(6)]
    vPad = va(1)
    a(f"s_lshl_b32 {s(sT0)}, s2, 2")
    a(f"s_add_u32 {s(sT0)}, {s(sT0)}, {s(sW)}")
    a(f"s_cmp_lg_u32 {s(sT0)}, {64*4+3}")
    a(f"s_cbranch_scc1 {name}_notag")
    a(f"s_mov_b32 {s(SD+2)}, 256\ns_mov_b32 {s(SD+3)}, 0x20000")
    a(f"v_mov_b32 v2, 0")
    a(f"s_mov_b32 {s(sT0)}, {WS_TAG}")
    a("s_waitcnt lgkmcnt(0)")
    a(f"s_mov_b32 {s(SD)}, s78\ns_mov_b32 {s(SD+1)}, s79")
    a("s_mov_b64 exec, 1")
    a(f"buffer_load_dword v3, v2, {s(SWS,4)}, {s(sT0)} offen sc1")
    a("s_waitcnt vmcnt(0)")
    a("v_add_u32 v3, 1, v3")
    a("v_max_u32 v3, 1, v3")
    a(f"buffer_store_dword v3, v2, {s(SD,4)}, 0 offen sc1")
    a(f"buffer_store_dword v3, v2, {s(SWS,4)}, {s(sT0)} offen sc1")
    a("s_mov_b64 exec, -1")
    a("s_nop 1")
    a.label(f"{name}_notag")
    a(f"s_lshl_b32 {s(sN)}, {s(sN)}, 2")
    a(f"s_add_u32 {s(sN)}, {s(sN)}, {s(sW)}")
    a(f"s_add_u32 {s(sN)}, {s(sN)}, 4")
    a(f"s_mul_i32 {s(sCh)}, {s(sN)}, 205")
    a(f"s_lshr_b32 {s(sCh)}, {s(sCh)}, 12")
    a(f"s_mul_i32 {s(sA_)}, {s(sCh)}, 20")
    a(f"s_sub_u32 {s(sA_)}, {s(sN)}, {s(sA_)}")
    a(f"s_add_u32 {s(sCh)}, {s(sCh)}, 2")
    a(f"s_cmp_lt_u32 {s(sA_)}, 8")
    a(f"s_cbranch_scc1 {name}_pf_x")
    a(f"s_sub_u32 {s(sA_)}, {s(sA_)}, 8")
    a(f"s_lshl_b32 {s(sA_)}, {s(sA_)}, 6")
    a(f"v_add_u32 v3, {s(sA_)}, v0")
    a(f"v_mul_u32_u24 v4, 43691, v3")
    a(f"v_lshrrev_b32 v4, 19, v4")
    a(f"v_mul_u32_u24 v5, 12, v4")
    a(f"v_sub_u32 v5, v3, v5")
    a(f"v_mul_u32_u24 v4, 2688, v4")
    a(f"v_lshl_add_u32 v4, v5, 7, v4")
    a(f"s_and_b32 {s(sA_)}, {s(sXc)}, 1")
    a(f"s_mul_i32 {s(sA_)}, {s(sA_)}, 1280")
    a(f"s_mul_i32 {s(sB2)}, {s(sCh)}, {64*2688}")
    a(f"s_add_u32 {s(sA_)}, {s(sA_)}, {s(sB2)}")
    a(f"s_waitcnt lgkmcnt(0)")
    a(f"s_mov_b32 {s(SBv)}, s66\ns_mov_b32 {s(SBv+1)}, s67")
    a(f"buffer_load_dword v6, v4, {s(SBv,4)}, {s(sA_)} offen")
    a(f"s_branch {name}_pf_end")
    a.label(f"{name}_pf_x")
    a(f"v_mul_u32_u24 v4, 896, v0")
    a(f"s_lshr_b32 {s(sB2)}, {s(sXc)}, 1")
    a(f"s_lshl_b32 {s(sB2)}, {s(sB2)}, 3")
    a(f"s_add_u32 {s(sB2)}, {s(sB2)}, {s(sA_)}")
    a(f"s_mul_i32 {s(sB2)}, {s(sB2)}, {64*896}")
    a(f"s_lshl_b32 {s(sA_)}, {s(sCh)}, 7")
    a(f"s_add_u32 {s(sB2)}, {s(sB2)}, {s(sA_)}")
    a(f"s_waitcnt lgkmcnt(0)")
    a(f"s_mov_b32 {s(SA)}, s64\ns_mov_b32 {s(SA+1)}, s65")
    a(f"buffer_load_dword v6, v4, {s(SA,4)}, {s(sB2)} offen")
    a.label(f"{name}_pf_end")
    a(f"v_and_b32 {v(t[0])}, 31, v0")
    a(f"v_lshrrev_b32 {v(t[1])}, 5, v0")
    a(f"v_bfe_u32 {v(t[2])}, v0, 1, 3")
    a(f"v_xor_b32 {v(t[2])}, {v(t[2])}, {v(t[1])}")
    a(f"s_lshr_b32 {s(sT0)}, {s(sW)}, 1")
    a(f"s_lshl_b32 {s(sT0)}, {s(sT0)}, 13")
    a(f"v_lshl_add_u32 {v(t[3])}, {v(t[0])}, 7, {s(sT0)}")
    for i in range(4):
        a(f"v_xor_b32 {v(t[4])}, {2*i}, {v(t[2])}")
        a(f"v_lshl_add_u32 {v(bX[i])}, {v(t[4])}, 4, {v(t[3])}")
    a(f"v_mov_b32 {v(vPad)}, 0")
    a(f"v_mov_b32 {v(t[4])}, 0x3f803f80")
    a(f"v_cmp_eq_u32 vcc, 28, {v(t[0])}")
    a(f"v_bfe_u32 {v(t[0])}, v0, 2, 2")
    a(f"v_lshl_add_u32 {v(t[2])}, {v(t[1])}, 3, {v(t[0])}")
    a(f"v_cndmask_b32 {v(vPad)}, {v(vPad)}, {v(t[4])}, vcc")
    a(f"v_lshlrev_b32 {v(t[2])}, 8, {v(t[2])}")
    a(f"v_bfe_u32 {v(t[3])}, v0, 4, 1")
    a(f"v_lshlrev_b32 {v(t[3])}, 5, {v(t[3])}")
    a(f"v_lshl_add_u32 {v(t[3])}, {v(t[0])}, 6, {v(t[3])}")
    a(f"v_and_b32 {v(t[4])}, 3, v0")
    a(f"v_lshl_add_u32 {v(t[3])}, {v(t[4])}, 3, {v(t[3])}")
    a(f"s_and_b32 {s(sT0)}, {s(sW)}, 1")
    a(f"s_mul_i32 {s(sT0)}, {s(sT0)}, 112")
    a(f"s_add_u32 {s(sT0)}, {s(sT0)}, {s(sOfs)}")
    for hp in range(2):
        a(f"s_add_u32 {s(sT1)}, {s(sT0)}, {56*hp}")
        a(f"v_add_u32 {v(t[4])}, {s(sT1)}, {v(t[3])}")
        a(f"v_and_b32 {v(t[4])}, 255, {v(t[4])}")
        a(f"v_add_u32 {v(bW[hp])}, {v(t[4])}, {v(t[2])}")
    for tt in range(2):
        for hp in range(2):
            for r in range(16):
                a(f"v_mov_b32 {v(ACC[tt][hp]+r)}, 0")
    a(f"s_lshr_b32 {s(sT0)}, {s(sG)}, 2")
    a(f"s_lshl_b32 {s(sXo)}, {s(sT0)}, 21")
    a(f"s_and_b32 {s(sT0)}, {s(sG)}, 3")
    a(f"s_lshl_b32 {s(sT0)}, {s(sT0)}, 19")
    a(f"s_add_u32 {s(sXo)}, {s(sXo)}, {s(sT0)}")
    a(f"s_and_b32 {s(sT0)}, {s(sW)}, 1")
    a(f"s_lshl_b32 {s(sT0)}, {s(sT0)}, 18")
    a(f"s_add_u32 {s(sXo)}, {s(sXo)}, {s(sT0)}")
    a(f"s_lshl_b32 {s(sT0)}, {s(sTb)}, 13")
    a(f"s_add_u32 {s(sXo)}, {s(sXo)}, {s(sT0)}")
    a(f"s_lshr_b32 {s(sT0)}, {s(sW)}, 1")
    a(f"s_lshl_b32 {s(sT0)}, {s(sT0)}, 12")
    a(f"s_add_u32 {s(sXo)}, {s(sXo)}, {s(sT0)}")
    a(f"s_add_u32 {s(sWo)}, {s(sXo)}, {64*2048}")
    a(f"s_mov_b32 {s(sHi)}, 0\ns_mov_b32 {s(sHi+1)}, -1")
    a(f"s_mov_b32 {s(sMsk)}, 0xf0000000\ns_mov_b32 {s(sMsk+1)}, 0xf0000000")
    a(f"s_cmp_lt_u32 {s(sG)}, 4")
    a(f"s_cselect_b32 {s(SP)}, {f32hex(M.SC)}, 1.0")
    a(f"s_cselect_b32 {s(SP+1)}, {f32hex(M.SC)}, 1.0")
    a(f"s_cselect_b32 {s(sPadv)}, 0, 0x3f803f80")
    a(f"s_mov_b32 {s(sC)}, 0")
    a(f"s_cmp_ge_u32 {s(sG)}, 8")
    a(f"s_cbranch_scc1 {name}_t1v")
    def setaddr(nxt):
        a(f"s_add_u32 {s(sT0)}, {s(sC)}, {nxt}")
        a(f"s_and_b32 {s(sT0)}, {s(sT0)}, {NS-1}")
        a(f"s_lshl_b32 {s(sT0)}, {s(sT0)}, 15")
        for i in range(4):
            a(f"v_add_u32 {v(aX[i])}, {s(sT0)}, {v(bX[i])}")
        for hp in range(2):
            a(f"v_add_u32 {v(aW[hp])}, {s(sT0)}, {v(bW[hp])}")
    def rd_list(i, b):
        L = []
        for tt in range(2):
            L.append(f"ds_read_b128 {v(XF[b][tt],4)}, {v(aX[i])} offset:{4096*tt}")
        for hp in range(2):
            for jj in range(2):
                L.append(f"ds_read_b64_tr_b16 {v(WF[b][hp]+2*jj,2)}, {v(aW[hp])} offset:{16384+(16*i+4*jj)*256}")
        return [L[0], L[2], L[3], L[4], L[5], L[1]]
    def kloop(lbl, vmode):
        setaddr(0)
        a("s_barrier")
        for r_ in rd_list(0, 0): a(r_)
        a.label(lbl)
        for i in range(4):
            b = i % 2
            mm = []
            for tt in range(2):
                for hp in range(2):
                    mm.append(mfma32(ACC[tt][hp], XF[b][tt], WF[b][hp], ACC[tt][hp]) if vmode else mfma32(ACC[tt][hp], WF[b][hp], XF[b][tt], ACC[tt][hp]))
            a("s_waitcnt lgkmcnt(0)")
            if i < 3:
                R = rd_list(i + 1, 1 - b)
                a(mm[0]); a(R[0]); a(R[1]); a(mm[1]); a(R[2]); a(R[3]); a(mm[2]); a(R[4]); a(R[5]); a(mm[3])
            else:
                R = rd_list(0, 0)
                a(mm[0])
                a(f"s_cmp_eq_u32 {s(sC)}, 6")
                a(f"s_cbranch_scc1 {lbl}_last")
                setaddr(1)
                a(mm[1])
                a("s_barrier")
                a(R[0]); a(R[1]); a(R[2]); a(mm[2]); a(R[3]); a(R[4]); a(R[5]); a(mm[3])
                a(f"s_add_u32 {s(sC)}, {s(sC)}, 1")
                a(f"s_branch {lbl}")
                a.label(f"{lbl}_last")
                a(mm[1]); a(mm[2]); a(mm[3])
        rt(1)
        a("s_nop 7\ns_nop 1")
    order = [(0, 0), (0, 1), (1, 0), (1, 1)]
    kloop(f"{name}_qk_loop", False)
    for tt, hp in order:
        A_ = ACC[tt][hp]
        for r in range(0, 16, 2):
            a(f"v_pk_mul_f32 {v(A_+r,2)}, {v(A_+r,2)}, {s(SP,2)}")
        for k in range(8):
            a(f"v_cvt_pk_bf16_f32 {v(A_+k)}, {v(A_+2*k)}, {v(A_+2*k+1)}")
        a(f"s_mov_b64 exec, {s(sHi,2)}")
        a(f"v_mov_b32 {v(A_+6)}, {s(sPadv)}")
        a(f"v_mov_b32 {v(A_+7)}, 0")
        a(f"s_mov_b64 exec, -1")
        for t_ in range(2):
            a(f"buffer_store_dwordx4 {v(A_+4*t_,4)}, v1, {s(SWS,4)}, {s(sWo if hp else sXo)} offen offset:{2048*tt+1024*t_} {ST}")
    a(f"s_branch {name}_c_p1")
    a.label(f"{name}_t1v")
    kloop(f"{name}_v_loop", True)
    for tt, hp in order:
        A_ = ACC[tt][hp]
        for k in range(8):
            a(f"v_cvt_pk_bf16_f32 {v(A_+k)}, {v(A_+2*k)}, {v(A_+2*k+1)}")
        a(f"s_mov_b64 exec, {s(sMsk,2)}")
        for k in range(8):
            a(f"v_mov_b32 {v(A_+k)}, {v(vPad)}")
        a(f"s_mov_b64 exec, -1")
        for t_ in range(2):
            a(f"buffer_store_dwordx4 {v(A_+4*t_,4)}, v1, {s(SWS,4)}, {s(sWo if hp else sXo)} offen offset:{2048*tt+1024*t_} {ST}")
    a(f"s_branch {name}_c_p1")
    hi = va.hi
    a.label(f"{name}_bwg")
    sB = sTb
    a(f"s_lshl_b32 {s(sB)}, {s(sXc)}, 3")
    a(f"s_add_u32 {s(sB)}, {s(sB)}, {s(sSlot)}")
    srd_consts(a, SC_)
    a(f"s_cmp_ge_u32 s3, 4")
    a(f"s_cbranch_scc1 {name}_t3")
    a(f"s_mov_b32 {s(SA+2)}, {2048*896}\ns_mov_b32 {s(SA+3)}, 0x20000")
    va = VAlloc(2)
    RAW = [va(32), va(32)]
    XFc = [va(4) for j in range(8)]
    AC = [[va(4) for cs in range(2)] for j in range(8)]
    FC = [[va(4) for u in range(2)] for cs in range(2)]
    TWv = va(56)
    t = [va(1) for i in range(8)]
    vP = [va(1) for r in range(4)]; vM = [va(1) for r in range(4)]
    aR = [va(1), va(1)]
    sGq, sO = sG, sC
    a(f"s_lshr_b32 {s(sGq)}, {s(sB)}, 2")
    a(f"s_and_b32 {s(sO)}, {s(sB)}, 3")
    a(f"s_and_b32 {s(sT1)}, {s(sW)}, 1")
    a(f"s_lshl_b32 {s(sT0)}, {s(sT1)}, 12")
    a(f"s_add_u32 {s(sT0)}, {s(sT0)}, {CT_F56}")
    for cs in range(2):
        for u in range(2):
            a(f"buffer_load_dwordx4 {v(FC[cs][u],4)}, v1, {s(SC_,4)}, {s(sT0)} offen offset:{2048*cs+1024*u}")
    a(f"v_lshrrev_b32 {v(t[5])}, 4, v0")
    a(f"v_lshlrev_b32 {v(t[6])}, 8, {v(t[5])}")
    a(f"s_lshl_b32 {s(sT0)}, {s(sT1)}, 10")
    a(f"s_add_u32 {s(sT0)}, {s(sT0)}, {CT_TW448B}")
    for q in range(14):
        a(f"buffer_load_dwordx4 {v(TWv+4*q,4)}, {v(t[6])}, {s(SC_,4)}, {s(sT0)} offen offset:{16*q}")
    a(f"s_lshr_b32 {s(sT2)}, {s(sW)}, 1")
    a(f"s_lshl_b32 {s(sT0)}, {s(sGq)}, 5")
    a(f"s_lshl_b32 {s(sT1)}, {s(sO)}, 1")
    a(f"s_add_u32 {s(sT0)}, {s(sT0)}, {s(sT1)}")
    a(f"s_add_u32 {s(sT0)}, {s(sT0)}, {s(sT2)}")
    a(f"s_mul_i32 {s(sXo)}, {s(sT0)}, {4*896}")
    a(f"s_mul_i32 {s(sSl)}, {s(sW)}, 14336")
    a(f"v_lshrrev_b32 {v(t[0])}, 3, v0")
    a(f"v_and_b32 {v(t[1])}, 7, v0")
    for i in range(14):
        d_ = RAW[1] + i
        a(f"v_add_u32 {v(t[2])}, {8*i}, {v(t[0])}")
        a(f"v_mul_u32_u24 {v(t[3])}, 147, {v(t[2])}")
        a(f"v_lshrrev_b32 {v(t[3])}, 10, {v(t[3])}")
        a(f"v_lshrrev_b32 {v(t[4])}, 2, {v(t[3])}")
        a(f"v_and_b32 {v(t[3])}, 1, {v(t[3])}")
        a(f"v_lshl_add_u32 {v(t[3])}, {v(t[3])}, 2, {v(t[4])}")
        a(f"v_xor_b32 {v(t[3])}, {v(t[3])}, {v(t[1])}")
        a(f"v_mul_u32_u24 {v(t[4])}, {32*896-3584}, {v(t[4])}")
        a(f"v_lshl_add_u32 {v(t[4])}, {v(t[2])}, 7, {v(t[4])}")
        a(f"v_lshl_add_u32 {v(d_)}, {v(t[3])}, 4, {v(t[4])}")
    a("s_waitcnt lgkmcnt(0)" + (" vmcnt(0)" if os.environ.get("T2P", "1") == "1" else ""))
    a(f"s_mov_b32 {s(SA)}, s70\ns_mov_b32 {s(SA+1)}, s71")
    for i in range(14):
        a(f"s_add_u32 m0, {s(sSl)}, {1024*i}")
        a("s_nop 0")
        a(f"buffer_load_dwordx4 {v(RAW[1]+i)}, {s(SA,4)}, {s(sXo)} offen lds")
    a(f"s_and_b32 {s(sT1)}, {s(sW)}, 1")
    a(f"v_and_b32 {v(t[0])}, 3, v0")
    a(f"v_bfe_u32 {v(t[1])}, v0, 2, 2")
    a(f"v_lshl_add_u32 {v(t[2])}, {v(t[0])}, 2, {v(t[1])}")
    a(f"v_mul_u32_u24 {v(t[2])}, 896, {v(t[2])}")
    a(f"v_add_u32 {v(t[2])}, {s(sSl)}, {v(t[2])}")
    a(f"v_and_b32 {v(t[1])}, 1, {v(t[1])}")
    a(f"v_lshl_add_u32 {v(t[3])}, {v(t[1])}, 2, {v(t[0])}")
    a(f"v_lshlrev_b32 {v(t[3])}, 4, {v(t[3])}")
    a(f"v_lshl_add_u32 {v(aR[0])}, {v(t[5])}, 7, {v(t[2])}")
    a(f"v_min_u32 {v(t[4])}, 2, {v(t[5])}")
    a(f"v_lshl_add_u32 {v(aR[1])}, {v(t[4])}, 7, {v(t[2])}")
    a(f"v_add_u32 {v(aR[1])}, 512, {v(aR[1])}")
    a(f"v_and_b32 {v(t[0])}, 15, v0")
    a(f"v_lshlrev_b32 {v(t[0])}, 2, {v(t[0])}")
    a(f"s_lshl_b32 {s(sT0)}, {s(sT1)}, 4")
    a(f"v_lshl_add_u32 {v(t[1])}, {v(t[5])}, 2, {s(sT0)}")
    a(f"v_mov_b32 {v(t[7])}, 0x7f000000")
    a(f"s_mov_b32 {s(sA_)}, {M.X1S}")
    for rr in range(4):
        a(f"v_add_u32 {v(t[2])}, {rr}, {v(t[1])}")
        a(f"v_mad_u32_u24 {v(vP[rr])}, {v(t[2])}, {s(sA_)}, {v(t[0])}")
        a(f"v_sub_u32 {v(t[4])}, 28, {v(t[2])}")
        a(f"v_mad_u32_u24 {v(vM[rr])}, {v(t[4])}, {s(sA_)}, {v(t[0])}")
        a(f"v_cmp_lt_u32 vcc, 28, {v(t[2])}")
        a("s_nop 1")
        a(f"v_cndmask_b32 {v(vP[rr])}, {v(vP[rr])}, {v(t[7])}, vcc")
        a(f"v_cndmask_b32 {v(vM[rr])}, {v(vM[rr])}, {v(t[7])}, vcc")
    a(f"s_lshr_b32 {s(sT0)}, {s(sO)}, 1")
    a(f"s_lshl_b32 {s(sT0)}, {s(sT0)}, 12")
    a(f"s_lshl_b32 {s(sT1)}, {s(sGq)}, 8")
    a(f"s_add_u32 {s(sT0)}, {s(sT0)}, {s(sT1)}")
    a(f"s_and_b32 {s(sT1)}, {s(sO)}, 1")
    a(f"s_lshl_b32 {s(sT1)}, {s(sT1)}, 7")
    a(f"s_add_u32 {s(sT0)}, {s(sT0)}, {s(sT1)}")
    a(f"s_lshl_b32 {s(sT1)}, {s(sT2)}, 6")
    a(f"s_add_u32 {s(sT0)}, {s(sT0)}, {s(sT1)}")
    for tt_ in range(8):
        col = 56 * tt_ if tt_ < 4 else 56 * (8 - tt_) - 28
        a(f"s_add_u32 {s(sTt+tt_)}, {s(sT0)}, {M.WS_X1 + col*M.X1S}")
    a(f"s_mov_b32 {s(sScale)}, {f32hex(0.5**0.5)}\ns_mov_b32 {s(sScale+1)}, {f32hex(0.5**0.5)}")
    a(f"s_mov_b32 {s(sMsk)}, 0x05040100\ns_mov_b32 {s(sMsk+1)}, 0x07060302")
    a("s_waitcnt vmcnt(0)")
    rt(1)
    for u in range(2):
        for e in range(8):
            a(f"v_xor_b32 {v(t[e%2])}, {16*e}, {v(t[3])}")
            a(f"v_add_u32 {v(t[e%2])}, {v(t[e%2])}, {v(aR[u])}")
            a(f"ds_read_b128 {v(RAW[u]+4*e,4)}, {v(t[e%2])}")
    for u in range(2):
        a(f"s_waitcnt lgkmcnt({8 if u == 0 else 0})")
        for j in range(8):
            for q in range(4):
                lo = RAW[u] + 8 * q + j // 2; hi_ = RAW[u] + 8 * q + 4 + j // 2
                a(f"v_perm_b32 {v(XFc[j]+q)}, {v(hi_)}, {v(lo)}, {s(sMsk + j % 2)}")
            if j >= 1:
                for cs in range(2):
                    a(mfma16(AC[j-1][cs], FC[cs][u], XFc[j-1], None if u == 0 else AC[j-1][cs]))
        a("s_nop 1")
        for cs in range(2):
            a(mfma16(AC[7][cs], FC[cs][u], XFc[7], None if u == 0 else AC[7][cs]))
    a("s_nop 7")
    for rp in range(2):
        pool = Pool([RAW[0] + 8 + 2 * i for i in range(8)])
        for j in range(1, 8):
            tw = TWv + 8 * (j - 1) + 2 * rp
            PK8.pcmul(a, AC[j][0] + 2 * rp, AC[j][1] + 2 * rp, tw, tw + 4, RAW[0] + 4 * (j % 2))
        X = PK8.dft8(a, pool, [((AC[j][0] + 2 * rp, 1), (AC[j][1] + 2 * rp, 1)) for j in range(8)], -1, sScale)
        for tt_ in range(8):
            re, im = X[tt_]
            if tt_ >= 4: im = neg(im)
            for h in range(2):
                rr = 2 * rp + h
                o_ = RAW[1] + 8 * rr + tt_
                a(f"v_cvt_pk_bf16_f32 {v(o_)}, {sv((re[0]+h, re[1]))}, {sv((im[0]+h, im[1]))}")
                a(f"buffer_store_dword {v(o_)}, {v(vP[rr] if tt_ < 4 else vM[rr])}, {s(SWS,4)}, {s(sTt+tt_)} offen {ST}")
    a(f"s_mov_b32 {s(sHi)}, 0\ns_mov_b32 {s(sHi+1)}, -1")
    a(f"s_branch {name}_c_p1")
    hi = max(hi, va.hi)
    a.label(f"{name}_t3")
    a(f"s_lshr_b32 {s(sG)}, {s(sB)}, 3")
    a(f"s_and_b32 {s(sC)}, {s(sB)}, 7")
    a(f"s_lshl_b32 {s(sT0)}, {s(sG)}, 7")
    a(f"s_lshl_b32 {s(sT1)}, {s(sC)}, 2")
    a(f"s_add_u32 {s(sT0)}, {s(sT0)}, {s(sT1)}")
    a(f"s_add_u32 {s(sT0)}, {s(sT0)}, {s(sW)}")
    a(f"s_mul_i32 {s(sXo)}, {s(sT0)}, 900")
    a(f"s_lshl_b32 {s(sSl)}, {s(sW)}, 13")
    a(f"s_add_u32 {s(sSl)}, {s(sSl)}, 65536")
    a(f"v_lshlrev_b32 v2, 7, v0")
    a(f"s_lshl_b32 {s(sT1)}, {s(sSlot)}, 13")
    if os.environ.get("T3P", "1") == "1":
        a(f"buffer_load_dword v3, v2, {s(SC_,4)}, {s(sT1)} offen")
        a("s_waitcnt vmcnt(0)")
    a(f"s_waitcnt lgkmcnt(0)")
    a(f"s_mov_b32 {s(SBv)}, s72\ns_mov_b32 {s(SBv+1)}, s73\ns_mov_b32 {s(SBv+2)}, {2048*450}\ns_mov_b32 {s(SBv+3)}, 0x20000")
    a(f"s_mov_b32 {s(SD)}, s74\ns_mov_b32 {s(SD+1)}, s75\ns_mov_b32 {s(SD+2)}, {2048*450}\ns_mov_b32 {s(SD+3)}, 0x20000")
    for r in range(4):
        for arr in range(2):
            a(f"s_add_u32 m0, {s(sSl)}, {4096*arr + 1024*r}")
            a(f"s_add_u32 {s(sT0)}, {s(sXo)}, {64*450*r}")
            a(f"buffer_load_dwordx4 v1, {s(SD if arr else SBv,4)}, {s(sT0)} offen lds")
    a(f"v_and_b32 v2, 1, v0")
    a(f"v_lshrrev_b32 v3, 1, v0")
    a(f"v_mul_u32_u24 v4, 450, v2")
    a(f"v_lshl_add_u32 v4, v3, 1, v4")
    a(f"v_add_u32 v4, {s(sSl)}, v4")
    a(f"v_lshrrev_b32 v5, 3, v0")
    a(f"v_mul_u32_u24 v5, {M.WTS}, v5")
    a(f"v_and_b32 v2, 7, v0")
    a(f"v_lshl_add_u32 v5, v2, 4, v5")
    a(f"s_lshl_b32 {s(sT0)}, {s(sG)}, 12")
    a(f"s_lshl_b32 {s(sT1)}, {s(sC)}, 9")
    a(f"s_add_u32 {s(sT0)}, {s(sT0)}, {s(sT1)}")
    a(f"s_lshl_b32 {s(sT1)}, {s(sW)}, 7")
    a(f"s_add_u32 {s(sT0)}, {s(sT0)}, {s(sT1)}")
    a(f"s_add_u32 {s(sT0)}, {s(sT0)}, {M.WS_WT}")
    a("s_waitcnt vmcnt(0)")
    rt(1)
    D0 = 160
    def t3_reads(it):
        for r in range(4):
            a(f"ds_read_u16 {v(D0+4*it+r)}, v4 offset:{1024*r+64*it}")
            a(f"ds_read_u16 {v(D0+32+4*(it%2)+r)}, v4 offset:{4096+1024*r+64*it}")
    t3_reads(0)
    for it in range(8):
        if it < 7:
            t3_reads(it + 1)
            a("s_waitcnt lgkmcnt(8)")
        else:
            a("s_waitcnt lgkmcnt(0)")
        for r in range(4):
            a(f"v_lshl_or_b32 {v(D0+4*it+r)}, {v(D0+32+4*(it%2)+r)}, 16, {v(D0+4*it+r)}")
        a(f"buffer_store_dwordx4 {v(D0+4*it,4)}, v5, {s(SWS,4)}, {s(sT0)} offen {ST}")
        a(f"s_add_u32 {s(sT0)}, {s(sT0)}, {8*M.WTS}")
    a(f"s_mov_b32 {s(sWo)}, 1")
    a.label(f"{name}_h_p1")
    import fused_b
    hi = max(hi, fused_b.helpers(a, name, locals()))
    a.label(f"{name}_c_p1")
    hi = max(hi, fused_b.computes(a, name, locals()))
    a.label(f"{name}_end")
    a("s_endpgm")
    return a.text() + kernel_desc(NAME, hi, 102), hi
```

```python
from asmlib import *
import model as M
import os
from k2 import (CT_F64, CT_F32, CT_T2048, CT_F56, CT_TW448, CT_G56, srd_consts, cmul)
from dft8 import *
import fused as F

def helpers(a, name, E):
    SA, SBv, SWS, SC_, SD = E['SA'], E['SBv'], E['SWS'], E['SC_'], E['SD']
    sW, sXc, sSlot, sTag = E['sW'], E['sXc'], E['sSlot'], E['sTag']
    sXo, sWo, sN = E['sXo'], E['sWo'], E['sN']
    rt, dump, poll = E['rt'], E['dump'], E['poll']
    ST, LD = F.ST, F.LD
    sT0, sT1, sT2 = 33, 34, 35
    sHead, sCol, sDK, sM, sK, sV, sZ0, sZ1, sTb2, sCg, sWoO, sK8 = 31, 32, 36, 37, 40, 41, 42, 43, 44, 45, 46, 48
    va = VAlloc(8)
    DA = [[va(4) for ks in range(4)] for mt in range(2)]
    F64 = [[va(4) for ks in range(4)] for c in range(2)]
    F32 = [[va(4) for k in range(3)] for mt in range(2)]
    TW = va(16); Wv = [va(4), va(4)]
    AC = [[va(4) for c in range(2)] for mt in range(2)]
    BF = [va(4), va(4)]
    T = va(4); WR = va(1); WI = va(1)
    vL16 = va(1); vG = va(1); vA = va(1); vB = va(1); vC = va(1); vD = va(1); vWo = va(1); vS2 = va(1)
    assert va.hi <= 160
    srd_consts(a, SC_)
    a(f"s_lshl_b32 {s(sK)}, {s(sW)}, 13")
    a(f"s_add_u32 {s(sV)}, {s(sK)}, 4096")
    for ks in range(4):
        a(f"buffer_load_dwordx4 {v(F64[0][ks],4)}, v1, {s(SC_,4)}, {s(sK)} offen offset:{1024*ks}")
        a(f"buffer_load_dwordx4 {v(F64[1][ks],4)}, v1, {s(SC_,4)}, {s(sV)} offen offset:{1024*ks}")
    a(f"s_lshl_b32 {s(sK)}, {s(sW)}, 12")
    a(f"s_add_u32 {s(sK)}, {s(sK)}, {CT_T2048}")
    for q in range(4):
        a(f"buffer_load_dwordx4 {v(TW+4*q,4)}, v1, {s(SC_,4)}, {s(sK)} offen offset:{1024*q}")
    a(f"s_mov_b32 {s(sK)}, {CT_F32}")
    a(f"s_mov_b32 {s(sV)}, {CT_F32+3072}")
    for k in range(3):
        a(f"buffer_load_dwordx4 {v(F32[0][k],4)}, v1, {s(SC_,4)}, {s(sK)} offen offset:{1024*k}")
        a(f"buffer_load_dwordx4 {v(F32[1][k],4)}, v1, {s(SC_,4)}, {s(sV)} offen offset:{1024*k}")
    a(f"s_lshr_b32 {s(sHead)}, {s(sSlot)}, 4")
    a(f"s_lshl_b32 {s(sT0)}, {s(sXc)}, 1")
    a(f"s_add_u32 {s(sHead)}, {s(sHead)}, {s(sT0)}")
    a(f"s_lshl_b32 {s(sDK)}, {s(sHead)}, 17")
    a(f"s_lshl_b32 {s(sT0)}, {s(sW)}, 12")
    a(f"s_add_u32 {s(sDK)}, {s(sDK)}, {s(sT0)}")
    a(f"s_add_u32 {s(sDK)}, {s(sDK)}, {M.WS_KF}")
    a(f"s_lshl_b32 {s(sM)}, {s(sW)}, 13")
    a(f"s_lshl_b32 {s(sCol)}, {s(sXc)}, 5")
    a(f"s_add_u32 {s(sCol)}, {s(sCol)}, {s(sSlot)}")
    a(f"v_and_b32 {v(vL16)}, 15, v0")
    a(f"v_lshrrev_b32 {v(vG)}, 4, v0")
    a(f"v_lshlrev_b32 {v(vA)}, 12, {v(vG)}")
    a(f"v_lshrrev_b32 {v(T)}, 1, {v(vL16)}")
    a(f"v_lshl_add_u32 {v(vA)}, {v(T)}, 7, {v(vA)}")
    a(f"v_and_b32 {v(T)}, 1, v0")
    a(f"v_lshl_add_u32 {v(vA)}, {v(T)}, 4, {v(vA)}")
    a(f"v_mul_u32_u24 {v(vB)}, {4*272}, {v(vG)}")
    a(f"v_lshl_add_u32 {v(vB)}, {v(vL16)}, 2, {v(vB)}")
    a(f"s_lshl_b32 {s(sT0)}, {s(sW)}, 6")
    a(f"s_add_u32 {s(sT0)}, {s(sT0)}, {F.LDS_X}")
    a(f"v_add_u32 {v(vB)}, {s(sT0)}, {v(vB)}")
    a(f"v_mul_u32_u24 {v(vC)}, 272, {v(vL16)}")
    a(f"v_lshl_add_u32 {v(vC)}, {v(vG)}, 4, {v(vC)}")
    a(f"v_add_u32 {v(vC)}, {F.LDS_X}, {v(vC)}")
    a(f"v_lshlrev_b32 {v(vD)}, 2, {v(vL16)}")
    a(f"v_lshrrev_b32 {v(T)}, 1, {v(vG)}")
    a(f"v_add_u32 {v(vD)}, {v(vD)}, {v(T)}")
    a(f"v_mul_u32_u24 {v(vD)}, {M.ZSTRIDE}, {v(vD)}")
    a(f"v_and_b32 {v(T)}, 1, {v(vG)}")
    a(f"v_lshl_add_u32 {v(vD)}, {v(T)}, 4, {v(vD)}")
    a(f"s_mul_i32 {s(sZ0)}, {s(sW)}, {64*M.ZSTRIDE}")
    a(f"s_lshl_b32 {s(sT1)}, {s(sCol)}, 5")
    a(f"s_add_u32 {s(sZ0)}, {s(sZ0)}, {s(sT1)}")
    a(f"s_add_u32 {s(sZ0)}, {s(sZ0)}, {M.WS_ZB}")
    a(f"s_cmp_lt_u32 {s(sCol)}, 225")
    a(f"s_cselect_b32 {s(sZ0)}, {s(sZ0)}, 0x7f000000")
    a(f"s_add_u32 {s(sZ1)}, {s(sZ0)}, {2*M.ZSTRIDE}")
    a(f"s_mul_i32 {s(sT0)}, {s(sSlot)}, 37")
    a(f"s_lshr_b32 {s(sT0)}, {s(sT0)}, 8")
    a(f"s_mul_i32 {s(sT1)}, {s(sT0)}, 7")
    a(f"s_sub_u32 {s(sCg)}, {s(sSlot)}, {s(sT1)}")
    a(f"v_bfe_u32 {v(T)}, v0, 2, 1")
    a(f"v_lshl_add_u32 {v(T)}, {v(vG)}, 1, {v(T)}")
    a(f"v_mul_u32_u24 {v(vWo)}, 896, {v(T)}")
    a(f"v_lshrrev_b32 {v(T)}, 3, v0")
    a(f"v_xor_b32 {v(T)}, {v(T)}, {v(vG)}")
    a(f"v_and_b32 {v(T)}, 1, {v(T)}")
    a(f"v_lshl_add_u32 {v(vWo)}, {v(T)}, 6, {v(vWo)}")
    a(f"v_and_b32 {v(T)}, 3, v0")
    a(f"v_lshl_add_u32 {v(vWo)}, {v(T)}, 4, {v(vWo)}")
    a(f"s_mul_i32 {s(sWoO)}, {s(sW)}, {8*896}")
    a(f"s_lshl_b32 {s(sT0)}, {s(sCg)}, 7")
    a(f"s_add_u32 {s(sWoO)}, {s(sWoO)}, {s(sT0)}")
    a(f"v_cmp_lt_u32 vcc, 6, v0")
    a(f"s_and_b32 {s(sT0)}, {s(sSlot)}, 15")
    a(f"s_and_b32 {s(sT1)}, {s(sT0)}, 1")
    a(f"s_mul_i32 {s(sT1)}, {s(sT1)}, 14")
    a(f"v_add_u32 {v(vS2)}, {s(sT1)}, v0")
    a(f"s_lshr_b32 {s(sT0)}, {s(sT0)}, 1")
    a(f"v_lshl_add_u32 {v(vS2)}, {v(vS2)}, 3, {s(sT0)}")
    a(f"v_lshlrev_b32 {v(vS2)}, 7, {v(vS2)}")
    a(f"s_waitcnt lgkmcnt(0)")
    a(f"s_mov_b32 {s(SD)}, s78\ns_mov_b32 {s(SD+1)}, s79\ns_mov_b32 {s(SD+2)}, 256\ns_mov_b32 {s(SD+3)}, 0x20000")
    a(f"s_mov_b32 {s(SA)}, s68\ns_mov_b32 {s(SA+1)}, s69\ns_mov_b32 {s(SA+3)}, 0x20000")
    a(f"s_cmp_lt_u32 {s(sSlot)}, 28")
    a(f"s_cselect_b32 {s(SA+2)}, {448*896}, 0")
    a(f"s_mov_b32 {s(SBv)}, s76\ns_mov_b32 {s(SBv+1)}, s77\ns_mov_b32 {s(SBv+2)}, {2048*1792}\ns_mov_b32 {s(SBv+3)}, 0x20000")
    a(f"v_mov_b32 v5, 0")
    a(f"v_lshlrev_b32 v6, 2, v0")
    lead = [0]
    def if_lead(fn):
        lead[0] += 1; L = f"{name}_nl{lead[0]}"
        a(f"s_cmp_lg_u32 {s(sW)}, 0")
        a(f"s_cbranch_scc1 {L}")
        fn()
        a.label(L)
    def get_tag():
        a(f"buffer_load_dword v7, v5, {s(SD,4)}, 0 offen")
        a("s_waitcnt vmcnt(0)")
        a(f"v_readfirstlane_b32 {s(sTag)}, v7")
        a("s_nop 3")
        a(f"s_cmp_lg_u32 {s(sTag)}, 0")
        a(f"s_cbranch_scc1 {name}_gottag")
        poll(f"buffer_load_dword v7, v5, {s(SD,4)}, 0 offen sc1", "v_cmp_eq_u32 vcc, 0, v7", "1")
        a(f"v_readfirstlane_b32 {s(sTag)}, v7")
        a.label(f"{name}_gottag")
    def broadcast(base, shift):
        a(f"v_lshlrev_b32 v3, {shift}, v0")
        a(f"v_mov_b32 v7, {s(sTag)}")
        a(f"s_mov_b32 {s(sT0)}, {base}")
        for i in range(4):
            a(f"buffer_store_dword v7, v3, {s(SWS,4)}, {s(sT0)} offen sc1")
            a(f"s_add_u32 {s(sT0)}, {s(sT0)}, {64 << shift}")
    def atom(off_s, off):
        a("s_mov_b64 exec, 1")
        a("v_mov_b32 v4, 1")
        a(f"buffer_atomic_add v4, v5, {s(SD,4)}, {off_s} offen offset:{off} sc0 sc1")
        a("s_mov_b64 exec, -1")
    if_lead(get_tag)
    a("s_waitcnt vmcnt(0)")
    rt(3)
    a("s_barrier")
    def sig1():
        a(f"v_mov_b32 v7, {s(sTag)}")
        a(f"s_cmp_lg_u32 {s(sWo)}, 0")
        a(f"s_cbranch_scc1 {name}_sigB")
        a(f"buffer_store_dword v7, v2, {s(SWS,4)}, {s(sXo)} offen sc1")
        a(f"s_branch {name}_sigD")
        a.label(f"{name}_sigB")
        atom("0", 128)
        a("s_waitcnt vmcnt(0)")
        a(f"v_readfirstlane_b32 {s(sT0)}, v4")
        a("s_nop 3")
        a(f"s_cmp_lg_u32 {s(sT0)}, 63")
        a(f"s_cbranch_scc1 {name}_sigD")
        broadcast(F.WS_MB1 + 33 * 4, 8)
        a.label(f"{name}_sigD")
        a(f"s_lshl_b32 {s(sT0)}, s2, 8")
        a(f"s_add_u32 {s(sT0)}, {s(sT0)}, {F.WS_MB1}")
        a(f"s_mov_b32 {s(sK)}, -1\ns_mov_b32 {s(sK+1)}, {3 if os.environ.get('BSYNC','0')=='1' else 1}")
        poll(f"buffer_load_dword v7, v6, {s(SWS,4)}, {s(sT0)} offen sc1", f"v_cmp_ne_u32 vcc, {s(sTag)}, v7", s(sK, 2))
    if_lead(sig1)
    rt(4)
    a("s_barrier")
    q_ = []
    def epoch(e_):
        for tl in range(2):
            lds = (e_ % 4) * 32768 + tl * 4096
            src = e_ * 16384 + tl * 2048
            a(f"s_add_u32 m0, {s(sM)}, {lds}")
            a(f"s_add_u32 {s(sT0)}, {s(sDK)}, {src}")
            a(f"buffer_load_dwordx4 v1, {s(SWS,4)}, {s(sT0)} offen {LD} lds")
            a(f"buffer_load_dwordx4 v1, {s(SWS,4)}, {s(sT0)} offen offset:1024 {LD} lds")
            a(f"s_add_u32 m0, {s(sM)}, {lds + 2048}")
            a(f"s_add_u32 {s(sT0)}, {s(sDK)}, {src + M.WS_VF - M.WS_KF}")
            a(f"buffer_load_dwordx4 v1, {s(SWS,4)}, {s(sT0)} offen {LD} lds")
            a(f"buffer_load_dwordx4 v1, {s(SWS,4)}, {s(sT0)} offen offset:1024 {LD} lds")
            q_.extend([f"E{e_}"] * 4)
    def wait_for(tag):
        last = max(i for i, t_ in enumerate(q_) if t_ == tag)
        n = len(q_) - 1 - last
        assert n <= 63
        a(f"s_waitcnt vmcnt({n})")
    def fl(txt, tag):
        a(txt); q_.append(tag)
    def stage64(waits):
        for ks in range(4):
            waits(ks)
            for mt in range(2):
                for c in range(2):
                    a(mfma16(AC[mt][c], DA[mt][ks], F64[c][ks], None if ks == 0 else AC[mt][c]))
        a("s_nop 7")
    def twiddle():
        for mt in range(2):
            for r in range(4):
                tw = TW + 4 * (2 * mt + r // 2) + 2 * (r % 2)
                cmul(a, AC[mt][0] + r, AC[mt][1] + r, AC[mt][0] + r, AC[mt][1] + r, tw, tw + 1, T + 2 * (r % 2))
    def pack_sep():
        for c in range(2):
            for mt in range(2):
                for h in range(2):
                    a(f"v_cvt_pk_bf16_f32 {v(BF[c]+2*mt+h)}, {v(AC[mt][c]+2*h)}, {v(AC[mt][c]+2*h+1)}")
        a("s_nop 1")
    def stage32():
        for mt in range(2):
            a(mfma16(AC[mt][0], F32[mt][0], BF[0], None))
            a(mfma16(AC[mt][1], F32[mt][2], BF[0], None))
        for mt in range(2):
            a(mfma16(AC[mt][0], F32[mt][1], BF[1], AC[mt][0]))
            a(mfma16(AC[mt][1], F32[mt][0], BF[1], AC[mt][1]))
        a("s_nop 7")
    epoch(0); epoch(1)
    a("s_setprio 2")
    def B(k):
        a("s_barrier"); rt(5 + k)
    wait_for("E0"); B(0)
    def pollB():
        a(f"s_lshl_b32 {s(sT0)}, s2, 8")
        a(f"s_add_u32 {s(sT0)}, {s(sT0)}, {F.WS_MB1 + 33*4}")
        poll(f"buffer_load_dword v7, v5, {s(SWS,4)}, {s(sT0)} offen sc1", f"v_cmp_ne_u32 vcc, {s(sTag)}, v7", "1")
    if_lead(pollB)
    epoch(2)
    wait_for("E1"); B(1)
    epoch(3)
    a(f"s_mul_i32 {s(sT2)}, {s(sCol)}, {M.X1S}")
    a(f"s_add_u32 {s(sK)}, {s(sT2)}, {M.WS_X1}")
    a(f"s_add_u32 {s(sV)}, {s(sK)}, 4096")
    for ks in range(4):
        fl(f"buffer_load_dwordx4 {v(DA[0][ks],4)}, v1, {s(SWS,4)}, {s(sK)} offen offset:{1024*ks} {LD}", "DA")
        fl(f"buffer_load_dwordx4 {v(DA[1][ks],4)}, v1, {s(SWS,4)}, {s(sV)} offen offset:{1024*ks} {LD}", "DA")
    a(f"s_lshr_b32 {s(sT2)}, {s(sCol)}, 2")
    a(f"s_mul_i32 {s(sT2)}, {s(sT2)}, {M.WTS}")
    a(f"s_lshl_b32 {s(sK)}, {s(sW)}, 10")
    a(f"s_add_u32 {s(sK)}, {s(sK)}, {s(sT2)}")
    a(f"s_and_b32 {s(sT2)}, {s(sCol)}, 3")
    a(f"s_lshl_b32 {s(sT2)}, {s(sT2)}, 5")
    a(f"s_add_u32 {s(sK)}, {s(sK)}, {s(sT2)}")
    a(f"s_add_u32 {s(sK)}, {s(sK)}, {M.WS_WT}")
    a(f"s_add_u32 {s(sV)}, {s(sK)}, 16384")
    fl(f"buffer_load_dwordx4 {v(Wv[0],4)}, {v(vA)}, {s(SWS,4)}, {s(sK)} offen {LD}", "W")
    fl(f"buffer_load_dwordx4 {v(Wv[1],4)}, {v(vA)}, {s(SWS,4)}, {s(sV)} offen {LD}", "W")
    wait_for("E2"); B(2)
    wait_for("W")
    stage64(lambda ks: None)
    epoch(4)
    twiddle()
    pack_sep()
    stage32()
    B(3)
    for mt in range(2):
        for r in range(4):
            a(f"v_lshlrev_b32 {v(WR)}, 16, {v(Wv[mt]+r)}")
            a(f"v_and_b32 {v(WI)}, 0xffff0000, {v(Wv[mt]+r)}")
            cmul(a, AC[mt][0] + r, AC[mt][1] + r, AC[mt][0] + r, AC[mt][1] + r, WR, WI, T + 2 * (r % 2), conj_out=True)
    pack_sep()
    stage32()
    epoch(5)
    twiddle()
    for mt in range(2):
        for r in range(4):
            a(f"v_cvt_pk_bf16_f32 {v(BF[mt]+r)}, {v(AC[mt][0]+r)}, {v(AC[mt][1]+r)}")
    for mt in range(2):
        for r in range(4):
            a(f"ds_write_b32 {v(vB)}, {v(BF[mt]+r)} offset:{(16*mt+r)*272}")
    a("s_waitcnt lgkmcnt(0)")
    wait_for("E4"); B(4)
    for ks in range(4):
        for mt in range(2):
            a(f"ds_read_b128 {v(DA[mt][ks],4)}, {v(vC)} offset:{16*mt*272+64*ks}")
    stage64(lambda ks: a(f"s_waitcnt lgkmcnt({2*(3-ks)})"))
    for mt in range(2):
        for r in range(4):
            a(f"v_cvt_pk_bf16_f32 {v(BF[mt]+r)}, {v(AC[mt][0]+r)}, {v(AC[mt][1]+r)}")
    fl(f"buffer_store_dwordx4 {v(BF[0],4)}, {v(vD)}, {s(SWS,4)}, {s(sZ0)} offen {ST}", "ST")
    fl(f"buffer_store_dwordx4 {v(BF[1],4)}, {v(vD)}, {s(SWS,4)}, {s(sZ1)} offen {ST}", "ST")
    epoch(6)
    a("s_setprio 0")
    wait_for("E5"); B(5)
    epoch(7)
    wait_for("E6"); B(6)
    def f1():
        a(f"s_lshr_b32 {s(sT1)}, s2, 4")
        a(f"s_mul_i32 {s(sT0)}, {s(sT1)}, 17")
        a(f"s_lshl_b32 {s(sT0)}, {s(sT0)}, 8")
        a(f"s_and_b32 {s(sT1)}, s2, 15")
        a(f"s_lshl_b32 {s(sT1)}, {s(sT1)}, 2")
        a(f"s_add_u32 {s(sT0)}, {s(sT0)}, {s(sT1)}")
        a(f"s_add_u32 {s(sT0)}, {s(sT0)}, {F.WS_MB1 + 192}")
        a(f"v_mov_b32 v7, {s(sTag)}")
        a("s_mov_b64 exec, 1")
        a(f"buffer_store_dword v7, v5, {s(SWS,4)}, {s(sT0)} offen sc1")
        a("s_mov_b64 exec, -1")
    if_lead(f1)
    def wo_items(k0, k1):
        for k in range(k0, k1):
            a(f"s_lshr_b32 {s(sT1)}, {s(sM)}, 3")
            a(f"s_add_u32 m0, {s(sT1)}, {4096*k}")
            a(f"s_add_u32 {s(sT0)}, {s(sWoO)}, {32*896*k}")
            fl(f"buffer_load_dwordx4 {v(vWo)}, {s(SA,4)}, {s(sT0)} offen lds", "WO")
    wo_items(0, 8)
    wait_for("E7"); B(7)
    def f2():
        a(f"s_lshr_b32 {s(sT1)}, s2, 4")
        a(f"s_and_b32 {s(sT2)}, s2, 15")
        a(f"s_cmp_lg_u32 {s(sT1)}, {s(sT2)}")
        a(f"s_cbranch_scc1 {name}_f2n")
        a(f"s_lshl_b32 {s(sT0)}, s2, 8")
        a(f"s_add_u32 {s(sT0)}, {s(sT0)}, {F.WS_MB1 + 192}")
        poll(f"buffer_load_dword v7, v6, {s(SWS,4)}, {s(sT0)} offen sc1", f"v_cmp_ne_u32 vcc, {s(sTag)}, v7", "0xffff")
        a(f"s_lshl_b32 {s(sT1)}, {s(sT1)}, 2")
        a(f"v_lshlrev_b32 v3, 7, v0")
        a(f"v_mov_b32 v7, {s(sTag)}")
        a(f"s_add_u32 {s(sT0)}, {s(sT1)}, {F.WS_MB2 + 64}")
        for i_ in range(4):
            a(f"buffer_store_dword v7, v3, {s(SWS,4)}, {s(sT0)} offen sc1")
            a(f"s_add_u32 {s(sT0)}, {s(sT0)}, {64 << 7}")
        a.label(f"{name}_f2n")
    if_lead(f2)
    wo_items(8, 15)
    vb = VAlloc(8)
    D5 = vb(16); Zr = vb(8); Hh = vb(16); TWv = vb(16); GF = [vb(4) for ks in range(4)]; AF = [vb(4) for ks in range(4)]
    PL = vb(8); t = [vb(1) for i in range(8)]
    vP, vM, vEw, vEr, vY = [vb(1) for i in range(5)]
    assert vb.hi <= vL16
    a(f"v_lshrrev_b32 {v(t[0])}, 3, v0")
    a(f"v_and_b32 {v(t[1])}, 7, v0")
    a(f"v_sub_u32 {v(t[2])}, 7, {v(t[0])}")
    a(f"v_lshlrev_b32 {v(t[2])}, 5, {v(t[2])}")
    a(f"v_lshl_add_u32 {v(vM)}, {v(t[1])}, 2, {v(t[2])}")
    a(f"v_lshlrev_b32 {v(t[3])}, 6, {v(t[0])}")
    a(f"s_lshl_b32 {s(sT2)}, {s(sW)}, 9")
    a(f"s_add_u32 {s(sT2)}, {s(sT2)}, {CT_TW448}")
    for q in range(4):
        a(f"buffer_load_dwordx4 {v(TWv+4*q,4)}, {v(t[3])}, {s(SC_,4)}, {s(sT2)} offen offset:{16*q}")
    a(f"s_and_b32 {s(sK)}, {s(sW)}, 1")
    a(f"s_lshl_b32 {s(sT1)}, {s(sK)}, 12")
    a(f"s_add_u32 {s(sT1)}, {s(sT1)}, {CT_G56}")
    for ks in range(4):
        a(f"buffer_load_dwordx4 {v(GF[ks],4)}, v1, {s(SC_,4)}, {s(sT1)} offen offset:{1024*ks}")
    B(8)
    a(f"v_mul_u32_u24 {v(vEw)}, 1168, {v(t[1])}")
    a(f"v_lshl_add_u32 {v(vEw)}, {v(t[0])}, 2, {v(vEw)}")
    a(f"s_lshl_b32 {s(sT1)}, {s(sW)}, 5")
    a(f"s_add_u32 {s(sT1)}, {s(sT1)}, {F.LDS_X}")
    a(f"v_add_u32 {v(vEw)}, {s(sT1)}, {v(vEw)}")
    a(f"v_and_b32 {v(t[4])}, 31, v0")
    a(f"v_lshrrev_b32 {v(t[5])}, 5, v0")
    a(f"v_mul_u32_u24 {v(vEr)}, 144, {v(t[4])}")
    a(f"v_lshrrev_b32 {v(t[6])}, 3, {v(t[4])}")
    a(f"v_add_u32 {v(t[6])}, {v(t[6])}, {v(t[5])}")
    a(f"v_lshl_add_u32 {v(vEr)}, {v(t[6])}, 4, {v(vEr)}")
    a(f"s_lshr_b32 {s(sV)}, {s(sW)}, 1")
    a(f"s_mul_i32 {s(sT1)}, {s(sV)}, {4*1168}")
    a(f"s_add_u32 {s(sT1)}, {s(sT1)}, {F.LDS_X}")
    a(f"v_add_u32 {v(vEr)}, {s(sT1)}, {v(vEr)}")
    a(f"s_lshl_b32 {s(sT1)}, {s(sK)}, 5")
    a(f"v_add_u32 {v(t[6])}, {s(sT1)}, {v(t[4])}")
    a(f"v_lshlrev_b32 {v(vY)}, 4, {v(t[6])}")
    a(f"v_lshl_add_u32 {v(vY)}, {v(t[5])}, 3, {v(vY)}")
    a(f"v_mov_b32 {v(t[7])}, 0x7f000000")
    a(f"v_cmp_lt_u32 vcc, 55, {v(t[6])}")
    a(f"s_mul_i32 {s(sZ0)}, s2, {M.ZSTRIDE}")
    a(f"s_add_u32 {s(sZ0)}, {s(sZ0)}, {M.WS_ZB}")
    a(f"v_cndmask_b32 {v(vY)}, {v(vY)}, {v(t[7])}, vcc")
    a(f"s_lshl_b32 {s(sT2)}, {s(sW)}, 8")
    a(f"s_sub_u32 {s(sZ1)}, {s(sZ0)}, {s(sT2)}")
    a(f"s_add_u32 {s(sZ0)}, {s(sZ0)}, {s(sT2)}")
    a(f"s_mov_b32 {s(sK8)}, {f32hex(0.5**0.5)}")
    a(f"s_lshl_b32 {s(sDK)}, s2, 3")
    a(f"s_lshl_b32 {s(sT2)}, {s(sV)}, 2")
    a(f"s_add_u32 {s(sDK)}, {s(sDK)}, {s(sT2)}")
    a(f"s_mul_i32 {s(sDK)}, {s(sDK)}, 1792")
    a(f"s_add_u32 {s(sDK)}, {s(sDK)}, 896")
    a(f"s_add_u32 {s(sM)}, {s(sDK)}, 3584")
    a("s_waitcnt vmcnt(0)")
    rt(14)
    a("s_barrier")
    def sig2():
        a(f"v_mov_b32 v7, {s(sTag)}")
        a(f"s_lshl_b32 {s(sT0)}, {s(sHead)}, 2")
        a(f"s_add_u32 {s(sT0)}, {s(sT0)}, {F.WS_MB2}")
        a("s_mov_b64 exec, 0x3fff")
        a(f"buffer_store_dword v7, {v(vS2)}, {s(SWS,4)}, {s(sT0)} offen sc1")
        a("s_mov_b64 exec, -1")
        a(f"s_lshl_b32 {s(sT0)}, s2, 7")
        a(f"s_add_u32 {s(sT0)}, {s(sT0)}, {F.WS_MB2}")
        a(f"s_cmp_lt_u32 {s(sSlot)}, 28")
        a(f"s_cselect_b32 {s(sK)}, -1, 0xffff0000")
        a(f"s_mov_b32 {s(sK+1)}, 0")
        poll(f"buffer_load_dword v7, v6, {s(SWS,4)}, {s(sT0)} offen sc1", f"v_cmp_ne_u32 vcc, {s(sTag)}, v7", s(sK, 2))
    if_lead(sig2)
    a("s_barrier")
    for tt_ in range(8):
        if tt_ < 4:
            a(f"s_add_u32 {s(sT0)}, {s(sZ0)}, {56*tt_*32}")
            a(f"buffer_load_dword {v(Zr+tt_)}, v6, {s(SWS,4)}, {s(sT0)} offen {LD}")
        else:
            a(f"s_add_u32 {s(sT0)}, {s(sZ1)}, {(56*(8-tt_)-7)*32}")
            a(f"buffer_load_dword {v(Zr+tt_)}, {v(vM)}, {s(SWS,4)}, {s(sT0)} offen {LD}")
    a("s_waitcnt vmcnt(0)")
    for tt_ in range(8):
        a(f"v_lshlrev_b32 {v(Hh+2*tt_)}, 16, {v(Zr+tt_)}")
        a(f"v_and_b32 {v(Hh+2*tt_+1)}, 0xffff0000, {v(Zr+tt_)}")
    pool = Pool([PL + i for i in range(8)])
    X = dft8(a, pool, [((Hh + 2 * tt_, 1), (Hh + 2 * tt_ + 1, -1 if tt_ < 4 else 1)) for tt_ in range(8)], +1, sK8)
    for j in range(8):
        xr, xi = X[j]
        o_ = Zr + j
        if j == 0:
            a(f"v_cvt_pk_bf16_f32 {v(o_)}, {sv(xr)}, {sv(xi)}")
        else:
            tr = TWv + 2 * (j - 1); ti = tr + 1
            p, q = t[2 * (j % 2)], t[2 * (j % 2) + 1]
            a(f"v_mul_f32_e64 {v(p)}, {sv(xi)}, {v(ti)}")
            a(f"v_mul_f32_e64 {v(q)}, {sv(xi)}, {v(tr)}")
            a(f"v_fma_f32 {v(p)}, {sv(xr)}, {v(tr)}, {v(p)}")
            a(f"v_fma_f32 {v(q)}, {sv(neg(xr))}, {v(ti)}, {v(q)}")
            a(f"v_cvt_pk_bf16_f32 {v(o_)}, {v(p)}, {v(q)}")
        a(f"ds_write_b32 {v(vEw)}, {v(o_)} offset:{144*j}")
    a("s_waitcnt lgkmcnt(0)")
    a("s_barrier")
    for ks in range(4):
        a(f"ds_read_b128 {v(AF[ks],4)}, {v(vEr)} offset:{32*ks}")
    for ks in range(4):
        a(f"s_waitcnt lgkmcnt({3-ks})")
        a(mfma32(D5, AF[ks], GF[ks], None if ks == 0 else D5))
    a("s_nop 7\ns_nop 3")
    for k in range(8):
        a(f"v_cvt_pk_bf16_f32 {v(Hh+k)}, {v(D5+2*k)}, {v(D5+2*k+1)}")
    for q in range(4):
        a(f"buffer_store_dwordx2 {v(Hh+2*q,2)}, {v(vY)}, {s(SBv,4)}, {s(sDK if q < 2 else sM)} offen offset:{1792*(q%2)}")
    dump(4, 2)
    a("s_endpgm")
    return 200

def computes(a, name, E):
    SA, SBv, SWS = E['SA'], E['SBv'], E['SWS']
    sW, sXc, sSlot, sHi = E['sW'], E['sXc'], E['sSlot'], E['sHi']
    rt, dump = E['rt'], E['dump']
    ST, LD = F.ST, F.LD
    sT0, sT1, sT2 = 33, 34, 35
    sHead, sQt, sK0, sJ, sIt, sK, sV, sQo, sTb2, sCg = 31, 32, 36, 37, 38, 40, 41, 42, 44, 45
    va = VAlloc(2)
    Q = [va(4), va(4)]
    O = va(16)
    S_ = [va(16), va(16)]
    P_ = [va(8), va(8)]
    Kb = [va(8), va(8)]
    Vb = [va(8), va(8)]
    Mx = va(1); va(1); T = [va(1) for i in range(4)]
    vA = va(1); vB = va(1)
    def ld(dst, so, off):
        a(f"buffer_load_dwordx4 {v(dst,4)}, v1, {s(SWS,4)}, {s(so)} offen offset:{off} {LD}")
    a(f"s_mov_b32 {s(SBv)}, s76\ns_mov_b32 {s(SBv+1)}, s77")
    a(f"s_lshr_b32 {s(sHead)}, {s(sSlot)}, 4")
    a(f"s_lshl_b32 {s(sT0)}, {s(sXc)}, 1")
    a(f"s_add_u32 {s(sHead)}, {s(sHead)}, {s(sT0)}")
    a(f"s_lshl_b32 {s(sT0)}, {s(sHead)}, 17")
    a(f"s_add_u32 {s(sK0)}, {s(sT0)}, {M.WS_KF}")
    a(f"s_and_b32 {s(sQt)}, {s(sSlot)}, 15")
    a(f"s_lshl_b32 {s(sQt)}, {s(sQt)}, 2")
    a(f"s_add_u32 {s(sQt)}, {s(sQt)}, {s(sW)}")
    a(f"s_lshl_b32 {s(sT1)}, {s(sQt)}, 11")
    a(f"s_add_u32 {s(sQo)}, {s(sT0)}, {s(sT1)}")
    a(f"s_lshl_b32 {s(sJ)}, {s(sQt)}, 4")
    a(f"s_add_u32 {s(sJ)}, {s(sJ)}, {s(sHead)}")
    a(f"s_lshl_b32 {s(sJ)}, {s(sJ)}, 11")
    a(f"s_add_u32 {s(sJ)}, {s(sJ)}, {M.WS_OF}")
    a(f"s_mov_b32 {s(sIt)}, 0")
    a(f"s_mov_b32 {s(SBv+2)}, {2048*1792}\ns_mov_b32 {s(SBv+3)}, 0x20000")
    rt(2)
    a("s_waitcnt vmcnt(0) lgkmcnt(0)")
    rt(3)
    a("s_barrier")
    a(f"v_mov_b32 {v(Mx)}, 0xff800000")
    for r in range(16): a(f"v_mov_b32 {v(O+r)}, 0")
    for r in range(8): a(f"v_mov_b32 {v(P_[1]+r)}, 0")
    for r in range(8): a(f"v_mov_b32 {v(Vb[1]+r)}, 0")
    a(f"v_mov_b32 {v(vA)}, v1")
    a(f"v_add_u32 {v(vB)}, 0x8000, v1")
    a("s_barrier")
    rt(4)
    for t in range(2): ld(Kb[0] + 4 * t, sK0, 1024 * t)
    for t in range(2): ld(Q[t], sQo, 1024 * t)
    a("s_waitcnt vmcnt(0)")
    rt(5)
    def maxstep():
        a(mfma32(S_[1], Kb[0], Q[0], None))
        a(mfma32(S_[1], Kb[0] + 4, Q[1], S_[1]))
        a("s_nop 7\ns_nop 3")
        for r in range(0, 16, 2):
            a(f"v_max3_f32 {v(Mx)}, {v(S_[1]+r)}, {v(S_[1]+r+1)}, {v(Mx)}")
    def finalize():
        a(f"v_mov_b32 {v(T[0])}, {v(Mx)}\nv_mov_b32 {v(T[1])}, {v(Mx)}\ns_nop 1")
        a(f"v_permlane32_swap_b32 {v(T[0])}, {v(T[1])}\ns_nop 0")
        a(f"v_max_f32 {v(Mx)}, {v(T[0])}, {v(T[1])}")
        a(f"v_cvt_pk_bf16_f32 {v(T[0])}, {v(Mx)}, {v(Mx)}")
        a(f"v_and_b32 {v(T[0])}, 0xffff0000, {v(T[0])}")
        a(f"v_sub_f32 {v(T[1])}, {v(Mx)}, {v(T[0])}")
        a(f"s_mov_b64 exec, {s(sHi,2)}")
        a(f"v_cvt_pk_bf16_f32 {v(Q[1]+2)}, -{v(T[0])}, -{v(T[1])}")
        a(f"s_mov_b64 exec, -1")
    maxstep()
    finalize()
    a(mfma32(S_[0], Kb[0], Q[0], None))
    a("s_barrier")
    a(mfma32(S_[0], Kb[0] + 4, Q[1], S_[0]))
    for t in range(2):
        a(f"ds_read_b128 {v(Kb[1]+4*t,4)}, {v(vA)} offset:{4096+1024*t}")
    a("s_nop 7")
    a("s_waitcnt lgkmcnt(0)")
    rt(6)
    a.raw(".p2align 6")
    a.label(f"{name}_loop")
    for u in range(8):
        p = u % 2; q = 1 - p
        sb = S_[p]; pb = P_[p]; sn = S_[q]; pp = P_[q]
        e = lambda r: a(f"v_exp_f32 {v(sb+r)}, {v(sb+r)}")
        c = lambda k: a(f"v_cvt_pk_bf16_f32 {v(pb+k)}, {v(sb+2*k)}, {v(sb+2*k+1)}")
        def rdK(t):
            if u < 6: a(f"ds_read_b128 {v(Kb[p]+4*t,4)}, {v(vA)} offset:{4096*(u+2)+1024*t}")
            else:     a(f"ds_read_b128 {v(Kb[p]+4*t,4)}, {v(vB)} offset:{4096*(u-6)+1024*t}")
        def rdV(t):
            a(f"ds_read_b128 {v(Vb[p]+4*t,4)}, {v(vA)} offset:{4096*u+2048+1024*t}")
        a(mfma32(sn, Kb[q], Q[0], None))
        if u == 6: a("s_barrier")
        rdV(0)
        e(0); e(1); e(2); e(3)
        a(mfma32(sn, Kb[q] + 4, Q[1], sn))
        rdV(1)
        e(4); e(5); c(0); e(6); e(7); c(1)
        a(mfma32(O, Vb[q], pp, O))
        rdK(0); rdK(1)
        e(8); e(9); c(2); e(10); e(11); c(3)
        a(mfma32(O, Vb[q] + 4, pp + 4, O))
        e(12)
        if u == 7: a(f"s_add_u32 {s(sIt)}, {s(sIt)}, 1")
        e(13); c(4); e(14)
        if u == 7: a(f"s_cmp_lt_u32 {s(sIt)}, 8")
        e(15)
        a("s_waitcnt lgkmcnt(0)")
        c(5); c(6); c(7)
        if u == 7:
            a(f"v_mov_b32 {v(vA)}, {v(vB)}")
            a(f"v_add_u32 {v(vB)}, 0x8000, {v(vB)}")
            a(f"v_and_b32 {v(vB)}, 0x1ffff, {v(vB)}")
    a(f"s_cbranch_scc1 {name}_loop")
    a(mfma32(O, Vb[1], P_[1], O))
    a(mfma32(O, Vb[1] + 4, P_[1] + 4, O))
    rt(7)
    a(f"s_mov_b32 {s(sT1)}, 0x5d800000")
    a("s_nop 7\ns_nop 3")
    a(f"v_cmp_nge_f32 vcc, {s(sT1)}, {v(O+12)}")
    a(f"v_mov_b32 {v(T[0])}, {v(O+12)}")
    a(f"v_mov_b32 {v(T[1])}, {v(O+12)}")
    a(f"s_cmp_lg_u32 vcc_hi, 0")
    a(f"s_cbranch_scc1 {name}_redo")
    a.label(f"{name}_epi")
    a(f"v_permlane32_swap_b32 {v(T[0])}, {v(T[1])}")
    a("s_nop 1")
    a(f"v_rcp_f32 {v(T[2])}, {v(T[1])}")
    a("s_nop 0")
    assert T[2] % 2 == 0
    for r in range(0, 16, 2):
        a(f"v_pk_mul_f32 {v(O+r,2)}, {v(O+r,2)}, {v(T[2],2)} op_sel_hi:[1,0]")
    for k in range(8):
        a(f"v_cvt_pk_bf16_f32 {v(S_[0]+k)}, {v(O+2*k)}, {v(O+2*k+1)}")
    a(f"s_mov_b64 exec, {s(sHi,2)}")
    a(f"v_mov_b32 {v(S_[0]+6)}, 0")
    a(f"v_mov_b32 {v(S_[0]+7)}, 0")
    a(f"s_mov_b64 exec, -1")
    a(f"buffer_store_dwordx4 {v(S_[0],4)}, v1, {s(SWS,4)}, {s(sJ)} offen {ST}")
    a(f"buffer_store_dwordx4 {v(S_[0]+4,4)}, v1, {s(SWS,4)}, {s(sJ)} offen offset:1024 {ST}")
    vb = VAlloc(2)
    ACC = [vb(16), vb(16)]
    t = [vb(1) for i in range(8)]
    assert vb.hi <= S_[0] or True
    vb = VAlloc(max(va.hi, 48))
    vb = VAlloc(64 - 8)
    OFr = [vb(4) for k in range(16)]
    WFR = [[vb(4) for k in range(16)] for ct in range(2)]
    aW = [vb(1), vb(1)]; vTw = vb(1); vTr = vb(1); vSt = vb(1); vRw = vb(1); vRr = vb(1)
    a(f"s_mul_i32 {s(sT0)}, {s(sSlot)}, 37")
    a(f"s_lshr_b32 {s(sT0)}, {s(sT0)}, 8")
    a(f"s_mul_i32 {s(sT1)}, {s(sT0)}, 7")
    a(f"s_sub_u32 {s(sCg)}, {s(sSlot)}, {s(sT1)}")
    a(f"s_lshl_b32 {s(sTb2)}, {s(sXc)}, 2")
    a(f"s_add_u32 {s(sTb2)}, {s(sTb2)}, {s(sT0)}")
    a(f"s_and_b32 {s(sK)}, {s(sW)}, 1")
    a(f"s_lshr_b32 {s(sV)}, {s(sW)}, 1")
    a("s_waitcnt vmcnt(0)")
    rt(8)
    a("s_barrier")
    a(f"s_cmp_ge_u32 {s(sSlot)}, 28")
    a(f"s_cbranch_scc1 {name}_c_end")
    a(f"v_lshrrev_b32 {v(t[5])}, 5, v0")
    a(f"v_bfe_u32 {v(t[6])}, v0, 3, 1")
    a(f"v_lshlrev_b32 {v(aW[0])}, 9, {v(t[5])}")
    a(f"v_lshl_add_u32 {v(aW[0])}, {v(t[6])}, 8, {v(aW[0])}")
    a(f"v_xor_b32 {v(t[6])}, {s(sK)}, {v(t[6])}")
    a(f"v_lshl_add_u32 {v(aW[0])}, {v(t[6])}, 7, {v(aW[0])}")
    a(f"v_bfe_u32 {v(t[6])}, v0, 2, 1")
    a(f"v_lshl_add_u32 {v(aW[0])}, {v(t[6])}, 6, {v(aW[0])}")
    a(f"v_bfe_u32 {v(t[6])}, v0, 4, 1")
    a(f"v_lshl_add_u32 {v(aW[0])}, {v(t[6])}, 5, {v(aW[0])}")
    a(f"v_and_b32 {v(t[6])}, 3, v0")
    a(f"v_lshl_add_u32 {v(aW[0])}, {v(t[6])}, 3, {v(aW[0])}")
    a(f"s_mul_i32 {s(sT0)}, {s(sK)}, {8*28*128}")
    a(f"v_add_u32 {v(aW[0])}, {s(sT0)}, {v(aW[0])}")
    a(f"v_xor_b32 {v(aW[1])}, 0x80, {v(aW[0])}")
    n = 0
    for k in range(16):
        h2, t_ = k // 2, k % 2
        for ct in range(2):
            for jj in range(2):
                a(f"ds_read_b64_tr_b16 {v(WFR[ct][k]+2*jj,2)}, {v(aW[ct])} offset:{(28*h2+16*t_+8*jj)*128}")
                n += 1
                if n % 12 == 0: a("s_waitcnt lgkmcnt(4)")
    a(f"v_and_b32 {v(t[4])}, 31, v0")
    a(f"s_mul_i32 {s(sT1)}, {s(sW)}, 2560")
    a(f"s_add_u32 {s(sT1)}, {s(sT1)}, {F.L_TR}")
    a(f"v_mul_u32_u24 {v(vTw)}, 80, {v(t[4])}")
    a(f"v_lshl_add_u32 {v(vTw)}, {v(t[5])}, 3, {v(vTw)}")
    a(f"v_add_u32 {v(vTw)}, {s(sT1)}, {v(vTw)}")
    a(f"v_lshrrev_b32 {v(t[7])}, 2, v0")
    a(f"v_mul_u32_u24 {v(vTr)}, 80, {v(t[7])}")
    a(f"v_lshl_add_u32 {v(vTr)}, {v(t[6])}, 4, {v(vTr)}")
    a(f"v_add_u32 {v(vTr)}, {s(sT1)}, {v(vTr)}")
    a(f"v_mul_u32_u24 {v(vSt)}, 1792, {v(t[7])}")
    a(f"v_lshl_add_u32 {v(vSt)}, {v(t[6])}, 4, {v(vSt)}")
    a(f"s_lshl_b32 {s(sT1)}, {s(sW)}, 12")
    a(f"s_add_u32 {s(sT1)}, {s(sT1)}, {F.L_RED}")
    a(f"v_add_u32 {v(vRw)}, {s(sT1)}, v1")
    a(f"v_xor_b32 {v(vRr)}, 0x1000, {v(vRw)}")
    a(f"s_lshl_b32 {s(sT0)}, {s(sTb2)}, 1")
    a(f"s_add_u32 {s(sT0)}, {s(sT0)}, {s(sV)}")
    a(f"s_lshl_b32 {s(sJ)}, {s(sT0)}, 15")
    a(f"s_lshl_b32 {s(sT1)}, {s(sK)}, 14")
    a(f"s_add_u32 {s(sJ)}, {s(sJ)}, {s(sT1)}")
    a(f"s_add_u32 {s(sJ)}, {s(sJ)}, {M.WS_OF}")
    a(f"s_mul_i32 {s(sQo)}, {s(sT0)}, {32*1792}")
    a(f"s_lshl_b32 {s(sT1)}, {s(sCg)}, 7")
    a(f"s_add_u32 {s(sQo)}, {s(sQo)}, {s(sT1)}")
    a(f"s_lshl_b32 {s(sT1)}, {s(sK)}, 6")
    a(f"s_add_u32 {s(sQo)}, {s(sQo)}, {s(sT1)}")
    a(f"s_add_u32 {s(sK0)}, {s(sQo)}, {16*1792}")
    a("s_waitcnt lgkmcnt(0)")
    a("s_barrier")
    rt(9)
    for k in range(16):
        a(f"buffer_load_dwordx4 {v(OFr[k],4)}, v1, {s(SWS,4)}, {s(sJ)} offen offset:{1024*(k%4)} {LD}")
        if k % 4 == 3: a(f"s_add_u32 {s(sJ)}, {s(sJ)}, 4096")
    for k in range(16):
        a(f"s_waitcnt vmcnt({15-k})")
        for ct in (1, 0):
            a(mfma32(ACC[ct], WFR[ct][k], OFr[k], None if k == 0 else ACC[ct]))
    rt(10)
    a("s_nop 7\ns_nop 3")
    for q in range(4):
        a(f"ds_write_b128 {v(vRw)}, {v(ACC[1]+4*q,4)} offset:{1024*q}")
    a("s_waitcnt lgkmcnt(0)")
    a("s_barrier")
    for q in range(4):
        a(f"ds_read_b128 {v(ACC[1]+4*q,4)}, {v(vRr)} offset:{1024*q}")
    for q in range(4):
        a(f"s_waitcnt lgkmcnt({3-q})")
        for h in range(2):
            r = 4 * q + 2 * h
            a(f"v_pk_add_f32 {v(ACC[0]+r,2)}, {v(ACC[0]+r,2)}, {v(ACC[1]+r,2)}")
        for h in range(2):
            a(f"v_cvt_pk_bf16_f32 {v(OFr[0]+2*q+h)}, {v(ACC[0]+4*q+2*h)}, {v(ACC[0]+4*q+2*h+1)}")
    for q in range(4):
        a(f"ds_write_b64 {v(vTw)}, {v(OFr[0]+2*q,2)} offset:{16*q}")
    a("s_waitcnt lgkmcnt(0)")
    a(f"ds_read_b128 {v(OFr[4],4)}, {v(vTr)}")
    a(f"ds_read_b128 {v(OFr[5],4)}, {v(vTr)} offset:{16*80}")
    a("s_waitcnt lgkmcnt(1)")
    a(f"buffer_store_dwordx4 {v(OFr[4],4)}, {v(vSt)}, {s(SBv,4)}, {s(sQo)} offen")
    a("s_waitcnt lgkmcnt(0)")
    a(f"buffer_store_dwordx4 {v(OFr[5],4)}, {v(vSt)}, {s(SBv,4)}, {s(sK0)} offen")
    a.label(f"{name}_c_end")
    dump(0, 2)
    a("s_endpgm")
    a.label(f"{name}_redo")
    a(f"s_mov_b64 exec, {s(sHi,2)}")
    a(f"v_mov_b32 {v(Q[1]+2)}, 0")
    a(f"s_mov_b64 exec, -1")
    a(f"s_mov_b32 {s(sK)}, {s(sK0)}")
    a(f"s_mov_b32 {s(sIt)}, 0")
    a.label(f"{name}_redo1")
    for t_ in range(2): ld(Kb[0] + 4 * t_, sK, 1024 * t_)
    a("s_waitcnt vmcnt(0)")
    maxstep()
    a(f"s_add_u32 {s(sK)}, {s(sK)}, 2048")
    a(f"s_add_u32 {s(sIt)}, {s(sIt)}, 1")
    a(f"s_cmp_lt_u32 {s(sIt)}, 64")
    a(f"s_cbranch_scc1 {name}_redo1")
    finalize()
    for r in range(16): a(f"v_mov_b32 {v(O+r)}, 0")
    a(f"s_mov_b32 {s(sK)}, {s(sK0)}")
    a(f"s_mov_b32 {s(sIt)}, 0")
    a.label(f"{name}_redo2")
    a(f"s_add_u32 {s(sV)}, {s(sK)}, {M.WS_VF - M.WS_KF}")
    for t_ in range(2): ld(Kb[0] + 4 * t_, sK, 1024 * t_)
    for t_ in range(2): ld(Vb[0] + 4 * t_, sV, 1024 * t_)
    a("s_waitcnt vmcnt(0)")
    a(mfma32(S_[0], Kb[0], Q[0], None))
    a(mfma32(S_[0], Kb[0] + 4, Q[1], S_[0]))
    a("s_nop 7\ns_nop 3")
    for r in range(16): a(f"v_exp_f32 {v(S_[0]+r)}, {v(S_[0]+r)}")
    a("s_nop 0")
    for k in range(8): a(f"v_cvt_pk_bf16_f32 {v(P_[0]+k)}, {v(S_[0]+2*k)}, {v(S_[0]+2*k+1)}")
    a("s_nop 1")
    a(mfma32(O, Vb[0], P_[0], O))
    a(mfma32(O, Vb[0] + 4, P_[0] + 4, O))
    a(f"s_add_u32 {s(sK)}, {s(sK)}, 2048")
    a(f"s_add_u32 {s(sIt)}, {s(sIt)}, 1")
    a(f"s_cmp_lt_u32 {s(sIt)}, 64")
    a("s_nop 7")
    a(f"s_cbranch_scc1 {name}_redo2")
    a("s_nop 7")
    a(f"v_mov_b32 {v(T[0])}, {v(O+12)}")
    a(f"v_mov_b32 {v(T[1])}, {v(O+12)}")
    a("s_nop 1")
    a(f"s_branch {name}_epi")
    return max(va.hi, vb.hi)
```

```python
import numpy as np

S, D, H, DH = 2048, 448, 16, 28
SC = DH ** -0.5 * np.log2(np.e)

def bf16_bits(x):
    x = np.ascontiguousarray(x, dtype=np.float32)
    u = x.view(np.uint32)
    r = ((u + 0x7FFF + ((u >> 16) & 1)) >> 16).astype(np.uint16)
    return r
def bf16_val(b):
    return (b.astype(np.uint32) << 16).view(np.float32)
def rb(x):
    return bf16_val(bf16_bits(x))

WS_QF = 0
WS_KF = 2 << 20
WS_VF = 4 << 20
WS_X1 = 6 << 20
X1S = 8320
WS_WT = 17 << 19
WTS = 32768 + 128
WS_OF = 11 << 20
WS_ZB = 13 << 20
ZSTRIDE = 7296
WS_DBG = 15 << 20
WS_END = 16 << 20

def feat(t, half, j):
    return 16 * t + 8 * (j // 4) + 4 * half + j % 4

_t, _half, _j = np.meshgrid(np.arange(2), np.arange(2), np.arange(8), indexing='ij')
FEAT = 16 * _t + 8 * (_j // 4) + 4 * _half + _j % 4

def qkv_stage(x, wqkv):
    qkv = x.astype(np.float64) @ wqkv.astype(np.float64)
    q = qkv[:, :448].reshape(S, H, DH); k = qkv[:, 448:896].reshape(S, H, DH); v = qkv[:, 896:].reshape(S, H, DH)
    qp = np.zeros((S, H, 32)); kp = np.zeros((S, H, 32)); vp = np.zeros((S, H, 32))
    qp[:, :, :28] = q * SC; kp[:, :, :28] = k; kp[:, :, 28:30] = 1.0; vp[:, :, :28] = v; vp[:, :, 28] = 1.0
    def tokfrag(a):
        a = a.reshape(64, 32, H, 32)
        out = a[:, :, :, FEAT]
        out = out.transpose(2, 0, 3, 4, 1, 5)
        return rb(out.reshape(H, 64, 2, 64, 8))
    QF = tokfrag(qp); KF = tokfrag(kp)
    a = vp.reshape(64, 32, H, 32)
    out = a[:, FEAT]
    out = out.transpose(4, 0, 1, 2, 5, 3)
    VF = rb(out.reshape(H, 64, 2, 64, 8))
    return QF, KF, VF

def unfrag_tok(F):
    a = F.reshape(H, 64, 2, 2, 32, 8)
    out = np.zeros((64, 32, H, 32), F.dtype)
    for t in range(2):
        for hf in range(2):
            for j in range(8):
                out[:, :, :, FEAT[t, hf, j]] = a[:, :, t, hf, :, j].transpose(1, 2, 0)
    return out.reshape(S, H, 32)
def unfrag_v(F):
    a = F.reshape(H, 64, 2, 2, 32, 8)
    out = np.zeros((64, 32, H, 32), F.dtype)
    for t in range(2):
        for hf in range(2):
            for j in range(8):
                out[:, FEAT[t, hf, j], :, :] = a[:, :, t, hf, :, j].transpose(1, 0, 2)
    return out.reshape(S, H, 32)

def attn_stage(QF, KF, VF):
    q = unfrag_tok(QF).astype(np.float64); k = unfrag_tok(KF).astype(np.float64); v = unfrag_v(VF).astype(np.float64)
    o = np.zeros((S, H, 32))
    for h in range(H):
        s = q[:, h, :28] @ k[:, h, :28].T
        p = rb(np.exp2(s - s.max(axis=1, keepdims=True))).astype(np.float64)
        oo = p @ v[:, h, :]
        o[:, h, :28] = oo[:, :28] / oo[:, 28:29]
    a = o.reshape(64, 32, H, 32)
    out = a[:, :, :, FEAT]
    out = out.transpose(0, 2, 3, 4, 1, 5)
    return rb(out.reshape(64, H, 2, 64, 8))

def outproj_stage(OF, wo):
    a = OF.reshape(64, H, 2, 2, 32, 8)
    o = np.zeros((64, 32, H, 32))
    for t in range(2):
        for hf in range(2):
            for j in range(8):
                o[:, :, :, FEAT[t, hf, j]] = a[:, :, t, hf, :, j].transpose(0, 2, 1)
    o = o.reshape(S, H, 32)[:, :, :28].reshape(S, 448)
    return rb(o @ wo.astype(np.float64))

def const_F56():
    out = np.zeros((2, 2, 2, 64, 8))
    for kb in range(2):
        for u in range(2):
            for l in range(64):
                kap = 16 * kb + l % 16; g = l // 16
                for j in range(8):
                    m = 32 * u + 8 * g + j
                    if m < 56 and kap <= 28:
                        th = 2 * np.pi * ((kap * m) % 56) / 56
                        out[kb, 0, u, l, j] = np.cos(th); out[kb, 1, u, l, j] = -np.sin(th)
    return rb(out)
def const_TW448():
    out = np.zeros((32, 16), np.float32)
    for kap in range(32):
        for j in range(1, 8):
            th = 2 * np.pi * (kap * j) / 448
            out[kap, 2 * (j - 1)] = np.cos(th); out[kap, 2 * (j - 1) + 1] = -np.sin(th)
    return out
def const_TW448B():
    t = const_TW448()
    out = np.zeros((8, 64), np.float32)
    for kq in range(8):
        for j in range(7):
            for c in range(2):
                for rr in range(4):
                    out[kq, (j * 2 + c) * 4 + rr] = t[4 * kq + rr, 2 * j + c]
    return out
def const_F64():
    out = np.zeros((4, 2, 4, 64, 8))
    for w in range(4):
        for ks in range(4):
            for l in range(64):
                k1 = 16 * w + l % 16; g = l // 16
                for j in range(8):
                    n1 = 16 * ks + 4 * g + j // 2; c = j % 2
                    th = 2 * np.pi * ((n1 * k1) % 64) / 64
                    out[w, 0, ks, l, j] = np.cos(th) if c == 0 else np.sin(th)
                    out[w, 1, ks, l, j] = -np.sin(th) if c == 0 else np.cos(th)
    return rb(out)
def const_F32():
    out = np.zeros((2, 3, 64, 8))
    for mt in range(2):
        for l in range(64):
            k2 = 16 * mt + l % 16; g = l // 16
            for j in range(8):
                n2 = 16 * (j // 4) + 4 * g + j % 4
                th = 2 * np.pi * ((n2 * k2) % 32) / 32
                out[mt, 0, l, j] = np.cos(th); out[mt, 1, l, j] = np.sin(th); out[mt, 2, l, j] = -np.sin(th)
    return rb(out)
def const_T2048():
    out = np.zeros((4, 4, 64, 4), np.float32)
    for w in range(4):
        for l in range(64):
            k1 = 16 * w + l % 16; g = l // 16
            for mt in range(2):
                for r in range(4):
                    n2 = 16 * mt + 4 * g + r
                    th = 2 * np.pi * (n2 * k1) / 2048
                    out[w, 2 * mt + r // 2, l, 2 * (r % 2)] = np.cos(th); out[w, 2 * mt + r // 2, l, 2 * (r % 2) + 1] = -np.sin(th)
    return out
def const_G56():
    out = np.zeros((2, 4, 64, 8))
    cc = 1.0 / (S * D)
    for nu in range(2):
        for ks in range(4):
            for l in range(64):
                m = 32 * nu + l % 32; hf = l // 32
                for j in range(8):
                    kap = 8 * ks + 4 * hf + j // 2; c = j % 2
                    if m < 56 and kap <= 28:
                        wk = 1.0 if kap in (0, 28) else 2.0
                        th = 2 * np.pi * ((kap * m) % 56) / 56
                        out[nu, ks, l, j] = cc * wk * (np.cos(th) if c == 0 else -np.sin(th))
    return rb(out)

def rowdft_stage(x):
    F = const_F56().astype(np.float64)
    Fc = np.zeros((32, 64)); Fs = np.zeros((32, 64))
    for kb in range(2):
        for u in range(2):
            for l in range(64):
                for j in range(8):
                    Fc[16 * kb + l % 16, 32 * u + 8 * (l // 16) + j] = F[kb, 0, u, l, j]
                    Fs[16 * kb + l % 16, 32 * u + 8 * (l // 16) + j] = F[kb, 1, u, l, j]
    xx = x.astype(np.float64).reshape(S, 56, 8)
    Dj = np.einsum('km,smj->skj', Fc[:29, :56] + 1j * Fs[:29, :56], xx)
    tw = const_TW448().astype(np.float64)
    T = np.ones((29, 8), complex)
    for j in range(1, 8):
        T[:, j] = tw[:29, 2 * (j - 1)] + 1j * tw[:29, 2 * (j - 1) + 1]
    P = Dj * T[None]
    w8 = np.exp(-2j * np.pi * np.outer(np.arange(8), np.arange(8)) / 8)
    Xt = np.einsum('tj,skj->skt', w8, P)
    X = np.zeros((S, 225), complex)
    kap = np.arange(29)
    for t in range(4):
        X[:, kap + 56 * t] = Xt[:, :, t]
    for t in range(4, 8):
        X[:, 56 * (8 - t) - kap] = np.conj(Xt[:, :, t])
    return pack_X1(X)
def pack_X1(X):
    out = np.zeros((225, 2, 4, 64, 8))
    for mt in range(2):
        for ks in range(4):
            for l in range(64):
                for j in range(8):
                    n2 = 16 * mt + l % 16; n1 = 16 * ks + 4 * (l // 16) + j // 2
                    s = 32 * n1 + n2
                    out[:, mt, ks, l, j] = X[s].real if j % 2 == 0 else X[s].imag
    return rb(out)
def unpack_X1(X1):
    X = np.zeros((S, 225), complex)
    for mt in range(2):
        for ks in range(4):
            for l in range(64):
                for j in range(0, 8, 2):
                    n2 = 16 * mt + l % 16; n1 = 16 * ks + 4 * (l // 16) + j // 2
                    X[32 * n1 + n2] = X1[:, mt, ks, l, j] + 1j * X1[:, mt, ks, l, j + 1]
    return X

def wt_stage(w_r, w_i):
    k2 = (16 * np.arange(2)[:, None, None] + 4 * np.arange(4)[None, :, None] + np.arange(4)[None, None, :])
    k = np.arange(64)[None, None, :, None] + 64 * k2[:, :, None, :]
    out = np.stack([w_r[k], w_i[k]], axis=-1)
    return np.ascontiguousarray(out.transpose(4, 0, 1, 2, 3, 5)).astype(np.float32)

def crb(z):
    return rb(z.real).astype(np.float64) + 1j * rb(z.imag).astype(np.float64)

def colfft_stage(X1, WT):
    X = unpack_X1(X1)
    u = X.reshape(64, 32, 225)
    F64 = crb(np.exp(-2j * np.pi * (np.outer(np.arange(64), np.arange(64)) % 64) / 64))
    F32 = crb(np.exp(-2j * np.pi * (np.outer(np.arange(32), np.arange(32)) % 32) / 32))
    T = np.exp(-2j * np.pi * np.outer(np.arange(64), np.arange(32)) / 2048)
    A = np.einsum('kn,nmc->kmc', F64, u)
    B = crb(A * T[:, :, None])
    U = np.einsum('pm,kmc->kpc', F32, B)
    W = np.zeros((64, 32, 225), complex)
    Wc = WT[..., 0].astype(np.float64) + 1j * WT[..., 1].astype(np.float64)
    W = Wc.transpose(3, 1, 2, 4, 0).reshape(64, 32, 225)
    V = crb(np.conj(U * W))
    D3 = np.einsum('mp,kpc->kmc', F32, V)
    E = crb(D3 * T[:, :, None])
    Zb = np.einsum('nk,kmc->nmc', F64, E)
    return crb(Zb.reshape(S, 225))
def pack_ZB(Zb):
    out = np.zeros((256, ZSTRIDE // 2), np.float32)
    z = np.stack([Zb.real, Zb.imag], axis=-1).reshape(256, 8, 225, 2).transpose(0, 2, 1, 3)
    out[:, :225 * 16] = z.reshape(256, 225 * 16)
    return out
def unpack_ZB(ZB):
    z = ZB[:, :225 * 16].reshape(256, 225, 8, 2).transpose(0, 2, 1, 3).reshape(S, 225, 2).astype(np.float64)
    return z[..., 0] + 1j * z[..., 1]

def rowidft_stage(Zb):
    Z = np.conj(Zb)
    kap = np.arange(29)
    Hh = np.zeros((S, 29, 8), complex)
    for t in range(4):
        Hh[:, :, t] = Z[:, kap + 56 * t]
    for t in range(4, 8):
        Hh[:, :, t] = np.conj(Z[:, 56 * (8 - t) - kap])
    w8 = np.exp(2j * np.pi * np.outer(np.arange(8), np.arange(8)) / 8)
    Q = np.einsum('jt,skt->skj', w8, Hh)
    tw = const_TW448().astype(np.float64)
    T = np.ones((29, 8), complex)
    for j in range(1, 8):
        T[:, j] = tw[:29, 2 * (j - 1)] - 1j * tw[:29, 2 * (j - 1) + 1]
    Q = crb(Q * T[None])
    G = const_G56().astype(np.float64)
    Gr = np.zeros((32, 64)); Gi = np.zeros((32, 64))
    for nu in range(2):
        for ks in range(4):
            for l in range(64):
                for j in range(8):
                    kp = 8 * ks + 4 * (l // 32) + j // 2
                    (Gr if j % 2 == 0 else Gi)[kp, 32 * nu + l % 32] = G[nu, ks, l, j]
    y = np.einsum('skj,km->smj', Q.real, Gr[:29, :56]) + np.einsum('skj,km->smj', Q.imag, Gi[:29, :56])
    return rb(y.reshape(S, 448))

def reference(A_x, wqkv, wo, B_x, w_r, w_i):
    x = A_x.astype(np.float64)
    qkv = rb(x @ wqkv.astype(np.float64)).astype(np.float64)
    q = qkv[:, :448].reshape(S, H, DH); k = qkv[:, 448:896].reshape(S, H, DH); v = qkv[:, 896:].reshape(S, H, DH)
    o = np.zeros((S, H, DH))
    for h in range(H):
        s = rb(rb(q[:, h] @ k[:, h].T) * np.float32(DH ** -0.5)).astype(np.float64)
        p = np.exp(s - s.max(axis=1, keepdims=True)); p = rb(p / p.sum(axis=1, keepdims=True)).astype(np.float64)
        o[:, h] = rb(p @ v[:, h])
    a = rb(o.reshape(S, D) @ wo.astype(np.float64))
    X = np.fft.rfft2(B_x.astype(np.float64))
    y = np.fft.irfft2(X * (w_r.astype(np.float64) + 1j * w_i.astype(np.float64)), s=(S, D))
    return a, rb(y)

def make_inputs(seed=0):
    rng = np.random.default_rng(seed)
    r = lambda *s: rb(rng.standard_normal(s))
    return dict(A_x=rb(r(S, D) * 0.2), wqkv=rb(r(D, 3 * D) * 0.2), wo=rb(r(D, D) * 0.05), B_x=rb(r(S, D) * 0.05),
                w_r=rb(rb(r(S, 225) * 6.4) * 0.02), w_i=rb(rb(r(S, 225) * 6.4) * 0.02))

if __name__ == "__main__":
    I = make_inputs()
    ra, rbb = reference(**I)
    QF, KF, VF = qkv_stage(I['A_x'], I['wqkv'])
    OF = attn_stage(QF, KF, VF)
    a = outproj_stage(OF, I['wo'])
    print("A: max|ref|", np.abs(ra).max(), "maxerr", np.abs(a - ra).max(), "rel l2", np.linalg.norm(a - ra) / np.linalg.norm(ra))
    X1 = rowdft_stage(I['B_x'])
    Xref = np.fft.rfft(I['B_x'].astype(np.float64), axis=1)
    print("X1 rel", np.linalg.norm(unpack_X1(X1) - Xref) / np.linalg.norm(Xref))
    WT = wt_stage(I['w_r'], I['w_i'])
    Zb = colfft_stage(X1, WT)
    y = rowidft_stage(unpack_ZB(pack_ZB(Zb)))
    print("B: max|ref|", np.abs(rbb).max(), "maxerr", np.abs(y - rbb).max(), "rel l2", np.linalg.norm(y - rbb) / np.linalg.norm(rbb))


def x1_from_ws(w16):
    out = np.zeros((225, 4096), np.float32)
    for c in range(225):
        o = (WS_X1 + c * X1S) // 2
        out[c] = bf16_val(w16[o:o + 4096])
    return out.reshape(225, 2, 4, 64, 8)
def wt_from_ws(w16):
    out = np.zeros((228, 8, 64, 4, 2), np.float32)
    for cg in range(57):
        o = (WS_WT + cg * WTS) // 2
        blk = bf16_val(w16[o:o + 16384]).reshape(8, 32, 4, 2, 4, 2)
        out[4 * cg:4 * cg + 4] = blk.transpose(2, 0, 1, 3, 4, 5).reshape(4, 8, 64, 4, 2)
    return out[:225].reshape(225, 2, 4, 64, 4, 2)
```

```python
import sys
from asmlib import *
import k2, fused
HDR = open('concat_heads__mha_block__spectral_gfnet__prompt.s.ref').read().split("; Override launch")[0]
t, nv = fused.gen()
print("vgprs", nv, file=sys.stderr)
out = HDR + f"; @launch grid=(256,1,1) block=(512,1,1) lds={fused.F_LDS}\n" + '.amdgcn_target "amdgcn-amd-amdhsa--gfx950"\n.text\n' + t
out += '.section .rodata,"a"\n.p2align 8\n.type ctab,@object\nctab:\n' + data_lines(k2.const_table()) + f".size ctab, {k2.CT_SIZE}\n.text\n"
open(sys.argv[1], 'w').write(out)
```

```python
from asmlib import *
import model as M
import os
from k2 import (CT_F64, CT_F32, CT_T2048, CT_F56, CT_TW448, CT_G56, CT_TW448B, CT_SIZE, srd_consts, cmul)
from dft8 import *
import dft8pk as PK8

INSTR = os.environ.get("INSTR", "0") == "1"
NAME = "concat_heads__mha_block__spectral_gfnet__prompt_kernel"
WS_MB1 = 31 << 19
WS_MB2 = WS_MB1 + 65536
WS_MB3 = WS_MB1 + 98304
WS_TAG = WS_MB1 + 131072
LDS_X = 131072
F_LDS = LDS_X + 9472
L_RED = 65536
L_TR = 98304
NS = 4
SPIN = 100000
ST = os.environ.get("STF", "sc1")
LD = os.environ.get("LDF", "sc1")
SB = 80

def gen():
    name = "fk"
    a = Asm()
    a.raw(f".globl {NAME}\n.p2align 8\n.type {NAME},@function\n{NAME}:")
    SA, SBv, SWS, SC_, SD = 8, 12, 16, 20, 24
    sW, sXc, sSlot, sTag = 28, 29, 30, 49
    sTb, sG, sT0, sT1, sT2, sC, sSl, sXo, sWo, sOfs = 31, 32, 33, 34, 35, 36, 37, 38, 39, 48
    sHi = 50; sMsk = 52; sScale = 54; sPadv = 55; sTt = 40
    SP = 60; sN, sCh, sA_, sB2 = 56, 57, 58, 59
    def rt(idx):
        if INSTR:
            a("s_memrealtime s[96:97]\ns_waitcnt lgkmcnt(0)")
            a(f"s_mov_b32 s{SB+idx}, s96")
    def dump(wadd, vt):
        if INSTR:
            a("s_waitcnt vmcnt(0)")
            rt(15)
            a(f"s_lshl_b32 s96, s2, 9\ns_add_u32 s97, {s(sW)}, {wadd}\ns_lshl_b32 s97, s97, 6\ns_add_u32 s96, s96, s97\ns_add_u32 s96, s96, {M.WS_DBG}")
            a(f"v_mov_b32 {v(vt)}, 0")
            for i in range(16):
                a(f"v_mov_b32 {v(vt+1)}, s{SB+i}")
                a(f"buffer_store_dword {v(vt+1)}, {v(vt)}, {s(SWS,4)}, s96 offen offset:{4*i}\ns_nop 1")
    uid = [0]
    def poll(load_txt, cmp_txt, execmask):
        uid[0] += 1; L = f"{name}_poll{uid[0]}"
        a(f"s_mov_b64 exec, {execmask}")
        a(f"s_mov_b32 {s(sN)}, 0")
        a.label(L)
        a(load_txt)
        a("s_waitcnt vmcnt(0)")
        a(cmp_txt)
        a(f"s_add_u32 {s(sN)}, {s(sN)}, 1")
        a(f"s_cmp_gt_u32 {s(sN)}, {SPIN}")
        a(f"s_cbranch_scc1 {L}_x")
        a(f"s_cbranch_vccnz {L}")
        a.label(f"{L}_x")
        a("s_mov_b64 exec, -1")
    a(f"s_load_dwordx16 s[64:79], s[0:1], 0")
    a(f"s_cmp_ge_u32 s2, 256")
    a(f"s_cbranch_scc1 {name}_end")
    a(f"v_lshrrev_b32 v1, 6, v0")
    a(f"s_load_dwordx2 {s(SWS,2)}, s[0:1], 64")
    a(f"v_and_b32 v0, 63, v0")
    a(f"s_and_b32 {s(sXc)}, s2, 7")
    a(f"v_readfirstlane_b32 s3, v1")
    a(f"s_lshr_b32 {s(sSlot)}, s2, 3")
    a(f"v_lshlrev_b32 v1, 4, v0")
    if INSTR:
        for i in range(16): a(f"s_mov_b32 s{SB+i}, 0")
        rt(0)
    a(f"s_and_b32 {s(sW)}, s3, 3")
    a(f"s_mov_b32 {s(SWS+2)}, {M.WS_END}")
    a(f"s_mov_b32 {s(SWS+3)}, 0x20000")
    a(f"s_cmp_lt_u32 {s(sSlot)}, 8")
    a(f"s_cbranch_scc1 {name}_bwg")
    a(f"s_sub_u32 {s(sN)}, {s(sSlot)}, 8")
    a(f"s_mul_i32 {s(sT0)}, {s(sN)}, 43")
    a(f"s_lshr_b32 {s(sT0)}, {s(sT0)}, 8")
    a(f"s_mul_i32 {s(sT1)}, {s(sT0)}, 6")
    a(f"s_sub_u32 {s(sT1)}, {s(sN)}, {s(sT1)}")
    a(f"s_lshr_b32 {s(sTb)}, {s(sXc)}, 1")
    a(f"s_lshl_b32 {s(sTb)}, {s(sTb)}, 2")
    a(f"s_add_u32 {s(sTb)}, {s(sTb)}, {s(sT0)}")
    a(f"s_and_b32 {s(sG)}, {s(sXc)}, 1")
    a(f"s_mul_i32 {s(sG)}, {s(sG)}, 6")
    a(f"s_add_u32 {s(sG)}, {s(sG)}, {s(sT1)}")
    a(f"s_and_b32 {s(sOfs)}, {s(sG)}, 1")
    a(f"s_lshl_b32 {s(sOfs)}, {s(sOfs)}, 5")
    a(f"s_mov_b32 {s(SA+2)}, {2048*896}\ns_mov_b32 {s(SA+3)}, 0x20000")
    a(f"s_mov_b32 {s(SBv+2)}, {448*2688}\ns_mov_b32 {s(SBv+3)}, 0x20000")
    a(f"s_cmp_lt_u32 s3, 4")
    a(f"s_cbranch_scc1 {name}_t1c")
    vX0, vX1, vWw, vt = 2, 3, 4, 5
    a(f"v_lshrrev_b32 {v(vt)}, 3, v0")
    a(f"v_mul_u32_u24 {v(vX0)}, 896, {v(vt)}")
    a(f"v_and_b32 {v(vt)}, 7, v0")
    a(f"v_lshrrev_b32 {v(vt+1)}, 4, v0")
    a(f"v_xor_b32 {v(vt)}, {v(vt)}, {v(vt+1)}")
    a(f"v_xor_b32 {v(vt+2)}, 4, {v(vt)}")
    a(f"v_lshl_add_u32 {v(vX1)}, {v(vt+2)}, 4, {v(vX0)}")
    a(f"v_lshl_add_u32 {v(vX0)}, {v(vt)}, 4, {v(vX0)}")
    a(f"v_mul_u32_u24 {v(vWw)}, 2688, {v(vt+1)}")
    a(f"v_lshrrev_b32 {v(vt)}, 2, v0")
    a(f"v_sub_u32 {v(vt)}, {v(vt)}, {v(vt+1)}")
    a(f"v_and_b32 {v(vt)}, 3, {v(vt)}")
    a(f"v_lshl_add_u32 {v(vWw)}, {v(vt)}, 6, {v(vWw)}")
    a(f"v_and_b32 {v(vt)}, 3, v0")
    a(f"v_lshl_add_u32 {v(vWw)}, {v(vt)}, 4, {v(vWw)}")
    a(f"s_lshl_b32 {s(sT0)}, {s(sTb)}, 2")
    a(f"s_add_u32 {s(sT0)}, {s(sT0)}, {s(sW)}")
    a(f"s_mul_i32 {s(sXo)}, {s(sT0)}, {32*896}")
    a(f"s_mul_i32 {s(sWo)}, {s(sW)}, {16*2688}")
    a(f"s_mul_i32 {s(sT0)}, {s(sG)}, 224")
    a(f"s_add_u32 {s(sWo)}, {s(sWo)}, {s(sT0)}")
    a(f"s_sub_u32 {s(sWo)}, {s(sWo)}, {s(sOfs)}")
    a(f"s_lshl_b32 {s(sSl)}, {s(sW)}, 12")
    a(f"s_waitcnt lgkmcnt(0)")
    a(f"s_mov_b32 {s(SA)}, s64\ns_mov_b32 {s(SA+1)}, s65\ns_mov_b32 {s(SBv)}, s66\ns_mov_b32 {s(SBv+1)}, s67")
    def issue(c):
        base = (c % NS) * 32768
        for i in range(4):
            a(f"s_add_u32 m0, {s(sSl)}, {base + 1024*i}")
            a(f"s_add_u32 {s(sT0)}, {s(sXo)}, {8*i*896 + 128*c}")
            a(f"buffer_load_dwordx4 {v(vX1 if i % 2 else vX0)}, {s(SA,4)}, {s(sT0)} offen lds")
            a(f"s_add_u32 m0, {s(sSl)}, {base + 16384 + 1024*i}")
            a(f"s_add_u32 {s(sT0)}, {s(sWo)}, {(64*c + 4*i)*2688}")
            a(f"buffer_load_dwordx4 {v(vWw)}, {s(SBv,4)}, {s(sT0)} offen lds")
    issue(0); issue(1)
    issued = 2
    for c in range(7):
        a(f"s_waitcnt vmcnt({8*(issued-1-c)})")
        if c in (0, 6): rt(1 if c == 0 else 2)
        a("s_barrier")
        for k in range(2 if c == 0 else 1):
            if issued < 7:
                issue(issued); issued += 1
    a(f"s_and_b32 {s(sT0)}, {s(sG)}, 3")
    a(f"s_lshl_b32 {s(sT0)}, {s(sT0)}, 2")
    a(f"v_lshrrev_b32 v2, 4, v0")
    a(f"v_add_u32 v2, {s(sT0)}, v2")
    a(f"v_and_b32 v3, 15, v0")
    a(f"s_lshr_b32 {s(sT1)}, {s(sG)}, 2")
    a(f"s_cmp_eq_u32 {s(sT1)}, 0")
    a(f"s_cbranch_scc0 {name}_sig_kv")
    a(f"v_mov_b32 v3, {s(sTb)}")
    a.label(f"{name}_sig_kv")
    a(f"v_and_b32 v4, 1, v2")
    a(f"v_lshl_add_u32 v4, v4, 4, v3")
    a(f"v_lshrrev_b32 v2, 1, v2")
    a(f"v_lshl_add_u32 v2, v4, 3, v2")
    a(f"v_lshlrev_b32 v2, 8, v2")
    a(f"s_lshl_b32 {s(sT0)}, {s(sT1)}, 4")
    a(f"s_add_u32 {s(sT0)}, {s(sT0)}, {s(sTb)}")
    a(f"s_sub_u32 {s(sT0)}, {s(sT0)}, 16")
    a(f"s_cmp_eq_u32 {s(sT1)}, 0")
    a(f"s_cselect_b32 {s(sT0)}, 32, {s(sT0)}")
    a(f"s_lshl_b32 {s(sT0)}, {s(sT0)}, 2")
    a(f"s_add_u32 {s(sXo)}, {s(sT0)}, {WS_MB1}")
    a(f"s_mov_b32 {s(sWo)}, 0")
    a(f"s_branch {name}_h_p1")
    a.label(f"{name}_t1c")
    va = VAlloc(8)
    ACC = [[va(16) for hp in range(2)] for tt in range(2)]
    XF = [[va(4) for tt in range(2)] for b in range(2)]
    WF = [[va(4) for hp in range(2)] for b in range(2)]
    bX = [va(1) for i in range(4)]; bW = [va(1) for hp in range(2)]
    aX = [va(1) for i in range(4)]; aW = [va(1) for hp in range(2)]
    t = [va(1) for i in range(6)]
    vPad = va(1)
    a(f"s_lshl_b32 {s(sN)}, {s(sN)}, 2")
    a(f"s_add_u32 {s(sN)}, {s(sN)}, {s(sW)}")
    a(f"s_add_u32 {s(sN)}, {s(sN)}, 4")
    a(f"s_mul_i32 {s(sCh)}, {s(sN)}, 205")
    a(f"s_lshr_b32 {s(sCh)}, {s(sCh)}, 12")
    a(f"s_mul_i32 {s(sA_)}, {s(sCh)}, 20")
    a(f"s_sub_u32 {s(sA_)}, {s(sN)}, {s(sA_)}")
    a(f"s_add_u32 {s(sCh)}, {s(sCh)}, 2")
    a(f"s_cmp_lt_u32 {s(sA_)}, 8")
    a(f"s_cbranch_scc1 {name}_pf_x")
    a(f"s_sub_u32 {s(sA_)}, {s(sA_)}, 8")
    a(f"s_lshl_b32 {s(sA_)}, {s(sA_)}, 6")
    a(f"v_add_u32 v3, {s(sA_)}, v0")
    a(f"v_mul_u32_u24 v4, 43691, v3")
    a(f"v_lshrrev_b32 v4, 19, v4")
    a(f"v_mul_u32_u24 v5, 12, v4")
    a(f"v_sub_u32 v5, v3, v5")
    a(f"v_mul_u32_u24 v4, 2688, v4")
    a(f"v_lshl_add_u32 v4, v5, 7, v4")
    a(f"s_and_b32 {s(sA_)}, {s(sXc)}, 1")
    a(f"s_mul_i32 {s(sA_)}, {s(sA_)}, 1280")
    a(f"s_mul_i32 {s(sB2)}, {s(sCh)}, {64*2688}")
    a(f"s_add_u32 {s(sA_)}, {s(sA_)}, {s(sB2)}")
    a(f"s_waitcnt lgkmcnt(0)")
    a(f"s_mov_b32 {s(SBv)}, s66\ns_mov_b32 {s(SBv+1)}, s67")
    a(f"buffer_load_dword v6, v4, {s(SBv,4)}, {s(sA_)} offen")
    a(f"s_branch {name}_pf_end")
    a.label(f"{name}_pf_x")
    a(f"v_mul_u32_u24 v4, 896, v0")
    a(f"s_lshr_b32 {s(sB2)}, {s(sXc)}, 1")
    a(f"s_lshl_b32 {s(sB2)}, {s(sB2)}, 3")
    a(f"s_add_u32 {s(sB2)}, {s(sB2)}, {s(sA_)}")
    a(f"s_mul_i32 {s(sB2)}, {s(sB2)}, {64*896}")
    a(f"s_lshl_b32 {s(sA_)}, {s(sCh)}, 7")
    a(f"s_add_u32 {s(sB2)}, {s(sB2)}, {s(sA_)}")
    a(f"s_waitcnt lgkmcnt(0)")
    a(f"s_mov_b32 {s(SA)}, s64\ns_mov_b32 {s(SA+1)}, s65")
    a(f"buffer_load_dword v6, v4, {s(SA,4)}, {s(sB2)} offen")
    a.label(f"{name}_pf_end")
    a(f"v_and_b32 {v(t[0])}, 31, v0")
    a(f"v_lshrrev_b32 {v(t[1])}, 5, v0")
    a(f"v_bfe_u32 {v(t[2])}, v0, 1, 3")
    a(f"v_xor_b32 {v(t[2])}, {v(t[2])}, {v(t[1])}")
    a(f"s_lshr_b32 {s(sT0)}, {s(sW)}, 1")
    a(f"s_lshl_b32 {s(sT0)}, {s(sT0)}, 13")
    a(f"v_lshl_add_u32 {v(t[3])}, {v(t[0])}, 7, {s(sT0)}")
    for i in range(4):
        a(f"v_xor_b32 {v(t[4])}, {2*i}, {v(t[2])}")
        a(f"v_lshl_add_u32 {v(bX[i])}, {v(t[4])}, 4, {v(t[3])}")
    a(f"v_mov_b32 {v(vPad)}, 0")
    a(f"v_mov_b32 {v(t[4])}, 0x3f803f80")
    a(f"v_cmp_eq_u32 vcc, 28, {v(t[0])}")
    a(f"v_bfe_u32 {v(t[0])}, v0, 2, 2")
    a(f"v_lshl_add_u32 {v(t[2])}, {v(t[1])}, 3, {v(t[0])}")
    a(f"v_cndmask_b32 {v(vPad)}, {v(vPad)}, {v(t[4])}, vcc")
    a(f"v_lshlrev_b32 {v(t[2])}, 8, {v(t[2])}")
    a(f"v_bfe_u32 {v(t[3])}, v0, 4, 1")
    a(f"v_lshlrev_b32 {v(t[3])}, 5, {v(t[3])}")
    a(f"v_lshl_add_u32 {v(t[3])}, {v(t[0])}, 6, {v(t[3])}")
    a(f"v_and_b32 {v(t[4])}, 3, v0")
    a(f"v_lshl_add_u32 {v(t[3])}, {v(t[4])}, 3, {v(t[3])}")
    a(f"s_and_b32 {s(sT0)}, {s(sW)}, 1")
    a(f"s_mul_i32 {s(sT0)}, {s(sT0)}, 112")
    a(f"s_add_u32 {s(sT0)}, {s(sT0)}, {s(sOfs)}")
    for hp in range(2):
        a(f"s_add_u32 {s(sT1)}, {s(sT0)}, {56*hp}")
        a(f"v_add_u32 {v(t[4])}, {s(sT1)}, {v(t[3])}")
        a(f"v_and_b32 {v(t[4])}, 255, {v(t[4])}")
        a(f"v_add_u32 {v(bW[hp])}, {v(t[4])}, {v(t[2])}")
    for tt in range(2):
        for hp in range(2):
            for r in range(16):
                a(f"v_mov_b32 {v(ACC[tt][hp]+r)}, 0")
    a(f"s_lshr_b32 {s(sT0)}, {s(sG)}, 2")
    a(f"s_lshl_b32 {s(sXo)}, {s(sT0)}, 21")
    a(f"s_and_b32 {s(sT0)}, {s(sG)}, 3")
    a(f"s_lshl_b32 {s(sT0)}, {s(sT0)}, 19")
    a(f"s_add_u32 {s(sXo)}, {s(sXo)}, {s(sT0)}")
    a(f"s_and_b32 {s(sT0)}, {s(sW)}, 1")
    a(f"s_lshl_b32 {s(sT0)}, {s(sT0)}, 18")
    a(f"s_add_u32 {s(sXo)}, {s(sXo)}, {s(sT0)}")
    a(f"s_lshl_b32 {s(sT0)}, {s(sTb)}, 13")
    a(f"s_add_u32 {s(sXo)}, {s(sXo)}, {s(sT0)}")
    a(f"s_lshr_b32 {s(sT0)}, {s(sW)}, 1")
    a(f"s_lshl_b32 {s(sT0)}, {s(sT0)}, 12")
    a(f"s_add_u32 {s(sXo)}, {s(sXo)}, {s(sT0)}")
    a(f"s_add_u32 {s(sWo)}, {s(sXo)}, {64*2048}")
    a(f"s_mov_b32 {s(sHi)}, 0\ns_mov_b32 {s(sHi+1)}, -1")
    a(f"s_mov_b32 {s(sMsk)}, 0xf0000000\ns_mov_b32 {s(sMsk+1)}, 0xf0000000")
    a(f"s_cmp_lt_u32 {s(sG)}, 4")
    a(f"s_cselect_b32 {s(SP)}, {f32hex(M.SC)}, 1.0")
    a(f"s_cselect_b32 {s(SP+1)}, {f32hex(M.SC)}, 1.0")
    a(f"s_cselect_b32 {s(sPadv)}, 0, 0x3f803f80")
    a(f"s_mov_b32 {s(sC)}, 0")
    a(f"s_cmp_ge_u32 {s(sG)}, 8")
    a(f"s_cbranch_scc1 {name}_t1v")
    def setaddr(nxt):
        a(f"s_add_u32 {s(sT0)}, {s(sC)}, {nxt}")
        a(f"s_and_b32 {s(sT0)}, {s(sT0)}, {NS-1}")
        a(f"s_lshl_b32 {s(sT0)}, {s(sT0)}, 15")
        for i in range(4):
            a(f"v_add_u32 {v(aX[i])}, {s(sT0)}, {v(bX[i])}")
        for hp in range(2):
            a(f"v_add_u32 {v(aW[hp])}, {s(sT0)}, {v(bW[hp])}")
    def rd_list(i, b):
        L = []
        for tt in range(2):
            L.append(f"ds_read_b128 {v(XF[b][tt],4)}, {v(aX[i])} offset:{4096*tt}")
        for hp in range(2):
            for jj in range(2):
                L.append(f"ds_read_b64_tr_b16 {v(WF[b][hp]+2*jj,2)}, {v(aW[hp])} offset:{16384+(16*i+4*jj)*256}")
        return [L[0], L[2], L[3], L[4], L[5], L[1]]
    def kloop(lbl, vmode):
        setaddr(0)
        a("s_barrier")
        for r_ in rd_list(0, 0): a(r_)
        a.label(lbl)
        for i in range(4):
            b = i % 2
            mm = []
            for tt in range(2):
                for hp in range(2):
                    mm.append(mfma32(ACC[tt][hp], XF[b][tt], WF[b][hp], ACC[tt][hp]) if vmode else mfma32(ACC[tt][hp], WF[b][hp], XF[b][tt], ACC[tt][hp]))
            a("s_waitcnt lgkmcnt(0)")
            if i < 3:
                R = rd_list(i + 1, 1 - b)
                a(mm[0]); a(R[0]); a(R[1]); a(mm[1]); a(R[2]); a(R[3]); a(mm[2]); a(R[4]); a(R[5]); a(mm[3])
            else:
                R = rd_list(0, 0)
                a(mm[0])
                a(f"s_cmp_eq_u32 {s(sC)}, 6")
                a(f"s_cbranch_scc1 {lbl}_last")
                setaddr(1)
                a(mm[1])
                a("s_barrier")
                a(R[0]); a(R[1]); a(R[2]); a(mm[2]); a(R[3]); a(R[4]); a(R[5]); a(mm[3])
                a(f"s_add_u32 {s(sC)}, {s(sC)}, 1")
                a(f"s_branch {lbl}")
                a.label(f"{lbl}_last")
                a(mm[1]); a(mm[2]); a(mm[3])
        rt(1)
        a("s_nop 7\ns_nop 1")
    order = [(0, 0), (0, 1), (1, 0), (1, 1)]
    kloop(f"{name}_qk_loop", False)
    for tt, hp in order:
        A_ = ACC[tt][hp]
        for r in range(0, 16, 2):
            a(f"v_pk_mul_f32 {v(A_+r,2)}, {v(A_+r,2)}, {s(SP,2)}")
        for k in range(8):
            a(f"v_cvt_pk_bf16_f32 {v(A_+k)}, {v(A_+2*k)}, {v(A_+2*k+1)}")
        a(f"s_mov_b64 exec, {s(sHi,2)}")
        a(f"v_mov_b32 {v(A_+6)}, {s(sPadv)}")
        a(f"v_mov_b32 {v(A_+7)}, 0")
        a(f"s_mov_b64 exec, -1")
        for t_ in range(2):
            a(f"buffer_store_dwordx4 {v(A_+4*t_,4)}, v1, {s(SWS,4)}, {s(sWo if hp else sXo)} offen offset:{2048*tt+1024*t_} {ST}")
    a(f"s_branch {name}_c_p1")
    a.label(f"{name}_t1v")
    kloop(f"{name}_v_loop", True)
    for tt, hp in order:
        A_ = ACC[tt][hp]
        for k in range(8):
            a(f"v_cvt_pk_bf16_f32 {v(A_+k)}, {v(A_+2*k)}, {v(A_+2*k+1)}")
        a(f"s_mov_b64 exec, {s(sMsk,2)}")
        for k in range(8):
            a(f"v_mov_b32 {v(A_+k)}, {v(vPad)}")
        a(f"s_mov_b64 exec, -1")
        for t_ in range(2):
            a(f"buffer_store_dwordx4 {v(A_+4*t_,4)}, v1, {s(SWS,4)}, {s(sWo if hp else sXo)} offen offset:{2048*tt+1024*t_} {ST}")
    a(f"s_branch {name}_c_p1")
    hi = va.hi
    a.label(f"{name}_bwg")
    sB = sTb
    a(f"s_lshl_b32 {s(sB)}, {s(sXc)}, 3")
    a(f"s_add_u32 {s(sB)}, {s(sB)}, {s(sSlot)}")
    srd_consts(a, SC_)
    a(f"s_cmp_ge_u32 s3, 4")
    a(f"s_cbranch_scc1 {name}_t3")
    a(f"s_mov_b32 {s(SA+2)}, {2048*896}\ns_mov_b32 {s(SA+3)}, 0x20000")
    va = VAlloc(2)
    RAW = [va(32), va(32)]
    XFc = [va(4) for j in range(8)]
    AC = [[va(4) for cs in range(2)] for j in range(8)]
    FC = [[va(4) for u in range(2)] for cs in range(2)]
    TWv = va(56)
    t = [va(1) for i in range(8)]
    vP = [va(1) for r in range(4)]; vM = [va(1) for r in range(4)]
    aR = [va(1), va(1)]
    sGq, sO = sG, sC
    a(f"s_lshr_b32 {s(sGq)}, {s(sB)}, 2")
    a(f"s_and_b32 {s(sO)}, {s(sB)}, 3")
    a(f"s_and_b32 {s(sT1)}, {s(sW)}, 1")
    a(f"s_lshl_b32 {s(sT0)}, {s(sT1)}, 12")
    a(f"s_add_u32 {s(sT0)}, {s(sT0)}, {CT_F56}")
    for cs in range(2):
        for u in range(2):
            a(f"buffer_load_dwordx4 {v(FC[cs][u],4)}, v1, {s(SC_,4)}, {s(sT0)} offen offset:{2048*cs+1024*u}")
    a(f"v_lshrrev_b32 {v(t[5])}, 4, v0")
    a(f"v_lshlrev_b32 {v(t[6])}, 8, {v(t[5])}")
    a(f"s_lshl_b32 {s(sT0)}, {s(sT1)}, 10")
    a(f"s_add_u32 {s(sT0)}, {s(sT0)}, {CT_TW448B}")
    for q in range(14):
        a(f"buffer_load_dwordx4 {v(TWv+4*q,4)}, {v(t[6])}, {s(SC_,4)}, {s(sT0)} offen offset:{16*q}")
    a(f"s_lshr_b32 {s(sT2)}, {s(sW)}, 1")
    a(f"s_lshl_b32 {s(sT0)}, {s(sGq)}, 5")
    a(f"s_lshl_b32 {s(sT1)}, {s(sO)}, 1")
    a(f"s_add_u32 {s(sT0)}, {s(sT0)}, {s(sT1)}")
    a(f"s_add_u32 {s(sT0)}, {s(sT0)}, {s(sT2)}")
    a(f"s_mul_i32 {s(sXo)}, {s(sT0)}, {4*896}")
    a(f"s_mul_i32 {s(sSl)}, {s(sW)}, 14336")
    a(f"v_lshrrev_b32 {v(t[0])}, 3, v0")
    a(f"v_and_b32 {v(t[1])}, 7, v0")
    for i in range(14):
        d_ = RAW[1] + i
        a(f"v_add_u32 {v(t[2])}, {8*i}, {v(t[0])}")
        a(f"v_mul_u32_u24 {v(t[3])}, 147, {v(t[2])}")
        a(f"v_lshrrev_b32 {v(t[3])}, 10, {v(t[3])}")
        a(f"v_lshrrev_b32 {v(t[4])}, 2, {v(t[3])}")
        a(f"v_and_b32 {v(t[3])}, 1, {v(t[3])}")
        a(f"v_lshl_add_u32 {v(t[3])}, {v(t[3])}, 2, {v(t[4])}")
        a(f"v_xor_b32 {v(t[3])}, {v(t[3])}, {v(t[1])}")
        a(f"v_mul_u32_u24 {v(t[4])}, {32*896-3584}, {v(t[4])}")
        a(f"v_lshl_add_u32 {v(t[4])}, {v(t[2])}, 7, {v(t[4])}")
        a(f"v_lshl_add_u32 {v(d_)}, {v(t[3])}, 4, {v(t[4])}")
    a("s_waitcnt lgkmcnt(0)" + (" vmcnt(0)" if os.environ.get("T2P", "1") == "1" else ""))
    a(f"s_mov_b32 {s(SA)}, s70\ns_mov_b32 {s(SA+1)}, s71")
    for i in range(14):
        a(f"s_add_u32 m0, {s(sSl)}, {1024*i}")
        a("s_nop 0")
        a(f"buffer_load_dwordx4 {v(RAW[1]+i)}, {s(SA,4)}, {s(sXo)} offen lds")
    a(f"s_and_b32 {s(sT1)}, {s(sW)}, 1")
    a(f"v_and_b32 {v(t[0])}, 3, v0")
    a(f"v_bfe_u32 {v(t[1])}, v0, 2, 2")
    a(f"v_lshl_add_u32 {v(t[2])}, {v(t[0])}, 2, {v(t[1])}")
    a(f"v_mul_u32_u24 {v(t[2])}, 896, {v(t[2])}")
    a(f"v_add_u32 {v(t[2])}, {s(sSl)}, {v(t[2])}")
    a(f"v_and_b32 {v(t[1])}, 1, {v(t[1])}")
    a(f"v_lshl_add_u32 {v(t[3])}, {v(t[1])}, 2, {v(t[0])}")
    a(f"v_lshlrev_b32 {v(t[3])}, 4, {v(t[3])}")
    a(f"v_lshl_add_u32 {v(aR[0])}, {v(t[5])}, 7, {v(t[2])}")
    a(f"v_min_u32 {v(t[4])}, 2, {v(t[5])}")
    a(f"v_lshl_add_u32 {v(aR[1])}, {v(t[4])}, 7, {v(t[2])}")
    a(f"v_add_u32 {v(aR[1])}, 512, {v(aR[1])}")
    a(f"v_and_b32 {v(t[0])}, 15, v0")
    a(f"v_lshlrev_b32 {v(t[0])}, 2, {v(t[0])}")
    a(f"s_lshl_b32 {s(sT0)}, {s(sT1)}, 4")
    a(f"v_lshl_add_u32 {v(t[1])}, {v(t[5])}, 2, {s(sT0)}")
    a(f"v_mov_b32 {v(t[7])}, 0x7f000000")
    a(f"s_mov_b32 {s(sA_)}, {M.X1S}")
    for rr in range(4):
        a(f"v_add_u32 {v(t[2])}, {rr}, {v(t[1])}")
        a(f"v_mad_u32_u24 {v(vP[rr])}, {v(t[2])}, {s(sA_)}, {v(t[0])}")
        a(f"v_sub_u32 {v(t[4])}, 28, {v(t[2])}")
        a(f"v_mad_u32_u24 {v(vM[rr])}, {v(t[4])}, {s(sA_)}, {v(t[0])}")
        a(f"v_cmp_lt_u32 vcc, 28, {v(t[2])}")
        a("s_nop 1")
        a(f"v_cndmask_b32 {v(vP[rr])}, {v(vP[rr])}, {v(t[7])}, vcc")
        a(f"v_cndmask_b32 {v(vM[rr])}, {v(vM[rr])}, {v(t[7])}, vcc")
    a(f"s_lshr_b32 {s(sT0)}, {s(sO)}, 1")
    a(f"s_lshl_b32 {s(sT0)}, {s(sT0)}, 12")
    a(f"s_lshl_b32 {s(sT1)}, {s(sGq)}, 8")
    a(f"s_add_u32 {s(sT0)}, {s(sT0)}, {s(sT1)}")
    a(f"s_and_b32 {s(sT1)}, {s(sO)}, 1")
    a(f"s_lshl_b32 {s(sT1)}, {s(sT1)}, 7")
    a(f"s_add_u32 {s(sT0)}, {s(sT0)}, {s(sT1)}")
    a(f"s_lshl_b32 {s(sT1)}, {s(sT2)}, 6")
    a(f"s_add_u32 {s(sT0)}, {s(sT0)}, {s(sT1)}")
    for tt_ in range(8):
        col = 56 * tt_ if tt_ < 4 else 56 * (8 - tt_) - 28
        a(f"s_add_u32 {s(sTt+tt_)}, {s(sT0)}, {M.WS_X1 + col*M.X1S}")
    a(f"s_mov_b32 {s(sScale)}, {f32hex(0.5**0.5)}\ns_mov_b32 {s(sScale+1)}, {f32hex(0.5**0.5)}")
    a(f"s_mov_b32 {s(sMsk)}, 0x05040100\ns_mov_b32 {s(sMsk+1)}, 0x07060302")
    a("s_waitcnt vmcnt(0)")
    rt(1)
    for u in range(2):
        for e in range(8):
            a(f"v_xor_b32 {v(t[e%2])}, {16*e}, {v(t[3])}")
            a(f"v_add_u32 {v(t[e%2])}, {v(t[e%2])}, {v(aR[u])}")
            a(f"ds_read_b128 {v(RAW[u]+4*e,4)}, {v(t[e%2])}")
    for u in range(2):
        a(f"s_waitcnt lgkmcnt({8 if u == 0 else 0})")
        for j in range(8):
            for q in range(4):
                lo = RAW[u] + 8 * q + j // 2; hi_ = RAW[u] + 8 * q + 4 + j // 2
                a(f"v_perm_b32 {v(XFc[j]+q)}, {v(hi_)}, {v(lo)}, {s(sMsk + j % 2)}")
            if j >= 1:
                for cs in range(2):
                    a(mfma16(AC[j-1][cs], FC[cs][u], XFc[j-1], None if u == 0 else AC[j-1][cs]))
        a("s_nop 1")
        for cs in range(2):
            a(mfma16(AC[7][cs], FC[cs][u], XFc[7], None if u == 0 else AC[7][cs]))
    a("s_nop 7")
    for rp in range(2):
        pool = Pool([RAW[0] + 8 + 2 * i for i in range(8)])
        for j in range(1, 8):
            tw = TWv + 8 * (j - 1) + 2 * rp
            PK8.pcmul(a, AC[j][0] + 2 * rp, AC[j][1] + 2 * rp, tw, tw + 4, RAW[0] + 4 * (j % 2))
        X = PK8.dft8(a, pool, [((AC[j][0] + 2 * rp, 1), (AC[j][1] + 2 * rp, 1)) for j in range(8)], -1, sScale)
        for tt_ in range(8):
            re, im = X[tt_]
            if tt_ >= 4: im = neg(im)
            for h in range(2):
                rr = 2 * rp + h
                o_ = RAW[1] + 8 * rr + tt_
                a(f"v_cvt_pk_bf16_f32 {v(o_)}, {sv((re[0]+h, re[1]))}, {sv((im[0]+h, im[1]))}")
                a(f"buffer_store_dword {v(o_)}, {v(vP[rr] if tt_ < 4 else vM[rr])}, {s(SWS,4)}, {s(sTt+tt_)} offen {ST}")
    a(f"s_mov_b32 {s(sHi)}, 0\ns_mov_b32 {s(sHi+1)}, -1")
    a(f"s_branch {name}_c_p1")
    hi = max(hi, va.hi)
    a.label(f"{name}_t3")
    a(f"s_lshr_b32 {s(sG)}, {s(sB)}, 3")
    a(f"s_and_b32 {s(sC)}, {s(sB)}, 7")
    a(f"s_lshl_b32 {s(sT0)}, {s(sG)}, 7")
    a(f"s_lshl_b32 {s(sT1)}, {s(sC)}, 2")
    a(f"s_add_u32 {s(sT0)}, {s(sT0)}, {s(sT1)}")
    a(f"s_add_u32 {s(sT0)}, {s(sT0)}, {s(sW)}")
    a(f"s_mul_i32 {s(sXo)}, {s(sT0)}, 900")
    a(f"s_lshl_b32 {s(sSl)}, {s(sW)}, 13")
    a(f"s_add_u32 {s(sSl)}, {s(sSl)}, 65536")
    a(f"v_lshlrev_b32 v2, 7, v0")
    a(f"s_lshl_b32 {s(sT1)}, {s(sSlot)}, 13")
    if os.environ.get("T3P", "1") == "1":
        a(f"buffer_load_dword v3, v2, {s(SC_,4)}, {s(sT1)} offen")
        a("s_waitcnt vmcnt(0)")
    a(f"s_waitcnt lgkmcnt(0)")
    a(f"s_mov_b32 {s(SBv)}, s72\ns_mov_b32 {s(SBv+1)}, s73\ns_mov_b32 {s(SBv+2)}, {2048*450}\ns_mov_b32 {s(SBv+3)}, 0x20000")
    a(f"s_mov_b32 {s(SD)}, s74\ns_mov_b32 {s(SD+1)}, s75\ns_mov_b32 {s(SD+2)}, {2048*450}\ns_mov_b32 {s(SD+3)}, 0x20000")
    for r in range(4):
        for arr in range(2):
            a(f"s_add_u32 m0, {s(sSl)}, {4096*arr + 1024*r}")
            a(f"s_add_u32 {s(sT0)}, {s(sXo)}, {64*450*r}")
            a(f"buffer_load_dwordx4 v1, {s(SD if arr else SBv,4)}, {s(sT0)} offen lds")
    a(f"v_and_b32 v2, 1, v0")
    a(f"v_lshrrev_b32 v3, 1, v0")
    a(f"v_mul_u32_u24 v4, 450, v2")
    a(f"v_lshl_add_u32 v4, v3, 1, v4")
    a(f"v_add_u32 v4, {s(sSl)}, v4")
    a(f"v_lshrrev_b32 v5, 3, v0")
    a(f"v_mul_u32_u24 v5, {M.WTS}, v5")
    a(f"v_and_b32 v2, 7, v0")
    a(f"v_lshl_add_u32 v5, v2, 4, v5")
    a(f"s_lshl_b32 {s(sT0)}, {s(sG)}, 12")
    a(f"s_lshl_b32 {s(sT1)}, {s(sC)}, 9")
    a(f"s_add_u32 {s(sT0)}, {s(sT0)}, {s(sT1)}")
    a(f"s_lshl_b32 {s(sT1)}, {s(sW)}, 7")
    a(f"s_add_u32 {s(sT0)}, {s(sT0)}, {s(sT1)}")
    a(f"s_add_u32 {s(sT0)}, {s(sT0)}, {M.WS_WT}")
    a("s_waitcnt vmcnt(0)")
    rt(1)
    D0 = 160
    def t3_reads(it):
        for r in range(4):
            a(f"ds_read_u16 {v(D0+4*it+r)}, v4 offset:{1024*r+64*it}")
            a(f"ds_read_u16 {v(D0+32+4*(it%2)+r)}, v4 offset:{4096+1024*r+64*it}")
    t3_reads(0)
    for it in range(8):
        if it < 7:
            t3_reads(it + 1)
            a("s_waitcnt lgkmcnt(8)")
        else:
            a("s_waitcnt lgkmcnt(0)")
        for r in range(4):
            a(f"v_lshl_or_b32 {v(D0+4*it+r)}, {v(D0+32+4*(it%2)+r)}, 16, {v(D0+4*it+r)}")
        a(f"buffer_store_dwordx4 {v(D0+4*it,4)}, v5, {s(SWS,4)}, {s(sT0)} offen {ST}")
        a(f"s_add_u32 {s(sT0)}, {s(sT0)}, {8*M.WTS}")
    a(f"s_mov_b32 {s(sWo)}, 1")
    a.label(f"{name}_h_p1")
    import fused_b
    hi = max(hi, fused_b.helpers(a, name, locals()))
    a.label(f"{name}_c_p1")
    hi = max(hi, fused_b.computes(a, name, locals()))
    a.label(f"{name}_end")
    a("s_endpgm")
    return a.text() + kernel_desc(NAME, hi, 102), hi
```

```python
from asmlib import *
import model as M
import os
from k2 import (CT_F64, CT_F32, CT_T2048, CT_F56, CT_TW448, CT_G56, srd_consts, cmul)
from dft8 import *
import fused as F

def helpers(a, name, E):
    SA, SBv, SWS, SC_, SD = E['SA'], E['SBv'], E['SWS'], E['SC_'], E['SD']
    sW, sXc, sSlot, sTag = E['sW'], E['sXc'], E['sSlot'], E['sTag']
    sXo, sWo, sN = E['sXo'], E['sWo'], E['sN']
    rt, dump, poll = E['rt'], E['dump'], E['poll']
    ST, LD = F.ST, F.LD
    sT0, sT1, sT2 = 33, 34, 35
    sHead, sCol, sDK, sM, sK, sV, sZ0, sZ1, sTb2, sCg, sWoO, sK8 = 31, 32, 36, 37, 40, 41, 42, 43, 44, 45, 46, 48
    va = VAlloc(8)
    DA = [[va(4) for ks in range(4)] for mt in range(2)]
    F64 = [[va(4) for ks in range(4)] for c in range(2)]
    F32 = [[va(4) for k in range(3)] for mt in range(2)]
    TW = va(16); Wv = [va(4), va(4)]
    AC = [[va(4) for c in range(2)] for mt in range(2)]
    BF = [va(4), va(4)]
    T = va(4); WR = va(1); WI = va(1)
    vL16 = va(1); vG = va(1); vA = va(1); vB = va(1); vC = va(1); vD = va(1); vWo = va(1); vS2 = va(1)
    assert va.hi <= 160
    srd_consts(a, SC_)
    a(f"s_lshl_b32 {s(sK)}, {s(sW)}, 13")
    a(f"s_add_u32 {s(sV)}, {s(sK)}, 4096")
    for ks in range(4):
        a(f"buffer_load_dwordx4 {v(F64[0][ks],4)}, v1, {s(SC_,4)}, {s(sK)} offen offset:{1024*ks}")
        a(f"buffer_load_dwordx4 {v(F64[1][ks],4)}, v1, {s(SC_,4)}, {s(sV)} offen offset:{1024*ks}")
    a(f"s_lshl_b32 {s(sK)}, {s(sW)}, 12")
    a(f"s_add_u32 {s(sK)}, {s(sK)}, {CT_T2048}")
    for q in range(4):
        a(f"buffer_load_dwordx4 {v(TW+4*q,4)}, v1, {s(SC_,4)}, {s(sK)} offen offset:{1024*q}")
    a(f"s_mov_b32 {s(sK)}, {CT_F32}")
    a(f"s_mov_b32 {s(sV)}, {CT_F32+3072}")
    for k in range(3):
        a(f"buffer_load_dwordx4 {v(F32[0][k],4)}, v1, {s(SC_,4)}, {s(sK)} offen offset:{1024*k}")
        a(f"buffer_load_dwordx4 {v(F32[1][k],4)}, v1, {s(SC_,4)}, {s(sV)} offen offset:{1024*k}")
    a(f"s_lshr_b32 {s(sHead)}, {s(sSlot)}, 4")
    a(f"s_lshl_b32 {s(sT0)}, {s(sXc)}, 1")
    a(f"s_add_u32 {s(sHead)}, {s(sHead)}, {s(sT0)}")
    a(f"s_lshl_b32 {s(sDK)}, {s(sHead)}, 17")
    a(f"s_lshl_b32 {s(sT0)}, {s(sW)}, 12")
    a(f"s_add_u32 {s(sDK)}, {s(sDK)}, {s(sT0)}")
    a(f"s_add_u32 {s(sDK)}, {s(sDK)}, {M.WS_KF}")
    a(f"s_lshl_b32 {s(sM)}, {s(sW)}, 13")
    a(f"s_lshl_b32 {s(sCol)}, {s(sXc)}, 5")
    a(f"s_add_u32 {s(sCol)}, {s(sCol)}, {s(sSlot)}")
    a(f"v_and_b32 {v(vL16)}, 15, v0")
    a(f"v_lshrrev_b32 {v(vG)}, 4, v0")
    a(f"v_lshlrev_b32 {v(vA)}, 12, {v(vG)}")
    a(f"v_lshrrev_b32 {v(T)}, 1, {v(vL16)}")
    a(f"v_lshl_add_u32 {v(vA)}, {v(T)}, 7, {v(vA)}")
    a(f"v_and_b32 {v(T)}, 1, v0")
    a(f"v_lshl_add_u32 {v(vA)}, {v(T)}, 4, {v(vA)}")
    a(f"v_mul_u32_u24 {v(vB)}, {4*272}, {v(vG)}")
    a(f"v_lshl_add_u32 {v(vB)}, {v(vL16)}, 2, {v(vB)}")
    a(f"s_lshl_b32 {s(sT0)}, {s(sW)}, 6")
    a(f"s_add_u32 {s(sT0)}, {s(sT0)}, {F.LDS_X}")
    a(f"v_add_u32 {v(vB)}, {s(sT0)}, {v(vB)}")
    a(f"v_mul_u32_u24 {v(vC)}, 272, {v(vL16)}")
    a(f"v_lshl_add_u32 {v(vC)}, {v(vG)}, 4, {v(vC)}")
    a(f"v_add_u32 {v(vC)}, {F.LDS_X}, {v(vC)}")
    a(f"v_lshlrev_b32 {v(vD)}, 2, {v(vL16)}")
    a(f"v_lshrrev_b32 {v(T)}, 1, {v(vG)}")
    a(f"v_add_u32 {v(vD)}, {v(vD)}, {v(T)}")
    a(f"v_mul_u32_u24 {v(vD)}, {M.ZSTRIDE}, {v(vD)}")
    a(f"v_and_b32 {v(T)}, 1, {v(vG)}")
    a(f"v_lshl_add_u32 {v(vD)}, {v(T)}, 4, {v(vD)}")
    a(f"s_mul_i32 {s(sZ0)}, {s(sW)}, {64*M.ZSTRIDE}")
    a(f"s_lshl_b32 {s(sT1)}, {s(sCol)}, 5")
    a(f"s_add_u32 {s(sZ0)}, {s(sZ0)}, {s(sT1)}")
    a(f"s_add_u32 {s(sZ0)}, {s(sZ0)}, {M.WS_ZB}")
    a(f"s_cmp_lt_u32 {s(sCol)}, 225")
    a(f"s_cselect_b32 {s(sZ0)}, {s(sZ0)}, 0x7f000000")
    a(f"s_add_u32 {s(sZ1)}, {s(sZ0)}, {2*M.ZSTRIDE}")
    a(f"s_mul_i32 {s(sT0)}, {s(sSlot)}, 37")
    a(f"s_lshr_b32 {s(sT0)}, {s(sT0)}, 8")
    a(f"s_mul_i32 {s(sT1)}, {s(sT0)}, 7")
    a(f"s_sub_u32 {s(sCg)}, {s(sSlot)}, {s(sT1)}")
    a(f"v_bfe_u32 {v(T)}, v0, 2, 1")
    a(f"v_lshl_add_u32 {v(T)}, {v(vG)}, 1, {v(T)}")
    a(f"v_mul_u32_u24 {v(vWo)}, 896, {v(T)}")
    a(f"v_lshrrev_b32 {v(T)}, 3, v0")
    a(f"v_xor_b32 {v(T)}, {v(T)}, {v(vG)}")
    a(f"v_and_b32 {v(T)}, 1, {v(T)}")
    a(f"v_lshl_add_u32 {v(vWo)}, {v(T)}, 6, {v(vWo)}")
    a(f"v_and_b32 {v(T)}, 3, v0")
    a(f"v_lshl_add_u32 {v(vWo)}, {v(T)}, 4, {v(vWo)}")
    a(f"s_mul_i32 {s(sWoO)}, {s(sW)}, {8*896}")
    a(f"s_lshl_b32 {s(sT0)}, {s(sCg)}, 7")
    a(f"s_add_u32 {s(sWoO)}, {s(sWoO)}, {s(sT0)}")
    a(f"v_cmp_lt_u32 vcc, 6, v0")
    a(f"s_and_b32 {s(sT0)}, {s(sSlot)}, 15")
    a(f"s_and_b32 {s(sT1)}, {s(sT0)}, 1")
    a(f"s_mul_i32 {s(sT1)}, {s(sT1)}, 14")
    a(f"v_add_u32 {v(vS2)}, {s(sT1)}, v0")
    a(f"s_lshr_b32 {s(sT0)}, {s(sT0)}, 1")
    a(f"v_lshl_add_u32 {v(vS2)}, {v(vS2)}, 3, {s(sT0)}")
    a(f"v_lshlrev_b32 {v(vS2)}, 7, {v(vS2)}")
    a(f"s_waitcnt lgkmcnt(0)")
    a(f"s_mov_b32 {s(SD)}, s78\ns_mov_b32 {s(SD+1)}, s79\ns_mov_b32 {s(SD+2)}, 256\ns_mov_b32 {s(SD+3)}, 0x20000")
    a(f"s_mov_b32 {s(SA)}, s68\ns_mov_b32 {s(SA+1)}, s69\ns_mov_b32 {s(SA+3)}, 0x20000")
    a(f"s_cmp_lt_u32 {s(sSlot)}, 28")
    a(f"s_cselect_b32 {s(SA+2)}, {448*896}, 0")
    a(f"s_mov_b32 {s(SBv)}, s76\ns_mov_b32 {s(SBv+1)}, s77\ns_mov_b32 {s(SBv+2)}, {2048*1792}\ns_mov_b32 {s(SBv+3)}, 0x20000")
    a(f"v_mov_b32 v5, 0")
    a(f"v_lshlrev_b32 v6, 2, v0")
    lead = [0]
    def if_lead(fn):
        lead[0] += 1; L = f"{name}_nl{lead[0]}"
        a(f"s_cmp_lg_u32 {s(sW)}, 0")
        a(f"s_cbranch_scc1 {L}")
        fn()
        a.label(L)
    def get_tag():
        a(f"s_mov_b32 {s(sT0)}, {F.WS_TAG}")
        a(f"buffer_load_dword v7, v5, {s(SWS,4)}, {s(sT0)} offen")
        a("s_waitcnt vmcnt(0)")
        a(f"v_readfirstlane_b32 {s(sTag)}, v7")
        a("s_nop 3")
        a(f"s_add_u32 {s(sTag)}, {s(sTag)}, 1")
    def tree_up(off):
        a(f"s_lshr_b32 {s(sT1)}, s2, 4")
        a(f"s_mul_i32 {s(sT0)}, {s(sT1)}, {17*128}")
        a(f"s_and_b32 {s(sT1)}, s2, 15")
        a(f"s_lshl_b32 {s(sT1)}, {s(sT1)}, 2")
        a(f"s_add_u32 {s(sT0)}, {s(sT0)}, {s(sT1)}")
        a(f"s_add_u32 {s(sT0)}, {s(sT0)}, {F.WS_MB3 + off}")
        a(f"v_mov_b32 v7, {s(sTag)}")
        a("s_mov_b64 exec, 1")
        a(f"buffer_store_dword v7, v5, {s(SWS,4)}, {s(sT0)} offen sc1")
        a("s_mov_b64 exec, -1")
    def tree_down(off, base, shift, lbl):
        a(f"s_lshr_b32 {s(sT1)}, s2, 4")
        a(f"s_and_b32 {s(sT2)}, s2, 15")
        a(f"s_cmp_lg_u32 {s(sT1)}, {s(sT2)}")
        a(f"s_cbranch_scc1 {lbl}")
        a(f"s_lshl_b32 {s(sT0)}, s2, 7")
        a(f"s_add_u32 {s(sT0)}, {s(sT0)}, {F.WS_MB3 + off}")
        poll(f"buffer_load_dword v7, v6, {s(SWS,4)}, {s(sT0)} offen sc1", f"v_cmp_ne_u32 vcc, {s(sTag)}, v7", "0xffff")
        a(f"s_lshl_b32 {s(sT1)}, {s(sT1)}, 2")
        a(f"v_lshlrev_b32 v3, {shift}, v0")
        a(f"v_mov_b32 v7, {s(sTag)}")
        a(f"s_add_u32 {s(sT0)}, {s(sT1)}, {base}")
        for i_ in range(4):
            a(f"buffer_store_dword v7, v3, {s(SWS,4)}, {s(sT0)} offen sc1")
            a(f"s_add_u32 {s(sT0)}, {s(sT0)}, {64 << shift}")
        a.label(lbl)
    def broadcast(base, shift):
        a(f"v_lshlrev_b32 v3, {shift}, v0")
        a(f"v_mov_b32 v7, {s(sTag)}")
        a(f"s_mov_b32 {s(sT0)}, {base}")
        for i in range(4):
            a(f"buffer_store_dword v7, v3, {s(SWS,4)}, {s(sT0)} offen sc1")
            a(f"s_add_u32 {s(sT0)}, {s(sT0)}, {64 << shift}")
    def atom(off_s, off):
        a("s_mov_b64 exec, 1")
        a("v_mov_b32 v4, 1")
        a(f"buffer_atomic_add v4, v5, {s(SD,4)}, {off_s} offen offset:{off} sc0 sc1")
        a("s_mov_b64 exec, -1")
    if_lead(get_tag)
    a("s_waitcnt vmcnt(0)")
    rt(3)
    a("s_barrier")
    def sig1():
        a(f"v_mov_b32 v7, {s(sTag)}")
        a(f"s_cmp_lg_u32 {s(sWo)}, 0")
        a(f"s_cbranch_scc1 {name}_sigB")
        a(f"buffer_store_dword v7, v2, {s(SWS,4)}, {s(sXo)} offen sc1")
        a(f"s_branch {name}_sigD")
        a.label(f"{name}_sigB")
        tree_up(0)
        tree_down(0, F.WS_MB1 + 33 * 4, 8, f"{name}_tdB")
        a.label(f"{name}_sigD")
        a(f"s_lshl_b32 {s(sT0)}, s2, 8")
        a(f"s_add_u32 {s(sT0)}, {s(sT0)}, {F.WS_MB1}")
        a(f"s_mov_b32 {s(sK)}, -1\ns_mov_b32 {s(sK+1)}, {3 if os.environ.get('BSYNC','0')=='1' else 1}")
        poll(f"buffer_load_dword v7, v6, {s(SWS,4)}, {s(sT0)} offen sc1", f"v_cmp_ne_u32 vcc, {s(sTag)}, v7", s(sK, 2))
    if_lead(sig1)
    rt(4)
    a("s_barrier")
    q_ = []
    def epoch(e_):
        for tl in range(2):
            lds = (e_ % 4) * 32768 + tl * 4096
            src = e_ * 16384 + tl * 2048
            a(f"s_add_u32 m0, {s(sM)}, {lds}")
            a(f"s_add_u32 {s(sT0)}, {s(sDK)}, {src}")
            a(f"buffer_load_dwordx4 v1, {s(SWS,4)}, {s(sT0)} offen {LD} lds")
            a(f"buffer_load_dwordx4 v1, {s(SWS,4)}, {s(sT0)} offen offset:1024 {LD} lds")
            a(f"s_add_u32 m0, {s(sM)}, {lds + 2048}")
            a(f"s_add_u32 {s(sT0)}, {s(sDK)}, {src + M.WS_VF - M.WS_KF}")
            a(f"buffer_load_dwordx4 v1, {s(SWS,4)}, {s(sT0)} offen {LD} lds")
            a(f"buffer_load_dwordx4 v1, {s(SWS,4)}, {s(sT0)} offen offset:1024 {LD} lds")
            q_.extend([f"E{e_}"] * 4)
    def wait_for(tag):
        last = max(i for i, t_ in enumerate(q_) if t_ == tag)
        n = len(q_) - 1 - last
        assert n <= 63
        a(f"s_waitcnt vmcnt({n})")
    def fl(txt, tag):
        a(txt); q_.append(tag)
    def stage64(waits):
        for ks in range(4):
            waits(ks)
            for mt in range(2):
                for c in range(2):
                    a(mfma16(AC[mt][c], DA[mt][ks], F64[c][ks], None if ks == 0 else AC[mt][c]))
        a("s_nop 7")
    def twiddle():
        for mt in range(2):
            for r in range(4):
                tw = TW + 4 * (2 * mt + r // 2) + 2 * (r % 2)
                cmul(a, AC[mt][0] + r, AC[mt][1] + r, AC[mt][0] + r, AC[mt][1] + r, tw, tw + 1, T + 2 * (r % 2))
    def pack_sep():
        for c in range(2):
            for mt in range(2):
                for h in range(2):
                    a(f"v_cvt_pk_bf16_f32 {v(BF[c]+2*mt+h)}, {v(AC[mt][c]+2*h)}, {v(AC[mt][c]+2*h+1)}")
        a("s_nop 1")
    def stage32():
        for mt in range(2):
            a(mfma16(AC[mt][0], F32[mt][0], BF[0], None))
            a(mfma16(AC[mt][1], F32[mt][2], BF[0], None))
        for mt in range(2):
            a(mfma16(AC[mt][0], F32[mt][1], BF[1], AC[mt][0]))
            a(mfma16(AC[mt][1], F32[mt][0], BF[1], AC[mt][1]))
        a("s_nop 7")
    epoch(0); epoch(1)
    a("s_setprio 2")
    def B(k):
        a("s_barrier"); rt(5 + k)
    wait_for("E0"); B(0)
    def pollB():
        a(f"s_lshl_b32 {s(sT0)}, s2, 8")
        a(f"s_add_u32 {s(sT0)}, {s(sT0)}, {F.WS_MB1 + 33*4}")
        poll(f"buffer_load_dword v7, v6, {s(SWS,4)}, {s(sT0)} offen sc1", f"v_cmp_ne_u32 vcc, {s(sTag)}, v7", "0xf")
    if_lead(pollB)
    epoch(2)
    wait_for("E1"); B(1)
    epoch(3)
    a(f"s_mul_i32 {s(sT2)}, {s(sCol)}, {M.X1S}")
    a(f"s_add_u32 {s(sK)}, {s(sT2)}, {M.WS_X1}")
    a(f"s_add_u32 {s(sV)}, {s(sK)}, 4096")
    for ks in range(4):
        fl(f"buffer_load_dwordx4 {v(DA[0][ks],4)}, v1, {s(SWS,4)}, {s(sK)} offen offset:{1024*ks} {LD}", "DA")
        fl(f"buffer_load_dwordx4 {v(DA[1][ks],4)}, v1, {s(SWS,4)}, {s(sV)} offen offset:{1024*ks} {LD}", "DA")
    a(f"s_lshr_b32 {s(sT2)}, {s(sCol)}, 2")
    a(f"s_mul_i32 {s(sT2)}, {s(sT2)}, {M.WTS}")
    a(f"s_lshl_b32 {s(sK)}, {s(sW)}, 10")
    a(f"s_add_u32 {s(sK)}, {s(sK)}, {s(sT2)}")
    a(f"s_and_b32 {s(sT2)}, {s(sCol)}, 3")
    a(f"s_lshl_b32 {s(sT2)}, {s(sT2)}, 5")
    a(f"s_add_u32 {s(sK)}, {s(sK)}, {s(sT2)}")
    a(f"s_add_u32 {s(sK)}, {s(sK)}, {M.WS_WT}")
    a(f"s_add_u32 {s(sV)}, {s(sK)}, 16384")
    fl(f"buffer_load_dwordx4 {v(Wv[0],4)}, {v(vA)}, {s(SWS,4)}, {s(sK)} offen {LD}", "W")
    fl(f"buffer_load_dwordx4 {v(Wv[1],4)}, {v(vA)}, {s(SWS,4)}, {s(sV)} offen {LD}", "W")
    wait_for("E2"); B(2)
    wait_for("W")
    stage64(lambda ks: None)
    epoch(4)
    twiddle()
    pack_sep()
    stage32()
    B(3)
    for mt in range(2):
        for r in range(4):
            a(f"v_lshlrev_b32 {v(WR)}, 16, {v(Wv[mt]+r)}")
            a(f"v_and_b32 {v(WI)}, 0xffff0000, {v(Wv[mt]+r)}")
            cmul(a, AC[mt][0] + r, AC[mt][1] + r, AC[mt][0] + r, AC[mt][1] + r, WR, WI, T + 2 * (r % 2), conj_out=True)
    pack_sep()
    stage32()
    epoch(5)
    twiddle()
    for mt in range(2):
        for r in range(4):
            a(f"v_cvt_pk_bf16_f32 {v(BF[mt]+r)}, {v(AC[mt][0]+r)}, {v(AC[mt][1]+r)}")
    for mt in range(2):
        for r in range(4):
            a(f"ds_write_b32 {v(vB)}, {v(BF[mt]+r)} offset:{(16*mt+r)*272}")
    a("s_waitcnt lgkmcnt(0)")
    wait_for("E4"); B(4)
    for ks in range(4):
        for mt in range(2):
            a(f"ds_read_b128 {v(DA[mt][ks],4)}, {v(vC)} offset:{16*mt*272+64*ks}")
    stage64(lambda ks: a(f"s_waitcnt lgkmcnt({2*(3-ks)})"))
    for mt in range(2):
        for r in range(4):
            a(f"v_cvt_pk_bf16_f32 {v(BF[mt]+r)}, {v(AC[mt][0]+r)}, {v(AC[mt][1]+r)}")
    fl(f"buffer_store_dwordx4 {v(BF[0],4)}, {v(vD)}, {s(SWS,4)}, {s(sZ0)} offen {ST}", "ST")
    fl(f"buffer_store_dwordx4 {v(BF[1],4)}, {v(vD)}, {s(SWS,4)}, {s(sZ1)} offen {ST}", "ST")
    epoch(6)
    a("s_setprio 0")
    wait_for("E5"); B(5)
    epoch(7)
    wait_for("E6"); B(6)
    def f1(): tree_up(64)
    if_lead(f1)
    def wo_items(k0, k1):
        for k in range(k0, k1):
            a(f"s_lshr_b32 {s(sT1)}, {s(sM)}, 3")
            a(f"s_add_u32 m0, {s(sT1)}, {4096*k}")
            a(f"s_add_u32 {s(sT0)}, {s(sWoO)}, {32*896*k}")
            fl(f"buffer_load_dwordx4 {v(vWo)}, {s(SA,4)}, {s(sT0)} offen lds", "WO")
    wo_items(0, 8)
    wait_for("E7"); B(7)
    def f2(): tree_down(64, F.WS_MB2 + 64, 7, f"{name}_tdF")
    if_lead(f2)
    wo_items(8, 15)
    vb = VAlloc(8)
    D5 = vb(16); Zr = vb(8); Hh = vb(16); TWv = vb(16); GF = [vb(4) for ks in range(4)]; AF = [vb(4) for ks in range(4)]
    PL = vb(8); t = [vb(1) for i in range(8)]
    vP, vM, vEw, vEr, vY = [vb(1) for i in range(5)]
    assert vb.hi <= vL16
    a(f"v_lshrrev_b32 {v(t[0])}, 3, v0")
    a(f"v_and_b32 {v(t[1])}, 7, v0")
    a(f"v_sub_u32 {v(t[2])}, 7, {v(t[0])}")
    a(f"v_lshlrev_b32 {v(t[2])}, 5, {v(t[2])}")
    a(f"v_lshl_add_u32 {v(vM)}, {v(t[1])}, 2, {v(t[2])}")
    a(f"v_lshlrev_b32 {v(t[3])}, 6, {v(t[0])}")
    a(f"s_lshl_b32 {s(sT2)}, {s(sW)}, 9")
    a(f"s_add_u32 {s(sT2)}, {s(sT2)}, {CT_TW448}")
    for q in range(4):
        a(f"buffer_load_dwordx4 {v(TWv+4*q,4)}, {v(t[3])}, {s(SC_,4)}, {s(sT2)} offen offset:{16*q}")
    a(f"s_and_b32 {s(sK)}, {s(sW)}, 1")
    a(f"s_lshl_b32 {s(sT1)}, {s(sK)}, 12")
    a(f"s_add_u32 {s(sT1)}, {s(sT1)}, {CT_G56}")
    for ks in range(4):
        a(f"buffer_load_dwordx4 {v(GF[ks],4)}, v1, {s(SC_,4)}, {s(sT1)} offen offset:{1024*ks}")
    B(8)
    a(f"v_mul_u32_u24 {v(vEw)}, 1168, {v(t[1])}")
    a(f"v_lshl_add_u32 {v(vEw)}, {v(t[0])}, 2, {v(vEw)}")
    a(f"s_lshl_b32 {s(sT1)}, {s(sW)}, 5")
    a(f"s_add_u32 {s(sT1)}, {s(sT1)}, {F.LDS_X}")
    a(f"v_add_u32 {v(vEw)}, {s(sT1)}, {v(vEw)}")
    a(f"v_and_b32 {v(t[4])}, 31, v0")
    a(f"v_lshrrev_b32 {v(t[5])}, 5, v0")
    a(f"v_mul_u32_u24 {v(vEr)}, 144, {v(t[4])}")
    a(f"v_lshrrev_b32 {v(t[6])}, 3, {v(t[4])}")
    a(f"v_add_u32 {v(t[6])}, {v(t[6])}, {v(t[5])}")
    a(f"v_lshl_add_u32 {v(vEr)}, {v(t[6])}, 4, {v(vEr)}")
    a(f"s_lshr_b32 {s(sV)}, {s(sW)}, 1")
    a(f"s_mul_i32 {s(sT1)}, {s(sV)}, {4*1168}")
    a(f"s_add_u32 {s(sT1)}, {s(sT1)}, {F.LDS_X}")
    a(f"v_add_u32 {v(vEr)}, {s(sT1)}, {v(vEr)}")
    a(f"s_lshl_b32 {s(sT1)}, {s(sK)}, 5")
    a(f"v_add_u32 {v(t[6])}, {s(sT1)}, {v(t[4])}")
    a(f"v_lshlrev_b32 {v(vY)}, 4, {v(t[6])}")
    a(f"v_lshl_add_u32 {v(vY)}, {v(t[5])}, 3, {v(vY)}")
    a(f"v_mov_b32 {v(t[7])}, 0x7f000000")
    a(f"v_cmp_lt_u32 vcc, 55, {v(t[6])}")
    a(f"s_mul_i32 {s(sZ0)}, s2, {M.ZSTRIDE}")
    a(f"s_add_u32 {s(sZ0)}, {s(sZ0)}, {M.WS_ZB}")
    a(f"v_cndmask_b32 {v(vY)}, {v(vY)}, {v(t[7])}, vcc")
    a(f"s_lshl_b32 {s(sT2)}, {s(sW)}, 8")
    a(f"s_sub_u32 {s(sZ1)}, {s(sZ0)}, {s(sT2)}")
    a(f"s_add_u32 {s(sZ0)}, {s(sZ0)}, {s(sT2)}")
    a(f"s_mov_b32 {s(sK8)}, {f32hex(0.5**0.5)}")
    a(f"s_lshl_b32 {s(sDK)}, s2, 3")
    a(f"s_lshl_b32 {s(sT2)}, {s(sV)}, 2")
    a(f"s_add_u32 {s(sDK)}, {s(sDK)}, {s(sT2)}")
    a(f"s_mul_i32 {s(sDK)}, {s(sDK)}, 1792")
    a(f"s_add_u32 {s(sDK)}, {s(sDK)}, 896")
    a(f"s_add_u32 {s(sM)}, {s(sDK)}, 3584")
    a("s_waitcnt vmcnt(0)")
    rt(14)
    a("s_barrier")
    def sig2():
        a(f"v_mov_b32 v7, {s(sTag)}")
        a(f"s_lshl_b32 {s(sT0)}, {s(sHead)}, 2")
        a(f"s_add_u32 {s(sT0)}, {s(sT0)}, {F.WS_MB2}")
        a("s_mov_b64 exec, 0x3fff")
        a(f"buffer_store_dword v7, {v(vS2)}, {s(SWS,4)}, {s(sT0)} offen sc1")
        a("s_mov_b64 exec, -1")
        a(f"s_lshl_b32 {s(sT0)}, s2, 7")
        a(f"s_add_u32 {s(sT0)}, {s(sT0)}, {F.WS_MB2}")
        a(f"s_cmp_lt_u32 {s(sSlot)}, 28")
        a(f"s_cselect_b32 {s(sK)}, -1, 0xffff0000")
        a(f"s_mov_b32 {s(sK+1)}, 0")
        poll(f"buffer_load_dword v7, v6, {s(SWS,4)}, {s(sT0)} offen sc1", f"v_cmp_ne_u32 vcc, {s(sTag)}, v7", s(sK, 2))
        a(f"s_cmp_lg_u32 s2, 255")
        a(f"s_cbranch_scc1 {name}_noadv")
        a(f"v_mov_b32 v7, {s(sTag)}")
        a(f"s_mov_b32 {s(sT0)}, {F.WS_TAG}")
        a("s_mov_b64 exec, 1")
        a(f"buffer_store_dword v7, v5, {s(SWS,4)}, {s(sT0)} offen sc1")
        a("s_mov_b64 exec, -1")
        a.label(f"{name}_noadv")
    if_lead(sig2)
    a("s_barrier")
    for tt_ in range(8):
        if tt_ < 4:
            a(f"s_add_u32 {s(sT0)}, {s(sZ0)}, {56*tt_*32}")
            a(f"buffer_load_dword {v(Zr+tt_)}, v6, {s(SWS,4)}, {s(sT0)} offen {LD}")
        else:
            a(f"s_add_u32 {s(sT0)}, {s(sZ1)}, {(56*(8-tt_)-7)*32}")
            a(f"buffer_load_dword {v(Zr+tt_)}, {v(vM)}, {s(SWS,4)}, {s(sT0)} offen {LD}")
    a("s_waitcnt vmcnt(0)")
    for tt_ in range(8):
        a(f"v_lshlrev_b32 {v(Hh+2*tt_)}, 16, {v(Zr+tt_)}")
        a(f"v_and_b32 {v(Hh+2*tt_+1)}, 0xffff0000, {v(Zr+tt_)}")
    pool = Pool([PL + i for i in range(8)])
    X = dft8(a, pool, [((Hh + 2 * tt_, 1), (Hh + 2 * tt_ + 1, -1 if tt_ < 4 else 1)) for tt_ in range(8)], +1, sK8)
    for j in range(8):
        xr, xi = X[j]
        o_ = Zr + j
        if j == 0:
            a(f"v_cvt_pk_bf16_f32 {v(o_)}, {sv(xr)}, {sv(xi)}")
        else:
            tr = TWv + 2 * (j - 1); ti = tr + 1
            p, q = t[2 * (j % 2)], t[2 * (j % 2) + 1]
            a(f"v_mul_f32_e64 {v(p)}, {sv(xi)}, {v(ti)}")
            a(f"v_mul_f32_e64 {v(q)}, {sv(xi)}, {v(tr)}")
            a(f"v_fma_f32 {v(p)}, {sv(xr)}, {v(tr)}, {v(p)}")
            a(f"v_fma_f32 {v(q)}, {sv(neg(xr))}, {v(ti)}, {v(q)}")
            a(f"v_cvt_pk_bf16_f32 {v(o_)}, {v(p)}, {v(q)}")
        a(f"ds_write_b32 {v(vEw)}, {v(o_)} offset:{144*j}")
    a("s_waitcnt lgkmcnt(0)")
    a("s_barrier")
    for ks in range(4):
        a(f"ds_read_b128 {v(AF[ks],4)}, {v(vEr)} offset:{32*ks}")
    for ks in range(4):
        a(f"s_waitcnt lgkmcnt({3-ks})")
        a(mfma32(D5, AF[ks], GF[ks], None if ks == 0 else D5))
    a("s_nop 7\ns_nop 3")
    for k in range(8):
        a(f"v_cvt_pk_bf16_f32 {v(Hh+k)}, {v(D5+2*k)}, {v(D5+2*k+1)}")
    for q in range(4):
        a(f"buffer_store_dwordx2 {v(Hh+2*q,2)}, {v(vY)}, {s(SBv,4)}, {s(sDK if q < 2 else sM)} offen offset:{1792*(q%2)}")
    dump(4, 2)
    a("s_endpgm")
    return 200

def computes(a, name, E):
    SA, SBv, SWS = E['SA'], E['SBv'], E['SWS']
    sW, sXc, sSlot, sHi = E['sW'], E['sXc'], E['sSlot'], E['sHi']
    rt, dump = E['rt'], E['dump']
    ST, LD = F.ST, F.LD
    sT0, sT1, sT2 = 33, 34, 35
    sHead, sQt, sK0, sJ, sIt, sK, sV, sQo, sTb2, sCg = 31, 32, 36, 37, 38, 40, 41, 42, 44, 45
    va = VAlloc(2)
    Q = [va(4), va(4)]
    O = va(16)
    S_ = [va(16), va(16)]
    P_ = [va(8), va(8)]
    Kb = [va(8), va(8)]
    Vb = [va(8), va(8)]
    Mx = va(1); va(1); T = [va(1) for i in range(4)]
    vA = va(1); vB = va(1)
    def ld(dst, so, off):
        a(f"buffer_load_dwordx4 {v(dst,4)}, v1, {s(SWS,4)}, {s(so)} offen offset:{off} {LD}")
    a(f"s_mov_b32 {s(SBv)}, s76\ns_mov_b32 {s(SBv+1)}, s77")
    a(f"s_lshr_b32 {s(sHead)}, {s(sSlot)}, 4")
    a(f"s_lshl_b32 {s(sT0)}, {s(sXc)}, 1")
    a(f"s_add_u32 {s(sHead)}, {s(sHead)}, {s(sT0)}")
    a(f"s_lshl_b32 {s(sT0)}, {s(sHead)}, 17")
    a(f"s_add_u32 {s(sK0)}, {s(sT0)}, {M.WS_KF}")
    a(f"s_and_b32 {s(sQt)}, {s(sSlot)}, 15")
    a(f"s_lshl_b32 {s(sQt)}, {s(sQt)}, 2")
    a(f"s_add_u32 {s(sQt)}, {s(sQt)}, {s(sW)}")
    a(f"s_lshl_b32 {s(sT1)}, {s(sQt)}, 11")
    a(f"s_add_u32 {s(sQo)}, {s(sT0)}, {s(sT1)}")
    a(f"s_lshl_b32 {s(sJ)}, {s(sQt)}, 4")
    a(f"s_add_u32 {s(sJ)}, {s(sJ)}, {s(sHead)}")
    a(f"s_lshl_b32 {s(sJ)}, {s(sJ)}, 11")
    a(f"s_add_u32 {s(sJ)}, {s(sJ)}, {M.WS_OF}")
    a(f"s_mov_b32 {s(sIt)}, 0")
    a(f"s_mov_b32 {s(SBv+2)}, {2048*1792}\ns_mov_b32 {s(SBv+3)}, 0x20000")
    rt(2)
    a("s_waitcnt vmcnt(0) lgkmcnt(0)")
    rt(3)
    a("s_barrier")
    a(f"v_mov_b32 {v(Mx)}, 0xff800000")
    for r in range(16): a(f"v_mov_b32 {v(O+r)}, 0")
    for r in range(8): a(f"v_mov_b32 {v(P_[1]+r)}, 0")
    for r in range(8): a(f"v_mov_b32 {v(Vb[1]+r)}, 0")
    a(f"v_mov_b32 {v(vA)}, v1")
    a(f"v_add_u32 {v(vB)}, 0x8000, v1")
    a("s_barrier")
    rt(4)
    for t in range(2): ld(Kb[0] + 4 * t, sK0, 1024 * t)
    for t in range(2): ld(Q[t], sQo, 1024 * t)
    a("s_waitcnt vmcnt(0)")
    rt(5)
    def maxstep():
        a(mfma32(S_[1], Kb[0], Q[0], None))
        a(mfma32(S_[1], Kb[0] + 4, Q[1], S_[1]))
        a("s_nop 7\ns_nop 3")
        for r in range(0, 16, 2):
            a(f"v_max3_f32 {v(Mx)}, {v(S_[1]+r)}, {v(S_[1]+r+1)}, {v(Mx)}")
    def finalize():
        a(f"v_mov_b32 {v(T[0])}, {v(Mx)}\nv_mov_b32 {v(T[1])}, {v(Mx)}\ns_nop 1")
        a(f"v_permlane32_swap_b32 {v(T[0])}, {v(T[1])}\ns_nop 0")
        a(f"v_max_f32 {v(Mx)}, {v(T[0])}, {v(T[1])}")
        a(f"v_cvt_pk_bf16_f32 {v(T[0])}, {v(Mx)}, {v(Mx)}")
        a(f"v_and_b32 {v(T[0])}, 0xffff0000, {v(T[0])}")
        a(f"v_sub_f32 {v(T[1])}, {v(Mx)}, {v(T[0])}")
        a(f"s_mov_b64 exec, {s(sHi,2)}")
        a(f"v_cvt_pk_bf16_f32 {v(Q[1]+2)}, -{v(T[0])}, -{v(T[1])}")
        a(f"s_mov_b64 exec, -1")
    maxstep()
    finalize()
    a(mfma32(S_[0], Kb[0], Q[0], None))
    a("s_barrier")
    a(mfma32(S_[0], Kb[0] + 4, Q[1], S_[0]))
    for t in range(2):
        a(f"ds_read_b128 {v(Kb[1]+4*t,4)}, {v(vA)} offset:{4096+1024*t}")
    a("s_nop 7")
    a("s_waitcnt lgkmcnt(0)")
    rt(6)
    a.raw(".p2align 6")
    a.label(f"{name}_loop")
    for u in range(8):
        p = u % 2; q = 1 - p
        sb = S_[p]; pb = P_[p]; sn = S_[q]; pp = P_[q]
        e = lambda r: a(f"v_exp_f32 {v(sb+r)}, {v(sb+r)}")
        c = lambda k: a(f"v_cvt_pk_bf16_f32 {v(pb+k)}, {v(sb+2*k)}, {v(sb+2*k+1)}")
        def rdK(t):
            if u < 6: a(f"ds_read_b128 {v(Kb[p]+4*t,4)}, {v(vA)} offset:{4096*(u+2)+1024*t}")
            else:     a(f"ds_read_b128 {v(Kb[p]+4*t,4)}, {v(vB)} offset:{4096*(u-6)+1024*t}")
        def rdV(t):
            a(f"ds_read_b128 {v(Vb[p]+4*t,4)}, {v(vA)} offset:{4096*u+2048+1024*t}")
        a(mfma32(sn, Kb[q], Q[0], None))
        if u == 6: a("s_barrier")
        rdV(0)
        e(0); e(1); e(2); e(3)
        a(mfma32(sn, Kb[q] + 4, Q[1], sn))
        rdV(1)
        e(4); e(5); c(0); e(6); e(7); c(1)
        a(mfma32(O, Vb[q], pp, O))
        rdK(0); rdK(1)
        e(8); e(9); c(2); e(10); e(11); c(3)
        a(mfma32(O, Vb[q] + 4, pp + 4, O))
        e(12)
        if u == 7: a(f"s_add_u32 {s(sIt)}, {s(sIt)}, 1")
        e(13); c(4); e(14)
        if u == 7: a(f"s_cmp_lt_u32 {s(sIt)}, 8")
        e(15)
        a("s_waitcnt lgkmcnt(0)")
        c(5); c(6); c(7)
        if u == 7:
            a(f"v_mov_b32 {v(vA)}, {v(vB)}")
            a(f"v_add_u32 {v(vB)}, 0x8000, {v(vB)}")
            a(f"v_and_b32 {v(vB)}, 0x1ffff, {v(vB)}")
    a(f"s_cbranch_scc1 {name}_loop")
    a(mfma32(O, Vb[1], P_[1], O))
    a(mfma32(O, Vb[1] + 4, P_[1] + 4, O))
    rt(7)
    a(f"s_mov_b32 {s(sT1)}, 0x5d800000")
    a("s_nop 7\ns_nop 3")
    a(f"v_cmp_nge_f32 vcc, {s(sT1)}, {v(O+12)}")
    a(f"v_mov_b32 {v(T[0])}, {v(O+12)}")
    a(f"v_mov_b32 {v(T[1])}, {v(O+12)}")
    a(f"s_cmp_lg_u32 vcc_hi, 0")
    a(f"s_cbranch_scc1 {name}_redo")
    a.label(f"{name}_epi")
    a(f"v_permlane32_swap_b32 {v(T[0])}, {v(T[1])}")
    a("s_nop 1")
    a(f"v_rcp_f32 {v(T[2])}, {v(T[1])}")
    a("s_nop 0")
    assert T[2] % 2 == 0
    for r in range(0, 16, 2):
        a(f"v_pk_mul_f32 {v(O+r,2)}, {v(O+r,2)}, {v(T[2],2)} op_sel_hi:[1,0]")
    for k in range(8):
        a(f"v_cvt_pk_bf16_f32 {v(S_[0]+k)}, {v(O+2*k)}, {v(O+2*k+1)}")
    a(f"s_mov_b64 exec, {s(sHi,2)}")
    a(f"v_mov_b32 {v(S_[0]+6)}, 0")
    a(f"v_mov_b32 {v(S_[0]+7)}, 0")
    a(f"s_mov_b64 exec, -1")
    a(f"buffer_store_dwordx4 {v(S_[0],4)}, v1, {s(SWS,4)}, {s(sJ)} offen {ST}")
    a(f"buffer_store_dwordx4 {v(S_[0]+4,4)}, v1, {s(SWS,4)}, {s(sJ)} offen offset:1024 {ST}")
    vb = VAlloc(2)
    ACC = [vb(16), vb(16)]
    t = [vb(1) for i in range(8)]
    assert vb.hi <= S_[0] or True
    vb = VAlloc(max(va.hi, 48))
    vb = VAlloc(64 - 8)
    OFr = [vb(4) for k in range(16)]
    WFR = [[vb(4) for k in range(16)] for ct in range(2)]
    aW = [vb(1), vb(1)]; vTw = vb(1); vTr = vb(1); vSt = vb(1); vRw = vb(1); vRr = vb(1)
    a(f"s_mul_i32 {s(sT0)}, {s(sSlot)}, 37")
    a(f"s_lshr_b32 {s(sT0)}, {s(sT0)}, 8")
    a(f"s_mul_i32 {s(sT1)}, {s(sT0)}, 7")
    a(f"s_sub_u32 {s(sCg)}, {s(sSlot)}, {s(sT1)}")
    a(f"s_lshl_b32 {s(sTb2)}, {s(sXc)}, 2")
    a(f"s_add_u32 {s(sTb2)}, {s(sTb2)}, {s(sT0)}")
    a(f"s_and_b32 {s(sK)}, {s(sW)}, 1")
    a(f"s_lshr_b32 {s(sV)}, {s(sW)}, 1")
    a("s_waitcnt vmcnt(0)")
    rt(8)
    a("s_barrier")
    a(f"s_cmp_ge_u32 {s(sSlot)}, 28")
    a(f"s_cbranch_scc1 {name}_c_end")
    a(f"v_lshrrev_b32 {v(t[5])}, 5, v0")
    a(f"v_bfe_u32 {v(t[6])}, v0, 3, 1")
    a(f"v_lshlrev_b32 {v(aW[0])}, 9, {v(t[5])}")
    a(f"v_lshl_add_u32 {v(aW[0])}, {v(t[6])}, 8, {v(aW[0])}")
    a(f"v_xor_b32 {v(t[6])}, {s(sK)}, {v(t[6])}")
    a(f"v_lshl_add_u32 {v(aW[0])}, {v(t[6])}, 7, {v(aW[0])}")
    a(f"v_bfe_u32 {v(t[6])}, v0, 2, 1")
    a(f"v_lshl_add_u32 {v(aW[0])}, {v(t[6])}, 6, {v(aW[0])}")
    a(f"v_bfe_u32 {v(t[6])}, v0, 4, 1")
    a(f"v_lshl_add_u32 {v(aW[0])}, {v(t[6])}, 5, {v(aW[0])}")
    a(f"v_and_b32 {v(t[6])}, 3, v0")
    a(f"v_lshl_add_u32 {v(aW[0])}, {v(t[6])}, 3, {v(aW[0])}")
    a(f"s_mul_i32 {s(sT0)}, {s(sK)}, {8*28*128}")
    a(f"v_add_u32 {v(aW[0])}, {s(sT0)}, {v(aW[0])}")
    a(f"v_xor_b32 {v(aW[1])}, 0x80, {v(aW[0])}")
    n = 0
    for k in range(16):
        h2, t_ = k // 2, k % 2
        for ct in range(2):
            for jj in range(2):
                a(f"ds_read_b64_tr_b16 {v(WFR[ct][k]+2*jj,2)}, {v(aW[ct])} offset:{(28*h2+16*t_+8*jj)*128}")
                n += 1
                if n % 12 == 0: a("s_waitcnt lgkmcnt(4)")
    a(f"v_and_b32 {v(t[4])}, 31, v0")
    a(f"s_mul_i32 {s(sT1)}, {s(sW)}, 2560")
    a(f"s_add_u32 {s(sT1)}, {s(sT1)}, {F.L_TR}")
    a(f"v_mul_u32_u24 {v(vTw)}, 80, {v(t[4])}")
    a(f"v_lshl_add_u32 {v(vTw)}, {v(t[5])}, 3, {v(vTw)}")
    a(f"v_add_u32 {v(vTw)}, {s(sT1)}, {v(vTw)}")
    a(f"v_lshrrev_b32 {v(t[7])}, 2, v0")
    a(f"v_mul_u32_u24 {v(vTr)}, 80, {v(t[7])}")
    a(f"v_lshl_add_u32 {v(vTr)}, {v(t[6])}, 4, {v(vTr)}")
    a(f"v_add_u32 {v(vTr)}, {s(sT1)}, {v(vTr)}")
    a(f"v_mul_u32_u24 {v(vSt)}, 1792, {v(t[7])}")
    a(f"v_lshl_add_u32 {v(vSt)}, {v(t[6])}, 4, {v(vSt)}")
    a(f"s_lshl_b32 {s(sT1)}, {s(sW)}, 12")
    a(f"s_add_u32 {s(sT1)}, {s(sT1)}, {F.L_RED}")
    a(f"v_add_u32 {v(vRw)}, {s(sT1)}, v1")
    a(f"v_xor_b32 {v(vRr)}, 0x1000, {v(vRw)}")
    a(f"s_lshl_b32 {s(sT0)}, {s(sTb2)}, 1")
    a(f"s_add_u32 {s(sT0)}, {s(sT0)}, {s(sV)}")
    a(f"s_lshl_b32 {s(sJ)}, {s(sT0)}, 15")
    a(f"s_lshl_b32 {s(sT1)}, {s(sK)}, 14")
    a(f"s_add_u32 {s(sJ)}, {s(sJ)}, {s(sT1)}")
    a(f"s_add_u32 {s(sJ)}, {s(sJ)}, {M.WS_OF}")
    a(f"s_mul_i32 {s(sQo)}, {s(sT0)}, {32*1792}")
    a(f"s_lshl_b32 {s(sT1)}, {s(sCg)}, 7")
    a(f"s_add_u32 {s(sQo)}, {s(sQo)}, {s(sT1)}")
    a(f"s_lshl_b32 {s(sT1)}, {s(sK)}, 6")
    a(f"s_add_u32 {s(sQo)}, {s(sQo)}, {s(sT1)}")
    a(f"s_add_u32 {s(sK0)}, {s(sQo)}, {16*1792}")
    a("s_waitcnt lgkmcnt(0)")
    a("s_barrier")
    rt(9)
    for k in range(16):
        a(f"buffer_load_dwordx4 {v(OFr[k],4)}, v1, {s(SWS,4)}, {s(sJ)} offen offset:{1024*(k%4)} {LD}")
        if k % 4 == 3: a(f"s_add_u32 {s(sJ)}, {s(sJ)}, 4096")
    for k in range(16):
        a(f"s_waitcnt vmcnt({15-k})")
        for ct in (1, 0):
            a(mfma32(ACC[ct], WFR[ct][k], OFr[k], None if k == 0 else ACC[ct]))
    rt(10)
    a("s_nop 7\ns_nop 3")
    for q in range(4):
        a(f"ds_write_b128 {v(vRw)}, {v(ACC[1]+4*q,4)} offset:{1024*q}")
    a("s_waitcnt lgkmcnt(0)")
    a("s_barrier")
    for q in range(4):
        a(f"ds_read_b128 {v(ACC[1]+4*q,4)}, {v(vRr)} offset:{1024*q}")
    for q in range(4):
        a(f"s_waitcnt lgkmcnt({3-q})")
        for h in range(2):
            r = 4 * q + 2 * h
            a(f"v_pk_add_f32 {v(ACC[0]+r,2)}, {v(ACC[0]+r,2)}, {v(ACC[1]+r,2)}")
        for h in range(2):
            a(f"v_cvt_pk_bf16_f32 {v(OFr[0]+2*q+h)}, {v(ACC[0]+4*q+2*h)}, {v(ACC[0]+4*q+2*h+1)}")
    for q in range(4):
        a(f"ds_write_b64 {v(vTw)}, {v(OFr[0]+2*q,2)} offset:{16*q}")
    a("s_waitcnt lgkmcnt(0)")
    a(f"ds_read_b128 {v(OFr[4],4)}, {v(vTr)}")
    a(f"ds_read_b128 {v(OFr[5],4)}, {v(vTr)} offset:{16*80}")
    a("s_waitcnt lgkmcnt(1)")
    a(f"buffer_store_dwordx4 {v(OFr[4],4)}, {v(vSt)}, {s(SBv,4)}, {s(sQo)} offen")
    a("s_waitcnt lgkmcnt(0)")
    a(f"buffer_store_dwordx4 {v(OFr[5],4)}, {v(vSt)}, {s(SBv,4)}, {s(sK0)} offen")
    a.label(f"{name}_c_end")
    dump(0, 2)
    a("s_endpgm")
    a.label(f"{name}_redo")
    a(f"s_mov_b64 exec, {s(sHi,2)}")
    a(f"v_mov_b32 {v(Q[1]+2)}, 0")
    a(f"s_mov_b64 exec, -1")
    a(f"s_mov_b32 {s(sK)}, {s(sK0)}")
    a(f"s_mov_b32 {s(sIt)}, 0")
    a.label(f"{name}_redo1")
    for t_ in range(2): ld(Kb[0] + 4 * t_, sK, 1024 * t_)
    a("s_waitcnt vmcnt(0)")
    maxstep()
    a(f"s_add_u32 {s(sK)}, {s(sK)}, 2048")
    a(f"s_add_u32 {s(sIt)}, {s(sIt)}, 1")
    a(f"s_cmp_lt_u32 {s(sIt)}, 64")
    a(f"s_cbranch_scc1 {name}_redo1")
    finalize()
    for r in range(16): a(f"v_mov_b32 {v(O+r)}, 0")
    a(f"s_mov_b32 {s(sK)}, {s(sK0)}")
    a(f"s_mov_b32 {s(sIt)}, 0")
    a.label(f"{name}_redo2")
    a(f"s_add_u32 {s(sV)}, {s(sK)}, {M.WS_VF - M.WS_KF}")
    for t_ in range(2): ld(Kb[0] + 4 * t_, sK, 1024 * t_)
    for t_ in range(2): ld(Vb[0] + 4 * t_, sV, 1024 * t_)
    a("s_waitcnt vmcnt(0)")
    a(mfma32(S_[0], Kb[0], Q[0], None))
    a(mfma32(S_[0], Kb[0] + 4, Q[1], S_[0]))
    a("s_nop 7\ns_nop 3")
    for r in range(16): a(f"v_exp_f32 {v(S_[0]+r)}, {v(S_[0]+r)}")
    a("s_nop 0")
    for k in range(8): a(f"v_cvt_pk_bf16_f32 {v(P_[0]+k)}, {v(S_[0]+2*k)}, {v(S_[0]+2*k+1)}")
    a("s_nop 1")
    a(mfma32(O, Vb[0], P_[0], O))
    a(mfma32(O, Vb[0] + 4, P_[0] + 4, O))
    a(f"s_add_u32 {s(sK)}, {s(sK)}, 2048")
    a(f"s_add_u32 {s(sIt)}, {s(sIt)}, 1")
    a(f"s_cmp_lt_u32 {s(sIt)}, 64")
    a("s_nop 7")
    a(f"s_cbranch_scc1 {name}_redo2")
    a("s_nop 7")
    a(f"v_mov_b32 {v(T[0])}, {v(O+12)}")
    a(f"v_mov_b32 {v(T[1])}, {v(O+12)}")
    a("s_nop 1")
    a(f"s_branch {name}_epi")
    return max(va.hi, vb.hi)
```

```python
from asmlib import *
import model as M
import os
from k2 import (CT_F64, CT_F32, CT_T2048, CT_F56, CT_TW448, CT_G56, CT_TW448B, CT_SIZE, srd_consts, cmul)
from dft8 import *
import dft8pk as PK8

INSTR = os.environ.get("INSTR", "0") == "1"
NAME = "concat_heads__mha_block__spectral_gfnet__prompt_kernel"
WS_MB1 = 31 << 19
WS_MB2 = WS_MB1 + 65536
WS_MB3 = WS_MB1 + 98304
WS_TAG = WS_MB1 + 131072
LDS_X = 131072
LDS_Z = LDS_X + 9472
F_LDS = LDS_Z + 4 * 2304
L_RED = 65536
L_TR = 98304
NS = 4
SPIN = 100000
ST = os.environ.get("STF", "sc1")
LD = os.environ.get("LDF", "sc1")
SB = 80

def gen():
    name = "fk"
    a = Asm()
    a.raw(f".globl {NAME}\n.p2align 8\n.type {NAME},@function\n{NAME}:")
    SA, SBv, SWS, SC_, SD = 8, 12, 16, 20, 24
    sW, sXc, sSlot, sTag = 28, 29, 30, 49
    sTb, sG, sT0, sT1, sT2, sC, sSl, sXo, sWo, sOfs = 31, 32, 33, 34, 35, 36, 37, 38, 39, 48
    sHi = 50; sMsk = 52; sScale = 54; sPadv = 55; sTt = 40
    SP = 60; sN, sCh, sA_, sB2 = 56, 57, 58, 59
    uid = [0]
    def rt(idx):
        if INSTR:
            a("s_memrealtime s[96:97]\ns_waitcnt lgkmcnt(0)")
            a(f"s_mov_b32 s{SB+idx}, s96")
    def dump(wadd, vt):
        if INSTR:
            a("s_waitcnt vmcnt(0)")
            rt(15)
            a(f"s_lshl_b32 s96, s2, 9\ns_add_u32 s97, {s(sW)}, {wadd}\ns_lshl_b32 s97, s97, 6\ns_add_u32 s96, s96, s97\ns_add_u32 s96, s96, {M.WS_DBG}")
            a(f"v_mov_b32 {v(vt)}, 0")
            for i in range(16):
                a(f"v_mov_b32 {v(vt+1)}, s{SB+i}")
                a(f"buffer_store_dword {v(vt+1)}, {v(vt)}, {s(SWS,4)}, s96 offen offset:{4*i}\ns_nop 1")
            if os.environ.get("DBGOUT") and wadd == 0:
                uid[0] += 1
                a(f"s_lshl_b32 s96, s2, 2\ns_add_u32 s96, s96, {s(sW)}\ns_cmp_lg_u32 s96, 400\ns_cbranch_scc1 {name}_nodbg{uid[0]}")
                a(f"s_mov_b32 {s(SD)}, s78\ns_mov_b32 {s(SD+1)}, s79\ns_mov_b32 {s(SD+2)}, 256\ns_mov_b32 {s(SD+3)}, 0x20000")
                for i in range(16):
                    a(f"s_sub_u32 s96, s{SB+i}, s{SB}")
                    a(f"v_mov_b32 {v(vt+1)}, s96")
                    a(f"buffer_store_dword {v(vt+1)}, {v(vt)}, {s(SD,4)}, 0 offen offset:{4*i}\ns_nop 1")
                a.label(f"{name}_nodbg{uid[0]}")
    def poll(load_txt, cmp_txt, execmask):
        uid[0] += 1; L = f"{name}_poll{uid[0]}"
        a(f"s_mov_b64 exec, {execmask}")
        a(f"s_mov_b32 {s(sN)}, 0")
        a.label(L)
        a(load_txt)
        a("s_waitcnt vmcnt(0)")
        a(cmp_txt)
        a(f"s_add_u32 {s(sN)}, {s(sN)}, 1")
        a(f"s_cmp_gt_u32 {s(sN)}, {SPIN}")
        a(f"s_cbranch_scc1 {L}_x")
        a(f"s_cbranch_vccnz {L}")
        a.label(f"{L}_x")
        a("s_mov_b64 exec, -1")
    a(f"s_load_dwordx16 s[64:79], s[0:1], 0")
    a(f"s_cmp_ge_u32 s2, 256")
    a(f"s_cbranch_scc1 {name}_end")
    a(f"v_lshrrev_b32 v1, 6, v0")
    a(f"s_load_dwordx2 {s(SWS,2)}, s[0:1], 64")
    a(f"v_and_b32 v0, 63, v0")
    a(f"s_and_b32 {s(sXc)}, s2, 7")
    a(f"v_readfirstlane_b32 s3, v1")
    a(f"s_lshr_b32 {s(sSlot)}, s2, 3")
    a(f"v_lshlrev_b32 v1, 4, v0")
    if INSTR:
        for i in range(16): a(f"s_mov_b32 s{SB+i}, 0")
        rt(0)
    a(f"s_and_b32 {s(sW)}, s3, 3")
    a(f"s_mov_b32 {s(SWS+2)}, {M.WS_END}")
    a(f"s_mov_b32 {s(SWS+3)}, 0x20000")
    a(f"s_cmp_lt_u32 {s(sSlot)}, 8")
    a(f"s_cbranch_scc1 {name}_bwg")
    a(f"s_sub_u32 {s(sN)}, {s(sSlot)}, 8")
    a(f"s_mul_i32 {s(sT0)}, {s(sN)}, 43")
    a(f"s_lshr_b32 {s(sT0)}, {s(sT0)}, 8")
    a(f"s_mul_i32 {s(sT1)}, {s(sT0)}, 6")
    a(f"s_sub_u32 {s(sT1)}, {s(sN)}, {s(sT1)}")
    a(f"s_lshr_b32 {s(sTb)}, {s(sXc)}, 1")
    a(f"s_lshl_b32 {s(sTb)}, {s(sTb)}, 2")
    a(f"s_add_u32 {s(sTb)}, {s(sTb)}, {s(sT0)}")
    a(f"s_and_b32 {s(sG)}, {s(sXc)}, 1")
    a(f"s_mul_i32 {s(sG)}, {s(sG)}, 6")
    a(f"s_add_u32 {s(sG)}, {s(sG)}, {s(sT1)}")
    a(f"s_and_b32 {s(sOfs)}, {s(sG)}, 1")
    a(f"s_lshl_b32 {s(sOfs)}, {s(sOfs)}, 5")
    a(f"s_mov_b32 {s(SA+2)}, {2048*896}\ns_mov_b32 {s(SA+3)}, 0x20000")
    a(f"s_mov_b32 {s(SBv+2)}, {448*2688}\ns_mov_b32 {s(SBv+3)}, 0x20000")
    a(f"s_cmp_lt_u32 s3, 4")
    a(f"s_cbranch_scc1 {name}_t1c")
    vX0, vX1, vWw, vt = 2, 3, 4, 5
    a(f"v_lshrrev_b32 {v(vt)}, 3, v0")
    a(f"v_mul_u32_u24 {v(vX0)}, 896, {v(vt)}")
    a(f"v_and_b32 {v(vt)}, 7, v0")
    a(f"v_lshrrev_b32 {v(vt+1)}, 4, v0")
    a(f"v_xor_b32 {v(vt)}, {v(vt)}, {v(vt+1)}")
    a(f"v_xor_b32 {v(vt+2)}, 4, {v(vt)}")
    a(f"v_lshl_add_u32 {v(vX1)}, {v(vt+2)}, 4, {v(vX0)}")
    a(f"v_lshl_add_u32 {v(vX0)}, {v(vt)}, 4, {v(vX0)}")
    a(f"v_mul_u32_u24 {v(vWw)}, 2688, {v(vt+1)}")
    a(f"v_lshrrev_b32 {v(vt)}, 2, v0")
    a(f"v_sub_u32 {v(vt)}, {v(vt)}, {v(vt+1)}")
    a(f"v_and_b32 {v(vt)}, 3, {v(vt)}")
    a(f"v_lshl_add_u32 {v(vWw)}, {v(vt)}, 6, {v(vWw)}")
    a(f"v_and_b32 {v(vt)}, 3, v0")
    a(f"v_lshl_add_u32 {v(vWw)}, {v(vt)}, 4, {v(vWw)}")
    a(f"s_lshl_b32 {s(sT0)}, {s(sTb)}, 2")
    a(f"s_add_u32 {s(sT0)}, {s(sT0)}, {s(sW)}")
    a(f"s_mul_i32 {s(sXo)}, {s(sT0)}, {32*896}")
    a(f"s_mul_i32 {s(sWo)}, {s(sW)}, {16*2688}")
    a(f"s_mul_i32 {s(sT0)}, {s(sG)}, 224")
    a(f"s_add_u32 {s(sWo)}, {s(sWo)}, {s(sT0)}")
    a(f"s_sub_u32 {s(sWo)}, {s(sWo)}, {s(sOfs)}")
    a(f"s_lshl_b32 {s(sSl)}, {s(sW)}, 12")
    a(f"s_waitcnt lgkmcnt(0)")
    a(f"s_mov_b32 {s(SA)}, s64\ns_mov_b32 {s(SA+1)}, s65\ns_mov_b32 {s(SBv)}, s66\ns_mov_b32 {s(SBv+1)}, s67")
    def issue(c):
        base = (c % NS) * 32768
        for i in range(4):
            a(f"s_add_u32 m0, {s(sSl)}, {base + 1024*i}")
            a(f"s_add_u32 {s(sT0)}, {s(sXo)}, {8*i*896 + 128*c}")
            a(f"buffer_load_dwordx4 {v(vX1 if i % 2 else vX0)}, {s(SA,4)}, {s(sT0)} offen lds")
            a(f"s_add_u32 m0, {s(sSl)}, {base + 16384 + 1024*i}")
            a(f"s_add_u32 {s(sT0)}, {s(sWo)}, {(64*c + 4*i)*2688}")
            a(f"buffer_load_dwordx4 {v(vWw)}, {s(SBv,4)}, {s(sT0)} offen lds")
    a(f"v_mov_b32 v254, {WS_TAG}")
    a(f"buffer_load_dword v255, v254, {s(SWS,4)}, 0 offen")
    issue(0); issue(1)
    issued = 2
    for c in range(7):
        a(f"s_waitcnt vmcnt({8*(issued-1-c)})")
        if c in (0, 6): rt(1 if c == 0 else 2)
        a("s_barrier")
        for k in range(2 if c == 0 else 1):
            if issued < 7:
                issue(issued); issued += 1
    a(f"s_and_b32 {s(sT0)}, {s(sG)}, 3")
    a(f"s_lshl_b32 {s(sT0)}, {s(sT0)}, 2")
    a(f"v_lshrrev_b32 v2, 4, v0")
    a(f"v_add_u32 v2, {s(sT0)}, v2")
    a(f"v_and_b32 v3, 15, v0")
    a(f"s_lshr_b32 {s(sT1)}, {s(sG)}, 2")
    a(f"s_cmp_eq_u32 {s(sT1)}, 0")
    a(f"s_cbranch_scc0 {name}_sig_kv")
    a(f"v_mov_b32 v3, {s(sTb)}")
    a.label(f"{name}_sig_kv")
    a(f"v_and_b32 v4, 1, v2")
    a(f"v_lshl_add_u32 v4, v4, 4, v3")
    a(f"v_lshrrev_b32 v2, 1, v2")
    a(f"v_lshl_add_u32 v2, v4, 3, v2")
    a(f"v_lshlrev_b32 v2, 8, v2")
    a(f"s_lshl_b32 {s(sT0)}, {s(sT1)}, 4")
    a(f"s_add_u32 {s(sT0)}, {s(sT0)}, {s(sTb)}")
    a(f"s_sub_u32 {s(sT0)}, {s(sT0)}, 16")
    a(f"s_cmp_eq_u32 {s(sT1)}, 0")
    a(f"s_cselect_b32 {s(sT0)}, 32, {s(sT0)}")
    a(f"s_lshl_b32 {s(sT0)}, {s(sT0)}, 2")
    a(f"s_add_u32 {s(sXo)}, {s(sT0)}, {WS_MB1}")
    a(f"s_mov_b32 {s(sWo)}, 0")
    a(f"s_branch {name}_h_p1")
    a.label(f"{name}_t1c")
    va = VAlloc(8)
    ACC = [[va(16) for hp in range(2)] for tt in range(2)]
    XF = [[va(4) for tt in range(2)] for b in range(2)]
    WF = [[va(4) for hp in range(2)] for b in range(2)]
    bX = [va(1) for i in range(4)]; bW = [va(1) for hp in range(2)]
    aX = [va(1) for i in range(4)]; aW = [va(1) for hp in range(2)]
    t = [va(1) for i in range(6)]
    vPad = va(1)
    a(f"s_lshl_b32 {s(sN)}, {s(sN)}, 2")
    a(f"s_add_u32 {s(sN)}, {s(sN)}, {s(sW)}")
    a(f"s_add_u32 {s(sN)}, {s(sN)}, {os.environ.get('PFO', '4')}")
    a(f"s_cmp_ge_u32 {s(sN)}, {os.environ.get('PFN', '100')}")
    a(f"s_cbranch_scc1 {name}_pf_end")
    a(f"s_mul_i32 {s(sCh)}, {s(sN)}, 205")
    a(f"s_lshr_b32 {s(sCh)}, {s(sCh)}, 12")
    a(f"s_mul_i32 {s(sA_)}, {s(sCh)}, 20")
    a(f"s_sub_u32 {s(sA_)}, {s(sN)}, {s(sA_)}")
    a(f"s_add_u32 {s(sCh)}, {s(sCh)}, 2")
    a(f"s_cmp_lt_u32 {s(sA_)}, 8")
    a(f"s_cbranch_scc1 {name}_pf_x")
    a(f"s_sub_u32 {s(sA_)}, {s(sA_)}, 8")
    a(f"s_lshl_b32 {s(sA_)}, {s(sA_)}, 6")
    a(f"v_add_u32 v3, {s(sA_)}, v0")
    a(f"v_mul_u32_u24 v4, 43691, v3")
    a(f"v_lshrrev_b32 v4, 19, v4")
    a(f"v_mul_u32_u24 v5, 12, v4")
    a(f"v_sub_u32 v5, v3, v5")
    a(f"v_mul_u32_u24 v4, 2688, v4")
    a(f"v_lshl_add_u32 v4, v5, 7, v4")
    a(f"s_and_b32 {s(sA_)}, {s(sXc)}, 1")
    a(f"s_mul_i32 {s(sA_)}, {s(sA_)}, 1280")
    a(f"s_mul_i32 {s(sB2)}, {s(sCh)}, {64*2688}")
    a(f"s_add_u32 {s(sA_)}, {s(sA_)}, {s(sB2)}")
    a(f"s_waitcnt lgkmcnt(0)")
    a(f"s_mov_b32 {s(SBv)}, s66\ns_mov_b32 {s(SBv+1)}, s67")
    a(f"buffer_load_dword v6, v4, {s(SBv,4)}, {s(sA_)} offen")
    a(f"s_branch {name}_pf_end")
    a.label(f"{name}_pf_x")
    a(f"v_mul_u32_u24 v4, 896, v0")
    a(f"s_lshr_b32 {s(sB2)}, {s(sXc)}, 1")
    a(f"s_lshl_b32 {s(sB2)}, {s(sB2)}, 3")
    a(f"s_add_u32 {s(sB2)}, {s(sB2)}, {s(sA_)}")
    a(f"s_mul_i32 {s(sB2)}, {s(sB2)}, {64*896}")
    a(f"s_lshl_b32 {s(sA_)}, {s(sCh)}, 7")
    a(f"s_add_u32 {s(sB2)}, {s(sB2)}, {s(sA_)}")
    a(f"s_waitcnt lgkmcnt(0)")
    a(f"s_mov_b32 {s(SA)}, s64\ns_mov_b32 {s(SA+1)}, s65")
    a(f"buffer_load_dword v6, v4, {s(SA,4)}, {s(sB2)} offen")
    a.label(f"{name}_pf_end")
    a(f"v_and_b32 {v(t[0])}, 31, v0")
    a(f"v_lshrrev_b32 {v(t[1])}, 5, v0")
    a(f"v_bfe_u32 {v(t[2])}, v0, 1, 3")
    a(f"v_xor_b32 {v(t[2])}, {v(t[2])}, {v(t[1])}")
    a(f"s_lshr_b32 {s(sT0)}, {s(sW)}, 1")
    a(f"s_lshl_b32 {s(sT0)}, {s(sT0)}, 13")
    a(f"v_lshl_add_u32 {v(t[3])}, {v(t[0])}, 7, {s(sT0)}")
    for i in range(4):
        a(f"v_xor_b32 {v(t[4])}, {2*i}, {v(t[2])}")
        a(f"v_lshl_add_u32 {v(bX[i])}, {v(t[4])}, 4, {v(t[3])}")
    a(f"v_mov_b32 {v(vPad)}, 0")
    a(f"v_mov_b32 {v(t[4])}, 0x3f803f80")
    a(f"v_cmp_eq_u32 vcc, 28, {v(t[0])}")
    a(f"v_bfe_u32 {v(t[0])}, v0, 2, 2")
    a(f"v_lshl_add_u32 {v(t[2])}, {v(t[1])}, 3, {v(t[0])}")
    a(f"v_cndmask_b32 {v(vPad)}, {v(vPad)}, {v(t[4])}, vcc")
    a(f"v_lshlrev_b32 {v(t[2])}, 8, {v(t[2])}")
    a(f"v_bfe_u32 {v(t[3])}, v0, 4, 1")
    a(f"v_lshlrev_b32 {v(t[3])}, 5, {v(t[3])}")
    a(f"v_lshl_add_u32 {v(t[3])}, {v(t[0])}, 6, {v(t[3])}")
    a(f"v_and_b32 {v(t[4])}, 3, v0")
    a(f"v_lshl_add_u32 {v(t[3])}, {v(t[4])}, 3, {v(t[3])}")
    a(f"s_and_b32 {s(sT0)}, {s(sW)}, 1")
    a(f"s_mul_i32 {s(sT0)}, {s(sT0)}, 112")
    a(f"s_add_u32 {s(sT0)}, {s(sT0)}, {s(sOfs)}")
    for hp in range(2):
        a(f"s_add_u32 {s(sT1)}, {s(sT0)}, {56*hp}")
        a(f"v_add_u32 {v(t[4])}, {s(sT1)}, {v(t[3])}")
        a(f"v_and_b32 {v(t[4])}, 255, {v(t[4])}")
        a(f"v_add_u32 {v(bW[hp])}, {v(t[4])}, {v(t[2])}")
    for tt in range(2):
        for hp in range(2):
            for r in range(16):
                a(f"v_mov_b32 {v(ACC[tt][hp]+r)}, 0")
    a(f"s_lshr_b32 {s(sT0)}, {s(sG)}, 2")
    a(f"s_lshl_b32 {s(sXo)}, {s(sT0)}, 21")
    a(f"s_and_b32 {s(sT0)}, {s(sG)}, 3")
    a(f"s_lshl_b32 {s(sT0)}, {s(sT0)}, 19")
    a(f"s_add_u32 {s(sXo)}, {s(sXo)}, {s(sT0)}")
    a(f"s_and_b32 {s(sT0)}, {s(sW)}, 1")
    a(f"s_lshl_b32 {s(sT0)}, {s(sT0)}, 18")
    a(f"s_add_u32 {s(sXo)}, {s(sXo)}, {s(sT0)}")
    a(f"s_lshl_b32 {s(sT0)}, {s(sTb)}, 13")
    a(f"s_add_u32 {s(sXo)}, {s(sXo)}, {s(sT0)}")
    a(f"s_lshr_b32 {s(sT0)}, {s(sW)}, 1")
    a(f"s_lshl_b32 {s(sT0)}, {s(sT0)}, 12")
    a(f"s_add_u32 {s(sXo)}, {s(sXo)}, {s(sT0)}")
    a(f"s_add_u32 {s(sWo)}, {s(sXo)}, {64*2048}")
    a(f"s_mov_b32 {s(sHi)}, 0\ns_mov_b32 {s(sHi+1)}, -1")
    a(f"s_mov_b32 {s(sMsk)}, 0xf0000000\ns_mov_b32 {s(sMsk+1)}, 0xf0000000")
    a(f"s_cmp_lt_u32 {s(sG)}, 4")
    a(f"s_cselect_b32 {s(SP)}, {f32hex(M.SC)}, 1.0")
    a(f"s_cselect_b32 {s(SP+1)}, {f32hex(M.SC)}, 1.0")
    a(f"s_cselect_b32 {s(sPadv)}, 0, 0x3f803f80")
    a(f"s_mov_b32 {s(sC)}, 0")
    a(f"s_cmp_ge_u32 {s(sG)}, 8")
    a(f"s_cbranch_scc1 {name}_t1v")
    def setaddr(nxt):
        a(f"s_add_u32 {s(sT0)}, {s(sC)}, {nxt}")
        a(f"s_and_b32 {s(sT0)}, {s(sT0)}, {NS-1}")
        a(f"s_lshl_b32 {s(sT0)}, {s(sT0)}, 15")
        for i in range(4):
            a(f"v_add_u32 {v(aX[i])}, {s(sT0)}, {v(bX[i])}")
        for hp in range(2):
            a(f"v_add_u32 {v(aW[hp])}, {s(sT0)}, {v(bW[hp])}")
    def rd_list(i, b):
        L = []
        for tt in range(2):
            L.append(f"ds_read_b128 {v(XF[b][tt],4)}, {v(aX[i])} offset:{4096*tt}")
        for hp in range(2):
            for jj in range(2):
                L.append(f"ds_read_b64_tr_b16 {v(WF[b][hp]+2*jj,2)}, {v(aW[hp])} offset:{16384+(16*i+4*jj)*256}")
        return [L[0], L[2], L[3], L[4], L[5], L[1]]
    def kloop(lbl, vmode):
        setaddr(0)
        a("s_barrier")
        for r_ in rd_list(0, 0): a(r_)
        a.label(lbl)
        for i in range(4):
            b = i % 2
            mm = []
            for tt in range(2):
                for hp in range(2):
                    mm.append(mfma32(ACC[tt][hp], XF[b][tt], WF[b][hp], ACC[tt][hp]) if vmode else mfma32(ACC[tt][hp], WF[b][hp], XF[b][tt], ACC[tt][hp]))
            a("s_waitcnt lgkmcnt(0)")
            if i < 3:
                R = rd_list(i + 1, 1 - b)
                a(mm[0]); a(R[0]); a(R[1]); a(mm[1]); a(R[2]); a(R[3]); a(mm[2]); a(R[4]); a(R[5]); a(mm[3])
            else:
                R = rd_list(0, 0)
                a(mm[0])
                a(f"s_cmp_eq_u32 {s(sC)}, 6")
                a(f"s_cbranch_scc1 {lbl}_last")
                setaddr(1)
                a(mm[1])
                a("s_barrier")
                a(R[0]); a(R[1]); a(R[2]); a(mm[2]); a(R[3]); a(R[4]); a(R[5]); a(mm[3])
                a(f"s_add_u32 {s(sC)}, {s(sC)}, 1")
                a(f"s_branch {lbl}")
                a.label(f"{lbl}_last")
                a(mm[1]); a(mm[2]); a(mm[3])
        rt(1)
        a("s_nop 7\ns_nop 1")
    order = [(0, 0), (0, 1), (1, 0), (1, 1)]
    kloop(f"{name}_qk_loop", False)
    for tt, hp in order:
        A_ = ACC[tt][hp]
        for r in range(0, 16, 2):
            a(f"v_pk_mul_f32 {v(A_+r,2)}, {v(A_+r,2)}, {s(SP,2)}")
        for k in range(8):
            a(f"v_cvt_pk_bf16_f32 {v(A_+k)}, {v(A_+2*k)}, {v(A_+2*k+1)}")
        a(f"s_mov_b64 exec, {s(sHi,2)}")
        a(f"v_mov_b32 {v(A_+6)}, {s(sPadv)}")
        a(f"v_mov_b32 {v(A_+7)}, 0")
        a(f"s_mov_b64 exec, -1")
        for t_ in range(2):
            a(f"buffer_store_dwordx4 {v(A_+4*t_,4)}, v1, {s(SWS,4)}, {s(sWo if hp else sXo)} offen offset:{2048*tt+1024*t_} {ST}")
    a(f"s_branch {name}_c_p1")
    a.label(f"{name}_t1v")
    kloop(f"{name}_v_loop", True)
    for tt, hp in order:
        A_ = ACC[tt][hp]
        for k in range(8):
            a(f"v_cvt_pk_bf16_f32 {v(A_+k)}, {v(A_+2*k)}, {v(A_+2*k+1)}")
        a(f"s_mov_b64 exec, {s(sMsk,2)}")
        for k in range(8):
            a(f"v_mov_b32 {v(A_+k)}, {v(vPad)}")
        a(f"s_mov_b64 exec, -1")
        for t_ in range(2):
            a(f"buffer_store_dwordx4 {v(A_+4*t_,4)}, v1, {s(SWS,4)}, {s(sWo if hp else sXo)} offen offset:{2048*tt+1024*t_} {ST}")
    a(f"s_branch {name}_c_p1")
    hi = va.hi
    a.label(f"{name}_bwg")
    sB = sTb
    a(f"s_lshl_b32 {s(sB)}, {s(sXc)}, 3")
    a(f"s_add_u32 {s(sB)}, {s(sB)}, {s(sSlot)}")
    srd_consts(a, SC_)
    if os.environ.get("CPF", "0") == "1":
        a(f"s_cmp_ge_u32 {s(sSlot)}, 3")
        a(f"s_cbranch_scc1 {name}_nocpf")
        a(f"v_lshlrev_b32 v2, 7, v0")
        a(f"s_lshl_b32 {s(sT0)}, s3, 13")
        a(f"s_cmp_eq_u32 {s(sSlot)}, 0")
        a(f"s_cbranch_scc0 {name}_cpf_c")
        a(f"s_getpc_b64 {s(SP,2)}")
        a.label(f"{name}_cpf_pc")
        a(f"s_sub_u32 {s(SP)}, {s(SP)}, {name}_cpf_pc-{NAME}")
        a(f"s_subb_u32 {s(SP+1)}, {s(SP+1)}, 0")
        a(f"s_mov_b32 {s(SP+2)}, {name}_end-{NAME}")
        a(f"s_mov_b32 {s(SP+3)}, 0x20000")
        a(f"buffer_load_dword v3, v2, {s(SP,4)}, {s(sT0)} offen")
        a(f"s_branch {name}_nocpf")
        a.label(f"{name}_cpf_c")
        a(f"s_lshl_b32 {s(sT1)}, {s(sSlot)}, 16")
        a(f"s_add_u32 {s(sT0)}, {s(sT0)}, {s(sT1)}")
        a(f"s_sub_u32 {s(sT0)}, {s(sT0)}, 65536")
        a(f"buffer_load_dword v3, v2, {s(SC_,4)}, {s(sT0)} offen")
        a.label(f"{name}_nocpf")
    a(f"s_cmp_ge_u32 s3, 4")
    a(f"s_cbranch_scc1 {name}_t3")
    a(f"s_mov_b32 {s(SA+2)}, {2048*896}\ns_mov_b32 {s(SA+3)}, 0x20000")
    va = VAlloc(2)
    RAW = [va(32), va(32)]
    XFc = [va(4) for j in range(8)]
    AC = [[va(4) for cs in range(2)] for j in range(8)]
    FC = [[va(4) for u in range(2)] for cs in range(2)]
    TWv = va(56)
    t = [va(1) for i in range(8)]
    vP = [va(1) for r in range(4)]; vM = [va(1) for r in range(4)]
    aR = [va(1), va(1)]
    sGq, sO = sG, sC
    a(f"s_lshr_b32 {s(sGq)}, {s(sB)}, 2")
    a(f"s_and_b32 {s(sO)}, {s(sB)}, 3")
    a(f"s_and_b32 {s(sT1)}, {s(sW)}, 1")
    a(f"s_lshl_b32 {s(sT0)}, {s(sT1)}, 12")
    a(f"s_add_u32 {s(sT0)}, {s(sT0)}, {CT_F56}")
    for cs in range(2):
        for u in range(2):
            a(f"buffer_load_dwordx4 {v(FC[cs][u],4)}, v1, {s(SC_,4)}, {s(sT0)} offen offset:{2048*cs+1024*u}")
    a(f"v_lshrrev_b32 {v(t[5])}, 4, v0")
    a(f"v_lshlrev_b32 {v(t[6])}, 8, {v(t[5])}")
    a(f"s_lshl_b32 {s(sT0)}, {s(sT1)}, 10")
    a(f"s_add_u32 {s(sT0)}, {s(sT0)}, {CT_TW448B}")
    for q in range(14):
        a(f"buffer_load_dwordx4 {v(TWv+4*q,4)}, {v(t[6])}, {s(SC_,4)}, {s(sT0)} offen offset:{16*q}")
    a(f"s_lshr_b32 {s(sT2)}, {s(sW)}, 1")
    a(f"s_lshl_b32 {s(sT0)}, {s(sGq)}, 5")
    a(f"s_lshl_b32 {s(sT1)}, {s(sO)}, 1")
    a(f"s_add_u32 {s(sT0)}, {s(sT0)}, {s(sT1)}")
    a(f"s_add_u32 {s(sT0)}, {s(sT0)}, {s(sT2)}")
    a(f"s_mul_i32 {s(sXo)}, {s(sT0)}, {4*896}")
    a(f"s_mul_i32 {s(sSl)}, {s(sW)}, 14336")
    a(f"v_lshrrev_b32 {v(t[0])}, 3, v0")
    a(f"v_and_b32 {v(t[1])}, 7, v0")
    for i in range(14):
        d_ = RAW[1] + i
        a(f"v_add_u32 {v(t[2])}, {8*i}, {v(t[0])}")
        a(f"v_mul_u32_u24 {v(t[3])}, 147, {v(t[2])}")
        a(f"v_lshrrev_b32 {v(t[3])}, 10, {v(t[3])}")
        a(f"v_lshrrev_b32 {v(t[4])}, 2, {v(t[3])}")
        a(f"v_and_b32 {v(t[3])}, 1, {v(t[3])}")
        a(f"v_lshl_add_u32 {v(t[3])}, {v(t[3])}, 2, {v(t[4])}")
        a(f"v_xor_b32 {v(t[3])}, {v(t[3])}, {v(t[1])}")
        a(f"v_mul_u32_u24 {v(t[4])}, {32*896-3584}, {v(t[4])}")
        a(f"v_lshl_add_u32 {v(t[4])}, {v(t[2])}, 7, {v(t[4])}")
        a(f"v_lshl_add_u32 {v(d_)}, {v(t[3])}, 4, {v(t[4])}")
    a("s_waitcnt lgkmcnt(0)" + (" vmcnt(0)" if os.environ.get("T2P", "0") == "1" else ""))
    a(f"s_mov_b32 {s(SA)}, s70\ns_mov_b32 {s(SA+1)}, s71")
    for rnd in range(int(os.environ.get("T2R", "0"))):
        a(f"s_mov_b32 {s(SP)}, s68\ns_mov_b32 {s(SP+1)}, s69\ns_mov_b32 {s(SP+2)}, {448*896}\ns_mov_b32 {s(SP+3)}, 0x20000")
        a(f"s_lshl_b32 {s(sT0)}, {s(sB)}, 2\ns_add_u32 {s(sT0)}, {s(sT0)}, {s(sW)}\ns_lshl_b32 {s(sT0)}, {s(sT0)}, 10\ns_add_u32 {s(sT0)}, {s(sT0)}, {rnd*262144}")
        a(f"buffer_load_dwordx4 {v(RAW[0],4)}, v1, {s(SP,4)}, {s(sT0)} offen")
        a("s_waitcnt vmcnt(0)")
    for i in range(14):
        a(f"s_add_u32 m0, {s(sSl)}, {1024*i}")
        a("s_nop 0")
        a(f"buffer_load_dwordx4 {v(RAW[1]+i)}, {s(SA,4)}, {s(sXo)} offen lds")
    a(f"s_and_b32 {s(sT1)}, {s(sW)}, 1")
    a(f"v_and_b32 {v(t[0])}, 3, v0")
    a(f"v_bfe_u32 {v(t[1])}, v0, 2, 2")
    a(f"v_lshl_add_u32 {v(t[2])}, {v(t[0])}, 2, {v(t[1])}")
    a(f"v_mul_u32_u24 {v(t[2])}, 896, {v(t[2])}")
    a(f"v_add_u32 {v(t[2])}, {s(sSl)}, {v(t[2])}")
    a(f"v_and_b32 {v(t[1])}, 1, {v(t[1])}")
    a(f"v_lshl_add_u32 {v(t[3])}, {v(t[1])}, 2, {v(t[0])}")
    a(f"v_lshlrev_b32 {v(t[3])}, 4, {v(t[3])}")
    a(f"v_lshl_add_u32 {v(aR[0])}, {v(t[5])}, 7, {v(t[2])}")
    a(f"v_min_u32 {v(t[4])}, 2, {v(t[5])}")
    a(f"v_lshl_add_u32 {v(aR[1])}, {v(t[4])}, 7, {v(t[2])}")
    a(f"v_add_u32 {v(aR[1])}, 512, {v(aR[1])}")
    a(f"v_and_b32 {v(t[0])}, 15, v0")
    a(f"v_lshlrev_b32 {v(t[0])}, 2, {v(t[0])}")
    a(f"s_lshl_b32 {s(sT0)}, {s(sT1)}, 4")
    a(f"v_lshl_add_u32 {v(t[1])}, {v(t[5])}, 2, {s(sT0)}")
    a(f"v_mov_b32 {v(t[7])}, 0x7f000000")
    a(f"s_mov_b32 {s(sA_)}, {M.X1S}")
    for rr in range(4):
        a(f"v_add_u32 {v(t[2])}, {rr}, {v(t[1])}")
        a(f"v_mad_u32_u24 {v(vP[rr])}, {v(t[2])}, {s(sA_)}, {v(t[0])}")
        a(f"v_sub_u32 {v(t[4])}, 28, {v(t[2])}")
        a(f"v_mad_u32_u24 {v(vM[rr])}, {v(t[4])}, {s(sA_)}, {v(t[0])}")
        a(f"v_cmp_lt_u32 vcc, 28, {v(t[2])}")
        a("s_nop 1")
        a(f"v_cndmask_b32 {v(vP[rr])}, {v(vP[rr])}, {v(t[7])}, vcc")
        a(f"v_cndmask_b32 {v(vM[rr])}, {v(vM[rr])}, {v(t[7])}, vcc")
    a(f"s_lshr_b32 {s(sT0)}, {s(sO)}, 1")
    a(f"s_lshl_b32 {s(sT0)}, {s(sT0)}, 12")
    a(f"s_lshl_b32 {s(sT1)}, {s(sGq)}, 8")
    a(f"s_add_u32 {s(sT0)}, {s(sT0)}, {s(sT1)}")
    a(f"s_and_b32 {s(sT1)}, {s(sO)}, 1")
    a(f"s_lshl_b32 {s(sT1)}, {s(sT1)}, 7")
    a(f"s_add_u32 {s(sT0)}, {s(sT0)}, {s(sT1)}")
    a(f"s_lshl_b32 {s(sT1)}, {s(sT2)}, 6")
    a(f"s_add_u32 {s(sT0)}, {s(sT0)}, {s(sT1)}")
    for tt_ in range(8):
        col = 56 * tt_ if tt_ < 4 else 56 * (8 - tt_) - 28
        a(f"s_add_u32 {s(sTt+tt_)}, {s(sT0)}, {M.WS_X1 + col*M.X1S}")
    a(f"s_mov_b32 {s(sScale)}, {f32hex(0.5**0.5)}\ns_mov_b32 {s(sScale+1)}, {f32hex(0.5**0.5)}")
    a(f"s_mov_b32 {s(sMsk)}, 0x05040100\ns_mov_b32 {s(sMsk+1)}, 0x07060302")
    a("s_waitcnt vmcnt(0)")
    rt(1)
    for u in range(2):
        for e in range(8):
            a(f"v_xor_b32 {v(t[e%2])}, {16*e}, {v(t[3])}")
            a(f"v_add_u32 {v(t[e%2])}, {v(t[e%2])}, {v(aR[u])}")
            a(f"ds_read_b128 {v(RAW[u]+4*e,4)}, {v(t[e%2])}")
    for u in range(2):
        a(f"s_waitcnt lgkmcnt({8 if u == 0 else 0})")
        for j in range(8):
            for q in range(4):
                lo = RAW[u] + 8 * q + j // 2; hi_ = RAW[u] + 8 * q + 4 + j // 2
                a(f"v_perm_b32 {v(XFc[j]+q)}, {v(hi_)}, {v(lo)}, {s(sMsk + j % 2)}")
            if j >= 1:
                for cs in range(2):
                    a(mfma16(AC[j-1][cs], FC[cs][u], XFc[j-1], None if u == 0 else AC[j-1][cs]))
        a("s_nop 1")
        for cs in range(2):
            a(mfma16(AC[7][cs], FC[cs][u], XFc[7], None if u == 0 else AC[7][cs]))
    a("s_nop 7")
    for rp in range(2):
        pool = Pool([RAW[0] + 8 + 2 * i for i in range(8)])
        for j in range(1, 8):
            tw = TWv + 8 * (j - 1) + 2 * rp
            PK8.pcmul(a, AC[j][0] + 2 * rp, AC[j][1] + 2 * rp, tw, tw + 4, RAW[0] + 4 * (j % 2))
        X = PK8.dft8(a, pool, [((AC[j][0] + 2 * rp, 1), (AC[j][1] + 2 * rp, 1)) for j in range(8)], -1, sScale)
        for tt_ in range(8):
            re, im = X[tt_]
            if tt_ >= 4: im = neg(im)
            for h in range(2):
                rr = 2 * rp + h
                o_ = RAW[1] + 8 * rr + tt_
                a(f"v_cvt_pk_bf16_f32 {v(o_)}, {sv((re[0]+h, re[1]))}, {sv((im[0]+h, im[1]))}")
                a(f"buffer_store_dword {v(o_)}, {v(vP[rr] if tt_ < 4 else vM[rr])}, {s(SWS,4)}, {s(sTt+tt_)} offen {ST}")
    a(f"s_mov_b32 {s(sHi)}, 0\ns_mov_b32 {s(sHi+1)}, -1")
    a(f"s_branch {name}_c_p1")
    hi = max(hi, va.hi)
    a.label(f"{name}_t3")
    a(f"s_lshr_b32 {s(sG)}, {s(sB)}, 3")
    a(f"s_and_b32 {s(sC)}, {s(sB)}, 7")
    a(f"s_lshl_b32 {s(sT0)}, {s(sG)}, 7")
    a(f"s_lshl_b32 {s(sT1)}, {s(sC)}, 2")
    a(f"s_add_u32 {s(sT0)}, {s(sT0)}, {s(sT1)}")
    a(f"s_add_u32 {s(sT0)}, {s(sT0)}, {s(sW)}")
    a(f"s_mul_i32 {s(sXo)}, {s(sT0)}, 900")
    a(f"s_lshl_b32 {s(sSl)}, {s(sW)}, 13")
    a(f"s_add_u32 {s(sSl)}, {s(sSl)}, 65536")
    a(f"v_lshlrev_b32 v2, 7, v0")
    a(f"s_lshl_b32 {s(sT1)}, {s(sSlot)}, 13")
    if os.environ.get("T3P", "0") == "1":
        a(f"buffer_load_dword v3, v2, {s(SC_,4)}, {s(sT1)} offen")
        a("s_waitcnt vmcnt(0)")
    for rnd in range(int(os.environ.get("T3R", "0"))):
        a("s_waitcnt lgkmcnt(0)")
        a(f"s_mov_b32 {s(SP)}, s68\ns_mov_b32 {s(SP+1)}, s69\ns_mov_b32 {s(SP+2)}, {448*896}\ns_mov_b32 {s(SP+3)}, 0x20000")
        a(f"s_lshl_b32 {s(sT0)}, {s(sB)}, 2\ns_add_u32 {s(sT0)}, {s(sT0)}, {s(sW)}\ns_lshl_b32 {s(sT0)}, {s(sT0)}, 9\ns_add_u32 {s(sT0)}, {s(sT0)}, {262144 + rnd*65536}")
        a(f"buffer_load_dwordx2 v[8:9], v1, {s(SP,4)}, {s(sT0)} offen")
        a("s_waitcnt vmcnt(0)")
    a(f"s_waitcnt lgkmcnt(0)")
    a(f"s_mov_b32 {s(SBv)}, s72\ns_mov_b32 {s(SBv+1)}, s73\ns_mov_b32 {s(SBv+2)}, {2048*450}\ns_mov_b32 {s(SBv+3)}, 0x20000")
    a(f"s_mov_b32 {s(SD)}, s74\ns_mov_b32 {s(SD+1)}, s75\ns_mov_b32 {s(SD+2)}, {2048*450}\ns_mov_b32 {s(SD+3)}, 0x20000")
    a(f"v_mov_b32 v254, {WS_TAG}")
    a(f"buffer_load_dword v255, v254, {s(SWS,4)}, 0 offen")
    for r in range(4):
        for arr in range(2):
            a(f"s_add_u32 m0, {s(sSl)}, {4096*arr + 1024*r}")
            a(f"s_add_u32 {s(sT0)}, {s(sXo)}, {64*450*r}")
            a(f"buffer_load_dwordx4 v1, {s(SD if arr else SBv,4)}, {s(sT0)} offen lds")
    a(f"v_and_b32 v2, 1, v0")
    a(f"v_lshrrev_b32 v3, 1, v0")
    a(f"v_mul_u32_u24 v4, 450, v2")
    a(f"v_lshl_add_u32 v4, v3, 1, v4")
    a(f"v_add_u32 v4, {s(sSl)}, v4")
    a(f"v_lshrrev_b32 v5, 3, v0")
    a(f"v_mul_u32_u24 v5, {M.WTS}, v5")
    a(f"v_and_b32 v2, 7, v0")
    a(f"v_lshl_add_u32 v5, v2, 4, v5")
    a(f"s_lshl_b32 {s(sT0)}, {s(sG)}, 12")
    a(f"s_lshl_b32 {s(sT1)}, {s(sC)}, 9")
    a(f"s_add_u32 {s(sT0)}, {s(sT0)}, {s(sT1)}")
    a(f"s_lshl_b32 {s(sT1)}, {s(sW)}, 7")
    a(f"s_add_u32 {s(sT0)}, {s(sT0)}, {s(sT1)}")
    a(f"s_add_u32 {s(sT0)}, {s(sT0)}, {M.WS_WT}")
    a("s_waitcnt vmcnt(0)")
    rt(1)
    D0 = 160
    def t3_reads(it):
        for r in range(4):
            a(f"ds_read_u16 {v(D0+4*it+r)}, v4 offset:{1024*r+64*it}")
            a(f"ds_read_u16 {v(D0+32+4*(it%2)+r)}, v4 offset:{4096+1024*r+64*it}")
    t3_reads(0)
    for it in range(8):
        if it < 7:
            t3_reads(it + 1)
            a("s_waitcnt lgkmcnt(8)")
        else:
            a("s_waitcnt lgkmcnt(0)")
        for r in range(4):
            a(f"v_lshl_or_b32 {v(D0+4*it+r)}, {v(D0+32+4*(it%2)+r)}, 16, {v(D0+4*it+r)}")
        a(f"buffer_store_dwordx4 {v(D0+4*it,4)}, v5, {s(SWS,4)}, {s(sT0)} offen {ST}")
        a(f"s_add_u32 {s(sT0)}, {s(sT0)}, {8*M.WTS}")
    a(f"s_mov_b32 {s(sWo)}, 1")
    a.label(f"{name}_h_p1")
    import fused_b
    hi = max(hi, fused_b.helpers(a, name, locals()))
    a.label(f"{name}_c_p1")
    hi = max(hi, fused_b.computes(a, name, locals()))
    a.label(f"{name}_end")
    a("s_endpgm")
    return a.text() + kernel_desc(NAME, 256, 102), hi
```

```python
from asmlib import *
import model as M
import os
from k2 import (CT_F64, CT_F32, CT_T2048, CT_F56, CT_TW448, CT_G56, srd_consts, cmul)
from dft8 import *
import fused as F

def helpers(a, name, E):
    SA, SBv, SWS, SC_, SD = E['SA'], E['SBv'], E['SWS'], E['SC_'], E['SD']
    sW, sXc, sSlot, sTag = E['sW'], E['sXc'], E['sSlot'], E['sTag']
    sXo, sWo, sN = E['sXo'], E['sWo'], E['sN']
    rt, dump, poll = E['rt'], E['dump'], E['poll']
    ST, LD = F.ST, F.LD
    sT0, sT1, sT2 = 33, 34, 35
    sHead, sCol, sDK, sM, sK, sV, sZ0, sZ1, sTb2, sCg, sWoO, sK8 = 31, 32, 36, 37, 40, 41, 42, 43, 44, 45, 46, 48
    va = VAlloc(8)
    DA = [[va(4) for ks in range(4)] for mt in range(2)]
    F64 = [[va(4) for ks in range(4)] for c in range(2)]
    F32 = [[va(4) for k in range(3)] for mt in range(2)]
    TW = va(16); Wv = [va(4), va(4)]
    AC = [[va(4) for c in range(2)] for mt in range(2)]
    BF = [va(4), va(4)]
    T = va(4); WR = va(1); WI = va(1)
    vL16 = va(1); vG = va(1); vA = va(1); vB = va(1); vC = va(1); vD = va(1); vWo = va(1); vS2 = va(1); vE = va(1)
    assert va.hi <= 160
    srd_consts(a, SC_)
    a(f"s_lshr_b32 {s(sHead)}, {s(sSlot)}, 4")
    a(f"s_lshl_b32 {s(sT0)}, {s(sXc)}, 1")
    a(f"s_add_u32 {s(sHead)}, {s(sHead)}, {s(sT0)}")
    a(f"s_lshl_b32 {s(sDK)}, {s(sHead)}, 17")
    a(f"s_lshl_b32 {s(sT0)}, {s(sW)}, 12")
    a(f"s_add_u32 {s(sDK)}, {s(sDK)}, {s(sT0)}")
    a(f"s_add_u32 {s(sDK)}, {s(sDK)}, {M.WS_KF}")
    a(f"s_lshl_b32 {s(sM)}, {s(sW)}, 13")
    a(f"s_lshl_b32 {s(sCol)}, {s(sXc)}, 5")
    a(f"s_add_u32 {s(sCol)}, {s(sCol)}, {s(sSlot)}")
    a(f"v_and_b32 {v(vL16)}, 15, v0")
    a(f"v_lshrrev_b32 {v(vG)}, 4, v0")
    a(f"v_lshlrev_b32 {v(vA)}, 12, {v(vG)}")
    a(f"v_lshrrev_b32 {v(T)}, 1, {v(vL16)}")
    a(f"v_lshl_add_u32 {v(vA)}, {v(T)}, 7, {v(vA)}")
    a(f"v_and_b32 {v(T)}, 1, v0")
    a(f"v_lshl_add_u32 {v(vA)}, {v(T)}, 4, {v(vA)}")
    a(f"v_mul_u32_u24 {v(vB)}, {4*272}, {v(vG)}")
    a(f"v_lshl_add_u32 {v(vB)}, {v(vL16)}, 2, {v(vB)}")
    a(f"s_lshl_b32 {s(sT0)}, {s(sW)}, 6")
    a(f"s_add_u32 {s(sT0)}, {s(sT0)}, {F.LDS_X}")
    a(f"v_add_u32 {v(vB)}, {s(sT0)}, {v(vB)}")
    a(f"v_mul_u32_u24 {v(vC)}, 272, {v(vL16)}")
    a(f"v_lshl_add_u32 {v(vC)}, {v(vG)}, 4, {v(vC)}")
    a(f"v_add_u32 {v(vC)}, {F.LDS_X}, {v(vC)}")
    a(f"v_mul_u32_u24 {v(vD)}, 144, {v(vL16)}")
    a(f"v_lshl_add_u32 {v(vD)}, {v(vG)}, 4, {v(vD)}")
    a(f"s_mul_i32 {s(sT0)}, {s(sW)}, 2304")
    a(f"s_add_u32 {s(sT0)}, {s(sT0)}, {F.LDS_Z}")
    a(f"v_add_u32 {v(vD)}, {s(sT0)}, {v(vD)}")
    a(f"v_lshrrev_b32 {v(T)}, 3, v0")
    a(f"v_mul_u32_u24 {v(vE)}, 144, {v(T)}")
    a(f"v_and_b32 {v(T)}, 7, v0")
    a(f"v_lshl_add_u32 {v(vE)}, {v(T)}, 4, {v(vE)}")
    a(f"v_add_u32 {v(vE)}, {s(sT0)}, {v(vE)}")
    a(f"s_mul_i32 {s(sZ0)}, {s(sCol)}, {M.ZCS}")
    a(f"s_lshl_b32 {s(sT1)}, {s(sW)}, 11")
    a(f"s_add_u32 {s(sZ0)}, {s(sZ0)}, {s(sT1)}")
    a(f"s_add_u32 {s(sZ0)}, {s(sZ0)}, {M.WS_ZB}")
    a(f"s_cmp_lt_u32 {s(sCol)}, 225")
    a(f"s_cselect_b32 {s(sZ0)}, {s(sZ0)}, 0x7f000000")
    a(f"s_mul_i32 {s(sT0)}, {s(sSlot)}, 37")
    a(f"s_lshr_b32 {s(sT0)}, {s(sT0)}, 8")
    a(f"s_mul_i32 {s(sT1)}, {s(sT0)}, 7")
    a(f"s_sub_u32 {s(sCg)}, {s(sSlot)}, {s(sT1)}")
    a(f"v_bfe_u32 {v(T)}, v0, 2, 1")
    a(f"v_lshl_add_u32 {v(T)}, {v(vG)}, 1, {v(T)}")
    a(f"v_mul_u32_u24 {v(vWo)}, 896, {v(T)}")
    a(f"v_lshrrev_b32 {v(T)}, 3, v0")
    a(f"v_xor_b32 {v(T)}, {v(T)}, {v(vG)}")
    a(f"v_and_b32 {v(T)}, 1, {v(T)}")
    a(f"v_lshl_add_u32 {v(vWo)}, {v(T)}, 6, {v(vWo)}")
    a(f"v_and_b32 {v(T)}, 3, v0")
    a(f"v_lshl_add_u32 {v(vWo)}, {v(T)}, 4, {v(vWo)}")
    a(f"s_mul_i32 {s(sWoO)}, {s(sW)}, {8*896}")
    a(f"s_lshl_b32 {s(sT0)}, {s(sCg)}, 7")
    a(f"s_add_u32 {s(sWoO)}, {s(sWoO)}, {s(sT0)}")
    a(f"v_cmp_lt_u32 vcc, 6, v0")
    a(f"s_and_b32 {s(sT0)}, {s(sSlot)}, 15")
    a(f"s_and_b32 {s(sT1)}, {s(sT0)}, 1")
    a(f"s_mul_i32 {s(sT1)}, {s(sT1)}, 14")
    a(f"v_add_u32 {v(vS2)}, {s(sT1)}, v0")
    a(f"s_lshr_b32 {s(sT0)}, {s(sT0)}, 1")
    a(f"v_lshl_add_u32 {v(vS2)}, {v(vS2)}, 3, {s(sT0)}")
    a(f"v_lshlrev_b32 {v(vS2)}, 7, {v(vS2)}")
    a(f"s_waitcnt lgkmcnt(0)")
    a(f"s_mov_b32 {s(SD)}, s78\ns_mov_b32 {s(SD+1)}, s79\ns_mov_b32 {s(SD+2)}, 256\ns_mov_b32 {s(SD+3)}, 0x20000")
    a(f"s_mov_b32 {s(SA)}, s68\ns_mov_b32 {s(SA+1)}, s69\ns_mov_b32 {s(SA+3)}, 0x20000")
    a(f"s_cmp_lt_u32 {s(sSlot)}, 28")
    a(f"s_cselect_b32 {s(SA+2)}, {448*896}, 0")
    a(f"s_mov_b32 {s(SBv)}, s76\ns_mov_b32 {s(SBv+1)}, s77\ns_mov_b32 {s(SBv+2)}, {2048*1792}\ns_mov_b32 {s(SBv+3)}, 0x20000")
    a(f"v_mov_b32 v5, 0")
    a(f"v_lshlrev_b32 v6, 2, v0")
    lead = [0]
    def if_lead(fn):
        lead[0] += 1; L = f"{name}_nl{lead[0]}"
        a(f"s_cmp_lg_u32 {s(sW)}, 0")
        a(f"s_cbranch_scc1 {L}")
        fn()
        a.label(L)
    def get_tag():
        a(f"v_readfirstlane_b32 {s(sTag)}, v255")
        a("s_nop 3")
        a(f"s_add_u32 {s(sTag)}, {s(sTag)}, 1")
    def tree_up(off):
        a(f"s_lshr_b32 {s(sT1)}, s2, 4")
        a(f"s_mul_i32 {s(sT0)}, {s(sT1)}, {17*128}")
        a(f"s_and_b32 {s(sT1)}, s2, 15")
        a(f"s_lshl_b32 {s(sT1)}, {s(sT1)}, 2")
        a(f"s_add_u32 {s(sT0)}, {s(sT0)}, {s(sT1)}")
        a(f"s_add_u32 {s(sT0)}, {s(sT0)}, {F.WS_MB3 + off}")
        a(f"v_mov_b32 v7, {s(sTag)}")
        a("s_mov_b64 exec, 1")
        a(f"buffer_store_dword v7, v5, {s(SWS,4)}, {s(sT0)} offen sc1")
        a("s_mov_b64 exec, -1")
    def tree_down(off, base, shift, lbl):
        a(f"s_lshr_b32 {s(sT1)}, s2, 4")
        a(f"s_and_b32 {s(sT2)}, s2, 15")
        a(f"s_cmp_lg_u32 {s(sT1)}, {s(sT2)}")
        a(f"s_cbranch_scc1 {lbl}")
        a(f"s_lshl_b32 {s(sT0)}, s2, 7")
        a(f"s_add_u32 {s(sT0)}, {s(sT0)}, {F.WS_MB3 + off}")
        poll(f"buffer_load_dword v7, v6, {s(SWS,4)}, {s(sT0)} offen sc1", f"v_cmp_ne_u32 vcc, {s(sTag)}, v7", "0xffff")
        a(f"s_lshl_b32 {s(sT1)}, {s(sT1)}, 2")
        a(f"s_lshl_b32 {s(sT2)}, {s(sW)}, {6 + shift}")
        a(f"v_lshlrev_b32 v3, {shift}, v0")
        a(f"v_mov_b32 v7, {s(sTag)}")
        a(f"s_add_u32 {s(sT0)}, {s(sT1)}, {base}")
        a(f"s_add_u32 {s(sT0)}, {s(sT0)}, {s(sT2)}")
        a(f"buffer_store_dword v7, v3, {s(SWS,4)}, {s(sT0)} offen sc1")
        a.label(lbl)
    def broadcast(base, shift):
        a(f"v_lshlrev_b32 v3, {shift}, v0")
        a(f"v_mov_b32 v7, {s(sTag)}")
        a(f"s_mov_b32 {s(sT0)}, {base}")
        for i in range(4):
            a(f"buffer_store_dword v7, v3, {s(SWS,4)}, {s(sT0)} offen sc1")
            a(f"s_add_u32 {s(sT0)}, {s(sT0)}, {64 << shift}")
    def atom(off_s, off):
        a("s_mov_b64 exec, 1")
        a("v_mov_b32 v4, 1")
        a(f"buffer_atomic_add v4, v5, {s(SD,4)}, {off_s} offen offset:{off} sc0 sc1")
        a("s_mov_b64 exec, -1")
    get_tag()
    a("s_waitcnt vmcnt(0)")
    rt(3)
    a("s_barrier")
    def sig1a():
        a(f"v_mov_b32 v7, {s(sTag)}")
        a(f"s_cmp_lg_u32 {s(sWo)}, 0")
        a(f"s_cbranch_scc1 {name}_sigB")
        a(f"buffer_store_dword v7, v2, {s(SWS,4)}, {s(sXo)} offen sc1")
        a(f"s_branch {name}_sigD")
        a.label(f"{name}_sigB")
        tree_up(0)
        a.label(f"{name}_sigD")
    if_lead(sig1a)
    a(f"s_cmp_eq_u32 {s(sWo)}, 0")
    a(f"s_cbranch_scc1 {name}_tdB")
    tree_down(0, F.WS_MB1 + 33 * 4, 8, f"{name}_tdB")
    def sig1b():
        a(f"s_lshl_b32 {s(sT0)}, s2, 8")
        a(f"s_add_u32 {s(sT0)}, {s(sT0)}, {F.WS_MB1}")
        a(f"s_mov_b32 {s(sK)}, -1\ns_mov_b32 {s(sK+1)}, 1")
        poll(f"buffer_load_dword v7, v6, {s(SWS,4)}, {s(sT0)} offen sc1", f"v_cmp_ne_u32 vcc, {s(sTag)}, v7", s(sK, 2))
    if_lead(sig1b)
    rt(4)
    a("s_barrier")
    q_ = []
    def epoch(e_):
        for tl in range(2):
            lds = (e_ % 4) * 32768 + tl * 4096
            src = e_ * 16384 + tl * 2048
            a(f"s_add_u32 m0, {s(sM)}, {lds}")
            a(f"s_add_u32 {s(sT0)}, {s(sDK)}, {src}")
            a(f"buffer_load_dwordx4 v1, {s(SWS,4)}, {s(sT0)} offen {LD} lds")
            a(f"buffer_load_dwordx4 v1, {s(SWS,4)}, {s(sT0)} offen offset:1024 {LD} lds")
            a(f"s_add_u32 m0, {s(sM)}, {lds + 2048}")
            a(f"s_add_u32 {s(sT0)}, {s(sDK)}, {src + M.WS_VF - M.WS_KF}")
            a(f"buffer_load_dwordx4 v1, {s(SWS,4)}, {s(sT0)} offen {LD} lds")
            a(f"buffer_load_dwordx4 v1, {s(SWS,4)}, {s(sT0)} offen offset:1024 {LD} lds")
            q_.extend([f"E{e_}"] * 4)
    def wait_for(tag):
        last = max(i for i, t_ in enumerate(q_) if t_ == tag)
        n = len(q_) - 1 - last
        assert n <= 63
        a(f"s_waitcnt vmcnt({n})")
    def fl(txt, tag):
        a(txt); q_.append(tag)
    def stage64(waits):
        for ks in range(4):
            waits(ks)
            for mt in range(2):
                for c in range(2):
                    a(mfma16(AC[mt][c], DA[mt][ks], F64[c][ks], None if ks == 0 else AC[mt][c]))
                    if os.environ.get("MGAP"): a(f"s_nop {os.environ['MGAP']}")
        a("s_nop 7")
    def twiddle():
        for mt in range(2):
            for r in range(4):
                tw = TW + 4 * (2 * mt + r // 2) + 2 * (r % 2)
                cmul(a, AC[mt][0] + r, AC[mt][1] + r, AC[mt][0] + r, AC[mt][1] + r, tw, tw + 1, T + 2 * (r % 2))
    def pack_sep():
        for c in range(2):
            for mt in range(2):
                for h in range(2):
                    a(f"v_cvt_pk_bf16_f32 {v(BF[c]+2*mt+h)}, {v(AC[mt][c]+2*h)}, {v(AC[mt][c]+2*h+1)}")
        a("s_nop 1")
    def stage32():
        for mt in range(2):
            a(mfma16(AC[mt][0], F32[mt][0], BF[0], None))
            a(mfma16(AC[mt][1], F32[mt][2], BF[0], None))
        for mt in range(2):
            a(mfma16(AC[mt][0], F32[mt][1], BF[1], AC[mt][0]))
            a(mfma16(AC[mt][1], F32[mt][0], BF[1], AC[mt][1]))
        a("s_nop 7")
    epoch(0); epoch(1)
    a(f"s_setprio {os.environ.get('HPRIO', '2')}")
    def B(k):
        a("s_barrier"); rt(5 + k)
    wait_for("E0"); B(0)
    def pollB():
        a(f"s_lshl_b32 {s(sT0)}, s2, 8")
        a(f"s_add_u32 {s(sT0)}, {s(sT0)}, {F.WS_MB1 + 33*4}")
        poll(f"buffer_load_dword v7, v6, {s(SWS,4)}, {s(sT0)} offen sc1", f"v_cmp_ne_u32 vcc, {s(sTag)}, v7", "0xf")
    if_lead(pollB)
    epoch(2)
    a(f"s_lshl_b32 {s(sK)}, {s(sW)}, 13")
    a(f"s_add_u32 {s(sV)}, {s(sK)}, 4096")
    for ks in range(4):
        fl(f"buffer_load_dwordx4 {v(F64[0][ks],4)}, v1, {s(SC_,4)}, {s(sK)} offen offset:{1024*ks}", "C")
        fl(f"buffer_load_dwordx4 {v(F64[1][ks],4)}, v1, {s(SC_,4)}, {s(sV)} offen offset:{1024*ks}", "C")
    wait_for("E1"); B(1)
    epoch(3)
    a(f"s_mul_i32 {s(sT2)}, {s(sCol)}, {M.X1S}")
    a(f"s_add_u32 {s(sK)}, {s(sT2)}, {M.WS_X1}")
    a(f"s_add_u32 {s(sV)}, {s(sK)}, 4096")
    for ks in range(4):
        fl(f"buffer_load_dwordx4 {v(DA[0][ks],4)}, v1, {s(SWS,4)}, {s(sK)} offen offset:{1024*ks} {LD}", "DA")
        fl(f"buffer_load_dwordx4 {v(DA[1][ks],4)}, v1, {s(SWS,4)}, {s(sV)} offen offset:{1024*ks} {LD}", "DA")
    a(f"s_lshl_b32 {s(sK)}, {s(sW)}, 12")
    a(f"s_add_u32 {s(sK)}, {s(sK)}, {CT_T2048}")
    for q in range(4):
        fl(f"buffer_load_dwordx4 {v(TW+4*q,4)}, v1, {s(SC_,4)}, {s(sK)} offen offset:{1024*q}", "TW")
    wait_for("E2"); B(2)
    a(f"s_mov_b32 {s(sK)}, {CT_F32}")
    a(f"s_mov_b32 {s(sV)}, {CT_F32+3072}")
    for k in range(3):
        fl(f"buffer_load_dwordx4 {v(F32[0][k],4)}, v1, {s(SC_,4)}, {s(sK)} offen offset:{1024*k}", "F32")
        fl(f"buffer_load_dwordx4 {v(F32[1][k],4)}, v1, {s(SC_,4)}, {s(sV)} offen offset:{1024*k}", "F32")
    a(f"s_lshr_b32 {s(sT2)}, {s(sCol)}, 2")
    a(f"s_mul_i32 {s(sT2)}, {s(sT2)}, {M.WTS}")
    a(f"s_lshl_b32 {s(sK)}, {s(sW)}, 10")
    a(f"s_add_u32 {s(sK)}, {s(sK)}, {s(sT2)}")
    a(f"s_and_b32 {s(sT2)}, {s(sCol)}, 3")
    a(f"s_lshl_b32 {s(sT2)}, {s(sT2)}, 5")
    a(f"s_add_u32 {s(sK)}, {s(sK)}, {s(sT2)}")
    a(f"s_add_u32 {s(sK)}, {s(sK)}, {M.WS_WT}")
    a(f"s_add_u32 {s(sV)}, {s(sK)}, 16384")
    fl(f"buffer_load_dwordx4 {v(Wv[0],4)}, {v(vA)}, {s(SWS,4)}, {s(sK)} offen {LD}", "W")
    fl(f"buffer_load_dwordx4 {v(Wv[1],4)}, {v(vA)}, {s(SWS,4)}, {s(sV)} offen {LD}", "W")
    wait_for("TW")
    a(f"s_cmp_ge_u32 {s(sCol)}, 225"); a(f"s_cbranch_scc1 {name}_sk1")
    stage64(lambda ks: None)
    a.label(f"{name}_sk1")
    epoch(4)
    a(f"s_cmp_ge_u32 {s(sCol)}, 225"); a(f"s_cbranch_scc1 {name}_sk2")
    twiddle()
    pack_sep()
    a.label(f"{name}_sk2")
    B(3)
    wait_for("W")
    a(f"s_cmp_ge_u32 {s(sCol)}, 225"); a(f"s_cbranch_scc1 {name}_sk3")
    stage32()
    for mt in range(2):
        for r in range(4):
            a(f"v_lshlrev_b32 {v(WR)}, 16, {v(Wv[mt]+r)}")
            a(f"v_and_b32 {v(WI)}, 0xffff0000, {v(Wv[mt]+r)}")
            cmul(a, AC[mt][0] + r, AC[mt][1] + r, AC[mt][0] + r, AC[mt][1] + r, WR, WI, T + 2 * (r % 2), conj_out=True)
    pack_sep()
    stage32()
    a.label(f"{name}_sk3")
    epoch(5)
    a(f"s_cmp_ge_u32 {s(sCol)}, 225"); a(f"s_cbranch_scc1 {name}_sk4")
    twiddle()
    for mt in range(2):
        for r in range(4):
            a(f"v_cvt_pk_bf16_f32 {v(BF[mt]+r)}, {v(AC[mt][0]+r)}, {v(AC[mt][1]+r)}")
    for mt in range(2):
        for r in range(4):
            a(f"ds_write_b32 {v(vB)}, {v(BF[mt]+r)} offset:{(16*mt+r)*272}")
    a("s_waitcnt lgkmcnt(0)")
    a.label(f"{name}_sk4")
    wait_for("E4"); B(4)
    a(f"s_cmp_ge_u32 {s(sCol)}, 225"); a(f"s_cbranch_scc1 {name}_sk5")
    for ks in range(4):
        for mt in range(2):
            a(f"ds_read_b128 {v(DA[mt][ks],4)}, {v(vC)} offset:{16*mt*272+64*ks}")
    stage64(lambda ks: a(f"s_waitcnt lgkmcnt({2*(3-ks)})"))
    for mt in range(2):
        for r in range(4):
            a(f"v_cvt_pk_bf16_f32 {v(BF[mt]+r)}, {v(AC[mt][0]+r)}, {v(AC[mt][1]+r)}")
    a(f"ds_write_b128 {v(vD)}, {v(BF[0],4)}")
    a(f"ds_write_b128 {v(vD)}, {v(BF[1],4)} offset:64")
    a("s_waitcnt lgkmcnt(0)")
    a(f"ds_read_b128 {v(BF[0],4)}, {v(vE)}")
    a(f"ds_read_b128 {v(BF[1],4)}, {v(vE)} offset:{8*144}")
    a("s_waitcnt lgkmcnt(0)")
    a.label(f"{name}_sk5")
    fl(f"buffer_store_dwordx4 {v(BF[0],4)}, v1, {s(SWS,4)}, {s(sZ0)} offen {ST}", "ST")
    fl(f"buffer_store_dwordx4 {v(BF[1],4)}, v1, {s(SWS,4)}, {s(sZ0)} offen offset:1024 {ST}", "ST")
    epoch(6)
    a("s_setprio 0")
    wait_for("ST"); B(5)
    if_lead(lambda: tree_up(64))
    epoch(7)
    wait_for("E6"); B(6)
    tree_down(64, F.WS_MB2 + 64, 7, f"{name}_tdF")
    def wo_items(k0, k1):
        for k in range(k0, k1):
            a(f"s_lshr_b32 {s(sT1)}, {s(sM)}, 3")
            a(f"s_add_u32 m0, {s(sT1)}, {4096*k}")
            a(f"s_add_u32 {s(sT0)}, {s(sWoO)}, {32*896*k}")
            fl(f"buffer_load_dwordx4 {v(vWo)}, {s(SA,4)}, {s(sT0)} offen lds", "WO")
    wo_items(0, 8)
    wait_for("E7"); B(7)
    wo_items(8, 15)
    vb = VAlloc(8)
    D5 = vb(16); Zr = vb(8); Hh = vb(16); TWv = vb(16); GF = [vb(4) for ks in range(4)]; AF = [vb(4) for ks in range(4)]
    PL = vb(8); t = [vb(1) for i in range(8)]
    vP, vM, vEw, vEr, vY = [vb(1) for i in range(5)]
    assert vb.hi <= vL16
    a(f"v_lshrrev_b32 {v(t[0])}, 3, v0")
    a(f"v_and_b32 {v(t[1])}, 7, v0")
    a(f"v_sub_u32 {v(t[2])}, 7, {v(t[0])}")
    a(f"v_mul_u32_u24 {v(t[2])}, {M.ZCS}, {v(t[2])}")
    a(f"v_lshl_add_u32 {v(vM)}, {v(t[1])}, 2, {v(t[2])}")
    a(f"v_mul_u32_u24 {v(t[2])}, {M.ZCS}, {v(t[0])}")
    a(f"v_lshl_add_u32 {v(vP)}, {v(t[1])}, 2, {v(t[2])}")
    a(f"v_lshlrev_b32 {v(t[3])}, 6, {v(t[0])}")
    a(f"s_lshl_b32 {s(sT2)}, {s(sW)}, 9")
    a(f"s_add_u32 {s(sT2)}, {s(sT2)}, {CT_TW448}")
    for q in range(4):
        a(f"buffer_load_dwordx4 {v(TWv+4*q,4)}, {v(t[3])}, {s(SC_,4)}, {s(sT2)} offen offset:{16*q}")
    a(f"s_and_b32 {s(sK)}, {s(sW)}, 1")
    a(f"s_lshl_b32 {s(sT1)}, {s(sK)}, 12")
    a(f"s_add_u32 {s(sT1)}, {s(sT1)}, {CT_G56}")
    for ks in range(4):
        a(f"buffer_load_dwordx4 {v(GF[ks],4)}, v1, {s(SC_,4)}, {s(sT1)} offen offset:{1024*ks}")
    B(8)
    a(f"v_mul_u32_u24 {v(vEw)}, 1168, {v(t[1])}")
    a(f"v_lshl_add_u32 {v(vEw)}, {v(t[0])}, 2, {v(vEw)}")
    a(f"s_lshl_b32 {s(sT1)}, {s(sW)}, 5")
    a(f"s_add_u32 {s(sT1)}, {s(sT1)}, {F.LDS_X}")
    a(f"v_add_u32 {v(vEw)}, {s(sT1)}, {v(vEw)}")
    a(f"v_and_b32 {v(t[4])}, 31, v0")
    a(f"v_lshrrev_b32 {v(t[5])}, 5, v0")
    a(f"v_mul_u32_u24 {v(vEr)}, 144, {v(t[4])}")
    a(f"v_lshrrev_b32 {v(t[6])}, 3, {v(t[4])}")
    a(f"v_add_u32 {v(t[6])}, {v(t[6])}, {v(t[5])}")
    a(f"v_lshl_add_u32 {v(vEr)}, {v(t[6])}, 4, {v(vEr)}")
    a(f"s_lshr_b32 {s(sV)}, {s(sW)}, 1")
    a(f"s_mul_i32 {s(sT1)}, {s(sV)}, {4*1168}")
    a(f"s_add_u32 {s(sT1)}, {s(sT1)}, {F.LDS_X}")
    a(f"v_add_u32 {v(vEr)}, {s(sT1)}, {v(vEr)}")
    a(f"s_lshl_b32 {s(sT1)}, {s(sK)}, 5")
    a(f"v_add_u32 {v(t[6])}, {s(sT1)}, {v(t[4])}")
    a(f"v_lshlrev_b32 {v(vY)}, 4, {v(t[6])}")
    a(f"v_lshl_add_u32 {v(vY)}, {v(t[5])}, 3, {v(vY)}")
    a(f"v_mov_b32 {v(t[7])}, 0x7f000000")
    a(f"v_cmp_lt_u32 vcc, 55, {v(t[6])}")
    a(f"s_lshl_b32 {s(sZ0)}, {s(sCol)}, 5")
    a(f"s_add_u32 {s(sZ0)}, {s(sZ0)}, {M.WS_ZB}")
    a(f"v_cndmask_b32 {v(vY)}, {v(vY)}, {v(t[7])}, vcc")
    a(f"s_mul_i32 {s(sT2)}, {s(sW)}, {8*M.ZCS}")
    a(f"s_sub_u32 {s(sZ1)}, {s(sZ0)}, {s(sT2)}")
    a(f"s_add_u32 {s(sZ0)}, {s(sZ0)}, {s(sT2)}")
    a(f"s_mov_b32 {s(sK8)}, {f32hex(0.5**0.5)}")
    a(f"s_lshl_b32 {s(sDK)}, {s(sCol)}, 3")
    a(f"s_lshl_b32 {s(sT2)}, {s(sV)}, 2")
    a(f"s_add_u32 {s(sDK)}, {s(sDK)}, {s(sT2)}")
    a(f"s_mul_i32 {s(sDK)}, {s(sDK)}, 1792")
    a(f"s_add_u32 {s(sDK)}, {s(sDK)}, 896")
    a(f"s_add_u32 {s(sM)}, {s(sDK)}, 3584")
    def pollF():
        a(f"s_lshl_b32 {s(sT0)}, s2, 7")
        a(f"s_add_u32 {s(sT0)}, {s(sT0)}, {F.WS_MB2 + 64}")
        poll(f"buffer_load_dword v7, v6, {s(SWS,4)}, {s(sT0)} offen sc1", f"v_cmp_ne_u32 vcc, {s(sTag)}, v7", "0xffff")
    pollF()
    for tt_ in range(8):
        if tt_ < 4:
            a(f"s_add_u32 {s(sT0)}, {s(sZ0)}, {56*tt_*M.ZCS}")
            a(f"buffer_load_dword {v(Zr+tt_)}, {v(vP)}, {s(SWS,4)}, {s(sT0)} offen {LD}")
        else:
            a(f"s_add_u32 {s(sT0)}, {s(sZ1)}, {(56*(8-tt_)-7)*M.ZCS}")
            a(f"buffer_load_dword {v(Zr+tt_)}, {v(vM)}, {s(SWS,4)}, {s(sT0)} offen {LD}")
    rt(14)
    a("s_barrier")
    def sig2():
        a(f"v_mov_b32 v7, {s(sTag)}")
        a(f"s_lshl_b32 {s(sT0)}, {s(sHead)}, 2")
        a(f"s_add_u32 {s(sT0)}, {s(sT0)}, {F.WS_MB2}")
        a("s_mov_b64 exec, 0x3fff")
        a(f"buffer_store_dword v7, {v(vS2)}, {s(SWS,4)}, {s(sT0)} offen sc1")
        a("s_mov_b64 exec, -1")
        a(f"s_cmp_lg_u32 s2, 255")
        a(f"s_cbranch_scc1 {name}_noadv")
        a(f"s_mov_b32 {s(sT0)}, {F.WS_TAG}")
        a("s_mov_b64 exec, 1")
        a(f"buffer_store_dword v7, v5, {s(SWS,4)}, {s(sT0)} offen sc1")
        a("s_mov_b64 exec, -1")
        a.label(f"{name}_noadv")
        a("s_waitcnt vmcnt(2)")
    if_lead(sig2)
    a(f"s_cmp_eq_u32 {s(sW)}, 0")
    a(f"s_cbranch_scc1 {name}_zok")
    a("s_waitcnt vmcnt(0)")
    a.label(f"{name}_zok")
    a("s_waitcnt vmcnt(1)")
    for tt_ in range(8):
        a(f"v_lshlrev_b32 {v(Hh+2*tt_)}, 16, {v(Zr+tt_)}")
        a(f"v_and_b32 {v(Hh+2*tt_+1)}, 0xffff0000, {v(Zr+tt_)}")
    pool = Pool([PL + i for i in range(8)])
    X = dft8(a, pool, [((Hh + 2 * tt_, 1), (Hh + 2 * tt_ + 1, -1 if tt_ < 4 else 1)) for tt_ in range(8)], +1, sK8)
    for j in range(8):
        xr, xi = X[j]
        o_ = Zr + j
        if j == 0:
            a(f"v_cvt_pk_bf16_f32 {v(o_)}, {sv(xr)}, {sv(xi)}")
        else:
            tr = TWv + 2 * (j - 1); ti = tr + 1
            p, q = t[2 * (j % 2)], t[2 * (j % 2) + 1]
            a(f"v_mul_f32_e64 {v(p)}, {sv(xi)}, {v(ti)}")
            a(f"v_mul_f32_e64 {v(q)}, {sv(xi)}, {v(tr)}")
            a(f"v_fma_f32 {v(p)}, {sv(xr)}, {v(tr)}, {v(p)}")
            a(f"v_fma_f32 {v(q)}, {sv(neg(xr))}, {v(ti)}, {v(q)}")
            a(f"v_cvt_pk_bf16_f32 {v(o_)}, {v(p)}, {v(q)}")
        a(f"ds_write_b32 {v(vEw)}, {v(o_)} offset:{144*j}")
    a("s_waitcnt lgkmcnt(0)")
    def poll2():
        a(f"s_cmp_ge_u32 {s(sSlot)}, 28")
        a(f"s_cbranch_scc1 {name}_np2")
        a(f"s_lshl_b32 {s(sT0)}, s2, 7")
        a(f"s_add_u32 {s(sT0)}, {s(sT0)}, {F.WS_MB2}")
        poll(f"buffer_load_dword v7, v6, {s(SWS,4)}, {s(sT0)} offen sc1", f"v_cmp_ne_u32 vcc, {s(sTag)}, v7", "0xffff")
        a.label(f"{name}_np2")
    if_lead(poll2)
    a("s_barrier")
    for ks in range(4):
        a(f"ds_read_b128 {v(AF[ks],4)}, {v(vEr)} offset:{32*ks}")
    for ks in range(4):
        a(f"s_waitcnt lgkmcnt({3-ks})")
        a(mfma32(D5, AF[ks], GF[ks], None if ks == 0 else D5))
    a("s_nop 7\ns_nop 3")
    for k in range(8):
        a(f"v_cvt_pk_bf16_f32 {v(Hh+k)}, {v(D5+2*k)}, {v(D5+2*k+1)}")
    for q in range(4):
        a(f"buffer_store_dwordx2 {v(Hh+2*q,2)}, {v(vY)}, {s(SBv,4)}, {s(sDK if q < 2 else sM)} offen offset:{1792*(q%2)}")
    dump(4, 2)
    a("s_endpgm")
    return 200

def computes(a, name, E):
    SA, SBv, SWS = E['SA'], E['SBv'], E['SWS']
    sW, sXc, sSlot, sHi = E['sW'], E['sXc'], E['sSlot'], E['sHi']
    rt, dump = E['rt'], E['dump']
    ST, LD = F.ST, F.LD
    sT0, sT1, sT2 = 33, 34, 35
    sHead, sQt, sK0, sJ, sIt, sK, sV, sQo, sTb2, sCg = 31, 32, 36, 37, 38, 40, 41, 42, 44, 45
    va = VAlloc(2)
    Q = [va(4), va(4)]
    O = va(16)
    S_ = [va(16), va(16)]
    P_ = [va(8), va(8)]
    Kb = [va(8), va(8)]
    Vb = [va(8), va(8)]
    Mx = va(1); va(1); T = [va(1) for i in range(4)]
    vA = va(1); vB = va(1)
    def ld(dst, so, off):
        a(f"buffer_load_dwordx4 {v(dst,4)}, v1, {s(SWS,4)}, {s(so)} offen offset:{off} {LD}")
    a(f"s_mov_b32 {s(SBv)}, s76\ns_mov_b32 {s(SBv+1)}, s77")
    a(f"s_lshr_b32 {s(sHead)}, {s(sSlot)}, 4")
    a(f"s_lshl_b32 {s(sT0)}, {s(sXc)}, 1")
    a(f"s_add_u32 {s(sHead)}, {s(sHead)}, {s(sT0)}")
    a(f"s_lshl_b32 {s(sT0)}, {s(sHead)}, 17")
    a(f"s_add_u32 {s(sK0)}, {s(sT0)}, {M.WS_KF}")
    a(f"s_and_b32 {s(sQt)}, {s(sSlot)}, 15")
    a(f"s_lshl_b32 {s(sQt)}, {s(sQt)}, 2")
    a(f"s_add_u32 {s(sQt)}, {s(sQt)}, {s(sW)}")
    a(f"s_lshl_b32 {s(sT1)}, {s(sQt)}, 11")
    a(f"s_add_u32 {s(sQo)}, {s(sT0)}, {s(sT1)}")
    a(f"s_lshl_b32 {s(sJ)}, {s(sQt)}, 4")
    a(f"s_add_u32 {s(sJ)}, {s(sJ)}, {s(sHead)}")
    a(f"s_lshl_b32 {s(sJ)}, {s(sJ)}, 11")
    a(f"s_add_u32 {s(sJ)}, {s(sJ)}, {M.WS_OF}")
    a(f"s_mov_b32 {s(sIt)}, 0")
    a(f"s_mov_b32 {s(SBv+2)}, {2048*1792}\ns_mov_b32 {s(SBv+3)}, 0x20000")
    rt(2)
    a("s_waitcnt vmcnt(0) lgkmcnt(0)")
    rt(3)
    a("s_barrier")
    a(f"v_mov_b32 {v(Mx)}, 0xff800000")
    for r in range(16): a(f"v_mov_b32 {v(O+r)}, 0")
    for r in range(8): a(f"v_mov_b32 {v(P_[1]+r)}, 0")
    for r in range(8): a(f"v_mov_b32 {v(Vb[1]+r)}, 0")
    a(f"v_mov_b32 {v(vA)}, v1")
    a(f"v_add_u32 {v(vB)}, 0x8000, v1")
    a("s_barrier")
    rt(4)
    for t in range(2): ld(Kb[0] + 4 * t, sK0, 1024 * t)
    for t in range(2): ld(Q[t], sQo, 1024 * t)
    a("s_waitcnt vmcnt(0)")
    rt(5)
    def maxstep():
        a(mfma32(S_[1], Kb[0], Q[0], None))
        a(mfma32(S_[1], Kb[0] + 4, Q[1], S_[1]))
        a("s_nop 7\ns_nop 3")
        for r in range(0, 16, 2):
            a(f"v_max3_f32 {v(Mx)}, {v(S_[1]+r)}, {v(S_[1]+r+1)}, {v(Mx)}")
    def finalize():
        a(f"v_mov_b32 {v(T[0])}, {v(Mx)}\nv_mov_b32 {v(T[1])}, {v(Mx)}\ns_nop 1")
        a(f"v_permlane32_swap_b32 {v(T[0])}, {v(T[1])}\ns_nop 0")
        a(f"v_max_f32 {v(Mx)}, {v(T[0])}, {v(T[1])}")
        a(f"v_cvt_pk_bf16_f32 {v(T[0])}, {v(Mx)}, {v(Mx)}")
        a(f"v_and_b32 {v(T[0])}, 0xffff0000, {v(T[0])}")
        a(f"v_sub_f32 {v(T[1])}, {v(Mx)}, {v(T[0])}")
        a(f"s_mov_b64 exec, {s(sHi,2)}")
        a(f"v_cvt_pk_bf16_f32 {v(Q[1]+2)}, -{v(T[0])}, -{v(T[1])}")
        a(f"s_mov_b64 exec, -1")
    maxstep()
    finalize()
    a(mfma32(S_[0], Kb[0], Q[0], None))
    a("s_barrier")
    a(mfma32(S_[0], Kb[0] + 4, Q[1], S_[0]))
    for t in range(2):
        a(f"ds_read_b128 {v(Kb[1]+4*t,4)}, {v(vA)} offset:{4096+1024*t}")
    a("s_nop 7")
    a("s_waitcnt lgkmcnt(0)")
    rt(6)
    if os.environ.get("APRIO"): a(f"s_setprio {os.environ['APRIO']}")
    a.raw(".p2align 6")
    a.label(f"{name}_loop")
    for u in range(8):
        p = u % 2; q = 1 - p
        sb = S_[p]; pb = P_[p]; sn = S_[q]; pp = P_[q]
        e = lambda r: a(f"v_exp_f32 {v(sb+r)}, {v(sb+r)}")
        c = lambda k: a(f"v_cvt_pk_bf16_f32 {v(pb+k)}, {v(sb+2*k)}, {v(sb+2*k+1)}")
        def rdK(t):
            if u < 6: a(f"ds_read_b128 {v(Kb[p]+4*t,4)}, {v(vA)} offset:{4096*(u+2)+1024*t}")
            else:     a(f"ds_read_b128 {v(Kb[p]+4*t,4)}, {v(vB)} offset:{4096*(u-6)+1024*t}")
        def rdV(t):
            a(f"ds_read_b128 {v(Vb[p]+4*t,4)}, {v(vA)} offset:{4096*u+2048+1024*t}")
        a(mfma32(sn, Kb[q], Q[0], None))
        if u == 6: a("s_barrier")
        rdV(0)
        e(0); e(1); e(2); e(3)
        a(mfma32(sn, Kb[q] + 4, Q[1], sn))
        rdV(1)
        e(4); e(5); c(0); e(6); e(7); c(1)
        a(mfma32(O, Vb[q], pp, O))
        rdK(0); rdK(1)
        e(8); e(9); c(2); e(10); e(11); c(3)
        a(mfma32(O, Vb[q] + 4, pp + 4, O))
        e(12)
        if u == 7: a(f"s_add_u32 {s(sIt)}, {s(sIt)}, 1")
        e(13); c(4); e(14)
        if u == 7: a(f"s_cmp_lt_u32 {s(sIt)}, 8")
        e(15)
        a("s_waitcnt lgkmcnt(0)")
        c(5); c(6); c(7)
        if u == 7:
            a(f"v_mov_b32 {v(vA)}, {v(vB)}")
            a(f"v_add_u32 {v(vB)}, 0x8000, {v(vB)}")
            a(f"v_and_b32 {v(vB)}, 0x1ffff, {v(vB)}")
    a(f"s_cbranch_scc1 {name}_loop")
    a(mfma32(O, Vb[1], P_[1], O))
    a(mfma32(O, Vb[1] + 4, P_[1] + 4, O))
    rt(7)
    a(f"s_mov_b32 {s(sT1)}, 0x5d800000")
    a("s_nop 7\ns_nop 3")
    a(f"v_cmp_nge_f32 vcc, {s(sT1)}, {v(O+12)}")
    a(f"v_mov_b32 {v(T[0])}, {v(O+12)}")
    a(f"v_mov_b32 {v(T[1])}, {v(O+12)}")
    a(f"s_cmp_lg_u32 vcc_hi, 0")
    a(f"s_cbranch_scc1 {name}_redo")
    a.label(f"{name}_epi")
    a(f"v_permlane32_swap_b32 {v(T[0])}, {v(T[1])}")
    a("s_nop 1")
    a(f"v_rcp_f32 {v(T[2])}, {v(T[1])}")
    a("s_nop 0")
    assert T[2] % 2 == 0
    for r in range(0, 16, 2):
        a(f"v_pk_mul_f32 {v(O+r,2)}, {v(O+r,2)}, {v(T[2],2)} op_sel_hi:[1,0]")
    for k in range(8):
        a(f"v_cvt_pk_bf16_f32 {v(S_[0]+k)}, {v(O+2*k)}, {v(O+2*k+1)}")
    a(f"s_mov_b64 exec, {s(sHi,2)}")
    a(f"v_mov_b32 {v(S_[0]+6)}, 0")
    a(f"v_mov_b32 {v(S_[0]+7)}, 0")
    a(f"s_mov_b64 exec, -1")
    a(f"buffer_store_dwordx4 {v(S_[0],4)}, v1, {s(SWS,4)}, {s(sJ)} offen {ST}")
    a(f"buffer_store_dwordx4 {v(S_[0]+4,4)}, v1, {s(SWS,4)}, {s(sJ)} offen offset:1024 {ST}")
    vb = VAlloc(2)
    ACC = [vb(16), vb(16)]
    t = [vb(1) for i in range(8)]
    assert vb.hi <= S_[0] or True
    vb = VAlloc(max(va.hi, 48))
    vb = VAlloc(64 - 8)
    OFr = [vb(4) for k in range(16)]
    WFR = [[vb(4) for k in range(16)] for ct in range(2)]
    aW = [vb(1), vb(1)]; vTw = vb(1); vTr = vb(1); vSt = vb(1); vRw = vb(1); vRr = vb(1)
    a(f"s_mul_i32 {s(sT0)}, {s(sSlot)}, 37")
    a(f"s_lshr_b32 {s(sT0)}, {s(sT0)}, 8")
    a(f"s_mul_i32 {s(sT1)}, {s(sT0)}, 7")
    a(f"s_sub_u32 {s(sCg)}, {s(sSlot)}, {s(sT1)}")
    a(f"s_lshl_b32 {s(sTb2)}, {s(sXc)}, 2")
    a(f"s_add_u32 {s(sTb2)}, {s(sTb2)}, {s(sT0)}")
    a(f"s_and_b32 {s(sK)}, {s(sW)}, 1")
    a(f"s_lshr_b32 {s(sV)}, {s(sW)}, 1")
    a("s_waitcnt vmcnt(0)")
    rt(8)
    a("s_barrier")
    a(f"s_cmp_ge_u32 {s(sSlot)}, 28")
    a(f"s_cbranch_scc1 {name}_c_end")
    a(f"v_lshrrev_b32 {v(t[5])}, 5, v0")
    a(f"v_bfe_u32 {v(t[6])}, v0, 3, 1")
    a(f"v_lshlrev_b32 {v(aW[0])}, 9, {v(t[5])}")
    a(f"v_lshl_add_u32 {v(aW[0])}, {v(t[6])}, 8, {v(aW[0])}")
    a(f"v_xor_b32 {v(t[6])}, {s(sK)}, {v(t[6])}")
    a(f"v_lshl_add_u32 {v(aW[0])}, {v(t[6])}, 7, {v(aW[0])}")
    a(f"v_bfe_u32 {v(t[6])}, v0, 2, 1")
    a(f"v_lshl_add_u32 {v(aW[0])}, {v(t[6])}, 6, {v(aW[0])}")
    a(f"v_bfe_u32 {v(t[6])}, v0, 4, 1")
    a(f"v_lshl_add_u32 {v(aW[0])}, {v(t[6])}, 5, {v(aW[0])}")
    a(f"v_and_b32 {v(t[6])}, 3, v0")
    a(f"v_lshl_add_u32 {v(aW[0])}, {v(t[6])}, 3, {v(aW[0])}")
    a(f"s_mul_i32 {s(sT0)}, {s(sK)}, {8*28*128}")
    a(f"v_add_u32 {v(aW[0])}, {s(sT0)}, {v(aW[0])}")
    a(f"v_xor_b32 {v(aW[1])}, 0x80, {v(aW[0])}")
    n = 0
    for k in range(16):
        h2, t_ = k // 2, k % 2
        for ct in range(2):
            for jj in range(2):
                a(f"ds_read_b64_tr_b16 {v(WFR[ct][k]+2*jj,2)}, {v(aW[ct])} offset:{(28*h2+16*t_+8*jj)*128}")
                n += 1
                if n % 12 == 0: a("s_waitcnt lgkmcnt(4)")
    a(f"v_and_b32 {v(t[4])}, 31, v0")
    a(f"s_mul_i32 {s(sT1)}, {s(sW)}, 2560")
    a(f"s_add_u32 {s(sT1)}, {s(sT1)}, {F.L_TR}")
    a(f"v_mul_u32_u24 {v(vTw)}, 80, {v(t[4])}")
    a(f"v_lshl_add_u32 {v(vTw)}, {v(t[5])}, 3, {v(vTw)}")
    a(f"v_add_u32 {v(vTw)}, {s(sT1)}, {v(vTw)}")
    a(f"v_lshrrev_b32 {v(t[7])}, 2, v0")
    a(f"v_mul_u32_u24 {v(vTr)}, 80, {v(t[7])}")
    a(f"v_lshl_add_u32 {v(vTr)}, {v(t[6])}, 4, {v(vTr)}")
    a(f"v_add_u32 {v(vTr)}, {s(sT1)}, {v(vTr)}")
    a(f"v_mul_u32_u24 {v(vSt)}, 1792, {v(t[7])}")
    a(f"v_lshl_add_u32 {v(vSt)}, {v(t[6])}, 4, {v(vSt)}")
    a(f"s_lshl_b32 {s(sT1)}, {s(sW)}, 12")
    a(f"s_add_u32 {s(sT1)}, {s(sT1)}, {F.L_RED}")
    a(f"v_add_u32 {v(vRw)}, {s(sT1)}, v1")
    a(f"v_xor_b32 {v(vRr)}, 0x1000, {v(vRw)}")
    a(f"s_lshl_b32 {s(sT0)}, {s(sTb2)}, 1")
    a(f"s_add_u32 {s(sT0)}, {s(sT0)}, {s(sV)}")
    a(f"s_lshl_b32 {s(sJ)}, {s(sT0)}, 15")
    a(f"s_lshl_b32 {s(sT1)}, {s(sK)}, 14")
    a(f"s_add_u32 {s(sJ)}, {s(sJ)}, {s(sT1)}")
    a(f"s_add_u32 {s(sJ)}, {s(sJ)}, {M.WS_OF}")
    a(f"s_mul_i32 {s(sQo)}, {s(sT0)}, {32*1792}")
    a(f"s_lshl_b32 {s(sT1)}, {s(sCg)}, 7")
    a(f"s_add_u32 {s(sQo)}, {s(sQo)}, {s(sT1)}")
    a(f"s_lshl_b32 {s(sT1)}, {s(sK)}, 6")
    a(f"s_add_u32 {s(sQo)}, {s(sQo)}, {s(sT1)}")
    a(f"s_add_u32 {s(sK0)}, {s(sQo)}, {16*1792}")
    a("s_waitcnt lgkmcnt(0)")
    a("s_barrier")
    rt(9)
    for k in range(16):
        a(f"buffer_load_dwordx4 {v(OFr[k],4)}, v1, {s(SWS,4)}, {s(sJ)} offen offset:{1024*(k%4)} {LD}")
        if k % 4 == 3: a(f"s_add_u32 {s(sJ)}, {s(sJ)}, 4096")
    for k in range(16):
        a(f"s_waitcnt vmcnt({15-k})")
        for ct in (1, 0):
            a(mfma32(ACC[ct], WFR[ct][k], OFr[k], None if k == 0 else ACC[ct]))
    rt(10)
    a("s_nop 7\ns_nop 3")
    for q in range(4):
        a(f"ds_write_b128 {v(vRw)}, {v(ACC[1]+4*q,4)} offset:{1024*q}")
    a("s_waitcnt lgkmcnt(0)")
    a("s_barrier")
    for q in range(4):
        a(f"ds_read_b128 {v(ACC[1]+4*q,4)}, {v(vRr)} offset:{1024*q}")
    for q in range(4):
        a(f"s_waitcnt lgkmcnt({3-q})")
        for h in range(2):
            r = 4 * q + 2 * h
            a(f"v_pk_add_f32 {v(ACC[0]+r,2)}, {v(ACC[0]+r,2)}, {v(ACC[1]+r,2)}")
        for h in range(2):
            a(f"v_cvt_pk_bf16_f32 {v(OFr[0]+2*q+h)}, {v(ACC[0]+4*q+2*h)}, {v(ACC[0]+4*q+2*h+1)}")
    for q in range(4):
        a(f"ds_write_b64 {v(vTw)}, {v(OFr[0]+2*q,2)} offset:{16*q}")
    a("s_waitcnt lgkmcnt(0)")
    a(f"ds_read_b128 {v(OFr[4],4)}, {v(vTr)}")
    a(f"ds_read_b128 {v(OFr[5],4)}, {v(vTr)} offset:{16*80}")
    a("s_waitcnt lgkmcnt(1)")
    a(f"buffer_store_dwordx4 {v(OFr[4],4)}, {v(vSt)}, {s(SBv,4)}, {s(sQo)} offen")
    a("s_waitcnt lgkmcnt(0)")
    a(f"buffer_store_dwordx4 {v(OFr[5],4)}, {v(vSt)}, {s(SBv,4)}, {s(sK0)} offen")
    a.label(f"{name}_c_end")
    dump(0, 2)
    a("s_endpgm")
    a.label(f"{name}_redo")
    a(f"s_mov_b64 exec, {s(sHi,2)}")
    a(f"v_mov_b32 {v(Q[1]+2)}, 0")
    a(f"s_mov_b64 exec, -1")
    a(f"s_mov_b32 {s(sK)}, {s(sK0)}")
    a(f"s_mov_b32 {s(sIt)}, 0")
    a.label(f"{name}_redo1")
    for t_ in range(2): ld(Kb[0] + 4 * t_, sK, 1024 * t_)
    a("s_waitcnt vmcnt(0)")
    maxstep()
    a(f"s_add_u32 {s(sK)}, {s(sK)}, 2048")
    a(f"s_add_u32 {s(sIt)}, {s(sIt)}, 1")
    a(f"s_cmp_lt_u32 {s(sIt)}, 64")
    a(f"s_cbranch_scc1 {name}_redo1")
    finalize()
    for r in range(16): a(f"v_mov_b32 {v(O+r)}, 0")
    a(f"s_mov_b32 {s(sK)}, {s(sK0)}")
    a(f"s_mov_b32 {s(sIt)}, 0")
    a.label(f"{name}_redo2")
    a(f"s_add_u32 {s(sV)}, {s(sK)}, {M.WS_VF - M.WS_KF}")
    for t_ in range(2): ld(Kb[0] + 4 * t_, sK, 1024 * t_)
    for t_ in range(2): ld(Vb[0] + 4 * t_, sV, 1024 * t_)
    a("s_waitcnt vmcnt(0)")
    a(mfma32(S_[0], Kb[0], Q[0], None))
    a(mfma32(S_[0], Kb[0] + 4, Q[1], S_[0]))
    a("s_nop 7\ns_nop 3")
    for r in range(16): a(f"v_exp_f32 {v(S_[0]+r)}, {v(S_[0]+r)}")
    a("s_nop 0")
    for k in range(8): a(f"v_cvt_pk_bf16_f32 {v(P_[0]+k)}, {v(S_[0]+2*k)}, {v(S_[0]+2*k+1)}")
    a("s_nop 1")
    a(mfma32(O, Vb[0], P_[0], O))
    a(mfma32(O, Vb[0] + 4, P_[0] + 4, O))
    a(f"s_add_u32 {s(sK)}, {s(sK)}, 2048")
    a(f"s_add_u32 {s(sIt)}, {s(sIt)}, 1")
    a(f"s_cmp_lt_u32 {s(sIt)}, 64")
    a("s_nop 7")
    a(f"s_cbranch_scc1 {name}_redo2")
    a("s_nop 7")
    a(f"v_mov_b32 {v(T[0])}, {v(O+12)}")
    a(f"v_mov_b32 {v(T[1])}, {v(O+12)}")
    a("s_nop 1")
    a(f"s_branch {name}_epi")
    return max(va.hi, vb.hi)
```

```python
import numpy as np

S, D, H, DH = 2048, 448, 16, 28
SC = DH ** -0.5 * np.log2(np.e)

def bf16_bits(x):
    x = np.ascontiguousarray(x, dtype=np.float32)
    u = x.view(np.uint32)
    r = ((u + 0x7FFF + ((u >> 16) & 1)) >> 16).astype(np.uint16)
    return r
def bf16_val(b):
    return (b.astype(np.uint32) << 16).view(np.float32)
def rb(x):
    return bf16_val(bf16_bits(x))

WS_QF = 0
WS_KF = 2 << 20
WS_VF = 4 << 20
WS_X1 = 6 << 20
X1S = 8320
WS_WT = 17 << 19
WTS = 32768 + 128
WS_OF = 11 << 20
WS_ZB = 13 << 20
ZSTRIDE = 7296
ZCS = 8320
WS_DBG = 15 << 20
WS_END = 16 << 20

def feat(t, half, j):
    return 16 * t + 8 * (j // 4) + 4 * half + j % 4

_t, _half, _j = np.meshgrid(np.arange(2), np.arange(2), np.arange(8), indexing='ij')
FEAT = 16 * _t + 8 * (_j // 4) + 4 * _half + _j % 4

def qkv_stage(x, wqkv):
    qkv = x.astype(np.float64) @ wqkv.astype(np.float64)
    q = qkv[:, :448].reshape(S, H, DH); k = qkv[:, 448:896].reshape(S, H, DH); v = qkv[:, 896:].reshape(S, H, DH)
    qp = np.zeros((S, H, 32)); kp = np.zeros((S, H, 32)); vp = np.zeros((S, H, 32))
    qp[:, :, :28] = q * SC; kp[:, :, :28] = k; kp[:, :, 28:30] = 1.0; vp[:, :, :28] = v; vp[:, :, 28] = 1.0
    def tokfrag(a):
        a = a.reshape(64, 32, H, 32)
        out = a[:, :, :, FEAT]
        out = out.transpose(2, 0, 3, 4, 1, 5)
        return rb(out.reshape(H, 64, 2, 64, 8))
    QF = tokfrag(qp); KF = tokfrag(kp)
    a = vp.reshape(64, 32, H, 32)
    out = a[:, FEAT]
    out = out.transpose(4, 0, 1, 2, 5, 3)
    VF = rb(out.reshape(H, 64, 2, 64, 8))
    return QF, KF, VF

def unfrag_tok(F):
    a = F.reshape(H, 64, 2, 2, 32, 8)
    out = np.zeros((64, 32, H, 32), F.dtype)
    for t in range(2):
        for hf in range(2):
            for j in range(8):
                out[:, :, :, FEAT[t, hf, j]] = a[:, :, t, hf, :, j].transpose(1, 2, 0)
    return out.reshape(S, H, 32)
def unfrag_v(F):
    a = F.reshape(H, 64, 2, 2, 32, 8)
    out = np.zeros((64, 32, H, 32), F.dtype)
    for t in range(2):
        for hf in range(2):
            for j in range(8):
                out[:, FEAT[t, hf, j], :, :] = a[:, :, t, hf, :, j].transpose(1, 0, 2)
    return out.reshape(S, H, 32)

def attn_stage(QF, KF, VF):
    q = unfrag_tok(QF).astype(np.float64); k = unfrag_tok(KF).astype(np.float64); v = unfrag_v(VF).astype(np.float64)
    o = np.zeros((S, H, 32))
    for h in range(H):
        s = q[:, h, :28] @ k[:, h, :28].T
        p = rb(np.exp2(s - s.max(axis=1, keepdims=True))).astype(np.float64)
        oo = p @ v[:, h, :]
        o[:, h, :28] = oo[:, :28] / oo[:, 28:29]
    a = o.reshape(64, 32, H, 32)
    out = a[:, :, :, FEAT]
    out = out.transpose(0, 2, 3, 4, 1, 5)
    return rb(out.reshape(64, H, 2, 64, 8))

def outproj_stage(OF, wo):
    a = OF.reshape(64, H, 2, 2, 32, 8)
    o = np.zeros((64, 32, H, 32))
    for t in range(2):
        for hf in range(2):
            for j in range(8):
                o[:, :, :, FEAT[t, hf, j]] = a[:, :, t, hf, :, j].transpose(0, 2, 1)
    o = o.reshape(S, H, 32)[:, :, :28].reshape(S, 448)
    return rb(o @ wo.astype(np.float64))

def const_F56():
    out = np.zeros((2, 2, 2, 64, 8))
    for kb in range(2):
        for u in range(2):
            for l in range(64):
                kap = 16 * kb + l % 16; g = l // 16
                for j in range(8):
                    m = 32 * u + 8 * g + j
                    if m < 56 and kap <= 28:
                        th = 2 * np.pi * ((kap * m) % 56) / 56
                        out[kb, 0, u, l, j] = np.cos(th); out[kb, 1, u, l, j] = -np.sin(th)
    return rb(out)
def const_TW448():
    out = np.zeros((32, 16), np.float32)
    for kap in range(32):
        for j in range(1, 8):
            th = 2 * np.pi * (kap * j) / 448
            out[kap, 2 * (j - 1)] = np.cos(th); out[kap, 2 * (j - 1) + 1] = -np.sin(th)
    return out
def const_TW448B():
    t = const_TW448()
    out = np.zeros((8, 64), np.float32)
    for kq in range(8):
        for j in range(7):
            for c in range(2):
                for rr in range(4):
                    out[kq, (j * 2 + c) * 4 + rr] = t[4 * kq + rr, 2 * j + c]
    return out
def const_F64():
    out = np.zeros((4, 2, 4, 64, 8))
    for w in range(4):
        for ks in range(4):
            for l in range(64):
                k1 = 16 * w + l % 16; g = l // 16
                for j in range(8):
                    n1 = 16 * ks + 4 * g + j // 2; c = j % 2
                    th = 2 * np.pi * ((n1 * k1) % 64) / 64
                    out[w, 0, ks, l, j] = np.cos(th) if c == 0 else np.sin(th)
                    out[w, 1, ks, l, j] = -np.sin(th) if c == 0 else np.cos(th)
    return rb(out)
def const_F32():
    out = np.zeros((2, 3, 64, 8))
    for mt in range(2):
        for l in range(64):
            k2 = 16 * mt + l % 16; g = l // 16
            for j in range(8):
                n2 = 16 * (j // 4) + 4 * g + j % 4
                th = 2 * np.pi * ((n2 * k2) % 32) / 32
                out[mt, 0, l, j] = np.cos(th); out[mt, 1, l, j] = np.sin(th); out[mt, 2, l, j] = -np.sin(th)
    return rb(out)
def const_T2048():
    out = np.zeros((4, 4, 64, 4), np.float32)
    for w in range(4):
        for l in range(64):
            k1 = 16 * w + l % 16; g = l // 16
            for mt in range(2):
                for r in range(4):
                    n2 = 16 * mt + 4 * g + r
                    th = 2 * np.pi * (n2 * k1) / 2048
                    out[w, 2 * mt + r // 2, l, 2 * (r % 2)] = np.cos(th); out[w, 2 * mt + r // 2, l, 2 * (r % 2) + 1] = -np.sin(th)
    return out
def const_G56():
    out = np.zeros((2, 4, 64, 8))
    cc = 1.0 / (S * D)
    for nu in range(2):
        for ks in range(4):
            for l in range(64):
                m = 32 * nu + l % 32; hf = l // 32
                for j in range(8):
                    kap = 8 * ks + 4 * hf + j // 2; c = j % 2
                    if m < 56 and kap <= 28:
                        wk = 1.0 if kap in (0, 28) else 2.0
                        th = 2 * np.pi * ((kap * m) % 56) / 56
                        out[nu, ks, l, j] = cc * wk * (np.cos(th) if c == 0 else -np.sin(th))
    return rb(out)

def rowdft_stage(x):
    F = const_F56().astype(np.float64)
    Fc = np.zeros((32, 64)); Fs = np.zeros((32, 64))
    for kb in range(2):
        for u in range(2):
            for l in range(64):
                for j in range(8):
                    Fc[16 * kb + l % 16, 32 * u + 8 * (l // 16) + j] = F[kb, 0, u, l, j]
                    Fs[16 * kb + l % 16, 32 * u + 8 * (l // 16) + j] = F[kb, 1, u, l, j]
    xx = x.astype(np.float64).reshape(S, 56, 8)
    Dj = np.einsum('km,smj->skj', Fc[:29, :56] + 1j * Fs[:29, :56], xx)
    tw = const_TW448().astype(np.float64)
    T = np.ones((29, 8), complex)
    for j in range(1, 8):
        T[:, j] = tw[:29, 2 * (j - 1)] + 1j * tw[:29, 2 * (j - 1) + 1]
    P = Dj * T[None]
    w8 = np.exp(-2j * np.pi * np.outer(np.arange(8), np.arange(8)) / 8)
    Xt = np.einsum('tj,skj->skt', w8, P)
    X = np.zeros((S, 225), complex)
    kap = np.arange(29)
    for t in range(4):
        X[:, kap + 56 * t] = Xt[:, :, t]
    for t in range(4, 8):
        X[:, 56 * (8 - t) - kap] = np.conj(Xt[:, :, t])
    return pack_X1(X)
def pack_X1(X):
    out = np.zeros((225, 2, 4, 64, 8))
    for mt in range(2):
        for ks in range(4):
            for l in range(64):
                for j in range(8):
                    n2 = 16 * mt + l % 16; n1 = 16 * ks + 4 * (l // 16) + j // 2
                    s = 32 * n1 + n2
                    out[:, mt, ks, l, j] = X[s].real if j % 2 == 0 else X[s].imag
    return rb(out)
def unpack_X1(X1):
    X = np.zeros((S, 225), complex)
    for mt in range(2):
        for ks in range(4):
            for l in range(64):
                for j in range(0, 8, 2):
                    n2 = 16 * mt + l % 16; n1 = 16 * ks + 4 * (l // 16) + j // 2
                    X[32 * n1 + n2] = X1[:, mt, ks, l, j] + 1j * X1[:, mt, ks, l, j + 1]
    return X

def wt_stage(w_r, w_i):
    k2 = (16 * np.arange(2)[:, None, None] + 4 * np.arange(4)[None, :, None] + np.arange(4)[None, None, :])
    k = np.arange(64)[None, None, :, None] + 64 * k2[:, :, None, :]
    out = np.stack([w_r[k], w_i[k]], axis=-1)
    return np.ascontiguousarray(out.transpose(4, 0, 1, 2, 3, 5)).astype(np.float32)

def crb(z):
    return rb(z.real).astype(np.float64) + 1j * rb(z.imag).astype(np.float64)

def colfft_stage(X1, WT):
    X = unpack_X1(X1)
    u = X.reshape(64, 32, 225)
    F64 = crb(np.exp(-2j * np.pi * (np.outer(np.arange(64), np.arange(64)) % 64) / 64))
    F32 = crb(np.exp(-2j * np.pi * (np.outer(np.arange(32), np.arange(32)) % 32) / 32))
    T = np.exp(-2j * np.pi * np.outer(np.arange(64), np.arange(32)) / 2048)
    A = np.einsum('kn,nmc->kmc', F64, u)
    B = crb(A * T[:, :, None])
    U = np.einsum('pm,kmc->kpc', F32, B)
    W = np.zeros((64, 32, 225), complex)
    Wc = WT[..., 0].astype(np.float64) + 1j * WT[..., 1].astype(np.float64)
    W = Wc.transpose(3, 1, 2, 4, 0).reshape(64, 32, 225)
    V = crb(np.conj(U * W))
    D3 = np.einsum('mp,kpc->kmc', F32, V)
    E = crb(D3 * T[:, :, None])
    Zb = np.einsum('nk,kmc->nmc', F64, E)
    return crb(Zb.reshape(S, 225))
def pack_ZB(Zb):
    out = np.zeros((256, ZSTRIDE // 2), np.float32)
    z = np.stack([Zb.real, Zb.imag], axis=-1).reshape(256, 8, 225, 2).transpose(0, 2, 1, 3)
    out[:, :225 * 16] = z.reshape(256, 225 * 16)
    return out
def unpack_ZB(ZB):
    z = ZB[:, :225 * 16].reshape(256, 225, 8, 2).transpose(0, 2, 1, 3).reshape(S, 225, 2).astype(np.float64)
    return z[..., 0] + 1j * z[..., 1]

def rowidft_stage(Zb):
    Z = np.conj(Zb)
    kap = np.arange(29)
    Hh = np.zeros((S, 29, 8), complex)
    for t in range(4):
        Hh[:, :, t] = Z[:, kap + 56 * t]
    for t in range(4, 8):
        Hh[:, :, t] = np.conj(Z[:, 56 * (8 - t) - kap])
    w8 = np.exp(2j * np.pi * np.outer(np.arange(8), np.arange(8)) / 8)
    Q = np.einsum('jt,skt->skj', w8, Hh)
    tw = const_TW448().astype(np.float64)
    T = np.ones((29, 8), complex)
    for j in range(1, 8):
        T[:, j] = tw[:29, 2 * (j - 1)] - 1j * tw[:29, 2 * (j - 1) + 1]
    Q = crb(Q * T[None])
    G = const_G56().astype(np.float64)
    Gr = np.zeros((32, 64)); Gi = np.zeros((32, 64))
    for nu in range(2):
        for ks in range(4):
            for l in range(64):
                for j in range(8):
                    kp = 8 * ks + 4 * (l // 32) + j // 2
                    (Gr if j % 2 == 0 else Gi)[kp, 32 * nu + l % 32] = G[nu, ks, l, j]
    y = np.einsum('skj,km->smj', Q.real, Gr[:29, :56]) + np.einsum('skj,km->smj', Q.imag, Gi[:29, :56])
    return rb(y.reshape(S, 448))

def reference(A_x, wqkv, wo, B_x, w_r, w_i):
    x = A_x.astype(np.float64)
    qkv = rb(x @ wqkv.astype(np.float64)).astype(np.float64)
    q = qkv[:, :448].reshape(S, H, DH); k = qkv[:, 448:896].reshape(S, H, DH); v = qkv[:, 896:].reshape(S, H, DH)
    o = np.zeros((S, H, DH))
    for h in range(H):
        s = rb(rb(q[:, h] @ k[:, h].T) * np.float32(DH ** -0.5)).astype(np.float64)
        p = np.exp(s - s.max(axis=1, keepdims=True)); p = rb(p / p.sum(axis=1, keepdims=True)).astype(np.float64)
        o[:, h] = rb(p @ v[:, h])
    a = rb(o.reshape(S, D) @ wo.astype(np.float64))
    X = np.fft.rfft2(B_x.astype(np.float64))
    y = np.fft.irfft2(X * (w_r.astype(np.float64) + 1j * w_i.astype(np.float64)), s=(S, D))
    return a, rb(y)

def make_inputs(seed=0):
    rng = np.random.default_rng(seed)
    r = lambda *s: rb(rng.standard_normal(s))
    return dict(A_x=rb(r(S, D) * 0.2), wqkv=rb(r(D, 3 * D) * 0.2), wo=rb(r(D, D) * 0.05), B_x=rb(r(S, D) * 0.05),
                w_r=rb(rb(r(S, 225) * 6.4) * 0.02), w_i=rb(rb(r(S, 225) * 6.4) * 0.02))

if __name__ == "__main__":
    I = make_inputs()
    ra, rbb = reference(**I)
    QF, KF, VF = qkv_stage(I['A_x'], I['wqkv'])
    OF = attn_stage(QF, KF, VF)
    a = outproj_stage(OF, I['wo'])
    print("A: max|ref|", np.abs(ra).max(), "maxerr", np.abs(a - ra).max(), "rel l2", np.linalg.norm(a - ra) / np.linalg.norm(ra))
    X1 = rowdft_stage(I['B_x'])
    Xref = np.fft.rfft(I['B_x'].astype(np.float64), axis=1)
    print("X1 rel", np.linalg.norm(unpack_X1(X1) - Xref) / np.linalg.norm(Xref))
    WT = wt_stage(I['w_r'], I['w_i'])
    Zb = colfft_stage(X1, WT)
    y = rowidft_stage(unpack_ZB(pack_ZB(Zb)))
    print("B: max|ref|", np.abs(rbb).max(), "maxerr", np.abs(y - rbb).max(), "rel l2", np.linalg.norm(y - rbb) / np.linalg.norm(rbb))


def x1_from_ws(w16):
    out = np.zeros((225, 4096), np.float32)
    for c in range(225):
        o = (WS_X1 + c * X1S) // 2
        out[c] = bf16_val(w16[o:o + 4096])
    return out.reshape(225, 2, 4, 64, 8)
def wt_from_ws(w16):
    out = np.zeros((228, 8, 64, 4, 2), np.float32)
    for cg in range(57):
        o = (WS_WT + cg * WTS) // 2
        blk = bf16_val(w16[o:o + 16384]).reshape(8, 32, 4, 2, 4, 2)
        out[4 * cg:4 * cg + 4] = blk.transpose(2, 0, 1, 3, 4, 5).reshape(4, 8, 64, 4, 2)
    return out[:225].reshape(225, 2, 4, 64, 4, 2)

def zc_from_ws(w16):
    out = np.zeros((225, 2048, 2), np.float32)
    for c in range(225):
        o = (WS_ZB + c * ZCS) // 2
        out[c] = bf16_val(w16[o:o + 4096]).reshape(2048, 2)
    return out
```

```python
from asmlib import *
import model as M
import os
from k2 import (CT_F64, CT_F32, CT_T2048, CT_F56, CT_TW448, CT_G56, CT_TW448B, CT_SIZE, srd_consts, cmul)
from dft8 import *
import dft8pk as PK8

INSTR = os.environ.get("INSTR", "0") == "1"
NAME = "concat_heads__mha_block__spectral_gfnet__prompt_kernel"
WS_MB1 = 31 << 19
WS_MB2 = WS_MB1 + 65536
WS_MB3 = WS_MB1 + 98304
WS_TAG = WS_MB1 + 131072
LDS_X = 131072
LDS_Z = LDS_X + 9472
F_LDS = LDS_Z + 4 * 2304
L_RED = 65536
L_TR = 98304
NS = 4
SPIN = 100000
ST = os.environ.get("STF", "sc1")
LD = os.environ.get("LDF", "sc1")
SB = 80

def gen():
    name = "fk"
    a = Asm()
    a.raw(f".globl {NAME}\n.p2align 8\n.type {NAME},@function\n{NAME}:")
    SA, SBv, SWS, SC_, SD = 8, 12, 16, 20, 24
    sW, sXc, sSlot, sTag = 28, 29, 30, 49
    sTb, sG, sT0, sT1, sT2, sC, sSl, sXo, sWo, sOfs = 31, 32, 33, 34, 35, 36, 37, 38, 39, 48
    sHi = 50; sMsk = 52; sScale = 54; sPadv = 55; sTt = 40
    SP = 60; sN, sCh, sA_, sB2 = 56, 57, 58, 59
    uid = [0]
    def rt(idx):
        if INSTR:
            a("s_memrealtime s[96:97]\ns_waitcnt lgkmcnt(0)")
            a(f"s_mov_b32 s{SB+idx}, s96")
    def dump(wadd, vt):
        if INSTR:
            a("s_waitcnt vmcnt(0)")
            rt(15)
            a(f"s_lshl_b32 s96, s2, 9\ns_add_u32 s97, {s(sW)}, {wadd}\ns_lshl_b32 s97, s97, 6\ns_add_u32 s96, s96, s97\ns_add_u32 s96, s96, {M.WS_DBG}")
            a(f"v_mov_b32 {v(vt)}, 0")
            for i in range(16):
                a(f"v_mov_b32 {v(vt+1)}, s{SB+i}")
                a(f"buffer_store_dword {v(vt+1)}, {v(vt)}, {s(SWS,4)}, s96 offen offset:{4*i}\ns_nop 1")
            if os.environ.get("DBGOUT") and wadd == 0:
                uid[0] += 1
                a(f"s_lshl_b32 s96, s2, 2\ns_add_u32 s96, s96, {s(sW)}\ns_cmp_lg_u32 s96, 400\ns_cbranch_scc1 {name}_nodbg{uid[0]}")
                a(f"s_mov_b32 {s(SD)}, s78\ns_mov_b32 {s(SD+1)}, s79\ns_mov_b32 {s(SD+2)}, 256\ns_mov_b32 {s(SD+3)}, 0x20000")
                for i in range(16):
                    a(f"s_sub_u32 s96, s{SB+i}, s{SB}")
                    a(f"v_mov_b32 {v(vt+1)}, s96")
                    a(f"buffer_store_dword {v(vt+1)}, {v(vt)}, {s(SD,4)}, 0 offen offset:{4*i}\ns_nop 1")
                a.label(f"{name}_nodbg{uid[0]}")
    def poll(load_txt, cmp_txt, execmask):
        uid[0] += 1; L = f"{name}_poll{uid[0]}"
        a(f"s_mov_b64 exec, {execmask}")
        a(f"s_mov_b32 {s(sN)}, 0")
        a.label(L)
        a(load_txt)
        a("s_waitcnt vmcnt(0)")
        a(cmp_txt)
        a(f"s_add_u32 {s(sN)}, {s(sN)}, 1")
        a(f"s_cmp_gt_u32 {s(sN)}, {SPIN}")
        a(f"s_cbranch_scc1 {L}_x")
        a(f"s_cbranch_vccnz {L}")
        a.label(f"{L}_x")
        a("s_mov_b64 exec, -1")
    a(f"s_load_dwordx16 s[64:79], s[0:1], 0")
    a(f"s_cmp_ge_u32 s2, 256")
    a(f"s_cbranch_scc1 {name}_end")
    a(f"v_lshrrev_b32 v1, 6, v0")
    a(f"s_load_dwordx2 {s(SWS,2)}, s[0:1], 64")
    a(f"v_and_b32 v0, 63, v0")
    a(f"s_and_b32 {s(sXc)}, s2, 7")
    a(f"v_readfirstlane_b32 s3, v1")
    a(f"s_lshr_b32 {s(sSlot)}, s2, 3")
    a(f"v_lshlrev_b32 v1, 4, v0")
    if INSTR:
        for i in range(16): a(f"s_mov_b32 s{SB+i}, 0")
        rt(0)
    a(f"s_and_b32 {s(sW)}, s3, 3")
    a(f"s_mov_b32 {s(SWS+2)}, {M.WS_END}")
    a(f"s_mov_b32 {s(SWS+3)}, 0x20000")
    a(f"s_cmp_lt_u32 {s(sSlot)}, 8")
    a(f"s_cbranch_scc1 {name}_bwg")
    a(f"s_sub_u32 {s(sN)}, {s(sSlot)}, 8")
    a(f"s_mul_i32 {s(sT0)}, {s(sN)}, 43")
    a(f"s_lshr_b32 {s(sT0)}, {s(sT0)}, 8")
    a(f"s_mul_i32 {s(sT1)}, {s(sT0)}, 6")
    a(f"s_sub_u32 {s(sT1)}, {s(sN)}, {s(sT1)}")
    a(f"s_lshr_b32 {s(sTb)}, {s(sXc)}, 1")
    a(f"s_lshl_b32 {s(sTb)}, {s(sTb)}, 2")
    a(f"s_add_u32 {s(sTb)}, {s(sTb)}, {s(sT0)}")
    a(f"s_and_b32 {s(sG)}, {s(sXc)}, 1")
    a(f"s_mul_i32 {s(sG)}, {s(sG)}, 6")
    a(f"s_add_u32 {s(sG)}, {s(sG)}, {s(sT1)}")
    a(f"s_and_b32 {s(sOfs)}, {s(sG)}, 1")
    a(f"s_lshl_b32 {s(sOfs)}, {s(sOfs)}, 5")
    a(f"s_mov_b32 {s(SA+2)}, {2048*896}\ns_mov_b32 {s(SA+3)}, 0x20000")
    a(f"s_mov_b32 {s(SBv+2)}, {448*2688}\ns_mov_b32 {s(SBv+3)}, 0x20000")
    a(f"s_cmp_lt_u32 s3, 4")
    a(f"s_cbranch_scc1 {name}_t1c")
    vX0, vX1, vWw, vt = 2, 3, 4, 5
    a(f"v_lshrrev_b32 {v(vt)}, 3, v0")
    a(f"v_mul_u32_u24 {v(vX0)}, 896, {v(vt)}")
    a(f"v_and_b32 {v(vt)}, 7, v0")
    a(f"v_lshrrev_b32 {v(vt+1)}, 4, v0")
    a(f"v_xor_b32 {v(vt)}, {v(vt)}, {v(vt+1)}")
    a(f"v_xor_b32 {v(vt+2)}, 4, {v(vt)}")
    a(f"v_lshl_add_u32 {v(vX1)}, {v(vt+2)}, 4, {v(vX0)}")
    a(f"v_lshl_add_u32 {v(vX0)}, {v(vt)}, 4, {v(vX0)}")
    a(f"v_mul_u32_u24 {v(vWw)}, 2688, {v(vt+1)}")
    a(f"v_lshrrev_b32 {v(vt)}, 2, v0")
    a(f"v_sub_u32 {v(vt)}, {v(vt)}, {v(vt+1)}")
    a(f"v_and_b32 {v(vt)}, 3, {v(vt)}")
    a(f"v_lshl_add_u32 {v(vWw)}, {v(vt)}, 6, {v(vWw)}")
    a(f"v_and_b32 {v(vt)}, 3, v0")
    a(f"v_lshl_add_u32 {v(vWw)}, {v(vt)}, 4, {v(vWw)}")
    a(f"s_lshl_b32 {s(sT0)}, {s(sTb)}, 2")
    a(f"s_add_u32 {s(sT0)}, {s(sT0)}, {s(sW)}")
    a(f"s_mul_i32 {s(sXo)}, {s(sT0)}, {32*896}")
    a(f"s_mul_i32 {s(sWo)}, {s(sW)}, {16*2688}")
    a(f"s_mul_i32 {s(sT0)}, {s(sG)}, 224")
    a(f"s_add_u32 {s(sWo)}, {s(sWo)}, {s(sT0)}")
    a(f"s_sub_u32 {s(sWo)}, {s(sWo)}, {s(sOfs)}")
    a(f"s_lshl_b32 {s(sSl)}, {s(sW)}, 12")
    a(f"s_waitcnt lgkmcnt(0)")
    a(f"s_mov_b32 {s(SA)}, s64\ns_mov_b32 {s(SA+1)}, s65\ns_mov_b32 {s(SBv)}, s66\ns_mov_b32 {s(SBv+1)}, s67")
    def issue(c):
        base = (c % NS) * 32768
        for i in range(4):
            a(f"s_add_u32 m0, {s(sSl)}, {base + 1024*i}")
            a(f"s_add_u32 {s(sT0)}, {s(sXo)}, {8*i*896 + 128*c}")
            a(f"buffer_load_dwordx4 {v(vX1 if i % 2 else vX0)}, {s(SA,4)}, {s(sT0)} offen lds")
            a(f"s_add_u32 m0, {s(sSl)}, {base + 16384 + 1024*i}")
            a(f"s_add_u32 {s(sT0)}, {s(sWo)}, {(64*c + 4*i)*2688}")
            a(f"buffer_load_dwordx4 {v(vWw)}, {s(SBv,4)}, {s(sT0)} offen lds")
    a(f"v_mov_b32 v254, {WS_TAG}")
    a(f"buffer_load_dword v255, v254, {s(SWS,4)}, 0 offen")
    issue(0); issue(1)
    issued = 2
    for c in range(7):
        a(f"s_waitcnt vmcnt({8*(issued-1-c)})")
        if c in (0, 6): rt(1 if c == 0 else 2)
        a("s_barrier")
        for k in range(2 if c == 0 else 1):
            if issued < 7:
                issue(issued); issued += 1
    a(f"s_and_b32 {s(sT0)}, {s(sG)}, 3")
    a(f"s_lshl_b32 {s(sT0)}, {s(sT0)}, 2")
    a(f"v_lshrrev_b32 v2, 4, v0")
    a(f"v_add_u32 v2, {s(sT0)}, v2")
    a(f"v_and_b32 v3, 15, v0")
    a(f"s_lshr_b32 {s(sT1)}, {s(sG)}, 2")
    a(f"s_cmp_eq_u32 {s(sT1)}, 0")
    a(f"s_cbranch_scc0 {name}_sig_kv")
    a(f"v_mov_b32 v3, {s(sTb)}")
    a.label(f"{name}_sig_kv")
    a(f"v_and_b32 v4, 1, v2")
    a(f"v_lshl_add_u32 v4, v4, 4, v3")
    a(f"v_lshrrev_b32 v2, 1, v2")
    a(f"v_lshl_add_u32 v2, v4, 3, v2")
    a(f"v_lshlrev_b32 v2, 8, v2")
    a(f"s_lshl_b32 {s(sT0)}, {s(sT1)}, 4")
    a(f"s_add_u32 {s(sT0)}, {s(sT0)}, {s(sTb)}")
    a(f"s_sub_u32 {s(sT0)}, {s(sT0)}, 16")
    a(f"s_cmp_eq_u32 {s(sT1)}, 0")
    a(f"s_cselect_b32 {s(sT0)}, 32, {s(sT0)}")
    a(f"s_lshl_b32 {s(sT0)}, {s(sT0)}, 2")
    a(f"s_add_u32 {s(sXo)}, {s(sT0)}, {WS_MB1}")
    a(f"s_mov_b32 {s(sWo)}, 0")
    a(f"s_branch {name}_h_p1")
    a.label(f"{name}_t1c")
    va = VAlloc(8)
    ACC = [[va(16) for hp in range(2)] for tt in range(2)]
    XF = [[va(4) for tt in range(2)] for b in range(2)]
    WF = [[va(4) for hp in range(2)] for b in range(2)]
    bX = [va(1) for i in range(4)]; bW = [va(1) for hp in range(2)]
    aX = [va(1) for i in range(4)]; aW = [va(1) for hp in range(2)]
    t = [va(1) for i in range(6)]
    vPad = va(1)
    a(f"s_lshl_b32 {s(sN)}, {s(sN)}, 2")
    a(f"s_add_u32 {s(sN)}, {s(sN)}, {s(sW)}")
    a(f"s_add_u32 {s(sN)}, {s(sN)}, {os.environ.get('PFO', '4')}")
    a(f"s_cmp_ge_u32 {s(sN)}, {os.environ.get('PFN', '100')}")
    a(f"s_cbranch_scc1 {name}_pf_end")
    a(f"s_mul_i32 {s(sCh)}, {s(sN)}, 205")
    a(f"s_lshr_b32 {s(sCh)}, {s(sCh)}, 12")
    a(f"s_mul_i32 {s(sA_)}, {s(sCh)}, 20")
    a(f"s_sub_u32 {s(sA_)}, {s(sN)}, {s(sA_)}")
    a(f"s_add_u32 {s(sCh)}, {s(sCh)}, 2")
    a(f"s_cmp_lt_u32 {s(sA_)}, 8")
    a(f"s_cbranch_scc1 {name}_pf_x")
    a(f"s_sub_u32 {s(sA_)}, {s(sA_)}, 8")
    a(f"s_lshl_b32 {s(sA_)}, {s(sA_)}, 6")
    a(f"v_add_u32 v3, {s(sA_)}, v0")
    a(f"v_mul_u32_u24 v4, 43691, v3")
    a(f"v_lshrrev_b32 v4, 19, v4")
    a(f"v_mul_u32_u24 v5, 12, v4")
    a(f"v_sub_u32 v5, v3, v5")
    a(f"v_mul_u32_u24 v4, 2688, v4")
    a(f"v_lshl_add_u32 v4, v5, 7, v4")
    a(f"s_and_b32 {s(sA_)}, {s(sXc)}, 1")
    a(f"s_mul_i32 {s(sA_)}, {s(sA_)}, 1280")
    a(f"s_mul_i32 {s(sB2)}, {s(sCh)}, {64*2688}")
    a(f"s_add_u32 {s(sA_)}, {s(sA_)}, {s(sB2)}")
    a(f"s_waitcnt lgkmcnt(0)")
    a(f"s_mov_b32 {s(SBv)}, s66\ns_mov_b32 {s(SBv+1)}, s67")
    a(f"buffer_load_dword v6, v4, {s(SBv,4)}, {s(sA_)} offen")
    a(f"s_branch {name}_pf_end")
    a.label(f"{name}_pf_x")
    a(f"v_mul_u32_u24 v4, 896, v0")
    a(f"s_lshr_b32 {s(sB2)}, {s(sXc)}, 1")
    a(f"s_lshl_b32 {s(sB2)}, {s(sB2)}, 3")
    a(f"s_add_u32 {s(sB2)}, {s(sB2)}, {s(sA_)}")
    a(f"s_mul_i32 {s(sB2)}, {s(sB2)}, {64*896}")
    a(f"s_lshl_b32 {s(sA_)}, {s(sCh)}, 7")
    a(f"s_add_u32 {s(sB2)}, {s(sB2)}, {s(sA_)}")
    a(f"s_waitcnt lgkmcnt(0)")
    a(f"s_mov_b32 {s(SA)}, s64\ns_mov_b32 {s(SA+1)}, s65")
    a(f"buffer_load_dword v6, v4, {s(SA,4)}, {s(sB2)} offen")
    a.label(f"{name}_pf_end")
    if os.environ.get("CPF2", "1") == "1":
        a(f"s_sub_u32 {s(sN)}, {s(sN)}, 87")
        a(f"s_cmp_ge_u32 {s(sN)}, 13")
        a(f"s_cbranch_scc1 {name}_nocp2")
        a(f"v_lshlrev_b32 v2, 7, v0")
        a(f"s_cmp_lt_u32 {s(sN)}, 3")
        a(f"s_cbranch_scc0 {name}_cp2_c")
        a(f"s_lshl_b32 {s(sT0)}, {s(sN)}, 13")
        a(f"s_getpc_b64 {s(SC_,2)}")
        a.label(f"{name}_cp2_pc")
        a(f"s_sub_u32 {s(SC_)}, {s(SC_)}, {name}_cp2_pc-{NAME}")
        a(f"s_subb_u32 {s(SC_+1)}, {s(SC_+1)}, 0")
        a(f"s_mov_b32 {s(SC_+2)}, {name}_end-{NAME}")
        a(f"s_mov_b32 {s(SC_+3)}, 0x20000")
        a(f"buffer_load_dword v7, v2, {s(SC_,4)}, {s(sT0)} offen")
        a(f"s_branch {name}_nocp2")
        a.label(f"{name}_cp2_c")
        srd_consts(a, SC_)
        a(f"s_sub_u32 {s(sT0)}, {s(sN)}, 3")
        a(f"s_lshl_b32 {s(sT0)}, {s(sT0)}, 13")
        a(f"buffer_load_dword v7, v2, {s(SC_,4)}, {s(sT0)} offen")
        a.label(f"{name}_nocp2")
    a(f"v_and_b32 {v(t[0])}, 31, v0")
    a(f"v_lshrrev_b32 {v(t[1])}, 5, v0")
    a(f"v_bfe_u32 {v(t[2])}, v0, 1, 3")
    a(f"v_xor_b32 {v(t[2])}, {v(t[2])}, {v(t[1])}")
    a(f"s_lshr_b32 {s(sT0)}, {s(sW)}, 1")
    a(f"s_lshl_b32 {s(sT0)}, {s(sT0)}, 13")
    a(f"v_lshl_add_u32 {v(t[3])}, {v(t[0])}, 7, {s(sT0)}")
    for i in range(4):
        a(f"v_xor_b32 {v(t[4])}, {2*i}, {v(t[2])}")
        a(f"v_lshl_add_u32 {v(bX[i])}, {v(t[4])}, 4, {v(t[3])}")
    a(f"v_mov_b32 {v(vPad)}, 0")
    a(f"v_mov_b32 {v(t[4])}, 0x3f803f80")
    a(f"v_cmp_eq_u32 vcc, 28, {v(t[0])}")
    a(f"v_bfe_u32 {v(t[0])}, v0, 2, 2")
    a(f"v_lshl_add_u32 {v(t[2])}, {v(t[1])}, 3, {v(t[0])}")
    a(f"v_cndmask_b32 {v(vPad)}, {v(vPad)}, {v(t[4])}, vcc")
    a(f"v_lshlrev_b32 {v(t[2])}, 8, {v(t[2])}")
    a(f"v_bfe_u32 {v(t[3])}, v0, 4, 1")
    a(f"v_lshlrev_b32 {v(t[3])}, 5, {v(t[3])}")
    a(f"v_lshl_add_u32 {v(t[3])}, {v(t[0])}, 6, {v(t[3])}")
    a(f"v_and_b32 {v(t[4])}, 3, v0")
    a(f"v_lshl_add_u32 {v(t[3])}, {v(t[4])}, 3, {v(t[3])}")
    a(f"s_and_b32 {s(sT0)}, {s(sW)}, 1")
    a(f"s_mul_i32 {s(sT0)}, {s(sT0)}, 112")
    a(f"s_add_u32 {s(sT0)}, {s(sT0)}, {s(sOfs)}")
    for hp in range(2):
        a(f"s_add_u32 {s(sT1)}, {s(sT0)}, {56*hp}")
        a(f"v_add_u32 {v(t[4])}, {s(sT1)}, {v(t[3])}")
        a(f"v_and_b32 {v(t[4])}, 255, {v(t[4])}")
        a(f"v_add_u32 {v(bW[hp])}, {v(t[4])}, {v(t[2])}")
    for tt in range(2):
        for hp in range(2):
            for r in range(16):
                a(f"v_mov_b32 {v(ACC[tt][hp]+r)}, 0")
    a(f"s_lshr_b32 {s(sT0)}, {s(sG)}, 2")
    a(f"s_lshl_b32 {s(sXo)}, {s(sT0)}, 21")
    a(f"s_and_b32 {s(sT0)}, {s(sG)}, 3")
    a(f"s_lshl_b32 {s(sT0)}, {s(sT0)}, 19")
    a(f"s_add_u32 {s(sXo)}, {s(sXo)}, {s(sT0)}")
    a(f"s_and_b32 {s(sT0)}, {s(sW)}, 1")
    a(f"s_lshl_b32 {s(sT0)}, {s(sT0)}, 18")
    a(f"s_add_u32 {s(sXo)}, {s(sXo)}, {s(sT0)}")
    a(f"s_lshl_b32 {s(sT0)}, {s(sTb)}, 13")
    a(f"s_add_u32 {s(sXo)}, {s(sXo)}, {s(sT0)}")
    a(f"s_lshr_b32 {s(sT0)}, {s(sW)}, 1")
    a(f"s_lshl_b32 {s(sT0)}, {s(sT0)}, 12")
    a(f"s_add_u32 {s(sXo)}, {s(sXo)}, {s(sT0)}")
    a(f"s_add_u32 {s(sWo)}, {s(sXo)}, {64*2048}")
    a(f"s_mov_b32 {s(sHi)}, 0\ns_mov_b32 {s(sHi+1)}, -1")
    a(f"s_mov_b32 {s(sMsk)}, 0xf0000000\ns_mov_b32 {s(sMsk+1)}, 0xf0000000")
    a(f"s_cmp_lt_u32 {s(sG)}, 4")
    a(f"s_cselect_b32 {s(SP)}, {f32hex(M.SC)}, 1.0")
    a(f"s_cselect_b32 {s(SP+1)}, {f32hex(M.SC)}, 1.0")
    a(f"s_cselect_b32 {s(sPadv)}, 0, 0x3f803f80")
    a(f"s_mov_b32 {s(sC)}, 0")
    a(f"s_cmp_ge_u32 {s(sG)}, 8")
    a(f"s_cbranch_scc1 {name}_t1v")
    def setaddr(nxt):
        a(f"s_add_u32 {s(sT0)}, {s(sC)}, {nxt}")
        a(f"s_and_b32 {s(sT0)}, {s(sT0)}, {NS-1}")
        a(f"s_lshl_b32 {s(sT0)}, {s(sT0)}, 15")
        for i in range(4):
            a(f"v_add_u32 {v(aX[i])}, {s(sT0)}, {v(bX[i])}")
        for hp in range(2):
            a(f"v_add_u32 {v(aW[hp])}, {s(sT0)}, {v(bW[hp])}")
    def rd_list(i, b):
        L = []
        for tt in range(2):
            L.append(f"ds_read_b128 {v(XF[b][tt],4)}, {v(aX[i])} offset:{4096*tt}")
        for hp in range(2):
            for jj in range(2):
                L.append(f"ds_read_b64_tr_b16 {v(WF[b][hp]+2*jj,2)}, {v(aW[hp])} offset:{16384+(16*i+4*jj)*256}")
        return [L[0], L[2], L[3], L[4], L[5], L[1]]
    def kloop(lbl, vmode):
        setaddr(0)
        a("s_barrier")
        for r_ in rd_list(0, 0): a(r_)
        a.label(lbl)
        for i in range(4):
            b = i % 2
            mm = []
            for tt in range(2):
                for hp in range(2):
                    mm.append(mfma32(ACC[tt][hp], XF[b][tt], WF[b][hp], ACC[tt][hp]) if vmode else mfma32(ACC[tt][hp], WF[b][hp], XF[b][tt], ACC[tt][hp]))
            a("s_waitcnt lgkmcnt(0)")
            if i < 3:
                R = rd_list(i + 1, 1 - b)
                a(mm[0]); a(R[0]); a(R[1]); a(mm[1]); a(R[2]); a(R[3]); a(mm[2]); a(R[4]); a(R[5]); a(mm[3])
            else:
                R = rd_list(0, 0)
                a(mm[0])
                a(f"s_cmp_eq_u32 {s(sC)}, 6")
                a(f"s_cbranch_scc1 {lbl}_last")
                setaddr(1)
                a(mm[1])
                a("s_barrier")
                a(R[0]); a(R[1]); a(R[2]); a(mm[2]); a(R[3]); a(R[4]); a(R[5]); a(mm[3])
                a(f"s_add_u32 {s(sC)}, {s(sC)}, 1")
                a(f"s_branch {lbl}")
                a.label(f"{lbl}_last")
                a(mm[1]); a(mm[2]); a(mm[3])
        rt(1)
        a("s_nop 7\ns_nop 1")
    order = [(0, 0), (0, 1), (1, 0), (1, 1)]
    kloop(f"{name}_qk_loop", False)
    for tt, hp in order:
        A_ = ACC[tt][hp]
        for r in range(0, 16, 2):
            a(f"v_pk_mul_f32 {v(A_+r,2)}, {v(A_+r,2)}, {s(SP,2)}")
        for k in range(8):
            a(f"v_cvt_pk_bf16_f32 {v(A_+k)}, {v(A_+2*k)}, {v(A_+2*k+1)}")
        a(f"s_mov_b64 exec, {s(sHi,2)}")
        a(f"v_mov_b32 {v(A_+6)}, {s(sPadv)}")
        a(f"v_mov_b32 {v(A_+7)}, 0")
        a(f"s_mov_b64 exec, -1")
        for t_ in range(2):
            a(f"buffer_store_dwordx4 {v(A_+4*t_,4)}, v1, {s(SWS,4)}, {s(sWo if hp else sXo)} offen offset:{2048*tt+1024*t_} {ST}")
    a(f"s_branch {name}_c_p1")
    a.label(f"{name}_t1v")
    kloop(f"{name}_v_loop", True)
    for tt, hp in order:
        A_ = ACC[tt][hp]
        for k in range(8):
            a(f"v_cvt_pk_bf16_f32 {v(A_+k)}, {v(A_+2*k)}, {v(A_+2*k+1)}")
        a(f"s_mov_b64 exec, {s(sMsk,2)}")
        for k in range(8):
            a(f"v_mov_b32 {v(A_+k)}, {v(vPad)}")
        a(f"s_mov_b64 exec, -1")
        for t_ in range(2):
            a(f"buffer_store_dwordx4 {v(A_+4*t_,4)}, v1, {s(SWS,4)}, {s(sWo if hp else sXo)} offen offset:{2048*tt+1024*t_} {ST}")
    a(f"s_branch {name}_c_p1")
    hi = va.hi
    a.label(f"{name}_bwg")
    sB = sTb
    a(f"s_lshl_b32 {s(sB)}, {s(sXc)}, 3")
    a(f"s_add_u32 {s(sB)}, {s(sB)}, {s(sSlot)}")
    srd_consts(a, SC_)
    if os.environ.get("CPF", "0") == "1":
        a(f"s_cmp_ge_u32 {s(sSlot)}, 3")
        a(f"s_cbranch_scc1 {name}_nocpf")
        a(f"v_lshlrev_b32 v2, 7, v0")
        a(f"s_lshl_b32 {s(sT0)}, s3, 13")
        a(f"s_cmp_eq_u32 {s(sSlot)}, 0")
        a(f"s_cbranch_scc0 {name}_cpf_c")
        a(f"s_getpc_b64 {s(SP,2)}")
        a.label(f"{name}_cpf_pc")
        a(f"s_sub_u32 {s(SP)}, {s(SP)}, {name}_cpf_pc-{NAME}")
        a(f"s_subb_u32 {s(SP+1)}, {s(SP+1)}, 0")
        a(f"s_mov_b32 {s(SP+2)}, {name}_end-{NAME}")
        a(f"s_mov_b32 {s(SP+3)}, 0x20000")
        a(f"buffer_load_dword v3, v2, {s(SP,4)}, {s(sT0)} offen")
        a(f"s_branch {name}_nocpf")
        a.label(f"{name}_cpf_c")
        a(f"s_lshl_b32 {s(sT1)}, {s(sSlot)}, 16")
        a(f"s_add_u32 {s(sT0)}, {s(sT0)}, {s(sT1)}")
        a(f"s_sub_u32 {s(sT0)}, {s(sT0)}, 65536")
        a(f"buffer_load_dword v3, v2, {s(SC_,4)}, {s(sT0)} offen")
        a.label(f"{name}_nocpf")
    a(f"s_cmp_ge_u32 s3, 4")
    a(f"s_cbranch_scc1 {name}_t3")
    a(f"s_mov_b32 {s(SA+2)}, {2048*896}\ns_mov_b32 {s(SA+3)}, 0x20000")
    va = VAlloc(2)
    RAW = [va(32), va(32)]
    XFc = [va(4) for j in range(8)]
    AC = [[va(4) for cs in range(2)] for j in range(8)]
    FC = [[va(4) for u in range(2)] for cs in range(2)]
    TWv = va(56)
    t = [va(1) for i in range(8)]
    vP = [va(1) for r in range(4)]; vM = [va(1) for r in range(4)]
    aR = [va(1), va(1)]
    sGq, sO = sG, sC
    a(f"s_lshr_b32 {s(sGq)}, {s(sB)}, 2")
    a(f"s_and_b32 {s(sO)}, {s(sB)}, 3")
    a(f"s_and_b32 {s(sT1)}, {s(sW)}, 1")
    a(f"s_lshl_b32 {s(sT0)}, {s(sT1)}, 12")
    a(f"s_add_u32 {s(sT0)}, {s(sT0)}, {CT_F56}")
    for cs in range(2):
        for u in range(2):
            a(f"buffer_load_dwordx4 {v(FC[cs][u],4)}, v1, {s(SC_,4)}, {s(sT0)} offen offset:{2048*cs+1024*u}")
    a(f"v_lshrrev_b32 {v(t[5])}, 4, v0")
    a(f"v_lshlrev_b32 {v(t[6])}, 8, {v(t[5])}")
    a(f"s_lshl_b32 {s(sT0)}, {s(sT1)}, 10")
    a(f"s_add_u32 {s(sT0)}, {s(sT0)}, {CT_TW448B}")
    for q in range(14):
        a(f"buffer_load_dwordx4 {v(TWv+4*q,4)}, {v(t[6])}, {s(SC_,4)}, {s(sT0)} offen offset:{16*q}")
    a(f"s_lshr_b32 {s(sT2)}, {s(sW)}, 1")
    a(f"s_lshl_b32 {s(sT0)}, {s(sGq)}, 5")
    a(f"s_lshl_b32 {s(sT1)}, {s(sO)}, 1")
    a(f"s_add_u32 {s(sT0)}, {s(sT0)}, {s(sT1)}")
    a(f"s_add_u32 {s(sT0)}, {s(sT0)}, {s(sT2)}")
    a(f"s_mul_i32 {s(sXo)}, {s(sT0)}, {4*896}")
    a(f"s_mul_i32 {s(sSl)}, {s(sW)}, 14336")
    a(f"v_lshrrev_b32 {v(t[0])}, 3, v0")
    a(f"v_and_b32 {v(t[1])}, 7, v0")
    for i in range(14):
        d_ = RAW[1] + i
        a(f"v_add_u32 {v(t[2])}, {8*i}, {v(t[0])}")
        a(f"v_mul_u32_u24 {v(t[3])}, 147, {v(t[2])}")
        a(f"v_lshrrev_b32 {v(t[3])}, 10, {v(t[3])}")
        a(f"v_lshrrev_b32 {v(t[4])}, 2, {v(t[3])}")
        a(f"v_and_b32 {v(t[3])}, 1, {v(t[3])}")
        a(f"v_lshl_add_u32 {v(t[3])}, {v(t[3])}, 2, {v(t[4])}")
        a(f"v_xor_b32 {v(t[3])}, {v(t[3])}, {v(t[1])}")
        a(f"v_mul_u32_u24 {v(t[4])}, {32*896-3584}, {v(t[4])}")
        a(f"v_lshl_add_u32 {v(t[4])}, {v(t[2])}, 7, {v(t[4])}")
        a(f"v_lshl_add_u32 {v(d_)}, {v(t[3])}, 4, {v(t[4])}")
    a("s_waitcnt lgkmcnt(0)" + (" vmcnt(0)" if os.environ.get("T2P", "0") == "1" else ""))
    a(f"s_mov_b32 {s(SA)}, s70\ns_mov_b32 {s(SA+1)}, s71")
    for rnd in range(int(os.environ.get("T2R", "0"))):
        a(f"s_mov_b32 {s(SP)}, s68\ns_mov_b32 {s(SP+1)}, s69\ns_mov_b32 {s(SP+2)}, {448*896}\ns_mov_b32 {s(SP+3)}, 0x20000")
        a(f"s_lshl_b32 {s(sT0)}, {s(sB)}, 2\ns_add_u32 {s(sT0)}, {s(sT0)}, {s(sW)}\ns_lshl_b32 {s(sT0)}, {s(sT0)}, 10\ns_add_u32 {s(sT0)}, {s(sT0)}, {rnd*262144}")
        a(f"buffer_load_dwordx4 {v(RAW[0],4)}, v1, {s(SP,4)}, {s(sT0)} offen")
        a("s_waitcnt vmcnt(0)")
    for i in range(14):
        a(f"s_add_u32 m0, {s(sSl)}, {1024*i}")
        a("s_nop 0")
        a(f"buffer_load_dwordx4 {v(RAW[1]+i)}, {s(SA,4)}, {s(sXo)} offen lds")
    a(f"s_and_b32 {s(sT1)}, {s(sW)}, 1")
    a(f"v_and_b32 {v(t[0])}, 3, v0")
    a(f"v_bfe_u32 {v(t[1])}, v0, 2, 2")
    a(f"v_lshl_add_u32 {v(t[2])}, {v(t[0])}, 2, {v(t[1])}")
    a(f"v_mul_u32_u24 {v(t[2])}, 896, {v(t[2])}")
    a(f"v_add_u32 {v(t[2])}, {s(sSl)}, {v(t[2])}")
    a(f"v_and_b32 {v(t[1])}, 1, {v(t[1])}")
    a(f"v_lshl_add_u32 {v(t[3])}, {v(t[1])}, 2, {v(t[0])}")
    a(f"v_lshlrev_b32 {v(t[3])}, 4, {v(t[3])}")
    a(f"v_lshl_add_u32 {v(aR[0])}, {v(t[5])}, 7, {v(t[2])}")
    a(f"v_min_u32 {v(t[4])}, 2, {v(t[5])}")
    a(f"v_lshl_add_u32 {v(aR[1])}, {v(t[4])}, 7, {v(t[2])}")
    a(f"v_add_u32 {v(aR[1])}, 512, {v(aR[1])}")
    a(f"v_and_b32 {v(t[0])}, 15, v0")
    a(f"v_lshlrev_b32 {v(t[0])}, 2, {v(t[0])}")
    a(f"s_lshl_b32 {s(sT0)}, {s(sT1)}, 4")
    a(f"v_lshl_add_u32 {v(t[1])}, {v(t[5])}, 2, {s(sT0)}")
    a(f"v_mov_b32 {v(t[7])}, 0x7f000000")
    a(f"s_mov_b32 {s(sA_)}, {M.X1S}")
    for rr in range(4):
        a(f"v_add_u32 {v(t[2])}, {rr}, {v(t[1])}")
        a(f"v_mad_u32_u24 {v(vP[rr])}, {v(t[2])}, {s(sA_)}, {v(t[0])}")
        a(f"v_sub_u32 {v(t[4])}, 28, {v(t[2])}")
        a(f"v_mad_u32_u24 {v(vM[rr])}, {v(t[4])}, {s(sA_)}, {v(t[0])}")
        a(f"v_cmp_lt_u32 vcc, 28, {v(t[2])}")
        a("s_nop 1")
        a(f"v_cndmask_b32 {v(vP[rr])}, {v(vP[rr])}, {v(t[7])}, vcc")
        a(f"v_cndmask_b32 {v(vM[rr])}, {v(vM[rr])}, {v(t[7])}, vcc")
    a(f"s_lshr_b32 {s(sT0)}, {s(sO)}, 1")
    a(f"s_lshl_b32 {s(sT0)}, {s(sT0)}, 12")
    a(f"s_lshl_b32 {s(sT1)}, {s(sGq)}, 8")
    a(f"s_add_u32 {s(sT0)}, {s(sT0)}, {s(sT1)}")
    a(f"s_and_b32 {s(sT1)}, {s(sO)}, 1")
    a(f"s_lshl_b32 {s(sT1)}, {s(sT1)}, 7")
    a(f"s_add_u32 {s(sT0)}, {s(sT0)}, {s(sT1)}")
    a(f"s_lshl_b32 {s(sT1)}, {s(sT2)}, 6")
    a(f"s_add_u32 {s(sT0)}, {s(sT0)}, {s(sT1)}")
    for tt_ in range(8):
        col = 56 * tt_ if tt_ < 4 else 56 * (8 - tt_) - 28
        a(f"s_add_u32 {s(sTt+tt_)}, {s(sT0)}, {M.WS_X1 + col*M.X1S}")
    a(f"s_mov_b32 {s(sScale)}, {f32hex(0.5**0.5)}\ns_mov_b32 {s(sScale+1)}, {f32hex(0.5**0.5)}")
    a(f"s_mov_b32 {s(sMsk)}, 0x05040100\ns_mov_b32 {s(sMsk+1)}, 0x07060302")
    a("s_waitcnt vmcnt(0)")
    rt(1)
    for u in range(2):
        for e in range(8):
            a(f"v_xor_b32 {v(t[e%2])}, {16*e}, {v(t[3])}")
            a(f"v_add_u32 {v(t[e%2])}, {v(t[e%2])}, {v(aR[u])}")
            a(f"ds_read_b128 {v(RAW[u]+4*e,4)}, {v(t[e%2])}")
    for u in range(2):
        a(f"s_waitcnt lgkmcnt({8 if u == 0 else 0})")
        for j in range(8):
            for q in range(4):
                lo = RAW[u] + 8 * q + j // 2; hi_ = RAW[u] + 8 * q + 4 + j // 2
                a(f"v_perm_b32 {v(XFc[j]+q)}, {v(hi_)}, {v(lo)}, {s(sMsk + j % 2)}")
            if j >= 1:
                for cs in range(2):
                    a(mfma16(AC[j-1][cs], FC[cs][u], XFc[j-1], None if u == 0 else AC[j-1][cs]))
        a("s_nop 1")
        for cs in range(2):
            a(mfma16(AC[7][cs], FC[cs][u], XFc[7], None if u == 0 else AC[7][cs]))
    a("s_nop 7")
    for rp in range(2):
        pool = Pool([RAW[0] + 8 + 2 * i for i in range(8)])
        for j in range(1, 8):
            tw = TWv + 8 * (j - 1) + 2 * rp
            PK8.pcmul(a, AC[j][0] + 2 * rp, AC[j][1] + 2 * rp, tw, tw + 4, RAW[0] + 4 * (j % 2))
        X = PK8.dft8(a, pool, [((AC[j][0] + 2 * rp, 1), (AC[j][1] + 2 * rp, 1)) for j in range(8)], -1, sScale)
        for tt_ in range(8):
            re, im = X[tt_]
            if tt_ >= 4: im = neg(im)
            for h in range(2):
                rr = 2 * rp + h
                o_ = RAW[1] + 8 * rr + tt_
                a(f"v_cvt_pk_bf16_f32 {v(o_)}, {sv((re[0]+h, re[1]))}, {sv((im[0]+h, im[1]))}")
                a(f"buffer_store_dword {v(o_)}, {v(vP[rr] if tt_ < 4 else vM[rr])}, {s(SWS,4)}, {s(sTt+tt_)} offen {ST}")
    a(f"s_mov_b32 {s(sHi)}, 0\ns_mov_b32 {s(sHi+1)}, -1")
    a(f"s_branch {name}_c_p1")
    hi = max(hi, va.hi)
    a.label(f"{name}_t3")
    a(f"s_lshr_b32 {s(sG)}, {s(sB)}, 3")
    a(f"s_and_b32 {s(sC)}, {s(sB)}, 7")
    a(f"s_lshl_b32 {s(sT0)}, {s(sG)}, 7")
    a(f"s_lshl_b32 {s(sT1)}, {s(sC)}, 2")
    a(f"s_add_u32 {s(sT0)}, {s(sT0)}, {s(sT1)}")
    a(f"s_add_u32 {s(sT0)}, {s(sT0)}, {s(sW)}")
    a(f"s_mul_i32 {s(sXo)}, {s(sT0)}, 900")
    a(f"s_lshl_b32 {s(sSl)}, {s(sW)}, 13")
    a(f"s_add_u32 {s(sSl)}, {s(sSl)}, 65536")
    a(f"v_lshlrev_b32 v2, 7, v0")
    a(f"s_lshl_b32 {s(sT1)}, {s(sSlot)}, 13")
    if os.environ.get("T3P", "0") == "1":
        a(f"buffer_load_dword v3, v2, {s(SC_,4)}, {s(sT1)} offen")
        a("s_waitcnt vmcnt(0)")
    for rnd in range(int(os.environ.get("T3R", "0"))):
        a("s_waitcnt lgkmcnt(0)")
        a(f"s_mov_b32 {s(SP)}, s68\ns_mov_b32 {s(SP+1)}, s69\ns_mov_b32 {s(SP+2)}, {448*896}\ns_mov_b32 {s(SP+3)}, 0x20000")
        a(f"s_lshl_b32 {s(sT0)}, {s(sB)}, 2\ns_add_u32 {s(sT0)}, {s(sT0)}, {s(sW)}\ns_lshl_b32 {s(sT0)}, {s(sT0)}, 9\ns_add_u32 {s(sT0)}, {s(sT0)}, {262144 + rnd*65536}")
        a(f"buffer_load_dwordx2 v[8:9], v1, {s(SP,4)}, {s(sT0)} offen")
        a("s_waitcnt vmcnt(0)")
    a(f"s_waitcnt lgkmcnt(0)")
    a(f"s_mov_b32 {s(SBv)}, s72\ns_mov_b32 {s(SBv+1)}, s73\ns_mov_b32 {s(SBv+2)}, {2048*450}\ns_mov_b32 {s(SBv+3)}, 0x20000")
    a(f"s_mov_b32 {s(SD)}, s74\ns_mov_b32 {s(SD+1)}, s75\ns_mov_b32 {s(SD+2)}, {2048*450}\ns_mov_b32 {s(SD+3)}, 0x20000")
    a(f"v_mov_b32 v254, {WS_TAG}")
    a(f"buffer_load_dword v255, v254, {s(SWS,4)}, 0 offen")
    for r in range(4):
        for arr in range(2):
            a(f"s_add_u32 m0, {s(sSl)}, {4096*arr + 1024*r}")
            a(f"s_add_u32 {s(sT0)}, {s(sXo)}, {64*450*r}")
            a(f"buffer_load_dwordx4 v1, {s(SD if arr else SBv,4)}, {s(sT0)} offen lds")
    a(f"v_and_b32 v2, 1, v0")
    a(f"v_lshrrev_b32 v3, 1, v0")
    a(f"v_mul_u32_u24 v4, 450, v2")
    a(f"v_lshl_add_u32 v4, v3, 1, v4")
    a(f"v_add_u32 v4, {s(sSl)}, v4")
    a(f"v_lshrrev_b32 v5, 3, v0")
    a(f"v_mul_u32_u24 v5, {M.WTS}, v5")
    a(f"v_and_b32 v2, 7, v0")
    a(f"v_lshl_add_u32 v5, v2, 4, v5")
    a(f"s_lshl_b32 {s(sT0)}, {s(sG)}, 12")
    a(f"s_lshl_b32 {s(sT1)}, {s(sC)}, 9")
    a(f"s_add_u32 {s(sT0)}, {s(sT0)}, {s(sT1)}")
    a(f"s_lshl_b32 {s(sT1)}, {s(sW)}, 7")
    a(f"s_add_u32 {s(sT0)}, {s(sT0)}, {s(sT1)}")
    a(f"s_add_u32 {s(sT0)}, {s(sT0)}, {M.WS_WT}")
    a("s_waitcnt vmcnt(0)")
    rt(1)
    D0 = 160
    def t3_reads(it):
        for r in range(4):
            a(f"ds_read_u16 {v(D0+4*it+r)}, v4 offset:{1024*r+64*it}")
            a(f"ds_read_u16 {v(D0+32+4*(it%2)+r)}, v4 offset:{4096+1024*r+64*it}")
    t3_reads(0)
    for it in range(8):
        if it < 7:
            t3_reads(it + 1)
            a("s_waitcnt lgkmcnt(8)")
        else:
            a("s_waitcnt lgkmcnt(0)")
        for r in range(4):
            a(f"v_lshl_or_b32 {v(D0+4*it+r)}, {v(D0+32+4*(it%2)+r)}, 16, {v(D0+4*it+r)}")
        a(f"buffer_store_dwordx4 {v(D0+4*it,4)}, v5, {s(SWS,4)}, {s(sT0)} offen {ST}")
        a(f"s_add_u32 {s(sT0)}, {s(sT0)}, {8*M.WTS}")
    a(f"s_mov_b32 {s(sWo)}, 1")
    a.label(f"{name}_h_p1")
    import fused_b
    hi = max(hi, fused_b.helpers(a, name, locals()))
    a.label(f"{name}_c_p1")
    hi = max(hi, fused_b.computes(a, name, locals()))
    a.label(f"{name}_end")
    a("s_endpgm")
    return a.text() + kernel_desc(NAME, 256, 102), hi
```

```python
from asmlib import *
import model as M
import os
from k2 import (CT_F64, CT_F32, CT_T2048, CT_F56, CT_TW448, CT_G56, CT_TW448B, CT_SIZE, srd_consts, cmul)
from dft8 import *
import dft8pk as PK8

INSTR = os.environ.get("INSTR", "0") == "1"
NAME = "concat_heads__mha_block__spectral_gfnet__prompt_kernel"
WS_MB1 = 31 << 19
WS_MB2 = WS_MB1 + 65536
WS_MB3 = WS_MB1 + 98304
WS_TAG = WS_MB1 + 131072
LDS_X = 131072
LDS_Z = LDS_X + 9472
F_LDS = LDS_Z + 4 * 2304
L_RED = 65536
L_TR = 98304
NS = 4
SPIN = 100000
ST = os.environ.get("STF", "sc1")
LD = os.environ.get("LDF", "sc1")
SB = 80

def gen():
    name = "fk"
    a = Asm()
    a.raw(f".globl {NAME}\n.p2align 8\n.type {NAME},@function\n{NAME}:")
    SA, SBv, SWS, SC_, SD = 8, 12, 16, 20, 24
    sW, sXc, sSlot, sTag = 28, 29, 30, 49
    sTb, sG, sT0, sT1, sT2, sC, sSl, sXo, sWo, sOfs = 31, 32, 33, 34, 35, 36, 37, 38, 39, 48
    sHi = 50; sMsk = 52; sScale = 54; sPadv = 55; sTt = 40
    SP = 60; sN, sCh, sA_, sB2 = 56, 57, 58, 59
    uid = [0]
    def rt(idx):
        if INSTR:
            a("s_memrealtime s[96:97]\ns_waitcnt lgkmcnt(0)")
            a(f"s_mov_b32 s{SB+idx}, s96")
    def dump(wadd, vt):
        if INSTR:
            a("s_waitcnt vmcnt(0)")
            rt(15)
            a(f"s_lshl_b32 s96, s2, 9\ns_add_u32 s97, {s(sW)}, {wadd}\ns_lshl_b32 s97, s97, 6\ns_add_u32 s96, s96, s97\ns_add_u32 s96, s96, {M.WS_DBG}")
            a(f"v_mov_b32 {v(vt)}, 0")
            for i in range(16):
                a(f"v_mov_b32 {v(vt+1)}, s{SB+i}")
                a(f"buffer_store_dword {v(vt+1)}, {v(vt)}, {s(SWS,4)}, s96 offen offset:{4*i}\ns_nop 1")
            if os.environ.get("DBGOUT") and wadd == 0:
                uid[0] += 1
                a(f"s_lshl_b32 s96, s2, 2\ns_add_u32 s96, s96, {s(sW)}\ns_cmp_lg_u32 s96, 400\ns_cbranch_scc1 {name}_nodbg{uid[0]}")
                a(f"s_mov_b32 {s(SD)}, s78\ns_mov_b32 {s(SD+1)}, s79\ns_mov_b32 {s(SD+2)}, 256\ns_mov_b32 {s(SD+3)}, 0x20000")
                for i in range(16):
                    a(f"s_sub_u32 s96, s{SB+i}, s{SB}")
                    a(f"v_mov_b32 {v(vt+1)}, s96")
                    a(f"buffer_store_dword {v(vt+1)}, {v(vt)}, {s(SD,4)}, 0 offen offset:{4*i}\ns_nop 1")
                a.label(f"{name}_nodbg{uid[0]}")
    def poll(load_txt, cmp_txt, execmask):
        uid[0] += 1; L = f"{name}_poll{uid[0]}"
        a(f"s_mov_b64 exec, {execmask}")
        a(f"s_mov_b32 {s(sN)}, 0")
        a.label(L)
        a(load_txt)
        a("s_waitcnt vmcnt(0)")
        a(cmp_txt)
        a(f"s_add_u32 {s(sN)}, {s(sN)}, 1")
        a(f"s_cmp_gt_u32 {s(sN)}, {SPIN}")
        a(f"s_cbranch_scc1 {L}_x")
        a(f"s_cbranch_vccnz {L}")
        a.label(f"{L}_x")
        a("s_mov_b64 exec, -1")
    if INSTR:
        for i in range(16): a(f"s_mov_b32 s{SB+i}, 0")
        rt(0)
    a(f"s_load_dwordx16 s[64:79], s[0:1], 0")
    a(f"s_cmp_ge_u32 s2, 256")
    a(f"s_cbranch_scc1 {name}_end")
    a(f"v_lshrrev_b32 v1, 6, v0")
    a(f"s_load_dwordx2 {s(SWS,2)}, s[0:1], 64")
    a(f"v_and_b32 v0, 63, v0")
    a(f"s_and_b32 {s(sXc)}, s2, 7")
    a(f"v_readfirstlane_b32 s3, v1")
    a(f"s_lshr_b32 {s(sSlot)}, s2, 3")
    a(f"v_lshlrev_b32 v1, 4, v0")
    a(f"s_and_b32 {s(sW)}, s3, 3")
    a(f"s_mov_b32 {s(SWS+2)}, {M.WS_END}")
    a(f"s_mov_b32 {s(SWS+3)}, 0x20000")
    a(f"s_cmp_lt_u32 {s(sSlot)}, 8")
    a(f"s_cbranch_scc1 {name}_bwg")
    a(f"s_sub_u32 {s(sN)}, {s(sSlot)}, 8")
    a(f"s_mul_i32 {s(sT0)}, {s(sN)}, 43")
    a(f"s_lshr_b32 {s(sT0)}, {s(sT0)}, 8")
    a(f"s_mul_i32 {s(sT1)}, {s(sT0)}, 6")
    a(f"s_sub_u32 {s(sT1)}, {s(sN)}, {s(sT1)}")
    a(f"s_lshr_b32 {s(sTb)}, {s(sXc)}, 1")
    a(f"s_lshl_b32 {s(sTb)}, {s(sTb)}, 2")
    a(f"s_add_u32 {s(sTb)}, {s(sTb)}, {s(sT0)}")
    a(f"s_and_b32 {s(sG)}, {s(sXc)}, 1")
    a(f"s_mul_i32 {s(sG)}, {s(sG)}, 6")
    a(f"s_add_u32 {s(sG)}, {s(sG)}, {s(sT1)}")
    a(f"s_and_b32 {s(sOfs)}, {s(sG)}, 1")
    a(f"s_lshl_b32 {s(sOfs)}, {s(sOfs)}, 5")
    a(f"s_mov_b32 {s(SA+2)}, {2048*896}\ns_mov_b32 {s(SA+3)}, 0x20000")
    a(f"s_mov_b32 {s(SBv+2)}, {448*2688}\ns_mov_b32 {s(SBv+3)}, 0x20000")
    a(f"s_cmp_lt_u32 s3, 4")
    a(f"s_cbranch_scc1 {name}_t1c")
    vX0, vX1, vWw, vt = 2, 3, 4, 5
    a(f"v_lshrrev_b32 {v(vt)}, 3, v0")
    a(f"v_mul_u32_u24 {v(vX0)}, 896, {v(vt)}")
    a(f"v_and_b32 {v(vt)}, 7, v0")
    a(f"v_lshrrev_b32 {v(vt+1)}, 4, v0")
    a(f"v_xor_b32 {v(vt)}, {v(vt)}, {v(vt+1)}")
    a(f"v_xor_b32 {v(vt+2)}, 4, {v(vt)}")
    a(f"v_lshl_add_u32 {v(vX1)}, {v(vt+2)}, 4, {v(vX0)}")
    a(f"v_lshl_add_u32 {v(vX0)}, {v(vt)}, 4, {v(vX0)}")
    a(f"v_mul_u32_u24 {v(vWw)}, 2688, {v(vt+1)}")
    a(f"v_lshrrev_b32 {v(vt)}, 2, v0")
    a(f"v_sub_u32 {v(vt)}, {v(vt)}, {v(vt+1)}")
    a(f"v_and_b32 {v(vt)}, 3, {v(vt)}")
    a(f"v_lshl_add_u32 {v(vWw)}, {v(vt)}, 6, {v(vWw)}")
    a(f"v_and_b32 {v(vt)}, 3, v0")
    a(f"v_lshl_add_u32 {v(vWw)}, {v(vt)}, 4, {v(vWw)}")
    a(f"s_lshl_b32 {s(sT0)}, {s(sTb)}, 2")
    a(f"s_add_u32 {s(sT0)}, {s(sT0)}, {s(sW)}")
    a(f"s_mul_i32 {s(sXo)}, {s(sT0)}, {32*896}")
    a(f"s_mul_i32 {s(sWo)}, {s(sW)}, {16*2688}")
    a(f"s_mul_i32 {s(sT0)}, {s(sG)}, 224")
    a(f"s_add_u32 {s(sWo)}, {s(sWo)}, {s(sT0)}")
    a(f"s_sub_u32 {s(sWo)}, {s(sWo)}, {s(sOfs)}")
    a(f"s_lshl_b32 {s(sSl)}, {s(sW)}, 12")
    a(f"s_waitcnt lgkmcnt(0)")
    a(f"s_mov_b32 {s(SA)}, s64\ns_mov_b32 {s(SA+1)}, s65\ns_mov_b32 {s(SBv)}, s66\ns_mov_b32 {s(SBv+1)}, s67")
    def issue(c):
        base = (c % NS) * 32768
        for i in range(4):
            a(f"s_add_u32 m0, {s(sSl)}, {base + 1024*i}")
            a(f"s_add_u32 {s(sT0)}, {s(sXo)}, {8*i*896 + 128*c}")
            a(f"buffer_load_dwordx4 {v(vX1 if i % 2 else vX0)}, {s(SA,4)}, {s(sT0)} offen lds")
            a(f"s_add_u32 m0, {s(sSl)}, {base + 16384 + 1024*i}")
            a(f"s_add_u32 {s(sT0)}, {s(sWo)}, {(64*c + 4*i)*2688}")
            a(f"buffer_load_dwordx4 {v(vWw)}, {s(SBv,4)}, {s(sT0)} offen lds")
    a(f"v_mov_b32 v254, {WS_TAG}")
    a(f"buffer_load_dword v255, v254, {s(SWS,4)}, 0 offen")
    issued = int(os.environ.get("LPRE", "2"))
    for c in range(issued): issue(c)
    for c in range(7):
        a(f"s_waitcnt vmcnt({8*(issued-1-c)})")
        if c in (0, 6): rt(1 if c == 0 else 2)
        if os.environ.get("LSTAMP"): rt(5 + c)
        a("s_barrier")
        for k in range(4):
            if issued < 7 and issued <= c + int(os.environ.get("LAHEAD", "3")) and (k < int(os.environ.get("LBURST", "1"))):
                issue(issued); issued += 1
    a(f"s_and_b32 {s(sT0)}, {s(sG)}, 3")
    a(f"s_lshl_b32 {s(sT0)}, {s(sT0)}, 2")
    a(f"v_lshrrev_b32 v2, 4, v0")
    a(f"v_add_u32 v2, {s(sT0)}, v2")
    a(f"v_and_b32 v3, 15, v0")
    a(f"s_lshr_b32 {s(sT1)}, {s(sG)}, 2")
    a(f"s_cmp_eq_u32 {s(sT1)}, 0")
    a(f"s_cbranch_scc0 {name}_sig_kv")
    a(f"v_mov_b32 v3, {s(sTb)}")
    a.label(f"{name}_sig_kv")
    a(f"v_and_b32 v4, 1, v2")
    a(f"v_lshl_add_u32 v4, v4, 4, v3")
    a(f"v_lshrrev_b32 v2, 1, v2")
    a(f"v_lshl_add_u32 v2, v4, 3, v2")
    a(f"v_lshlrev_b32 v2, 8, v2")
    a(f"s_lshl_b32 {s(sT0)}, {s(sT1)}, 4")
    a(f"s_add_u32 {s(sT0)}, {s(sT0)}, {s(sTb)}")
    a(f"s_sub_u32 {s(sT0)}, {s(sT0)}, 16")
    a(f"s_cmp_eq_u32 {s(sT1)}, 0")
    a(f"s_cselect_b32 {s(sT0)}, 32, {s(sT0)}")
    a(f"s_lshl_b32 {s(sT0)}, {s(sT0)}, 2")
    a(f"s_add_u32 {s(sXo)}, {s(sT0)}, {WS_MB1}")
    a(f"s_mov_b32 {s(sWo)}, 0")
    a(f"s_branch {name}_h_p1")
    a.label(f"{name}_t1c")
    va = VAlloc(8)
    ACC = [[va(16) for hp in range(2)] for tt in range(2)]
    XF = [[va(4) for tt in range(2)] for b in range(2)]
    WF = [[va(4) for hp in range(2)] for b in range(2)]
    bX = [va(1) for i in range(4)]; bW = [va(1) for hp in range(2)]
    aX = [va(1) for i in range(4)]; aW = [va(1) for hp in range(2)]
    t = [va(1) for i in range(6)]
    vPad = va(1)
    def pf_block():
        a(f"s_lshl_b32 {s(sN)}, {s(sN)}, 2")
        a(f"s_add_u32 {s(sN)}, {s(sN)}, {s(sW)}")
        a(f"s_add_u32 {s(sN)}, {s(sN)}, {os.environ.get('PFO', '4')}")
        a(f"s_cmp_ge_u32 {s(sN)}, {os.environ.get('PFN', '100')}")
        a(f"s_cbranch_scc1 {name}_pf_end")
        a(f"s_mul_i32 {s(sCh)}, {s(sN)}, 205")
        a(f"s_lshr_b32 {s(sCh)}, {s(sCh)}, 12")
        a(f"s_mul_i32 {s(sA_)}, {s(sCh)}, 20")
        a(f"s_sub_u32 {s(sA_)}, {s(sN)}, {s(sA_)}")
        a(f"s_add_u32 {s(sCh)}, {s(sCh)}, 2")
        a(f"s_cmp_lt_u32 {s(sA_)}, 8")
        a(f"s_cbranch_scc1 {name}_pf_x")
        a(f"s_sub_u32 {s(sA_)}, {s(sA_)}, 8")
        a(f"s_lshl_b32 {s(sA_)}, {s(sA_)}, 6")
        a(f"v_add_u32 v3, {s(sA_)}, v0")
        a(f"v_mul_u32_u24 v4, 43691, v3")
        a(f"v_lshrrev_b32 v4, 19, v4")
        a(f"v_mul_u32_u24 v5, 12, v4")
        a(f"v_sub_u32 v5, v3, v5")
        a(f"v_mul_u32_u24 v4, 2688, v4")
        a(f"v_lshl_add_u32 v4, v5, 7, v4")
        a(f"s_and_b32 {s(sA_)}, {s(sXc)}, 1")
        a(f"s_mul_i32 {s(sA_)}, {s(sA_)}, 1280")
        a(f"s_mul_i32 {s(sB2)}, {s(sCh)}, {64*2688}")
        a(f"s_add_u32 {s(sA_)}, {s(sA_)}, {s(sB2)}")
        a(f"s_waitcnt lgkmcnt(0)")
        a(f"s_mov_b32 {s(SBv)}, s66\ns_mov_b32 {s(SBv+1)}, s67")
        a(f"buffer_load_dword v6, v4, {s(SBv,4)}, {s(sA_)} offen")
        a(f"s_branch {name}_pf_end")
        a.label(f"{name}_pf_x")
        a(f"v_mul_u32_u24 v4, 896, v0")
        a(f"s_lshr_b32 {s(sB2)}, {s(sXc)}, 1")
        a(f"s_lshl_b32 {s(sB2)}, {s(sB2)}, 3")
        a(f"s_add_u32 {s(sB2)}, {s(sB2)}, {s(sA_)}")
        a(f"s_mul_i32 {s(sB2)}, {s(sB2)}, {64*896}")
        a(f"s_lshl_b32 {s(sA_)}, {s(sCh)}, 7")
        a(f"s_add_u32 {s(sB2)}, {s(sB2)}, {s(sA_)}")
        a(f"s_waitcnt lgkmcnt(0)")
        a(f"s_mov_b32 {s(SA)}, s64\ns_mov_b32 {s(SA+1)}, s65")
        a(f"buffer_load_dword v6, v4, {s(SA,4)}, {s(sB2)} offen")
        a.label(f"{name}_pf_end")
        rt(11)
        if os.environ.get("CPF2", "1") == "1":
            a(f"s_sub_u32 {s(sN)}, {s(sN)}, 87")
            a(f"s_cmp_ge_u32 {s(sN)}, 13")
            a(f"s_cbranch_scc1 {name}_nocp2")
            a(f"v_lshlrev_b32 v2, 7, v0")
            a(f"s_cmp_lt_u32 {s(sN)}, 3")
            a(f"s_cbranch_scc0 {name}_cp2_c")
            a(f"s_lshl_b32 {s(sT0)}, {s(sN)}, 13")
            a(f"s_getpc_b64 {s(SC_,2)}")
            a.label(f"{name}_cp2_pc")
            a(f"s_sub_u32 {s(SC_)}, {s(SC_)}, {name}_cp2_pc-{NAME}")
            a(f"s_subb_u32 {s(SC_+1)}, {s(SC_+1)}, 0")
            a(f"s_mov_b32 {s(SC_+2)}, {name}_end-{NAME}")
            a(f"s_mov_b32 {s(SC_+3)}, 0x20000")
            a(f"buffer_load_dword v7, v2, {s(SC_,4)}, {s(sT0)} offen")
            a(f"s_branch {name}_nocp2")
            a.label(f"{name}_cp2_c")
            srd_consts(a, SC_)
            a(f"s_sub_u32 {s(sT0)}, {s(sN)}, 3")
            a(f"s_lshl_b32 {s(sT0)}, {s(sT0)}, 13")
            a(f"buffer_load_dword v7, v2, {s(SC_,4)}, {s(sT0)} offen")
            a.label(f"{name}_nocp2")

    if os.environ.get("PFLATE", "0") == "0": pf_block()
    a(f"v_and_b32 {v(t[0])}, 31, v0")
    a(f"v_lshrrev_b32 {v(t[1])}, 5, v0")
    a(f"v_bfe_u32 {v(t[2])}, v0, 1, 3")
    a(f"v_xor_b32 {v(t[2])}, {v(t[2])}, {v(t[1])}")
    a(f"s_lshr_b32 {s(sT0)}, {s(sW)}, 1")
    a(f"s_lshl_b32 {s(sT0)}, {s(sT0)}, 13")
    a(f"v_lshl_add_u32 {v(t[3])}, {v(t[0])}, 7, {s(sT0)}")
    for i in range(4):
        a(f"v_xor_b32 {v(t[4])}, {2*i}, {v(t[2])}")
        a(f"v_lshl_add_u32 {v(bX[i])}, {v(t[4])}, 4, {v(t[3])}")
    a(f"v_mov_b32 {v(vPad)}, 0")
    a(f"v_mov_b32 {v(t[4])}, 0x3f803f80")
    a(f"v_cmp_eq_u32 vcc, 28, {v(t[0])}")
    a(f"v_bfe_u32 {v(t[0])}, v0, 2, 2")
    a(f"v_lshl_add_u32 {v(t[2])}, {v(t[1])}, 3, {v(t[0])}")
    a(f"v_cndmask_b32 {v(vPad)}, {v(vPad)}, {v(t[4])}, vcc")
    a(f"v_lshlrev_b32 {v(t[2])}, 8, {v(t[2])}")
    a(f"v_bfe_u32 {v(t[3])}, v0, 4, 1")
    a(f"v_lshlrev_b32 {v(t[3])}, 5, {v(t[3])}")
    a(f"v_lshl_add_u32 {v(t[3])}, {v(t[0])}, 6, {v(t[3])}")
    a(f"v_and_b32 {v(t[4])}, 3, v0")
    a(f"v_lshl_add_u32 {v(t[3])}, {v(t[4])}, 3, {v(t[3])}")
    a(f"s_and_b32 {s(sT0)}, {s(sW)}, 1")
    a(f"s_mul_i32 {s(sT0)}, {s(sT0)}, 112")
    a(f"s_add_u32 {s(sT0)}, {s(sT0)}, {s(sOfs)}")
    for hp in range(2):
        a(f"s_add_u32 {s(sT1)}, {s(sT0)}, {56*hp}")
        a(f"v_add_u32 {v(t[4])}, {s(sT1)}, {v(t[3])}")
        a(f"v_and_b32 {v(t[4])}, 255, {v(t[4])}")
        a(f"v_add_u32 {v(bW[hp])}, {v(t[4])}, {v(t[2])}")
    for tt in range(2):
        for hp in range(2):
            for r in range(16):
                a(f"v_mov_b32 {v(ACC[tt][hp]+r)}, 0")
    a(f"s_lshr_b32 {s(sT0)}, {s(sG)}, 2")
    a(f"s_lshl_b32 {s(sXo)}, {s(sT0)}, 21")
    a(f"s_and_b32 {s(sT0)}, {s(sG)}, 3")
    a(f"s_lshl_b32 {s(sT0)}, {s(sT0)}, 19")
    a(f"s_add_u32 {s(sXo)}, {s(sXo)}, {s(sT0)}")
    a(f"s_and_b32 {s(sT0)}, {s(sW)}, 1")
    a(f"s_lshl_b32 {s(sT0)}, {s(sT0)}, 18")
    a(f"s_add_u32 {s(sXo)}, {s(sXo)}, {s(sT0)}")
    a(f"s_lshl_b32 {s(sT0)}, {s(sTb)}, 13")
    a(f"s_add_u32 {s(sXo)}, {s(sXo)}, {s(sT0)}")
    a(f"s_lshr_b32 {s(sT0)}, {s(sW)}, 1")
    a(f"s_lshl_b32 {s(sT0)}, {s(sT0)}, 12")
    a(f"s_add_u32 {s(sXo)}, {s(sXo)}, {s(sT0)}")
    a(f"s_add_u32 {s(sWo)}, {s(sXo)}, {64*2048}")
    a(f"s_mov_b32 {s(sHi)}, 0\ns_mov_b32 {s(sHi+1)}, -1")
    a(f"s_mov_b32 {s(sMsk)}, 0xf0000000\ns_mov_b32 {s(sMsk+1)}, 0xf0000000")
    a(f"s_cmp_lt_u32 {s(sG)}, 4")
    a(f"s_cselect_b32 {s(SP)}, {f32hex(M.SC)}, 1.0")
    a(f"s_cselect_b32 {s(SP+1)}, {f32hex(M.SC)}, 1.0")
    a(f"s_cselect_b32 {s(sPadv)}, 0, 0x3f803f80")
    if os.environ.get("PFLATE", "0") == "1": pf_block()
    a(f"s_mov_b32 {s(sC)}, 0")
    a(f"s_cmp_ge_u32 {s(sG)}, 8")
    a(f"s_cbranch_scc1 {name}_t1v")
    def setaddr(nxt):
        a(f"s_add_u32 {s(sT0)}, {s(sC)}, {nxt}")
        a(f"s_and_b32 {s(sT0)}, {s(sT0)}, {NS-1}")
        a(f"s_lshl_b32 {s(sT0)}, {s(sT0)}, 15")
        for i in range(4):
            a(f"v_add_u32 {v(aX[i])}, {s(sT0)}, {v(bX[i])}")
        for hp in range(2):
            a(f"v_add_u32 {v(aW[hp])}, {s(sT0)}, {v(bW[hp])}")
    def rd_list(i, b):
        L = []
        for tt in range(2):
            L.append(f"ds_read_b128 {v(XF[b][tt],4)}, {v(aX[i])} offset:{4096*tt}")
        for hp in range(2):
            for jj in range(2):
                L.append(f"ds_read_b64_tr_b16 {v(WF[b][hp]+2*jj,2)}, {v(aW[hp])} offset:{16384+(16*i+4*jj)*256}")
        return [L[0], L[2], L[3], L[4], L[5], L[1]]
    def kloop(lbl, vmode):
        setaddr(0)
        rt(12)
        a("s_barrier")
        rt(13)
        for r_ in rd_list(0, 0): a(r_)
        a.label(lbl)
        for i in range(4):
            b = i % 2
            mm = []
            for tt in range(2):
                for hp in range(2):
                    mm.append(mfma32(ACC[tt][hp], XF[b][tt], WF[b][hp], ACC[tt][hp]) if vmode else mfma32(ACC[tt][hp], WF[b][hp], XF[b][tt], ACC[tt][hp]))
            a("s_waitcnt lgkmcnt(0)")
            if i < 3:
                R = rd_list(i + 1, 1 - b)
                a(mm[0]); a(R[0]); a(R[1]); a(mm[1]); a(R[2]); a(R[3]); a(mm[2]); a(R[4]); a(R[5]); a(mm[3])
            else:
                R = rd_list(0, 0)
                a(mm[0])
                a(f"s_cmp_eq_u32 {s(sC)}, 6")
                a(f"s_cbranch_scc1 {lbl}_last")
                setaddr(1)
                a(mm[1])
                a("s_barrier")
                a(R[0]); a(R[1]); a(R[2]); a(mm[2]); a(R[3]); a(R[4]); a(R[5]); a(mm[3])
                a(f"s_add_u32 {s(sC)}, {s(sC)}, 1")
                a(f"s_branch {lbl}")
                a.label(f"{lbl}_last")
                a(mm[1]); a(mm[2]); a(mm[3])
        rt(1)
        a("s_nop 7\ns_nop 1")
    order = [(0, 0), (0, 1), (1, 0), (1, 1)]
    kloop(f"{name}_qk_loop", False)
    for tt, hp in order:
        A_ = ACC[tt][hp]
        for r in range(0, 16, 2):
            a(f"v_pk_mul_f32 {v(A_+r,2)}, {v(A_+r,2)}, {s(SP,2)}")
        for k in range(8):
            a(f"v_cvt_pk_bf16_f32 {v(A_+k)}, {v(A_+2*k)}, {v(A_+2*k+1)}")
        a(f"s_mov_b64 exec, {s(sHi,2)}")
        a(f"v_mov_b32 {v(A_+6)}, {s(sPadv)}")
        a(f"v_mov_b32 {v(A_+7)}, 0")
        a(f"s_mov_b64 exec, -1")
        for t_ in range(2):
            a(f"buffer_store_dwordx4 {v(A_+4*t_,4)}, v1, {s(SWS,4)}, {s(sWo if hp else sXo)} offen offset:{2048*tt+1024*t_} {ST}")
    a(f"s_branch {name}_c_p1")
    a.label(f"{name}_t1v")
    kloop(f"{name}_v_loop", True)
    for tt, hp in order:
        A_ = ACC[tt][hp]
        for k in range(8):
            a(f"v_cvt_pk_bf16_f32 {v(A_+k)}, {v(A_+2*k)}, {v(A_+2*k+1)}")
        a(f"s_mov_b64 exec, {s(sMsk,2)}")
        for k in range(8):
            a(f"v_mov_b32 {v(A_+k)}, {v(vPad)}")
        a(f"s_mov_b64 exec, -1")
        for t_ in range(2):
            a(f"buffer_store_dwordx4 {v(A_+4*t_,4)}, v1, {s(SWS,4)}, {s(sWo if hp else sXo)} offen offset:{2048*tt+1024*t_} {ST}")
    a(f"s_branch {name}_c_p1")
    hi = va.hi
    a.label(f"{name}_bwg")
    sB = sTb
    a(f"s_lshl_b32 {s(sB)}, {s(sXc)}, 3")
    a(f"s_add_u32 {s(sB)}, {s(sB)}, {s(sSlot)}")
    srd_consts(a, SC_)
    if os.environ.get("CPF", "0") == "1":
        a(f"s_cmp_ge_u32 {s(sSlot)}, 3")
        a(f"s_cbranch_scc1 {name}_nocpf")
        a(f"v_lshlrev_b32 v2, 7, v0")
        a(f"s_lshl_b32 {s(sT0)}, s3, 13")
        a(f"s_cmp_eq_u32 {s(sSlot)}, 0")
        a(f"s_cbranch_scc0 {name}_cpf_c")
        a(f"s_getpc_b64 {s(SP,2)}")
        a.label(f"{name}_cpf_pc")
        a(f"s_sub_u32 {s(SP)}, {s(SP)}, {name}_cpf_pc-{NAME}")
        a(f"s_subb_u32 {s(SP+1)}, {s(SP+1)}, 0")
        a(f"s_mov_b32 {s(SP+2)}, {name}_end-{NAME}")
        a(f"s_mov_b32 {s(SP+3)}, 0x20000")
        a(f"buffer_load_dword v3, v2, {s(SP,4)}, {s(sT0)} offen")
        a(f"s_branch {name}_nocpf")
        a.label(f"{name}_cpf_c")
        a(f"s_lshl_b32 {s(sT1)}, {s(sSlot)}, 16")
        a(f"s_add_u32 {s(sT0)}, {s(sT0)}, {s(sT1)}")
        a(f"s_sub_u32 {s(sT0)}, {s(sT0)}, 65536")
        a(f"buffer_load_dword v3, v2, {s(SC_,4)}, {s(sT0)} offen")
        a.label(f"{name}_nocpf")
    a(f"s_cmp_ge_u32 s3, 4")
    a(f"s_cbranch_scc1 {name}_t3")
    a(f"s_mov_b32 {s(SA+2)}, {2048*896}\ns_mov_b32 {s(SA+3)}, 0x20000")
    va = VAlloc(2)
    RAW = [va(32), va(32)]
    XFc = [va(4) for j in range(8)]
    AC = [[va(4) for cs in range(2)] for j in range(8)]
    FC = [[va(4) for u in range(2)] for cs in range(2)]
    TWv = va(56)
    t = [va(1) for i in range(8)]
    vP = [va(1) for r in range(4)]; vM = [va(1) for r in range(4)]
    aR = [va(1), va(1)]
    sGq, sO = sG, sC
    a(f"s_lshr_b32 {s(sGq)}, {s(sB)}, 2")
    a(f"s_and_b32 {s(sO)}, {s(sB)}, 3")
    a(f"s_and_b32 {s(sT1)}, {s(sW)}, 1")
    a(f"s_lshl_b32 {s(sT0)}, {s(sT1)}, 12")
    a(f"s_add_u32 {s(sT0)}, {s(sT0)}, {CT_F56}")
    for cs in range(2):
        for u in range(2):
            a(f"buffer_load_dwordx4 {v(FC[cs][u],4)}, v1, {s(SC_,4)}, {s(sT0)} offen offset:{2048*cs+1024*u}")
    a(f"v_lshrrev_b32 {v(t[5])}, 4, v0")
    a(f"v_lshlrev_b32 {v(t[6])}, 8, {v(t[5])}")
    a(f"s_lshl_b32 {s(sT0)}, {s(sT1)}, 10")
    a(f"s_add_u32 {s(sT0)}, {s(sT0)}, {CT_TW448B}")
    for q in range(14):
        a(f"buffer_load_dwordx4 {v(TWv+4*q,4)}, {v(t[6])}, {s(SC_,4)}, {s(sT0)} offen offset:{16*q}")
    a(f"s_lshr_b32 {s(sT2)}, {s(sW)}, 1")
    a(f"s_lshl_b32 {s(sT0)}, {s(sGq)}, 5")
    a(f"s_lshl_b32 {s(sT1)}, {s(sO)}, 1")
    a(f"s_add_u32 {s(sT0)}, {s(sT0)}, {s(sT1)}")
    a(f"s_add_u32 {s(sT0)}, {s(sT0)}, {s(sT2)}")
    a(f"s_mul_i32 {s(sXo)}, {s(sT0)}, {4*896}")
    a(f"s_mul_i32 {s(sSl)}, {s(sW)}, 14336")
    a(f"v_lshrrev_b32 {v(t[0])}, 3, v0")
    a(f"v_and_b32 {v(t[1])}, 7, v0")
    for i in range(14):
        d_ = RAW[1] + i
        a(f"v_add_u32 {v(t[2])}, {8*i}, {v(t[0])}")
        a(f"v_mul_u32_u24 {v(t[3])}, 147, {v(t[2])}")
        a(f"v_lshrrev_b32 {v(t[3])}, 10, {v(t[3])}")
        a(f"v_lshrrev_b32 {v(t[4])}, 2, {v(t[3])}")
        a(f"v_and_b32 {v(t[3])}, 1, {v(t[3])}")
        a(f"v_lshl_add_u32 {v(t[3])}, {v(t[3])}, 2, {v(t[4])}")
        a(f"v_xor_b32 {v(t[3])}, {v(t[3])}, {v(t[1])}")
        a(f"v_mul_u32_u24 {v(t[4])}, {32*896-3584}, {v(t[4])}")
        a(f"v_lshl_add_u32 {v(t[4])}, {v(t[2])}, 7, {v(t[4])}")
        a(f"v_lshl_add_u32 {v(d_)}, {v(t[3])}, 4, {v(t[4])}")
    a("s_waitcnt lgkmcnt(0)" + (" vmcnt(0)" if os.environ.get("T2P", "0") == "1" else ""))
    a(f"s_mov_b32 {s(SA)}, s70\ns_mov_b32 {s(SA+1)}, s71")
    for rnd in range(int(os.environ.get("T2R", "0"))):
        a(f"s_mov_b32 {s(SP)}, s68\ns_mov_b32 {s(SP+1)}, s69\ns_mov_b32 {s(SP+2)}, {448*896}\ns_mov_b32 {s(SP+3)}, 0x20000")
        a(f"s_lshl_b32 {s(sT0)}, {s(sB)}, 2\ns_add_u32 {s(sT0)}, {s(sT0)}, {s(sW)}\ns_lshl_b32 {s(sT0)}, {s(sT0)}, 10\ns_add_u32 {s(sT0)}, {s(sT0)}, {rnd*262144}")
        a(f"buffer_load_dwordx4 {v(RAW[0],4)}, v1, {s(SP,4)}, {s(sT0)} offen")
        a("s_waitcnt vmcnt(0)")
    for i in range(14):
        a(f"s_add_u32 m0, {s(sSl)}, {1024*i}")
        a("s_nop 0")
        a(f"buffer_load_dwordx4 {v(RAW[1]+i)}, {s(SA,4)}, {s(sXo)} offen lds")
    a(f"s_and_b32 {s(sT1)}, {s(sW)}, 1")
    a(f"v_and_b32 {v(t[0])}, 3, v0")
    a(f"v_bfe_u32 {v(t[1])}, v0, 2, 2")
    a(f"v_lshl_add_u32 {v(t[2])}, {v(t[0])}, 2, {v(t[1])}")
    a(f"v_mul_u32_u24 {v(t[2])}, 896, {v(t[2])}")
    a(f"v_add_u32 {v(t[2])}, {s(sSl)}, {v(t[2])}")
    a(f"v_and_b32 {v(t[1])}, 1, {v(t[1])}")
    a(f"v_lshl_add_u32 {v(t[3])}, {v(t[1])}, 2, {v(t[0])}")
    a(f"v_lshlrev_b32 {v(t[3])}, 4, {v(t[3])}")
    a(f"v_lshl_add_u32 {v(aR[0])}, {v(t[5])}, 7, {v(t[2])}")
    a(f"v_min_u32 {v(t[4])}, 2, {v(t[5])}")
    a(f"v_lshl_add_u32 {v(aR[1])}, {v(t[4])}, 7, {v(t[2])}")
    a(f"v_add_u32 {v(aR[1])}, 512, {v(aR[1])}")
    a(f"v_and_b32 {v(t[0])}, 15, v0")
    a(f"v_lshlrev_b32 {v(t[0])}, 2, {v(t[0])}")
    a(f"s_lshl_b32 {s(sT0)}, {s(sT1)}, 4")
    a(f"v_lshl_add_u32 {v(t[1])}, {v(t[5])}, 2, {s(sT0)}")
    a(f"v_mov_b32 {v(t[7])}, 0x7f000000")
    a(f"s_mov_b32 {s(sA_)}, {M.X1S}")
    for rr in range(4):
        a(f"v_add_u32 {v(t[2])}, {rr}, {v(t[1])}")
        a(f"v_mad_u32_u24 {v(vP[rr])}, {v(t[2])}, {s(sA_)}, {v(t[0])}")
        a(f"v_sub_u32 {v(t[4])}, 28, {v(t[2])}")
        a(f"v_mad_u32_u24 {v(vM[rr])}, {v(t[4])}, {s(sA_)}, {v(t[0])}")
        a(f"v_cmp_lt_u32 vcc, 28, {v(t[2])}")
        a("s_nop 1")
        a(f"v_cndmask_b32 {v(vP[rr])}, {v(vP[rr])}, {v(t[7])}, vcc")
        a(f"v_cndmask_b32 {v(vM[rr])}, {v(vM[rr])}, {v(t[7])}, vcc")
    a(f"s_lshr_b32 {s(sT0)}, {s(sO)}, 1")
    a(f"s_lshl_b32 {s(sT0)}, {s(sT0)}, 12")
    a(f"s_lshl_b32 {s(sT1)}, {s(sGq)}, 8")
    a(f"s_add_u32 {s(sT0)}, {s(sT0)}, {s(sT1)}")
    a(f"s_and_b32 {s(sT1)}, {s(sO)}, 1")
    a(f"s_lshl_b32 {s(sT1)}, {s(sT1)}, 7")
    a(f"s_add_u32 {s(sT0)}, {s(sT0)}, {s(sT1)}")
    a(f"s_lshl_b32 {s(sT1)}, {s(sT2)}, 6")
    a(f"s_add_u32 {s(sT0)}, {s(sT0)}, {s(sT1)}")
    for tt_ in range(8):
        col = 56 * tt_ if tt_ < 4 else 56 * (8 - tt_) - 28
        a(f"s_add_u32 {s(sTt+tt_)}, {s(sT0)}, {M.WS_X1 + col*M.X1S}")
    a(f"s_mov_b32 {s(sScale)}, {f32hex(0.5**0.5)}\ns_mov_b32 {s(sScale+1)}, {f32hex(0.5**0.5)}")
    a(f"s_mov_b32 {s(sMsk)}, 0x05040100\ns_mov_b32 {s(sMsk+1)}, 0x07060302")
    a("s_waitcnt vmcnt(0)")
    rt(1)
    for u in range(2):
        for e in range(8):
            a(f"v_xor_b32 {v(t[e%2])}, {16*e}, {v(t[3])}")
            a(f"v_add_u32 {v(t[e%2])}, {v(t[e%2])}, {v(aR[u])}")
            a(f"ds_read_b128 {v(RAW[u]+4*e,4)}, {v(t[e%2])}")
    for u in range(2):
        a(f"s_waitcnt lgkmcnt({8 if u == 0 else 0})")
        for j in range(8):
            for q in range(4):
                lo = RAW[u] + 8 * q + j // 2; hi_ = RAW[u] + 8 * q + 4 + j // 2
                a(f"v_perm_b32 {v(XFc[j]+q)}, {v(hi_)}, {v(lo)}, {s(sMsk + j % 2)}")
            if j >= 1:
                for cs in range(2):
                    a(mfma16(AC[j-1][cs], FC[cs][u], XFc[j-1], None if u == 0 else AC[j-1][cs]))
        a("s_nop 1")
        for cs in range(2):
            a(mfma16(AC[7][cs], FC[cs][u], XFc[7], None if u == 0 else AC[7][cs]))
    a("s_nop 7")
    for rp in range(2):
        pool = Pool([RAW[0] + 8 + 2 * i for i in range(8)])
        for j in range(1, 8):
            tw = TWv + 8 * (j - 1) + 2 * rp
            PK8.pcmul(a, AC[j][0] + 2 * rp, AC[j][1] + 2 * rp, tw, tw + 4, RAW[0] + 4 * (j % 2))
        X = PK8.dft8(a, pool, [((AC[j][0] + 2 * rp, 1), (AC[j][1] + 2 * rp, 1)) for j in range(8)], -1, sScale)
        for tt_ in range(8):
            re, im = X[tt_]
            if tt_ >= 4: im = neg(im)
            for h in range(2):
                rr = 2 * rp + h
                o_ = RAW[1] + 8 * rr + tt_
                a(f"v_cvt_pk_bf16_f32 {v(o_)}, {sv((re[0]+h, re[1]))}, {sv((im[0]+h, im[1]))}")
                a(f"buffer_store_dword {v(o_)}, {v(vP[rr] if tt_ < 4 else vM[rr])}, {s(SWS,4)}, {s(sTt+tt_)} offen {ST}")
    a(f"s_mov_b32 {s(sHi)}, 0\ns_mov_b32 {s(sHi+1)}, -1")
    a(f"s_branch {name}_c_p1")
    hi = max(hi, va.hi)
    a.label(f"{name}_t3")
    a(f"s_lshr_b32 {s(sG)}, {s(sB)}, 3")
    a(f"s_and_b32 {s(sC)}, {s(sB)}, 7")
    a(f"s_lshl_b32 {s(sT0)}, {s(sG)}, 7")
    a(f"s_lshl_b32 {s(sT1)}, {s(sC)}, 2")
    a(f"s_add_u32 {s(sT0)}, {s(sT0)}, {s(sT1)}")
    a(f"s_add_u32 {s(sT0)}, {s(sT0)}, {s(sW)}")
    a(f"s_mul_i32 {s(sXo)}, {s(sT0)}, 900")
    a(f"s_lshl_b32 {s(sSl)}, {s(sW)}, 13")
    a(f"s_add_u32 {s(sSl)}, {s(sSl)}, 65536")
    a(f"v_lshlrev_b32 v2, 7, v0")
    a(f"s_lshl_b32 {s(sT1)}, {s(sSlot)}, 13")
    if os.environ.get("T3P", "1") == "1":
        a(f"buffer_load_dword v3, v2, {s(SC_,4)}, {s(sT1)} offen")
        a("s_waitcnt vmcnt(0)")
    for rnd in range(int(os.environ.get("T3R", "0"))):
        a("s_waitcnt lgkmcnt(0)")
        a(f"s_mov_b32 {s(SP)}, s68\ns_mov_b32 {s(SP+1)}, s69\ns_mov_b32 {s(SP+2)}, {448*896}\ns_mov_b32 {s(SP+3)}, 0x20000")
        a(f"s_lshl_b32 {s(sT0)}, {s(sB)}, 2\ns_add_u32 {s(sT0)}, {s(sT0)}, {s(sW)}\ns_lshl_b32 {s(sT0)}, {s(sT0)}, 9\ns_add_u32 {s(sT0)}, {s(sT0)}, {262144 + rnd*65536}")
        a(f"buffer_load_dwordx2 v[8:9], v1, {s(SP,4)}, {s(sT0)} offen")
        a("s_waitcnt vmcnt(0)")
    a(f"s_waitcnt lgkmcnt(0)")
    a(f"s_mov_b32 {s(SBv)}, s72\ns_mov_b32 {s(SBv+1)}, s73\ns_mov_b32 {s(SBv+2)}, {2048*450}\ns_mov_b32 {s(SBv+3)}, 0x20000")
    a(f"s_mov_b32 {s(SD)}, s74\ns_mov_b32 {s(SD+1)}, s75\ns_mov_b32 {s(SD+2)}, {2048*450}\ns_mov_b32 {s(SD+3)}, 0x20000")
    a(f"v_mov_b32 v254, {WS_TAG}")
    a(f"buffer_load_dword v255, v254, {s(SWS,4)}, 0 offen")
    for r in range(4):
        for arr in range(2):
            a(f"s_add_u32 m0, {s(sSl)}, {4096*arr + 1024*r}")
            a(f"s_add_u32 {s(sT0)}, {s(sXo)}, {64*450*r}")
            a(f"buffer_load_dwordx4 v1, {s(SD if arr else SBv,4)}, {s(sT0)} offen lds")
    a(f"v_and_b32 v2, 1, v0")
    a(f"v_lshrrev_b32 v3, 1, v0")
    a(f"v_mul_u32_u24 v4, 450, v2")
    a(f"v_lshl_add_u32 v4, v3, 1, v4")
    a(f"v_add_u32 v4, {s(sSl)}, v4")
    a(f"v_lshrrev_b32 v5, 3, v0")
    a(f"v_mul_u32_u24 v5, {M.WTS}, v5")
    a(f"v_and_b32 v2, 7, v0")
    a(f"v_lshl_add_u32 v5, v2, 4, v5")
    a(f"s_lshl_b32 {s(sT0)}, {s(sG)}, 12")
    a(f"s_lshl_b32 {s(sT1)}, {s(sC)}, 9")
    a(f"s_add_u32 {s(sT0)}, {s(sT0)}, {s(sT1)}")
    a(f"s_lshl_b32 {s(sT1)}, {s(sW)}, 7")
    a(f"s_add_u32 {s(sT0)}, {s(sT0)}, {s(sT1)}")
    a(f"s_add_u32 {s(sT0)}, {s(sT0)}, {M.WS_WT}")
    a("s_waitcnt vmcnt(0)")
    rt(1)
    D0 = 160
    def t3_reads(it):
        for r in range(4):
            a(f"ds_read_u16 {v(D0+4*it+r)}, v4 offset:{1024*r+64*it}")
            a(f"ds_read_u16 {v(D0+32+4*(it%2)+r)}, v4 offset:{4096+1024*r+64*it}")
    t3_reads(0)
    for it in range(8):
        if it < 7:
            t3_reads(it + 1)
            a("s_waitcnt lgkmcnt(8)")
        else:
            a("s_waitcnt lgkmcnt(0)")
        for r in range(4):
            a(f"v_lshl_or_b32 {v(D0+4*it+r)}, {v(D0+32+4*(it%2)+r)}, 16, {v(D0+4*it+r)}")
        a(f"buffer_store_dwordx4 {v(D0+4*it,4)}, v5, {s(SWS,4)}, {s(sT0)} offen {ST}")
        a(f"s_add_u32 {s(sT0)}, {s(sT0)}, {8*M.WTS}")
    a(f"s_mov_b32 {s(sWo)}, 1")
    a.label(f"{name}_h_p1")
    import fused_b
    hi = max(hi, fused_b.helpers(a, name, locals()))
    a.label(f"{name}_c_p1")
    hi = max(hi, fused_b.computes(a, name, locals()))
    a.label(f"{name}_end")
    a("s_endpgm")
    return a.text() + kernel_desc(NAME, 256, 102), hi
```

```python
from asmlib import *
import model as M
import os
from k2 import (CT_F64, CT_F32, CT_T2048, CT_F56, CT_TW448, CT_G56, srd_consts, cmul)
from dft8 import *
import fused as F

def helpers(a, name, E):
    SA, SBv, SWS, SC_, SD = E['SA'], E['SBv'], E['SWS'], E['SC_'], E['SD']
    sW, sXc, sSlot, sTag = E['sW'], E['sXc'], E['sSlot'], E['sTag']
    sXo, sWo, sN = E['sXo'], E['sWo'], E['sN']
    rt, dump, poll = E['rt'], E['dump'], E['poll']
    ST, LD = F.ST, F.LD
    sT0, sT1, sT2 = 33, 34, 35
    sHead, sCol, sDK, sM, sK, sV, sZ0, sZ1, sTb2, sCg, sWoO, sK8 = 31, 32, 36, 37, 40, 41, 42, 43, 44, 45, 46, 48
    va = VAlloc(8)
    DA = [[va(4) for ks in range(4)] for mt in range(2)]
    F64 = [[va(4) for ks in range(4)] for c in range(2)]
    F32 = [[va(4) for k in range(3)] for mt in range(2)]
    TW = va(16); Wv = [va(4), va(4)]
    AC = [[va(4) for c in range(2)] for mt in range(2)]
    BF = [va(4), va(4)]
    T = va(4); WR = va(1); WI = va(1)
    vL16 = va(1); vG = va(1); vA = va(1); vB = va(1); vC = va(1); vD = va(1); vWo = va(1); vS2 = va(1); vE = va(1)
    assert va.hi <= 160
    srd_consts(a, SC_)
    a(f"s_lshr_b32 {s(sHead)}, {s(sSlot)}, 4")
    a(f"s_lshl_b32 {s(sT0)}, {s(sXc)}, 1")
    a(f"s_add_u32 {s(sHead)}, {s(sHead)}, {s(sT0)}")
    a(f"s_lshl_b32 {s(sDK)}, {s(sHead)}, 17")
    a(f"s_lshl_b32 {s(sT0)}, {s(sW)}, 12")
    a(f"s_add_u32 {s(sDK)}, {s(sDK)}, {s(sT0)}")
    a(f"s_add_u32 {s(sDK)}, {s(sDK)}, {M.WS_KF}")
    a(f"s_lshl_b32 {s(sM)}, {s(sW)}, 13")
    a(f"s_lshl_b32 {s(sCol)}, {s(sXc)}, 5")
    a(f"s_add_u32 {s(sCol)}, {s(sCol)}, {s(sSlot)}")
    a(f"v_and_b32 {v(vL16)}, 15, v0")
    a(f"v_lshrrev_b32 {v(vG)}, 4, v0")
    a(f"v_lshlrev_b32 {v(vA)}, 12, {v(vG)}")
    a(f"v_lshrrev_b32 {v(T)}, 1, {v(vL16)}")
    a(f"v_lshl_add_u32 {v(vA)}, {v(T)}, 7, {v(vA)}")
    a(f"v_and_b32 {v(T)}, 1, v0")
    a(f"v_lshl_add_u32 {v(vA)}, {v(T)}, 4, {v(vA)}")
    a(f"v_mul_u32_u24 {v(vB)}, {4*272}, {v(vG)}")
    a(f"v_lshl_add_u32 {v(vB)}, {v(vL16)}, 2, {v(vB)}")
    a(f"s_lshl_b32 {s(sT0)}, {s(sW)}, 6")
    a(f"s_add_u32 {s(sT0)}, {s(sT0)}, {F.LDS_X}")
    a(f"v_add_u32 {v(vB)}, {s(sT0)}, {v(vB)}")
    a(f"v_mul_u32_u24 {v(vC)}, 272, {v(vL16)}")
    a(f"v_lshl_add_u32 {v(vC)}, {v(vG)}, 4, {v(vC)}")
    a(f"v_add_u32 {v(vC)}, {F.LDS_X}, {v(vC)}")
    a(f"v_mul_u32_u24 {v(vD)}, 144, {v(vL16)}")
    a(f"v_lshl_add_u32 {v(vD)}, {v(vG)}, 4, {v(vD)}")
    a(f"s_mul_i32 {s(sT0)}, {s(sW)}, 2304")
    a(f"s_add_u32 {s(sT0)}, {s(sT0)}, {F.LDS_Z}")
    a(f"v_add_u32 {v(vD)}, {s(sT0)}, {v(vD)}")
    a(f"v_lshrrev_b32 {v(T)}, 3, v0")
    a(f"v_mul_u32_u24 {v(vE)}, 144, {v(T)}")
    a(f"v_and_b32 {v(T)}, 7, v0")
    a(f"v_lshl_add_u32 {v(vE)}, {v(T)}, 4, {v(vE)}")
    a(f"v_add_u32 {v(vE)}, {s(sT0)}, {v(vE)}")
    a(f"s_mul_i32 {s(sZ0)}, {s(sCol)}, {M.ZCS}")
    a(f"s_lshl_b32 {s(sT1)}, {s(sW)}, 11")
    a(f"s_add_u32 {s(sZ0)}, {s(sZ0)}, {s(sT1)}")
    a(f"s_add_u32 {s(sZ0)}, {s(sZ0)}, {M.WS_ZB}")
    a(f"s_cmp_lt_u32 {s(sCol)}, 225")
    a(f"s_cselect_b32 {s(sZ0)}, {s(sZ0)}, 0x7f000000")
    a(f"s_mul_i32 {s(sT0)}, {s(sSlot)}, 37")
    a(f"s_lshr_b32 {s(sT0)}, {s(sT0)}, 8")
    a(f"s_mul_i32 {s(sT1)}, {s(sT0)}, 7")
    a(f"s_sub_u32 {s(sCg)}, {s(sSlot)}, {s(sT1)}")
    a(f"v_bfe_u32 {v(T)}, v0, 2, 1")
    a(f"v_lshl_add_u32 {v(T)}, {v(vG)}, 1, {v(T)}")
    a(f"v_mul_u32_u24 {v(vWo)}, 896, {v(T)}")
    a(f"v_lshrrev_b32 {v(T)}, 3, v0")
    a(f"v_xor_b32 {v(T)}, {v(T)}, {v(vG)}")
    a(f"v_and_b32 {v(T)}, 1, {v(T)}")
    a(f"v_lshl_add_u32 {v(vWo)}, {v(T)}, 6, {v(vWo)}")
    a(f"v_and_b32 {v(T)}, 3, v0")
    a(f"v_lshl_add_u32 {v(vWo)}, {v(T)}, 4, {v(vWo)}")
    a(f"s_mul_i32 {s(sWoO)}, {s(sW)}, {8*896}")
    a(f"s_lshl_b32 {s(sT0)}, {s(sCg)}, 7")
    a(f"s_add_u32 {s(sWoO)}, {s(sWoO)}, {s(sT0)}")
    a(f"v_cmp_lt_u32 vcc, 6, v0")
    a(f"s_and_b32 {s(sT0)}, {s(sSlot)}, 15")
    a(f"s_and_b32 {s(sT1)}, {s(sT0)}, 1")
    a(f"s_mul_i32 {s(sT1)}, {s(sT1)}, 14")
    a(f"v_add_u32 {v(vS2)}, {s(sT1)}, v0")
    a(f"s_lshr_b32 {s(sT0)}, {s(sT0)}, 1")
    a(f"v_lshl_add_u32 {v(vS2)}, {v(vS2)}, 3, {s(sT0)}")
    a(f"v_lshlrev_b32 {v(vS2)}, 7, {v(vS2)}")
    a(f"s_waitcnt lgkmcnt(0)")
    a(f"s_mov_b32 {s(SD)}, s78\ns_mov_b32 {s(SD+1)}, s79\ns_mov_b32 {s(SD+2)}, 256\ns_mov_b32 {s(SD+3)}, 0x20000")
    a(f"s_mov_b32 {s(SA)}, s68\ns_mov_b32 {s(SA+1)}, s69\ns_mov_b32 {s(SA+3)}, 0x20000")
    a(f"s_cmp_lt_u32 {s(sSlot)}, 28")
    a(f"s_cselect_b32 {s(SA+2)}, {448*896}, 0")
    a(f"s_mov_b32 {s(SBv)}, s76\ns_mov_b32 {s(SBv+1)}, s77\ns_mov_b32 {s(SBv+2)}, {2048*1792}\ns_mov_b32 {s(SBv+3)}, 0x20000")
    a(f"v_mov_b32 v5, 0")
    a(f"v_lshlrev_b32 v6, 2, v0")
    lead = [0]
    def if_lead(fn):
        lead[0] += 1; L = f"{name}_nl{lead[0]}"
        a(f"s_cmp_lg_u32 {s(sW)}, 0")
        a(f"s_cbranch_scc1 {L}")
        fn()
        a.label(L)
    def get_tag():
        a(f"v_readfirstlane_b32 {s(sTag)}, v255")
        a("s_nop 3")
        a(f"s_add_u32 {s(sTag)}, {s(sTag)}, 1")
    def tree_up(off):
        a(f"s_lshr_b32 {s(sT1)}, s2, 4")
        a(f"s_mul_i32 {s(sT0)}, {s(sT1)}, {17*128}")
        a(f"s_and_b32 {s(sT1)}, s2, 15")
        a(f"s_lshl_b32 {s(sT1)}, {s(sT1)}, 2")
        a(f"s_add_u32 {s(sT0)}, {s(sT0)}, {s(sT1)}")
        a(f"s_add_u32 {s(sT0)}, {s(sT0)}, {F.WS_MB3 + off}")
        a(f"v_mov_b32 v7, {s(sTag)}")
        a("s_mov_b64 exec, 1")
        a(f"buffer_store_dword v7, v5, {s(SWS,4)}, {s(sT0)} offen sc1")
        a("s_mov_b64 exec, -1")
    def tree_down(off, base, shift, lbl):
        a(f"s_lshr_b32 {s(sT1)}, s2, 4")
        a(f"s_and_b32 {s(sT2)}, s2, 15")
        a(f"s_cmp_lg_u32 {s(sT1)}, {s(sT2)}")
        a(f"s_cbranch_scc1 {lbl}")
        a(f"s_lshl_b32 {s(sT0)}, s2, 7")
        a(f"s_add_u32 {s(sT0)}, {s(sT0)}, {F.WS_MB3 + off}")
        poll(f"buffer_load_dword v7, v6, {s(SWS,4)}, {s(sT0)} offen sc1", f"v_cmp_ne_u32 vcc, {s(sTag)}, v7", "0xffff")
        a(f"s_lshl_b32 {s(sT1)}, {s(sT1)}, 2")
        a(f"s_lshl_b32 {s(sT2)}, {s(sW)}, {6 + shift}")
        a(f"v_lshlrev_b32 v3, {shift}, v0")
        a(f"v_mov_b32 v7, {s(sTag)}")
        a(f"s_add_u32 {s(sT0)}, {s(sT1)}, {base}")
        a(f"s_add_u32 {s(sT0)}, {s(sT0)}, {s(sT2)}")
        a(f"buffer_store_dword v7, v3, {s(SWS,4)}, {s(sT0)} offen sc1")
        a.label(lbl)
    def broadcast(base, shift):
        a(f"v_lshlrev_b32 v3, {shift}, v0")
        a(f"v_mov_b32 v7, {s(sTag)}")
        a(f"s_mov_b32 {s(sT0)}, {base}")
        for i in range(4):
            a(f"buffer_store_dword v7, v3, {s(SWS,4)}, {s(sT0)} offen sc1")
            a(f"s_add_u32 {s(sT0)}, {s(sT0)}, {64 << shift}")
    def atom(off_s, off):
        a("s_mov_b64 exec, 1")
        a("v_mov_b32 v4, 1")
        a(f"buffer_atomic_add v4, v5, {s(SD,4)}, {off_s} offen offset:{off} sc0 sc1")
        a("s_mov_b64 exec, -1")
    get_tag()
    a("s_waitcnt vmcnt(0)")
    rt(3)
    a("s_barrier")
    def sig1a():
        a(f"v_mov_b32 v7, {s(sTag)}")
        a(f"s_cmp_lg_u32 {s(sWo)}, 0")
        a(f"s_cbranch_scc1 {name}_sigB")
        a(f"buffer_store_dword v7, v2, {s(SWS,4)}, {s(sXo)} offen sc1")
        a(f"s_branch {name}_sigD")
        a.label(f"{name}_sigB")
        tree_up(0)
        a.label(f"{name}_sigD")
    if_lead(sig1a)
    a(f"s_cmp_eq_u32 {s(sWo)}, 0")
    a(f"s_cbranch_scc1 {name}_tdB")
    tree_down(0, F.WS_MB1 + 33 * 4, 8, f"{name}_tdB")
    def sig1b():
        a(f"s_lshl_b32 {s(sT0)}, s2, 8")
        a(f"s_add_u32 {s(sT0)}, {s(sT0)}, {F.WS_MB1}")
        a(f"s_mov_b32 {s(sK)}, -1\ns_mov_b32 {s(sK+1)}, 1")
        poll(f"buffer_load_dword v7, v6, {s(SWS,4)}, {s(sT0)} offen sc1", f"v_cmp_ne_u32 vcc, {s(sTag)}, v7", s(sK, 2))
    if_lead(sig1b)
    rt(4)
    a("s_barrier")
    q_ = []
    def epoch(e_):
        for tl in range(2):
            lds = (e_ % 4) * 32768 + tl * 4096
            src = e_ * 16384 + tl * 2048
            a(f"s_add_u32 m0, {s(sM)}, {lds}")
            a(f"s_add_u32 {s(sT0)}, {s(sDK)}, {src}")
            a(f"buffer_load_dwordx4 v1, {s(SWS,4)}, {s(sT0)} offen {LD} lds")
            a(f"buffer_load_dwordx4 v1, {s(SWS,4)}, {s(sT0)} offen offset:1024 {LD} lds")
            a(f"s_add_u32 m0, {s(sM)}, {lds + 2048}")
            a(f"s_add_u32 {s(sT0)}, {s(sDK)}, {src + M.WS_VF - M.WS_KF}")
            a(f"buffer_load_dwordx4 v1, {s(SWS,4)}, {s(sT0)} offen {LD} lds")
            a(f"buffer_load_dwordx4 v1, {s(SWS,4)}, {s(sT0)} offen offset:1024 {LD} lds")
            q_.extend([f"E{e_}"] * 4)
    def wait_for(tag):
        last = max(i for i, t_ in enumerate(q_) if t_ == tag)
        n = len(q_) - 1 - last
        assert n <= 63
        a(f"s_waitcnt vmcnt({n})")
    def fl(txt, tag):
        a(txt); q_.append(tag)
    def stage64(waits):
        for ks in range(4):
            waits(ks)
            for mt in range(2):
                for c in range(2):
                    a(mfma16(AC[mt][c], DA[mt][ks], F64[c][ks], None if ks == 0 else AC[mt][c]))
                    if os.environ.get("MGAP"): a(f"s_nop {os.environ['MGAP']}")
        a("s_nop 7")
    def twiddle():
        for mt in range(2):
            for r in range(4):
                tw = TW + 4 * (2 * mt + r // 2) + 2 * (r % 2)
                cmul(a, AC[mt][0] + r, AC[mt][1] + r, AC[mt][0] + r, AC[mt][1] + r, tw, tw + 1, T + 2 * (r % 2))
    def pack_sep():
        for c in range(2):
            for mt in range(2):
                for h in range(2):
                    a(f"v_cvt_pk_bf16_f32 {v(BF[c]+2*mt+h)}, {v(AC[mt][c]+2*h)}, {v(AC[mt][c]+2*h+1)}")
        a("s_nop 1")
    def stage32():
        for mt in range(2):
            a(mfma16(AC[mt][0], F32[mt][0], BF[0], None))
            a(mfma16(AC[mt][1], F32[mt][2], BF[0], None))
        for mt in range(2):
            a(mfma16(AC[mt][0], F32[mt][1], BF[1], AC[mt][0]))
            a(mfma16(AC[mt][1], F32[mt][0], BF[1], AC[mt][1]))
        a("s_nop 7")
    epoch(0); epoch(1)
    a(f"s_setprio {os.environ.get('HPRIO', '2')}")
    def B(k):
        a("s_barrier")
        if not os.environ.get("LSTAMP"): rt(5 + k)
    wait_for("E0"); B(0)
    def pollB():
        a(f"s_lshl_b32 {s(sT0)}, s2, 8")
        a(f"s_add_u32 {s(sT0)}, {s(sT0)}, {F.WS_MB1 + 33*4}")
        poll(f"buffer_load_dword v7, v6, {s(SWS,4)}, {s(sT0)} offen sc1", f"v_cmp_ne_u32 vcc, {s(sTag)}, v7", "0xf")
    if_lead(pollB)
    epoch(2)
    a(f"s_lshl_b32 {s(sK)}, {s(sW)}, 13")
    a(f"s_add_u32 {s(sV)}, {s(sK)}, 4096")
    for ks in range(4):
        fl(f"buffer_load_dwordx4 {v(F64[0][ks],4)}, v1, {s(SC_,4)}, {s(sK)} offen offset:{1024*ks}", "C")
        fl(f"buffer_load_dwordx4 {v(F64[1][ks],4)}, v1, {s(SC_,4)}, {s(sV)} offen offset:{1024*ks}", "C")
    wait_for("E1"); B(1)
    epoch(3)
    a(f"s_mul_i32 {s(sT2)}, {s(sCol)}, {M.X1S}")
    a(f"s_add_u32 {s(sK)}, {s(sT2)}, {M.WS_X1}")
    a(f"s_add_u32 {s(sV)}, {s(sK)}, 4096")
    for ks in range(4):
        fl(f"buffer_load_dwordx4 {v(DA[0][ks],4)}, v1, {s(SWS,4)}, {s(sK)} offen offset:{1024*ks} {LD}", "DA")
        fl(f"buffer_load_dwordx4 {v(DA[1][ks],4)}, v1, {s(SWS,4)}, {s(sV)} offen offset:{1024*ks} {LD}", "DA")
    a(f"s_lshl_b32 {s(sK)}, {s(sW)}, 12")
    a(f"s_add_u32 {s(sK)}, {s(sK)}, {CT_T2048}")
    for q in range(4):
        fl(f"buffer_load_dwordx4 {v(TW+4*q,4)}, v1, {s(SC_,4)}, {s(sK)} offen offset:{1024*q}", "TW")
    wait_for("E2"); B(2)
    a(f"s_mov_b32 {s(sK)}, {CT_F32}")
    a(f"s_mov_b32 {s(sV)}, {CT_F32+3072}")
    for k in range(3):
        fl(f"buffer_load_dwordx4 {v(F32[0][k],4)}, v1, {s(SC_,4)}, {s(sK)} offen offset:{1024*k}", "F32")
        fl(f"buffer_load_dwordx4 {v(F32[1][k],4)}, v1, {s(SC_,4)}, {s(sV)} offen offset:{1024*k}", "F32")
    a(f"s_lshr_b32 {s(sT2)}, {s(sCol)}, 2")
    a(f"s_mul_i32 {s(sT2)}, {s(sT2)}, {M.WTS}")
    a(f"s_lshl_b32 {s(sK)}, {s(sW)}, 10")
    a(f"s_add_u32 {s(sK)}, {s(sK)}, {s(sT2)}")
    a(f"s_and_b32 {s(sT2)}, {s(sCol)}, 3")
    a(f"s_lshl_b32 {s(sT2)}, {s(sT2)}, 5")
    a(f"s_add_u32 {s(sK)}, {s(sK)}, {s(sT2)}")
    a(f"s_add_u32 {s(sK)}, {s(sK)}, {M.WS_WT}")
    a(f"s_add_u32 {s(sV)}, {s(sK)}, 16384")
    fl(f"buffer_load_dwordx4 {v(Wv[0],4)}, {v(vA)}, {s(SWS,4)}, {s(sK)} offen {LD}", "W")
    fl(f"buffer_load_dwordx4 {v(Wv[1],4)}, {v(vA)}, {s(SWS,4)}, {s(sV)} offen {LD}", "W")
    wait_for("TW")
    a(f"s_cmp_ge_u32 {s(sCol)}, 225"); a(f"s_cbranch_scc1 {name}_sk1")
    stage64(lambda ks: None)
    a.label(f"{name}_sk1")
    epoch(4)
    a(f"s_cmp_ge_u32 {s(sCol)}, 225"); a(f"s_cbranch_scc1 {name}_sk2")
    twiddle()
    pack_sep()
    a.label(f"{name}_sk2")
    B(3)
    wait_for("W")
    a(f"s_cmp_ge_u32 {s(sCol)}, 225"); a(f"s_cbranch_scc1 {name}_sk3")
    stage32()
    for mt in range(2):
        for r in range(4):
            a(f"v_lshlrev_b32 {v(WR)}, 16, {v(Wv[mt]+r)}")
            a(f"v_and_b32 {v(WI)}, 0xffff0000, {v(Wv[mt]+r)}")
            cmul(a, AC[mt][0] + r, AC[mt][1] + r, AC[mt][0] + r, AC[mt][1] + r, WR, WI, T + 2 * (r % 2), conj_out=True)
    pack_sep()
    stage32()
    a.label(f"{name}_sk3")
    epoch(5)
    a(f"s_cmp_ge_u32 {s(sCol)}, 225"); a(f"s_cbranch_scc1 {name}_sk4")
    twiddle()
    for mt in range(2):
        for r in range(4):
            a(f"v_cvt_pk_bf16_f32 {v(BF[mt]+r)}, {v(AC[mt][0]+r)}, {v(AC[mt][1]+r)}")
    for mt in range(2):
        for r in range(4):
            a(f"ds_write_b32 {v(vB)}, {v(BF[mt]+r)} offset:{(16*mt+r)*272}")
    a("s_waitcnt lgkmcnt(0)")
    a.label(f"{name}_sk4")
    wait_for("E4"); B(4)
    a(f"s_cmp_ge_u32 {s(sCol)}, 225"); a(f"s_cbranch_scc1 {name}_sk5")
    for ks in range(4):
        for mt in range(2):
            a(f"ds_read_b128 {v(DA[mt][ks],4)}, {v(vC)} offset:{16*mt*272+64*ks}")
    stage64(lambda ks: a(f"s_waitcnt lgkmcnt({2*(3-ks)})"))
    for mt in range(2):
        for r in range(4):
            a(f"v_cvt_pk_bf16_f32 {v(BF[mt]+r)}, {v(AC[mt][0]+r)}, {v(AC[mt][1]+r)}")
    a(f"ds_write_b128 {v(vD)}, {v(BF[0],4)}")
    a(f"ds_write_b128 {v(vD)}, {v(BF[1],4)} offset:64")
    a("s_waitcnt lgkmcnt(0)")
    a(f"ds_read_b128 {v(BF[0],4)}, {v(vE)}")
    a(f"ds_read_b128 {v(BF[1],4)}, {v(vE)} offset:{8*144}")
    a("s_waitcnt lgkmcnt(0)")
    a.label(f"{name}_sk5")
    fl(f"buffer_store_dwordx4 {v(BF[0],4)}, v1, {s(SWS,4)}, {s(sZ0)} offen {ST}", "ST")
    fl(f"buffer_store_dwordx4 {v(BF[1],4)}, v1, {s(SWS,4)}, {s(sZ0)} offen offset:1024 {ST}", "ST")
    epoch(6)
    a("s_setprio 0")
    wait_for("ST"); B(5)
    if_lead(lambda: tree_up(64))
    epoch(7)
    wait_for("E6"); B(6)
    tree_down(64, F.WS_MB2 + 64, 7, f"{name}_tdF")
    def wo_items(k0, k1):
        for k in range(k0, k1):
            a(f"s_lshr_b32 {s(sT1)}, {s(sM)}, 3")
            a(f"s_add_u32 m0, {s(sT1)}, {4096*k}")
            a(f"s_add_u32 {s(sT0)}, {s(sWoO)}, {32*896*k}")
            fl(f"buffer_load_dwordx4 {v(vWo)}, {s(SA,4)}, {s(sT0)} offen lds", "WO")
    wo_items(0, 8)
    wait_for("E7"); B(7)
    wo_items(8, 15)
    vb = VAlloc(8)
    D5 = vb(16); Zr = vb(8); Hh = vb(16); TWv = vb(16); GF = [vb(4) for ks in range(4)]; AF = [vb(4) for ks in range(4)]
    PL = vb(8); t = [vb(1) for i in range(8)]
    vP, vM, vEw, vEr, vY = [vb(1) for i in range(5)]
    assert vb.hi <= vL16
    a(f"v_lshrrev_b32 {v(t[0])}, 3, v0")
    a(f"v_and_b32 {v(t[1])}, 7, v0")
    a(f"v_sub_u32 {v(t[2])}, 7, {v(t[0])}")
    a(f"v_mul_u32_u24 {v(t[2])}, {M.ZCS}, {v(t[2])}")
    a(f"v_lshl_add_u32 {v(vM)}, {v(t[1])}, 2, {v(t[2])}")
    a(f"v_mul_u32_u24 {v(t[2])}, {M.ZCS}, {v(t[0])}")
    a(f"v_lshl_add_u32 {v(vP)}, {v(t[1])}, 2, {v(t[2])}")
    a(f"v_lshlrev_b32 {v(t[3])}, 6, {v(t[0])}")
    a(f"s_lshl_b32 {s(sT2)}, {s(sW)}, 9")
    a(f"s_add_u32 {s(sT2)}, {s(sT2)}, {CT_TW448}")
    for q in range(4):
        a(f"buffer_load_dwordx4 {v(TWv+4*q,4)}, {v(t[3])}, {s(SC_,4)}, {s(sT2)} offen offset:{16*q}")
    a(f"s_and_b32 {s(sK)}, {s(sW)}, 1")
    a(f"s_lshl_b32 {s(sT1)}, {s(sK)}, 12")
    a(f"s_add_u32 {s(sT1)}, {s(sT1)}, {CT_G56}")
    for ks in range(4):
        a(f"buffer_load_dwordx4 {v(GF[ks],4)}, v1, {s(SC_,4)}, {s(sT1)} offen offset:{1024*ks}")
    B(8)
    a(f"v_mul_u32_u24 {v(vEw)}, 1168, {v(t[1])}")
    a(f"v_lshl_add_u32 {v(vEw)}, {v(t[0])}, 2, {v(vEw)}")
    a(f"s_lshl_b32 {s(sT1)}, {s(sW)}, 5")
    a(f"s_add_u32 {s(sT1)}, {s(sT1)}, {F.LDS_X}")
    a(f"v_add_u32 {v(vEw)}, {s(sT1)}, {v(vEw)}")
    a(f"v_and_b32 {v(t[4])}, 31, v0")
    a(f"v_lshrrev_b32 {v(t[5])}, 5, v0")
    a(f"v_mul_u32_u24 {v(vEr)}, 144, {v(t[4])}")
    a(f"v_lshrrev_b32 {v(t[6])}, 3, {v(t[4])}")
    a(f"v_add_u32 {v(t[6])}, {v(t[6])}, {v(t[5])}")
    a(f"v_lshl_add_u32 {v(vEr)}, {v(t[6])}, 4, {v(vEr)}")
    a(f"s_lshr_b32 {s(sV)}, {s(sW)}, 1")
    a(f"s_mul_i32 {s(sT1)}, {s(sV)}, {4*1168}")
    a(f"s_add_u32 {s(sT1)}, {s(sT1)}, {F.LDS_X}")
    a(f"v_add_u32 {v(vEr)}, {s(sT1)}, {v(vEr)}")
    a(f"s_lshl_b32 {s(sT1)}, {s(sK)}, 5")
    a(f"v_add_u32 {v(t[6])}, {s(sT1)}, {v(t[4])}")
    a(f"v_lshlrev_b32 {v(vY)}, 4, {v(t[6])}")
    a(f"v_lshl_add_u32 {v(vY)}, {v(t[5])}, 3, {v(vY)}")
    a(f"v_mov_b32 {v(t[7])}, 0x7f000000")
    a(f"v_cmp_lt_u32 vcc, 55, {v(t[6])}")
    a(f"s_lshl_b32 {s(sZ0)}, {s(sCol)}, 5")
    a(f"s_add_u32 {s(sZ0)}, {s(sZ0)}, {M.WS_ZB}")
    a(f"v_cndmask_b32 {v(vY)}, {v(vY)}, {v(t[7])}, vcc")
    a(f"s_mul_i32 {s(sT2)}, {s(sW)}, {8*M.ZCS}")
    a(f"s_sub_u32 {s(sZ1)}, {s(sZ0)}, {s(sT2)}")
    a(f"s_add_u32 {s(sZ0)}, {s(sZ0)}, {s(sT2)}")
    a(f"s_mov_b32 {s(sK8)}, {f32hex(0.5**0.5)}")
    a(f"s_lshl_b32 {s(sDK)}, {s(sCol)}, 3")
    a(f"s_lshl_b32 {s(sT2)}, {s(sV)}, 2")
    a(f"s_add_u32 {s(sDK)}, {s(sDK)}, {s(sT2)}")
    a(f"s_mul_i32 {s(sDK)}, {s(sDK)}, 1792")
    a(f"s_add_u32 {s(sDK)}, {s(sDK)}, 896")
    a(f"s_add_u32 {s(sM)}, {s(sDK)}, 3584")
    def pollF():
        a(f"s_lshl_b32 {s(sT0)}, s2, 7")
        a(f"s_add_u32 {s(sT0)}, {s(sT0)}, {F.WS_MB2 + 64}")
        poll(f"buffer_load_dword v7, v6, {s(SWS,4)}, {s(sT0)} offen sc1", f"v_cmp_ne_u32 vcc, {s(sTag)}, v7", "0xffff")
    pollF()
    for tt_ in range(8):
        if tt_ < 4:
            a(f"s_add_u32 {s(sT0)}, {s(sZ0)}, {56*tt_*M.ZCS}")
            a(f"buffer_load_dword {v(Zr+tt_)}, {v(vP)}, {s(SWS,4)}, {s(sT0)} offen {LD}")
        else:
            a(f"s_add_u32 {s(sT0)}, {s(sZ1)}, {(56*(8-tt_)-7)*M.ZCS}")
            a(f"buffer_load_dword {v(Zr+tt_)}, {v(vM)}, {s(SWS,4)}, {s(sT0)} offen {LD}")
    rt(14)
    a("s_barrier")
    def sig2():
        a(f"v_mov_b32 v7, {s(sTag)}")
        a(f"s_lshl_b32 {s(sT0)}, {s(sHead)}, 2")
        a(f"s_add_u32 {s(sT0)}, {s(sT0)}, {F.WS_MB2}")
        a("s_mov_b64 exec, 0x3fff")
        a(f"buffer_store_dword v7, {v(vS2)}, {s(SWS,4)}, {s(sT0)} offen sc1")
        a("s_mov_b64 exec, -1")
        a(f"s_cmp_lg_u32 s2, 255")
        a(f"s_cbranch_scc1 {name}_noadv")
        a(f"s_mov_b32 {s(sT0)}, {F.WS_TAG}")
        a("s_mov_b64 exec, 1")
        a(f"buffer_store_dword v7, v5, {s(SWS,4)}, {s(sT0)} offen sc1")
        a("s_mov_b64 exec, -1")
        a.label(f"{name}_noadv")
        a("s_waitcnt vmcnt(2)")
    if_lead(sig2)
    a(f"s_cmp_eq_u32 {s(sW)}, 0")
    a(f"s_cbranch_scc1 {name}_zok")
    a("s_waitcnt vmcnt(0)")
    a.label(f"{name}_zok")
    a("s_waitcnt vmcnt(1)")
    for tt_ in range(8):
        a(f"v_lshlrev_b32 {v(Hh+2*tt_)}, 16, {v(Zr+tt_)}")
        a(f"v_and_b32 {v(Hh+2*tt_+1)}, 0xffff0000, {v(Zr+tt_)}")
    pool = Pool([PL + i for i in range(8)])
    X = dft8(a, pool, [((Hh + 2 * tt_, 1), (Hh + 2 * tt_ + 1, -1 if tt_ < 4 else 1)) for tt_ in range(8)], +1, sK8)
    for j in range(8):
        xr, xi = X[j]
        o_ = Zr + j
        if j == 0:
            a(f"v_cvt_pk_bf16_f32 {v(o_)}, {sv(xr)}, {sv(xi)}")
        else:
            tr = TWv + 2 * (j - 1); ti = tr + 1
            p, q = t[2 * (j % 2)], t[2 * (j % 2) + 1]
            a(f"v_mul_f32_e64 {v(p)}, {sv(xi)}, {v(ti)}")
            a(f"v_mul_f32_e64 {v(q)}, {sv(xi)}, {v(tr)}")
            a(f"v_fma_f32 {v(p)}, {sv(xr)}, {v(tr)}, {v(p)}")
            a(f"v_fma_f32 {v(q)}, {sv(neg(xr))}, {v(ti)}, {v(q)}")
            a(f"v_cvt_pk_bf16_f32 {v(o_)}, {v(p)}, {v(q)}")
        a(f"ds_write_b32 {v(vEw)}, {v(o_)} offset:{144*j}")
    a("s_waitcnt lgkmcnt(0)")
    def poll2():
        a(f"s_cmp_ge_u32 {s(sSlot)}, 28")
        a(f"s_cbranch_scc1 {name}_np2")
        a(f"s_lshl_b32 {s(sT0)}, s2, 7")
        a(f"s_add_u32 {s(sT0)}, {s(sT0)}, {F.WS_MB2}")
        poll(f"buffer_load_dword v7, v6, {s(SWS,4)}, {s(sT0)} offen sc1", f"v_cmp_ne_u32 vcc, {s(sTag)}, v7", "0xffff")
        a.label(f"{name}_np2")
    if_lead(poll2)
    a("s_barrier")
    for ks in range(4):
        a(f"ds_read_b128 {v(AF[ks],4)}, {v(vEr)} offset:{32*ks}")
    for ks in range(4):
        a(f"s_waitcnt lgkmcnt({3-ks})")
        a(mfma32(D5, AF[ks], GF[ks], None if ks == 0 else D5))
    a("s_nop 7\ns_nop 3")
    for k in range(8):
        a(f"v_cvt_pk_bf16_f32 {v(Hh+k)}, {v(D5+2*k)}, {v(D5+2*k+1)}")
    for q in range(4):
        a(f"buffer_store_dwordx2 {v(Hh+2*q,2)}, {v(vY)}, {s(SBv,4)}, {s(sDK if q < 2 else sM)} offen offset:{1792*(q%2)} {os.environ.get('OF5','')}")
    dump(4, 2)
    a("s_endpgm")
    return 200

def computes(a, name, E):
    SA, SBv, SWS = E['SA'], E['SBv'], E['SWS']
    sW, sXc, sSlot, sHi = E['sW'], E['sXc'], E['sSlot'], E['sHi']
    rt, dump = E['rt'], E['dump']
    ST, LD = F.ST, F.LD
    sT0, sT1, sT2 = 33, 34, 35
    sHead, sQt, sK0, sJ, sIt, sK, sV, sQo, sTb2, sCg = 31, 32, 36, 37, 38, 40, 41, 42, 44, 45
    va = VAlloc(2)
    Q = [va(4), va(4)]
    O = va(16)
    S_ = [va(16), va(16)]
    P_ = [va(8), va(8)]
    Kb = [va(8), va(8)]
    Vb = [va(8), va(8)]
    Mx = va(1); va(1); T = [va(1) for i in range(4)]
    vA = va(1); vB = va(1)
    def ld(dst, so, off):
        a(f"buffer_load_dwordx4 {v(dst,4)}, v1, {s(SWS,4)}, {s(so)} offen offset:{off} {LD}")
    a(f"s_mov_b32 {s(SBv)}, s76\ns_mov_b32 {s(SBv+1)}, s77")
    a(f"s_lshr_b32 {s(sHead)}, {s(sSlot)}, 4")
    a(f"s_lshl_b32 {s(sT0)}, {s(sXc)}, 1")
    a(f"s_add_u32 {s(sHead)}, {s(sHead)}, {s(sT0)}")
    a(f"s_lshl_b32 {s(sT0)}, {s(sHead)}, 17")
    a(f"s_add_u32 {s(sK0)}, {s(sT0)}, {M.WS_KF}")
    a(f"s_and_b32 {s(sQt)}, {s(sSlot)}, 15")
    a(f"s_lshl_b32 {s(sQt)}, {s(sQt)}, 2")
    a(f"s_add_u32 {s(sQt)}, {s(sQt)}, {s(sW)}")
    a(f"s_lshl_b32 {s(sT1)}, {s(sQt)}, 11")
    a(f"s_add_u32 {s(sQo)}, {s(sT0)}, {s(sT1)}")
    a(f"s_lshl_b32 {s(sJ)}, {s(sQt)}, 4")
    a(f"s_add_u32 {s(sJ)}, {s(sJ)}, {s(sHead)}")
    a(f"s_lshl_b32 {s(sJ)}, {s(sJ)}, 11")
    a(f"s_add_u32 {s(sJ)}, {s(sJ)}, {M.WS_OF}")
    a(f"s_mov_b32 {s(sIt)}, 0")
    a(f"s_mov_b32 {s(SBv+2)}, {2048*1792}\ns_mov_b32 {s(SBv+3)}, 0x20000")
    rt(2)
    a("s_waitcnt vmcnt(0) lgkmcnt(0)")
    rt(3)
    a("s_barrier")
    a(f"v_mov_b32 {v(Mx)}, 0xff800000")
    for r in range(16): a(f"v_mov_b32 {v(O+r)}, 0")
    for r in range(8): a(f"v_mov_b32 {v(P_[1]+r)}, 0")
    for r in range(8): a(f"v_mov_b32 {v(Vb[1]+r)}, 0")
    a(f"v_mov_b32 {v(vA)}, v1")
    a(f"v_add_u32 {v(vB)}, 0x8000, v1")
    a("s_barrier")
    rt(4)
    for t in range(2): ld(Kb[0] + 4 * t, sK0, 1024 * t)
    for t in range(2): ld(Q[t], sQo, 1024 * t)
    a("s_waitcnt vmcnt(0)")
    rt(5)
    def maxstep():
        a(mfma32(S_[1], Kb[0], Q[0], None))
        a(mfma32(S_[1], Kb[0] + 4, Q[1], S_[1]))
        a("s_nop 7\ns_nop 3")
        for r in range(0, 16, 2):
            a(f"v_max3_f32 {v(Mx)}, {v(S_[1]+r)}, {v(S_[1]+r+1)}, {v(Mx)}")
    def finalize():
        a(f"v_mov_b32 {v(T[0])}, {v(Mx)}\nv_mov_b32 {v(T[1])}, {v(Mx)}\ns_nop 1")
        a(f"v_permlane32_swap_b32 {v(T[0])}, {v(T[1])}\ns_nop 0")
        a(f"v_max_f32 {v(Mx)}, {v(T[0])}, {v(T[1])}")
        a(f"v_cvt_pk_bf16_f32 {v(T[0])}, {v(Mx)}, {v(Mx)}")
        a(f"v_and_b32 {v(T[0])}, 0xffff0000, {v(T[0])}")
        a(f"v_sub_f32 {v(T[1])}, {v(Mx)}, {v(T[0])}")
        a(f"s_mov_b64 exec, {s(sHi,2)}")
        a(f"v_cvt_pk_bf16_f32 {v(Q[1]+2)}, -{v(T[0])}, -{v(T[1])}")
        a(f"s_mov_b64 exec, -1")
    maxstep()
    finalize()
    a(mfma32(S_[0], Kb[0], Q[0], None))
    a("s_barrier")
    a(mfma32(S_[0], Kb[0] + 4, Q[1], S_[0]))
    for t in range(2):
        a(f"ds_read_b128 {v(Kb[1]+4*t,4)}, {v(vA)} offset:{4096+1024*t}")
    a("s_nop 7")
    a("s_waitcnt lgkmcnt(0)")
    rt(6)
    if os.environ.get("APRIO"): a(f"s_setprio {os.environ['APRIO']}")
    a.raw(".p2align 6")
    a.label(f"{name}_loop")
    for u in range(8):
        p = u % 2; q = 1 - p
        sb = S_[p]; pb = P_[p]; sn = S_[q]; pp = P_[q]
        e = lambda r: a(f"v_exp_f32 {v(sb+r)}, {v(sb+r)}")
        c = lambda k: a(f"v_cvt_pk_bf16_f32 {v(pb+k)}, {v(sb+2*k)}, {v(sb+2*k+1)}")
        def rdK(t):
            if u < 6: a(f"ds_read_b128 {v(Kb[p]+4*t,4)}, {v(vA)} offset:{4096*(u+2)+1024*t}")
            else:     a(f"ds_read_b128 {v(Kb[p]+4*t,4)}, {v(vB)} offset:{4096*(u-6)+1024*t}")
        def rdV(t):
            a(f"ds_read_b128 {v(Vb[p]+4*t,4)}, {v(vA)} offset:{4096*u+2048+1024*t}")
        a(mfma32(sn, Kb[q], Q[0], None))
        if u == 6: a("s_barrier")
        rdV(0)
        e(0); e(1); e(2); e(3)
        a(mfma32(sn, Kb[q] + 4, Q[1], sn))
        rdV(1)
        e(4); e(5); c(0); e(6); e(7); c(1)
        a(mfma32(O, Vb[q], pp, O))
        rdK(0); rdK(1)
        e(8); e(9); c(2); e(10); e(11); c(3)
        a(mfma32(O, Vb[q] + 4, pp + 4, O))
        e(12)
        if u == 7: a(f"s_add_u32 {s(sIt)}, {s(sIt)}, 1")
        e(13); c(4); e(14)
        if u == 7: a(f"s_cmp_lt_u32 {s(sIt)}, 8")
        e(15)
        a("s_waitcnt lgkmcnt(0)")
        c(5); c(6); c(7)
        if u == 7:
            a(f"v_mov_b32 {v(vA)}, {v(vB)}")
            a(f"v_add_u32 {v(vB)}, 0x8000, {v(vB)}")
            a(f"v_and_b32 {v(vB)}, 0x1ffff, {v(vB)}")
    a(f"s_cbranch_scc1 {name}_loop")
    a(mfma32(O, Vb[1], P_[1], O))
    a(mfma32(O, Vb[1] + 4, P_[1] + 4, O))
    rt(7)
    a(f"s_mov_b32 {s(sT1)}, 0x5d800000")
    a("s_nop 7\ns_nop 3")
    a(f"v_cmp_nge_f32 vcc, {s(sT1)}, {v(O+12)}")
    a(f"v_mov_b32 {v(T[0])}, {v(O+12)}")
    a(f"v_mov_b32 {v(T[1])}, {v(O+12)}")
    a(f"s_cmp_lg_u32 vcc_hi, 0")
    a(f"s_cbranch_scc1 {name}_redo")
    a.label(f"{name}_epi")
    a(f"v_permlane32_swap_b32 {v(T[0])}, {v(T[1])}")
    a("s_nop 1")
    a(f"v_rcp_f32 {v(T[2])}, {v(T[1])}")
    a("s_nop 0")
    assert T[2] % 2 == 0
    for r in range(0, 16, 2):
        a(f"v_pk_mul_f32 {v(O+r,2)}, {v(O+r,2)}, {v(T[2],2)} op_sel_hi:[1,0]")
    for k in range(8):
        a(f"v_cvt_pk_bf16_f32 {v(S_[0]+k)}, {v(O+2*k)}, {v(O+2*k+1)}")
    a(f"s_mov_b64 exec, {s(sHi,2)}")
    a(f"v_mov_b32 {v(S_[0]+6)}, 0")
    a(f"v_mov_b32 {v(S_[0]+7)}, 0")
    a(f"s_mov_b64 exec, -1")
    a(f"buffer_store_dwordx4 {v(S_[0],4)}, v1, {s(SWS,4)}, {s(sJ)} offen {ST}")
    a(f"buffer_store_dwordx4 {v(S_[0]+4,4)}, v1, {s(SWS,4)}, {s(sJ)} offen offset:1024 {ST}")
    vb = VAlloc(2)
    ACC = [vb(16), vb(16)]
    t = [vb(1) for i in range(8)]
    assert vb.hi <= S_[0] or True
    vb = VAlloc(max(va.hi, 48))
    vb = VAlloc(64 - 8)
    OFr = [vb(4) for k in range(16)]
    WFR = [[vb(4) for k in range(16)] for ct in range(2)]
    aW = [vb(1), vb(1)]; vTw = vb(1); vTr = vb(1); vSt = vb(1); vRw = vb(1); vRr = vb(1)
    a(f"s_mul_i32 {s(sT0)}, {s(sSlot)}, 37")
    a(f"s_lshr_b32 {s(sT0)}, {s(sT0)}, 8")
    a(f"s_mul_i32 {s(sT1)}, {s(sT0)}, 7")
    a(f"s_sub_u32 {s(sCg)}, {s(sSlot)}, {s(sT1)}")
    a(f"s_lshl_b32 {s(sTb2)}, {s(sXc)}, 2")
    a(f"s_add_u32 {s(sTb2)}, {s(sTb2)}, {s(sT0)}")
    a(f"s_and_b32 {s(sK)}, {s(sW)}, 1")
    a(f"s_lshr_b32 {s(sV)}, {s(sW)}, 1")
    a("s_waitcnt vmcnt(0)")
    rt(8)
    a("s_barrier")
    a(f"s_cmp_ge_u32 {s(sSlot)}, 28")
    a(f"s_cbranch_scc1 {name}_c_end")
    a(f"v_lshrrev_b32 {v(t[5])}, 5, v0")
    a(f"v_bfe_u32 {v(t[6])}, v0, 3, 1")
    a(f"v_lshlrev_b32 {v(aW[0])}, 9, {v(t[5])}")
    a(f"v_lshl_add_u32 {v(aW[0])}, {v(t[6])}, 8, {v(aW[0])}")
    a(f"v_xor_b32 {v(t[6])}, {s(sK)}, {v(t[6])}")
    a(f"v_lshl_add_u32 {v(aW[0])}, {v(t[6])}, 7, {v(aW[0])}")
    a(f"v_bfe_u32 {v(t[6])}, v0, 2, 1")
    a(f"v_lshl_add_u32 {v(aW[0])}, {v(t[6])}, 6, {v(aW[0])}")
    a(f"v_bfe_u32 {v(t[6])}, v0, 4, 1")
    a(f"v_lshl_add_u32 {v(aW[0])}, {v(t[6])}, 5, {v(aW[0])}")
    a(f"v_and_b32 {v(t[6])}, 3, v0")
    a(f"v_lshl_add_u32 {v(aW[0])}, {v(t[6])}, 3, {v(aW[0])}")
    a(f"s_mul_i32 {s(sT0)}, {s(sK)}, {8*28*128}")
    a(f"v_add_u32 {v(aW[0])}, {s(sT0)}, {v(aW[0])}")
    a(f"v_xor_b32 {v(aW[1])}, 0x80, {v(aW[0])}")
    n = 0
    for k in range(16):
        h2, t_ = k // 2, k % 2
        for ct in range(2):
            for jj in range(2):
                a(f"ds_read_b64_tr_b16 {v(WFR[ct][k]+2*jj,2)}, {v(aW[ct])} offset:{(28*h2+16*t_+8*jj)*128}")
                n += 1
                if n % 12 == 0: a("s_waitcnt lgkmcnt(4)")
    a(f"v_and_b32 {v(t[4])}, 31, v0")
    a(f"s_mul_i32 {s(sT1)}, {s(sW)}, 2560")
    a(f"s_add_u32 {s(sT1)}, {s(sT1)}, {F.L_TR}")
    a(f"v_mul_u32_u24 {v(vTw)}, 80, {v(t[4])}")
    a(f"v_lshl_add_u32 {v(vTw)}, {v(t[5])}, 3, {v(vTw)}")
    a(f"v_add_u32 {v(vTw)}, {s(sT1)}, {v(vTw)}")
    a(f"v_lshrrev_b32 {v(t[7])}, 2, v0")
    a(f"v_mul_u32_u24 {v(vTr)}, 80, {v(t[7])}")
    a(f"v_lshl_add_u32 {v(vTr)}, {v(t[6])}, 4, {v(vTr)}")
    a(f"v_add_u32 {v(vTr)}, {s(sT1)}, {v(vTr)}")
    a(f"v_mul_u32_u24 {v(vSt)}, 1792, {v(t[7])}")
    a(f"v_lshl_add_u32 {v(vSt)}, {v(t[6])}, 4, {v(vSt)}")
    a(f"s_lshl_b32 {s(sT1)}, {s(sW)}, 12")
    a(f"s_add_u32 {s(sT1)}, {s(sT1)}, {F.L_RED}")
    a(f"v_add_u32 {v(vRw)}, {s(sT1)}, v1")
    a(f"v_xor_b32 {v(vRr)}, 0x1000, {v(vRw)}")
    a(f"s_lshl_b32 {s(sT0)}, {s(sTb2)}, 1")
    a(f"s_add_u32 {s(sT0)}, {s(sT0)}, {s(sV)}")
    a(f"s_lshl_b32 {s(sJ)}, {s(sT0)}, 15")
    a(f"s_lshl_b32 {s(sT1)}, {s(sK)}, 14")
    a(f"s_add_u32 {s(sJ)}, {s(sJ)}, {s(sT1)}")
    a(f"s_add_u32 {s(sJ)}, {s(sJ)}, {M.WS_OF}")
    a(f"s_mul_i32 {s(sQo)}, {s(sT0)}, {32*1792}")
    a(f"s_lshl_b32 {s(sT1)}, {s(sCg)}, 7")
    a(f"s_add_u32 {s(sQo)}, {s(sQo)}, {s(sT1)}")
    a(f"s_lshl_b32 {s(sT1)}, {s(sK)}, 6")
    a(f"s_add_u32 {s(sQo)}, {s(sQo)}, {s(sT1)}")
    a(f"s_add_u32 {s(sK0)}, {s(sQo)}, {16*1792}")
    a("s_waitcnt lgkmcnt(0)")
    a("s_barrier")
    rt(9)
    for k in range(16):
        a(f"buffer_load_dwordx4 {v(OFr[k],4)}, v1, {s(SWS,4)}, {s(sJ)} offen offset:{1024*(k%4)} {LD}")
        if k % 4 == 3: a(f"s_add_u32 {s(sJ)}, {s(sJ)}, 4096")
    for k in range(16):
        a(f"s_waitcnt vmcnt({15-k})")
        for ct in (1, 0):
            a(mfma32(ACC[ct], WFR[ct][k], OFr[k], None if k == 0 else ACC[ct]))
    rt(10)
    a("s_nop 7\ns_nop 3")
    for q in range(4):
        a(f"ds_write_b128 {v(vRw)}, {v(ACC[1]+4*q,4)} offset:{1024*q}")
    a("s_waitcnt lgkmcnt(0)")
    a("s_barrier")
    for q in range(4):
        a(f"ds_read_b128 {v(ACC[1]+4*q,4)}, {v(vRr)} offset:{1024*q}")
    for q in range(4):
        a(f"s_waitcnt lgkmcnt({3-q})")
        for h in range(2):
            r = 4 * q + 2 * h
            a(f"v_pk_add_f32 {v(ACC[0]+r,2)}, {v(ACC[0]+r,2)}, {v(ACC[1]+r,2)}")
        for h in range(2):
            a(f"v_cvt_pk_bf16_f32 {v(OFr[0]+2*q+h)}, {v(ACC[0]+4*q+2*h)}, {v(ACC[0]+4*q+2*h+1)}")
    for q in range(4):
        a(f"ds_write_b64 {v(vTw)}, {v(OFr[0]+2*q,2)} offset:{16*q}")
    a("s_waitcnt lgkmcnt(0)")
    a(f"ds_read_b128 {v(OFr[4],4)}, {v(vTr)}")
    a(f"ds_read_b128 {v(OFr[5],4)}, {v(vTr)} offset:{16*80}")
    a("s_waitcnt lgkmcnt(1)")
    a(f"buffer_store_dwordx4 {v(OFr[4],4)}, {v(vSt)}, {s(SBv,4)}, {s(sQo)} offen {os.environ.get('OF4','')}")
    a("s_waitcnt lgkmcnt(0)")
    a(f"buffer_store_dwordx4 {v(OFr[5],4)}, {v(vSt)}, {s(SBv,4)}, {s(sK0)} offen {os.environ.get('OF4','')}")
    a.label(f"{name}_c_end")
    dump(0, 2)
    a("s_endpgm")
    a.label(f"{name}_redo")
    a(f"s_mov_b64 exec, {s(sHi,2)}")
    a(f"v_mov_b32 {v(Q[1]+2)}, 0")
    a(f"s_mov_b64 exec, -1")
    a(f"s_mov_b32 {s(sK)}, {s(sK0)}")
    a(f"s_mov_b32 {s(sIt)}, 0")
    a.label(f"{name}_redo1")
    for t_ in range(2): ld(Kb[0] + 4 * t_, sK, 1024 * t_)
    a("s_waitcnt vmcnt(0)")
    maxstep()
    a(f"s_add_u32 {s(sK)}, {s(sK)}, 2048")
    a(f"s_add_u32 {s(sIt)}, {s(sIt)}, 1")
    a(f"s_cmp_lt_u32 {s(sIt)}, 64")
    a(f"s_cbranch_scc1 {name}_redo1")
    finalize()
    for r in range(16): a(f"v_mov_b32 {v(O+r)}, 0")
    a(f"s_mov_b32 {s(sK)}, {s(sK0)}")
    a(f"s_mov_b32 {s(sIt)}, 0")
    a.label(f"{name}_redo2")
    a(f"s_add_u32 {s(sV)}, {s(sK)}, {M.WS_VF - M.WS_KF}")
    for t_ in range(2): ld(Kb[0] + 4 * t_, sK, 1024 * t_)
    for t_ in range(2): ld(Vb[0] + 4 * t_, sV, 1024 * t_)
    a("s_waitcnt vmcnt(0)")
    a(mfma32(S_[0], Kb[0], Q[0], None))
    a(mfma32(S_[0], Kb[0] + 4, Q[1], S_[0]))
    a("s_nop 7\ns_nop 3")
    for r in range(16): a(f"v_exp_f32 {v(S_[0]+r)}, {v(S_[0]+r)}")
    a("s_nop 0")
    for k in range(8): a(f"v_cvt_pk_bf16_f32 {v(P_[0]+k)}, {v(S_[0]+2*k)}, {v(S_[0]+2*k+1)}")
    a("s_nop 1")
    a(mfma32(O, Vb[0], P_[0], O))
    a(mfma32(O, Vb[0] + 4, P_[0] + 4, O))
    a(f"s_add_u32 {s(sK)}, {s(sK)}, 2048")
    a(f"s_add_u32 {s(sIt)}, {s(sIt)}, 1")
    a(f"s_cmp_lt_u32 {s(sIt)}, 64")
    a("s_nop 7")
    a(f"s_cbranch_scc1 {name}_redo2")
    a("s_nop 7")
    a(f"v_mov_b32 {v(T[0])}, {v(O+12)}")
    a(f"v_mov_b32 {v(T[1])}, {v(O+12)}")
    a("s_nop 1")
    a(f"s_branch {name}_epi")
    return max(va.hi, vb.hi)
```

```python
from asmlib import *
import model as M
import os
from k2 import (CT_F64, CT_F32, CT_T2048, CT_F56, CT_TW448, CT_G56, CT_TW448B, CT_SIZE, srd_consts, cmul)
from dft8 import *
import dft8pk as PK8

INSTR = os.environ.get("INSTR", "0") == "1"
NAME = "concat_heads__mha_block__spectral_gfnet__prompt_kernel"
WS_MB1 = 31 << 19
WS_MB2 = WS_MB1 + 65536
WS_MB3 = WS_MB1 + 98304
WS_TAG = WS_MB1 + 131072
LDS_X = 131072
LDS_Z = LDS_X + 9472
F_LDS = LDS_Z + 4 * 2304
L_RED = 65536
L_TR = 98304
NS = 4
SPIN = 100000
ST = os.environ.get("STF", "sc1")
LD = os.environ.get("LDF", "sc1")
SB = 80

def gen():
    name = "fk"
    a = Asm()
    a.raw(f".globl {NAME}\n.p2align 8\n.type {NAME},@function\n{NAME}:")
    SA, SBv, SWS, SC_, SD = 8, 12, 16, 20, 24
    sW, sXc, sSlot, sTag = 28, 29, 30, 49
    sTb, sG, sT0, sT1, sT2, sC, sSl, sXo, sWo, sOfs = 31, 32, 33, 34, 35, 36, 37, 38, 39, 48
    sHi = 50; sMsk = 52; sScale = 54; sPadv = 55; sTt = 40
    SP = 60; sN, sCh, sA_, sB2 = 56, 57, 58, 59
    uid = [0]
    def rt(idx):
        if INSTR:
            a("s_memrealtime s[96:97]\ns_waitcnt lgkmcnt(0)")
            a(f"s_mov_b32 s{SB+idx}, s96")
    def dump(wadd, vt):
        if INSTR:
            a("s_waitcnt vmcnt(0)")
            rt(15)
            a(f"s_lshl_b32 s96, s2, 9\ns_add_u32 s97, {s(sW)}, {wadd}\ns_lshl_b32 s97, s97, 6\ns_add_u32 s96, s96, s97\ns_add_u32 s96, s96, {M.WS_DBG}")
            a(f"v_mov_b32 {v(vt)}, 0")
            for i in range(16):
                a(f"v_mov_b32 {v(vt+1)}, s{SB+i}")
                a(f"buffer_store_dword {v(vt+1)}, {v(vt)}, {s(SWS,4)}, s96 offen offset:{4*i}\ns_nop 1")
            if os.environ.get("DBGOUT") and wadd == 0:
                uid[0] += 1
                a(f"s_lshl_b32 s96, s2, 2\ns_add_u32 s96, s96, {s(sW)}\ns_cmp_lg_u32 s96, 400\ns_cbranch_scc1 {name}_nodbg{uid[0]}")
                a(f"s_mov_b32 {s(SD)}, s78\ns_mov_b32 {s(SD+1)}, s79\ns_mov_b32 {s(SD+2)}, 256\ns_mov_b32 {s(SD+3)}, 0x20000")
                for i in range(16):
                    a(f"s_sub_u32 s96, s{SB+i}, s{SB}")
                    a(f"v_mov_b32 {v(vt+1)}, s96")
                    a(f"buffer_store_dword {v(vt+1)}, {v(vt)}, {s(SD,4)}, 0 offen offset:{4*i}\ns_nop 1")
                a.label(f"{name}_nodbg{uid[0]}")
    def poll(load_txt, cmp_txt, execmask):
        uid[0] += 1; L = f"{name}_poll{uid[0]}"
        a(f"s_mov_b64 exec, {execmask}")
        a(f"s_mov_b32 {s(sN)}, 0")
        a.label(L)
        a(load_txt)
        a("s_waitcnt vmcnt(0)")
        a(cmp_txt)
        a(f"s_add_u32 {s(sN)}, {s(sN)}, 1")
        a(f"s_cmp_gt_u32 {s(sN)}, {SPIN}")
        a(f"s_cbranch_scc1 {L}_x")
        if os.environ.get("BACKOFF"):
            a(f"s_cbranch_vccz {L}_x")
            a(f"s_sleep {os.environ['BACKOFF']}")
            a(f"s_branch {L}")
        else:
            a(f"s_cbranch_vccnz {L}")
        a.label(f"{L}_x")
        a("s_mov_b64 exec, -1")
    def ppoll(addr_v, soff, execmask, regs):
        NP = len(regs)
        uid[0] += 1; L = f"{name}_pp{uid[0]}"
        a("s_waitcnt vmcnt(0)")
        a(f"s_mov_b64 exec, {execmask}")
        a(f"s_mov_b32 {s(sN)}, 0")
        for i_, r_ in enumerate(regs):
            a(f"buffer_load_dword v{r_}, {addr_v}, {s(SWS,4)}, {soff} offen sc1")
            if i_ < NP - 1: a(f"s_sleep {os.environ.get('PSLEEP', '5')}")
        a.label(L)
        for r_ in regs:
            a(f"s_waitcnt vmcnt({NP-1})")
            a(f"v_cmp_ne_u32 vcc, {s(sTag)}, v{r_}")
            a("s_nop 1")
            a(f"s_cbranch_vccz {L}_x")
            a(f"buffer_load_dword v{r_}, {addr_v}, {s(SWS,4)}, {soff} offen sc1")
        a(f"s_add_u32 {s(sN)}, {s(sN)}, 1")
        a(f"s_cmp_lt_u32 {s(sN)}, {SPIN}")
        a(f"s_cbranch_scc1 {L}")
        a.label(f"{L}_x")
        a("s_mov_b64 exec, -1")
    if INSTR:
        for i in range(16): a(f"s_mov_b32 s{SB+i}, 0")
        rt(0)
    a(f"s_load_dwordx16 s[64:79], s[0:1], 0")
    a(f"s_cmp_ge_u32 s2, 256")
    a(f"s_cbranch_scc1 {name}_end")
    a(f"v_lshrrev_b32 v1, 6, v0")
    a(f"s_load_dwordx2 {s(SWS,2)}, s[0:1], 64")
    a(f"v_and_b32 v0, 63, v0")
    a(f"s_and_b32 {s(sXc)}, s2, 7")
    a(f"v_readfirstlane_b32 s3, v1")
    a(f"s_lshr_b32 {s(sSlot)}, s2, 3")
    a(f"v_lshlrev_b32 v1, 4, v0")
    if os.environ.get("WSOFF"):
        a("s_waitcnt lgkmcnt(0)")
        a(f"s_add_u32 {s(SWS)}, {s(SWS)}, {int(os.environ['WSOFF']) << 20}")
        a(f"s_addc_u32 {s(SWS+1)}, {s(SWS+1)}, 0")
    a(f"s_and_b32 {s(sW)}, s3, 3")
    a(f"s_mov_b32 {s(SWS+2)}, {M.WS_END}")
    a(f"s_mov_b32 {s(SWS+3)}, 0x20000")
    BL = os.environ.get("BLAST", "0") == "1"
    a(f"s_cmp_ge_u32 {s(sSlot)}, 24" if BL else f"s_cmp_lt_u32 {s(sSlot)}, 8")
    a(f"s_cbranch_scc1 {name}_bwg")
    a(f"s_sub_u32 {s(sN)}, {s(sSlot)}, {0 if BL else 8}")
    a(f"s_mul_i32 {s(sT0)}, {s(sN)}, 43")
    a(f"s_lshr_b32 {s(sT0)}, {s(sT0)}, 8")
    a(f"s_mul_i32 {s(sT1)}, {s(sT0)}, 6")
    a(f"s_sub_u32 {s(sT1)}, {s(sN)}, {s(sT1)}")
    a(f"s_lshr_b32 {s(sTb)}, {s(sXc)}, 1")
    a(f"s_lshl_b32 {s(sTb)}, {s(sTb)}, 2")
    a(f"s_add_u32 {s(sTb)}, {s(sTb)}, {s(sT0)}")
    a(f"s_and_b32 {s(sG)}, {s(sXc)}, 1")
    a(f"s_mul_i32 {s(sG)}, {s(sG)}, 6")
    a(f"s_add_u32 {s(sG)}, {s(sG)}, {s(sT1)}")
    a(f"s_and_b32 {s(sOfs)}, {s(sG)}, 1")
    a(f"s_lshl_b32 {s(sOfs)}, {s(sOfs)}, 5")
    a(f"s_mov_b32 {s(SA+2)}, {2048*896}\ns_mov_b32 {s(SA+3)}, 0x20000")
    a(f"s_mov_b32 {s(SBv+2)}, {448*2688}\ns_mov_b32 {s(SBv+3)}, 0x20000")
    CW2 = os.environ.get("CW2", "0") == "1"
    if not CW2:
        a(f"s_cmp_lt_u32 s3, 4")
        a(f"s_cbranch_scc1 {name}_t1c")
    vX0, vX1, vWw, vt = 2, 3, 4, 5
    a(f"v_lshrrev_b32 {v(vt)}, 3, v0")
    a(f"v_mul_u32_u24 {v(vX0)}, 896, {v(vt)}")
    a(f"v_and_b32 {v(vt)}, 7, v0")
    a(f"v_lshrrev_b32 {v(vt+1)}, 4, v0")
    a(f"v_xor_b32 {v(vt)}, {v(vt)}, {v(vt+1)}")
    a(f"v_xor_b32 {v(vt+2)}, 4, {v(vt)}")
    a(f"v_lshl_add_u32 {v(vX1)}, {v(vt+2)}, 4, {v(vX0)}")
    a(f"v_lshl_add_u32 {v(vX0)}, {v(vt)}, 4, {v(vX0)}")
    a(f"v_mul_u32_u24 {v(vWw)}, 2688, {v(vt+1)}")
    a(f"v_lshrrev_b32 {v(vt)}, 2, v0")
    a(f"v_sub_u32 {v(vt)}, {v(vt)}, {v(vt+1)}")
    a(f"v_and_b32 {v(vt)}, 3, {v(vt)}")
    a(f"v_lshl_add_u32 {v(vWw)}, {v(vt)}, 6, {v(vWw)}")
    a(f"v_and_b32 {v(vt)}, 3, v0")
    a(f"v_lshl_add_u32 {v(vWw)}, {v(vt)}, 4, {v(vWw)}")
    a(f"s_lshl_b32 {s(sT0)}, {s(sTb)}, 2")
    a(f"s_add_u32 {s(sT0)}, {s(sT0)}, {s(sW)}")
    a(f"s_mul_i32 {s(sXo)}, {s(sT0)}, {32*896}")
    a(f"s_mul_i32 {s(sWo)}, {s(sW)}, {16*2688}")
    a(f"s_mul_i32 {s(sT0)}, {s(sG)}, 224")
    a(f"s_add_u32 {s(sWo)}, {s(sWo)}, {s(sT0)}")
    a(f"s_sub_u32 {s(sWo)}, {s(sWo)}, {s(sOfs)}")
    a(f"s_lshl_b32 {s(sSl)}, {s(sW)}, 12")
    a(f"s_waitcnt lgkmcnt(0)")
    a(f"s_mov_b32 {s(SA)}, s64\ns_mov_b32 {s(SA+1)}, s65\ns_mov_b32 {s(SBv)}, s66\ns_mov_b32 {s(SBv+1)}, s67")
    def issue(c):
        base = (c % NS) * 32768
        for i in range(4):
            a(f"s_add_u32 m0, {s(sSl)}, {base + 1024*i}")
            a(f"s_add_u32 {s(sT0)}, {s(sXo)}, {8*i*896 + 128*c}")
            a(f"buffer_load_dwordx4 {v(vX1 if i % 2 else vX0)}, {s(SA,4)}, {s(sT0)} offen lds")
            a(f"s_add_u32 m0, {s(sSl)}, {base + 16384 + 1024*i}")
            a(f"s_add_u32 {s(sT0)}, {s(sWo)}, {(64*c + 4*i)*2688}")
            a(f"buffer_load_dwordx4 {v(vWw)}, {s(SBv,4)}, {s(sT0)} offen lds")
    if CW2:
        a(f"s_cmp_lt_u32 s3, 4")
        a(f"s_cbranch_scc1 {name}_t1c")
    a(f"v_mov_b32 v254, {WS_TAG}")
    a(f"buffer_load_dword v255, v254, {s(SWS,4)}, 0 offen")
    mine = [0, 1, 3, 4, 5, 6] if CW2 else list(range(7))
    qi = []
    for c in mine[:2]: issue(c); qi.append(c)
    for c in range(7):
        if c in qi: a(f"s_waitcnt vmcnt({8*(len(qi)-1-qi.index(c))})")
        if c in (0, 6): rt(1 if c == 0 else 2)
        if os.environ.get("LSTAMP"): rt(5 + c)
        a("s_barrier")
        if len(qi) < len(mine) and mine[len(qi)] <= c + 3:
            issue(mine[len(qi)]); qi.append(mine[len(qi)])
    a(f"s_and_b32 {s(sT0)}, {s(sG)}, 3")
    a(f"s_lshl_b32 {s(sT0)}, {s(sT0)}, 2")
    a(f"v_lshrrev_b32 v2, 4, v0")
    a(f"v_add_u32 v2, {s(sT0)}, v2")
    a(f"v_and_b32 v3, 15, v0")
    a(f"s_lshr_b32 {s(sT1)}, {s(sG)}, 2")
    a(f"s_cmp_eq_u32 {s(sT1)}, 0")
    a(f"s_cbranch_scc0 {name}_sig_kv")
    a(f"v_mov_b32 v3, {s(sTb)}")
    a.label(f"{name}_sig_kv")
    a(f"v_and_b32 v4, 1, v2")
    a(f"v_lshl_add_u32 v4, v4, 4, v3")
    a(f"v_lshrrev_b32 v2, 1, v2")
    a(f"v_lshl_add_u32 v2, v4, 3, v2")
    a(f"v_lshlrev_b32 v2, 8, v2")
    a(f"s_lshl_b32 {s(sT0)}, {s(sT1)}, 4")
    a(f"s_add_u32 {s(sT0)}, {s(sT0)}, {s(sTb)}")
    a(f"s_sub_u32 {s(sT0)}, {s(sT0)}, 16")
    a(f"s_cmp_eq_u32 {s(sT1)}, 0")
    a(f"s_cselect_b32 {s(sT0)}, 32, {s(sT0)}")
    a(f"s_lshl_b32 {s(sT0)}, {s(sT0)}, 2")
    a(f"s_add_u32 {s(sXo)}, {s(sT0)}, {WS_MB1}")
    a(f"s_mov_b32 {s(sWo)}, 0")
    a(f"s_branch {name}_h_p1")
    a.label(f"{name}_t1c")
    va = VAlloc(8)
    ACC = [[va(16) for hp in range(2)] for tt in range(2)]
    XF = [[va(4) for tt in range(2)] for b in range(2)]
    WF = [[va(4) for hp in range(2)] for b in range(2)]
    bX = [va(1) for i in range(4)]; bW = [va(1) for hp in range(2)]
    aX = [va(1) for i in range(4)]; aW = [va(1) for hp in range(2)]
    t = [va(1) for i in range(6)]
    vPad = va(1)
    def pf_lin():
        a(f"s_lshl_b32 {s(sN)}, {s(sN)}, 2")
        a(f"s_add_u32 {s(sN)}, {s(sN)}, {s(sW)}")
        a(f"s_cmp_lt_u32 {s(sN)}, 56")
        a(f"s_cbranch_scc1 {name}_pf_x")
        a(f"s_sub_u32 {s(sA_)}, {s(sN)}, 56")
        a(f"s_lshl_b32 {s(sA_)}, {s(sA_)}, 6")
        a(f"s_and_b32 {s(sB2)}, {s(sXc)}, 1")
        a(f"s_mul_i32 {s(sB2)}, {s(sB2)}, 1280")
        a(f"s_add_u32 {s(sB2)}, {s(sB2)}, {128*2688}")
        a(f"s_waitcnt lgkmcnt(0)")
        a(f"s_mov_b32 {s(SBv)}, s66\ns_mov_b32 {s(SBv+1)}, s67")
        for it in range(2):
            a(f"v_add_u32 v3, {s(sA_)}, v0")
            a(f"v_mul_u32_u24 v4, 43691, v3")
            a(f"v_lshrrev_b32 v4, 19, v4")
            a(f"v_mul_u32_u24 v5, 12, v4")
            a(f"v_sub_u32 v5, v3, v5")
            a(f"v_mul_u32_u24 v4, 2688, v4")
            a(f"v_lshl_add_u32 v4, v5, 7, v4")
            a(f"buffer_load_dword v6, v4, {s(SBv,4)}, {s(sB2)} offen")
            a(f"s_add_u32 {s(sA_)}, {s(sA_)}, 2560")
        a(f"s_branch {name}_pf_end")
        a.label(f"{name}_pf_x")
        a(f"v_lshlrev_b32 v4, 7, v0")
        a(f"s_lshr_b32 {s(sB2)}, {s(sXc)}, 1")
        a(f"s_mul_i32 {s(sB2)}, {s(sB2)}, {512*896}")
        a(f"s_lshl_b32 {s(sA_)}, {s(sN)}, 13")
        a(f"s_add_u32 {s(sB2)}, {s(sB2)}, {s(sA_)}")
        a(f"s_waitcnt lgkmcnt(0)")
        a(f"s_mov_b32 {s(SA)}, s64\ns_mov_b32 {s(SA+1)}, s65")
        a(f"buffer_load_dword v6, v4, {s(SA,4)}, {s(sB2)} offen")
        a(f"s_add_u32 {s(sN)}, {s(sN)}, 50")
    def pf_block():
        if os.environ.get("PFMODE", "lin") == "lin":
            pf_lin()
        else:
            a(f"s_lshl_b32 {s(sN)}, {s(sN)}, 2")
            a(f"s_add_u32 {s(sN)}, {s(sN)}, {s(sW)}")
            a(f"s_add_u32 {s(sN)}, {s(sN)}, {os.environ.get('PFO', '4')}")
            a(f"s_cmp_ge_u32 {s(sN)}, {os.environ.get('PFN', '100')}")
            a(f"s_cbranch_scc1 {name}_pf_end")
            a(f"s_mul_i32 {s(sCh)}, {s(sN)}, 205")
            a(f"s_lshr_b32 {s(sCh)}, {s(sCh)}, 12")
            a(f"s_mul_i32 {s(sA_)}, {s(sCh)}, 20")
            a(f"s_sub_u32 {s(sA_)}, {s(sN)}, {s(sA_)}")
            a(f"s_add_u32 {s(sCh)}, {s(sCh)}, 2")
            a(f"s_cmp_lt_u32 {s(sA_)}, 8")
            a(f"s_cbranch_scc1 {name}_pf_x")
            a(f"s_sub_u32 {s(sA_)}, {s(sA_)}, 8")
            a(f"s_lshl_b32 {s(sA_)}, {s(sA_)}, 6")
            a(f"v_add_u32 v3, {s(sA_)}, v0")
            a(f"v_mul_u32_u24 v4, 43691, v3")
            a(f"v_lshrrev_b32 v4, 19, v4")
            a(f"v_mul_u32_u24 v5, 12, v4")
            a(f"v_sub_u32 v5, v3, v5")
            a(f"v_mul_u32_u24 v4, 2688, v4")
            a(f"v_lshl_add_u32 v4, v5, 7, v4")
            a(f"s_and_b32 {s(sA_)}, {s(sXc)}, 1")
            a(f"s_mul_i32 {s(sA_)}, {s(sA_)}, 1280")
            a(f"s_mul_i32 {s(sB2)}, {s(sCh)}, {64*2688}")
            a(f"s_add_u32 {s(sA_)}, {s(sA_)}, {s(sB2)}")
            a(f"s_waitcnt lgkmcnt(0)")
            a(f"s_mov_b32 {s(SBv)}, s66\ns_mov_b32 {s(SBv+1)}, s67")
            a(f"buffer_load_dword v6, v4, {s(SBv,4)}, {s(sA_)} offen")
            a(f"s_branch {name}_pf_end")
            a.label(f"{name}_pf_x")
            a(f"v_mul_u32_u24 v4, 896, v0")
            a(f"s_lshr_b32 {s(sB2)}, {s(sXc)}, 1")
            a(f"s_lshl_b32 {s(sB2)}, {s(sB2)}, 3")
            a(f"s_add_u32 {s(sB2)}, {s(sB2)}, {s(sA_)}")
            a(f"s_mul_i32 {s(sB2)}, {s(sB2)}, {64*896}")
            a(f"s_lshl_b32 {s(sA_)}, {s(sCh)}, 7")
            a(f"s_add_u32 {s(sB2)}, {s(sB2)}, {s(sA_)}")
            a(f"s_waitcnt lgkmcnt(0)")
            a(f"s_mov_b32 {s(SA)}, s64\ns_mov_b32 {s(SA+1)}, s65")
            a(f"buffer_load_dword v6, v4, {s(SA,4)}, {s(sB2)} offen")
        a.label(f"{name}_pf_end")
        rt(11)
        if os.environ.get("CPF2", "1") == "1":
            a(f"s_sub_u32 {s(sN)}, {s(sN)}, 87")
            a(f"s_cmp_ge_u32 {s(sN)}, 13")
            a(f"s_cbranch_scc1 {name}_nocp2")
            a(f"v_lshlrev_b32 v2, 7, v0")
            a(f"s_cmp_lt_u32 {s(sN)}, 3")
            a(f"s_cbranch_scc0 {name}_cp2_c")
            a(f"s_lshl_b32 {s(sT0)}, {s(sN)}, 13")
            a(f"s_getpc_b64 {s(SC_,2)}")
            a.label(f"{name}_cp2_pc")
            a(f"s_sub_u32 {s(SC_)}, {s(SC_)}, {name}_cp2_pc-{NAME}")
            a(f"s_subb_u32 {s(SC_+1)}, {s(SC_+1)}, 0")
            a(f"s_mov_b32 {s(SC_+2)}, {name}_end-{NAME}")
            a(f"s_mov_b32 {s(SC_+3)}, 0x20000")
            a(f"buffer_load_dword v7, v2, {s(SC_,4)}, {s(sT0)} offen")
            a(f"s_branch {name}_nocp2")
            a.label(f"{name}_cp2_c")
            srd_consts(a, SC_)
            a(f"s_sub_u32 {s(sT0)}, {s(sN)}, 3")
            a(f"s_lshl_b32 {s(sT0)}, {s(sT0)}, 13")
            a(f"buffer_load_dword v7, v2, {s(SC_,4)}, {s(sT0)} offen")
            a.label(f"{name}_nocp2")

    PFIRST = os.environ.get("PFIRST", "1") == "1"
    if CW2:
        for r_ in range(3): a(f"v_mov_b32 {v(t[r_])}, v{2+r_}")
        if PFIRST: pf_block()
        for r_ in range(3): a(f"v_mov_b32 v{2+r_}, {v(t[r_])}")
        issue(2)
        if not PFIRST: pf_block()
    else:
        pf_block()
    a(f"v_and_b32 {v(t[0])}, 31, v0")
    a(f"v_lshrrev_b32 {v(t[1])}, 5, v0")
    a(f"v_bfe_u32 {v(t[2])}, v0, 1, 3")
    a(f"v_xor_b32 {v(t[2])}, {v(t[2])}, {v(t[1])}")
    a(f"s_lshr_b32 {s(sT0)}, {s(sW)}, 1")
    a(f"s_lshl_b32 {s(sT0)}, {s(sT0)}, 13")
    a(f"v_lshl_add_u32 {v(t[3])}, {v(t[0])}, 7, {s(sT0)}")
    for i in range(4):
        a(f"v_xor_b32 {v(t[4])}, {2*i}, {v(t[2])}")
        a(f"v_lshl_add_u32 {v(bX[i])}, {v(t[4])}, 4, {v(t[3])}")
    a(f"v_mov_b32 {v(vPad)}, 0")
    a(f"v_mov_b32 {v(t[4])}, 0x3f803f80")
    a(f"v_cmp_eq_u32 vcc, 28, {v(t[0])}")
    a(f"v_bfe_u32 {v(t[0])}, v0, 2, 2")
    a(f"v_lshl_add_u32 {v(t[2])}, {v(t[1])}, 3, {v(t[0])}")
    a(f"v_cndmask_b32 {v(vPad)}, {v(vPad)}, {v(t[4])}, vcc")
    a(f"v_lshlrev_b32 {v(t[2])}, 8, {v(t[2])}")
    a(f"v_bfe_u32 {v(t[3])}, v0, 4, 1")
    a(f"v_lshlrev_b32 {v(t[3])}, 5, {v(t[3])}")
    a(f"v_lshl_add_u32 {v(t[3])}, {v(t[0])}, 6, {v(t[3])}")
    a(f"v_and_b32 {v(t[4])}, 3, v0")
    a(f"v_lshl_add_u32 {v(t[3])}, {v(t[4])}, 3, {v(t[3])}")
    a(f"s_and_b32 {s(sT0)}, {s(sW)}, 1")
    a(f"s_mul_i32 {s(sT0)}, {s(sT0)}, 112")
    a(f"s_add_u32 {s(sT0)}, {s(sT0)}, {s(sOfs)}")
    for hp in range(2):
        a(f"s_add_u32 {s(sT1)}, {s(sT0)}, {56*hp}")
        a(f"v_add_u32 {v(t[4])}, {s(sT1)}, {v(t[3])}")
        a(f"v_and_b32 {v(t[4])}, 255, {v(t[4])}")
        a(f"v_add_u32 {v(bW[hp])}, {v(t[4])}, {v(t[2])}")
    for tt in range(2):
        for hp in range(2):
            for r in range(16):
                a(f"v_mov_b32 {v(ACC[tt][hp]+r)}, 0")
    a(f"s_lshr_b32 {s(sT0)}, {s(sG)}, 2")
    a(f"s_mul_i32 {s(sXo)}, {s(sT0)}, {M.RS}")
    a(f"s_add_u32 {s(sXo)}, {s(sXo)}, {M.WS_QF}")
    a(f"s_and_b32 {s(sT0)}, {s(sG)}, 3")
    a(f"s_mul_i32 {s(sT0)}, {s(sT0)}, {4*M.HS}")
    a(f"s_add_u32 {s(sXo)}, {s(sXo)}, {s(sT0)}")
    a(f"s_and_b32 {s(sT0)}, {s(sW)}, 1")
    a(f"s_mul_i32 {s(sT0)}, {s(sT0)}, {2*M.HS}")
    a(f"s_add_u32 {s(sXo)}, {s(sXo)}, {s(sT0)}")
    a(f"s_lshl_b32 {s(sT0)}, {s(sTb)}, 13")
    a(f"s_add_u32 {s(sXo)}, {s(sXo)}, {s(sT0)}")
    a(f"s_lshr_b32 {s(sT0)}, {s(sW)}, 1")
    a(f"s_lshl_b32 {s(sT0)}, {s(sT0)}, 12")
    a(f"s_add_u32 {s(sXo)}, {s(sXo)}, {s(sT0)}")
    a(f"s_add_u32 {s(sWo)}, {s(sXo)}, {M.HS}")
    a(f"s_mov_b32 {s(sHi)}, 0\ns_mov_b32 {s(sHi+1)}, -1")
    a(f"s_mov_b32 {s(sMsk)}, 0xf0000000\ns_mov_b32 {s(sMsk+1)}, 0xf0000000")
    a(f"s_cmp_lt_u32 {s(sG)}, 4")
    a(f"s_cselect_b32 {s(SP)}, {f32hex(M.SC)}, 1.0")
    a(f"s_cselect_b32 {s(SP+1)}, {f32hex(M.SC)}, 1.0")
    a(f"s_cselect_b32 {s(sPadv)}, 0, 0x3f803f80")
    a(f"s_mov_b32 {s(sC)}, 0")
    a(f"s_cmp_ge_u32 {s(sG)}, 8")
    a(f"s_cbranch_scc1 {name}_t1v")
    def setaddr(nxt):
        a(f"s_add_u32 {s(sT0)}, {s(sC)}, {nxt}")
        a(f"s_and_b32 {s(sT0)}, {s(sT0)}, {NS-1}")
        a(f"s_lshl_b32 {s(sT0)}, {s(sT0)}, 15")
        for i in range(4):
            a(f"v_add_u32 {v(aX[i])}, {s(sT0)}, {v(bX[i])}")
        for hp in range(2):
            a(f"v_add_u32 {v(aW[hp])}, {s(sT0)}, {v(bW[hp])}")
    def rd_list(i, b):
        L = []
        for tt in range(2):
            L.append(f"ds_read_b128 {v(XF[b][tt],4)}, {v(aX[i])} offset:{4096*tt}")
        for hp in range(2):
            for jj in range(2):
                L.append(f"ds_read_b64_tr_b16 {v(WF[b][hp]+2*jj,2)}, {v(aW[hp])} offset:{16384+(16*i+4*jj)*256}")
        return [L[0], L[2], L[3], L[4], L[5], L[1]]
    def kloop(lbl, vmode):
        setaddr(0)
        rt(12)
        a("s_barrier")
        rt(13)
        for r_ in rd_list(0, 0): a(r_)
        a.label(lbl)
        for i in range(4):
            b = i % 2
            mm = []
            for tt in range(2):
                for hp in range(2):
                    mm.append(mfma32(ACC[tt][hp], XF[b][tt], WF[b][hp], ACC[tt][hp]) if vmode else mfma32(ACC[tt][hp], WF[b][hp], XF[b][tt], ACC[tt][hp]))
            a("s_waitcnt lgkmcnt(0)")
            if i < 3:
                R = rd_list(i + 1, 1 - b)
                a(mm[0]); a(R[0]); a(R[1]); a(mm[1]); a(R[2]); a(R[3]); a(mm[2]); a(R[4]); a(R[5]); a(mm[3])
            else:
                R = rd_list(0, 0)
                a(mm[0])
                a(f"s_cmp_eq_u32 {s(sC)}, 6")
                a(f"s_cbranch_scc1 {lbl}_last")
                setaddr(1)
                a(mm[1])
                if CW2:
                    a(f"s_cmp_lg_u32 {s(sC)}, 1")
                    a(f"s_cbranch_scc1 {lbl}_nw")
                    a("s_waitcnt vmcnt(0)" if PFIRST else "s_waitcnt vmcnt(2)")
                    a.label(f"{lbl}_nw")
                a("s_barrier")
                a(R[0]); a(R[1]); a(R[2]); a(mm[2]); a(R[3]); a(R[4]); a(R[5]); a(mm[3])
                a(f"s_add_u32 {s(sC)}, {s(sC)}, 1")
                a(f"s_branch {lbl}")
                a.label(f"{lbl}_last")
                a(mm[1]); a(mm[2]); a(mm[3])
        rt(1)
        a("s_nop 7\ns_nop 1")
    order = [(0, 0), (0, 1), (1, 0), (1, 1)]
    kloop(f"{name}_qk_loop", False)
    for tt, hp in order:
        A_ = ACC[tt][hp]
        for r in range(0, 16, 2):
            a(f"v_pk_mul_f32 {v(A_+r,2)}, {v(A_+r,2)}, {s(SP,2)}")
        for k in range(8):
            a(f"v_cvt_pk_bf16_f32 {v(A_+k)}, {v(A_+2*k)}, {v(A_+2*k+1)}")
        a(f"s_mov_b64 exec, {s(sHi,2)}")
        a(f"v_mov_b32 {v(A_+6)}, {s(sPadv)}")
        a(f"v_mov_b32 {v(A_+7)}, 0")
        a(f"s_mov_b64 exec, -1")
        for t_ in range(2):
            a(f"buffer_store_dwordx4 {v(A_+4*t_,4)}, v1, {s(SWS,4)}, {s(sWo if hp else sXo)} offen offset:{2048*tt+1024*t_} {ST}")
    a(f"s_branch {name}_c_p1")
    a.label(f"{name}_t1v")
    kloop(f"{name}_v_loop", True)
    for tt, hp in order:
        A_ = ACC[tt][hp]
        for k in range(8):
            a(f"v_cvt_pk_bf16_f32 {v(A_+k)}, {v(A_+2*k)}, {v(A_+2*k+1)}")
        a(f"s_mov_b64 exec, {s(sMsk,2)}")
        for k in range(8):
            a(f"v_mov_b32 {v(A_+k)}, {v(vPad)}")
        a(f"s_mov_b64 exec, -1")
        for t_ in range(2):
            a(f"buffer_store_dwordx4 {v(A_+4*t_,4)}, v1, {s(SWS,4)}, {s(sWo if hp else sXo)} offen offset:{2048*tt+1024*t_} {ST}")
    a(f"s_branch {name}_c_p1")
    hi = va.hi
    a.label(f"{name}_bwg")
    sB = sTb
    a(f"s_lshl_b32 {s(sB)}, {s(sXc)}, 3")
    a(f"s_add_u32 {s(sB)}, {s(sB)}, {s(sSlot)}")
    if BL: a(f"s_sub_u32 {s(sB)}, {s(sB)}, 24")
    srd_consts(a, SC_)
    if os.environ.get("CPF", "0") == "1":
        a(f"s_cmp_ge_u32 {s(sSlot)}, 3")
        a(f"s_cbranch_scc1 {name}_nocpf")
        a(f"v_lshlrev_b32 v2, 7, v0")
        a(f"s_lshl_b32 {s(sT0)}, s3, 13")
        a(f"s_cmp_eq_u32 {s(sSlot)}, 0")
        a(f"s_cbranch_scc0 {name}_cpf_c")
        a(f"s_getpc_b64 {s(SP,2)}")
        a.label(f"{name}_cpf_pc")
        a(f"s_sub_u32 {s(SP)}, {s(SP)}, {name}_cpf_pc-{NAME}")
        a(f"s_subb_u32 {s(SP+1)}, {s(SP+1)}, 0")
        a(f"s_mov_b32 {s(SP+2)}, {name}_end-{NAME}")
        a(f"s_mov_b32 {s(SP+3)}, 0x20000")
        a(f"buffer_load_dword v3, v2, {s(SP,4)}, {s(sT0)} offen")
        a(f"s_branch {name}_nocpf")
        a.label(f"{name}_cpf_c")
        a(f"s_lshl_b32 {s(sT1)}, {s(sSlot)}, 16")
        a(f"s_add_u32 {s(sT0)}, {s(sT0)}, {s(sT1)}")
        a(f"s_sub_u32 {s(sT0)}, {s(sT0)}, 65536")
        a(f"buffer_load_dword v3, v2, {s(SC_,4)}, {s(sT0)} offen")
        a.label(f"{name}_nocpf")
    a(f"s_cmp_ge_u32 s3, 4")
    a(f"s_cbranch_scc1 {name}_t3")
    a(f"s_mov_b32 {s(SA+2)}, {2048*896}\ns_mov_b32 {s(SA+3)}, 0x20000")
    va = VAlloc(2)
    RAW = [va(32), va(32)]
    XFc = [va(4) for j in range(8)]
    AC = [[va(4) for cs in range(2)] for j in range(8)]
    FC = [[va(4) for u in range(2)] for cs in range(2)]
    TWv = va(56)
    t = [va(1) for i in range(8)]
    vP = [va(1) for r in range(4)]; vM = [va(1) for r in range(4)]
    aR = [va(1), va(1)]
    sGq, sO = sG, sC
    a(f"s_lshr_b32 {s(sGq)}, {s(sB)}, 2")
    a(f"s_and_b32 {s(sO)}, {s(sB)}, 3")
    a(f"s_and_b32 {s(sT1)}, {s(sW)}, 1")
    a(f"s_lshl_b32 {s(sT0)}, {s(sT1)}, 12")
    a(f"s_add_u32 {s(sT0)}, {s(sT0)}, {CT_F56}")
    for cs in range(2):
        for u in range(2):
            a(f"buffer_load_dwordx4 {v(FC[cs][u],4)}, v1, {s(SC_,4)}, {s(sT0)} offen offset:{2048*cs+1024*u}")
    a(f"v_lshrrev_b32 {v(t[5])}, 4, v0")
    a(f"v_lshlrev_b32 {v(t[6])}, 8, {v(t[5])}")
    a(f"s_lshl_b32 {s(sT0)}, {s(sT1)}, 10")
    a(f"s_add_u32 {s(sT0)}, {s(sT0)}, {CT_TW448B}")
    for q in range(14):
        a(f"buffer_load_dwordx4 {v(TWv+4*q,4)}, {v(t[6])}, {s(SC_,4)}, {s(sT0)} offen offset:{16*q}")
    a(f"s_lshr_b32 {s(sT2)}, {s(sW)}, 1")
    a(f"s_lshl_b32 {s(sT0)}, {s(sGq)}, 5")
    a(f"s_lshl_b32 {s(sT1)}, {s(sO)}, 1")
    a(f"s_add_u32 {s(sT0)}, {s(sT0)}, {s(sT1)}")
    a(f"s_add_u32 {s(sT0)}, {s(sT0)}, {s(sT2)}")
    a(f"s_mul_i32 {s(sXo)}, {s(sT0)}, {4*896}")
    a(f"s_mul_i32 {s(sSl)}, {s(sW)}, 14336")
    a(f"v_lshrrev_b32 {v(t[0])}, 3, v0")
    a(f"v_and_b32 {v(t[1])}, 7, v0")
    for i in range(14):
        d_ = RAW[1] + i
        a(f"v_add_u32 {v(t[2])}, {8*i}, {v(t[0])}")
        a(f"v_mul_u32_u24 {v(t[3])}, 147, {v(t[2])}")
        a(f"v_lshrrev_b32 {v(t[3])}, 10, {v(t[3])}")
        a(f"v_lshrrev_b32 {v(t[4])}, 2, {v(t[3])}")
        a(f"v_and_b32 {v(t[3])}, 1, {v(t[3])}")
        a(f"v_lshl_add_u32 {v(t[3])}, {v(t[3])}, 2, {v(t[4])}")
        a(f"v_xor_b32 {v(t[3])}, {v(t[3])}, {v(t[1])}")
        a(f"v_mul_u32_u24 {v(t[4])}, {32*896-3584}, {v(t[4])}")
        a(f"v_lshl_add_u32 {v(t[4])}, {v(t[2])}, 7, {v(t[4])}")
        a(f"v_lshl_add_u32 {v(d_)}, {v(t[3])}, 4, {v(t[4])}")
    a("s_waitcnt lgkmcnt(0)" + (" vmcnt(0)" if os.environ.get("T2P", "0") == "1" else ""))
    a(f"s_mov_b32 {s(SA)}, s70\ns_mov_b32 {s(SA+1)}, s71")
    for rnd in range(int(os.environ.get("T2R", "0"))):
        a(f"s_mov_b32 {s(SP)}, s68\ns_mov_b32 {s(SP+1)}, s69\ns_mov_b32 {s(SP+2)}, {448*896}\ns_mov_b32 {s(SP+3)}, 0x20000")
        a(f"s_lshl_b32 {s(sT0)}, {s(sB)}, 2\ns_add_u32 {s(sT0)}, {s(sT0)}, {s(sW)}\ns_lshl_b32 {s(sT0)}, {s(sT0)}, 10\ns_add_u32 {s(sT0)}, {s(sT0)}, {rnd*262144}")
        a(f"buffer_load_dwordx4 {v(RAW[0],4)}, v1, {s(SP,4)}, {s(sT0)} offen")
        a("s_waitcnt vmcnt(0)")
    for i in range(14):
        a(f"s_add_u32 m0, {s(sSl)}, {1024*i}")
        a("s_nop 0")
        a(f"buffer_load_dwordx4 {v(RAW[1]+i)}, {s(SA,4)}, {s(sXo)} offen lds")
    a(f"s_and_b32 {s(sT1)}, {s(sW)}, 1")
    a(f"v_and_b32 {v(t[0])}, 3, v0")
    a(f"v_bfe_u32 {v(t[1])}, v0, 2, 2")
    a(f"v_lshl_add_u32 {v(t[2])}, {v(t[0])}, 2, {v(t[1])}")
    a(f"v_mul_u32_u24 {v(t[2])}, 896, {v(t[2])}")
    a(f"v_add_u32 {v(t[2])}, {s(sSl)}, {v(t[2])}")
    a(f"v_and_b32 {v(t[1])}, 1, {v(t[1])}")
    a(f"v_lshl_add_u32 {v(t[3])}, {v(t[1])}, 2, {v(t[0])}")
    a(f"v_lshlrev_b32 {v(t[3])}, 4, {v(t[3])}")
    a(f"v_lshl_add_u32 {v(aR[0])}, {v(t[5])}, 7, {v(t[2])}")
    a(f"v_min_u32 {v(t[4])}, 2, {v(t[5])}")
    a(f"v_lshl_add_u32 {v(aR[1])}, {v(t[4])}, 7, {v(t[2])}")
    a(f"v_add_u32 {v(aR[1])}, 512, {v(aR[1])}")
    a(f"v_and_b32 {v(t[0])}, 15, v0")
    a(f"v_lshlrev_b32 {v(t[0])}, 2, {v(t[0])}")
    a(f"s_lshl_b32 {s(sT0)}, {s(sT1)}, 4")
    a(f"v_lshl_add_u32 {v(t[1])}, {v(t[5])}, 2, {s(sT0)}")
    a(f"v_mov_b32 {v(t[7])}, 0x7f000000")
    a(f"s_mov_b32 {s(sA_)}, {M.X1S}")
    for rr in range(4):
        a(f"v_add_u32 {v(t[2])}, {rr}, {v(t[1])}")
        a(f"v_mad_u32_u24 {v(vP[rr])}, {v(t[2])}, {s(sA_)}, {v(t[0])}")
        a(f"v_sub_u32 {v(t[4])}, 28, {v(t[2])}")
        a(f"v_mad_u32_u24 {v(vM[rr])}, {v(t[4])}, {s(sA_)}, {v(t[0])}")
        a(f"v_cmp_lt_u32 vcc, 28, {v(t[2])}")
        a("s_nop 1")
        a(f"v_cndmask_b32 {v(vP[rr])}, {v(vP[rr])}, {v(t[7])}, vcc")
        a(f"v_cndmask_b32 {v(vM[rr])}, {v(vM[rr])}, {v(t[7])}, vcc")
    a(f"s_lshr_b32 {s(sT0)}, {s(sO)}, 1")
    a(f"s_lshl_b32 {s(sT0)}, {s(sT0)}, 12")
    a(f"s_lshl_b32 {s(sT1)}, {s(sGq)}, 8")
    a(f"s_add_u32 {s(sT0)}, {s(sT0)}, {s(sT1)}")
    a(f"s_and_b32 {s(sT1)}, {s(sO)}, 1")
    a(f"s_lshl_b32 {s(sT1)}, {s(sT1)}, 7")
    a(f"s_add_u32 {s(sT0)}, {s(sT0)}, {s(sT1)}")
    a(f"s_lshl_b32 {s(sT1)}, {s(sT2)}, 6")
    a(f"s_add_u32 {s(sT0)}, {s(sT0)}, {s(sT1)}")
    for tt_ in range(8):
        col = 56 * tt_ if tt_ < 4 else 56 * (8 - tt_) - 28
        a(f"s_add_u32 {s(sTt+tt_)}, {s(sT0)}, {M.WS_X1 + col*M.X1S}")
    a(f"s_mov_b32 {s(sScale)}, {f32hex(0.5**0.5)}\ns_mov_b32 {s(sScale+1)}, {f32hex(0.5**0.5)}")
    a(f"s_mov_b32 {s(sMsk)}, 0x05040100\ns_mov_b32 {s(sMsk+1)}, 0x07060302")
    a("s_waitcnt vmcnt(0)")
    rt(1)
    for u in range(2):
        for e in range(8):
            a(f"v_xor_b32 {v(t[e%2])}, {16*e}, {v(t[3])}")
            a(f"v_add_u32 {v(t[e%2])}, {v(t[e%2])}, {v(aR[u])}")
            a(f"ds_read_b128 {v(RAW[u]+4*e,4)}, {v(t[e%2])}")
    for u in range(2):
        a(f"s_waitcnt lgkmcnt({8 if u == 0 else 0})")
        for j in range(8):
            for q in range(4):
                lo = RAW[u] + 8 * q + j // 2; hi_ = RAW[u] + 8 * q + 4 + j // 2
                a(f"v_perm_b32 {v(XFc[j]+q)}, {v(hi_)}, {v(lo)}, {s(sMsk + j % 2)}")
            if j >= 1:
                for cs in range(2):
                    a(mfma16(AC[j-1][cs], FC[cs][u], XFc[j-1], None if u == 0 else AC[j-1][cs]))
        a("s_nop 1")
        for cs in range(2):
            a(mfma16(AC[7][cs], FC[cs][u], XFc[7], None if u == 0 else AC[7][cs]))
    a("s_nop 7")
    for rp in range(2):
        pool = Pool([RAW[0] + 8 + 2 * i for i in range(8)])
        for j in range(1, 8):
            tw = TWv + 8 * (j - 1) + 2 * rp
            PK8.pcmul(a, AC[j][0] + 2 * rp, AC[j][1] + 2 * rp, tw, tw + 4, RAW[0] + 4 * (j % 2))
        X = PK8.dft8(a, pool, [((AC[j][0] + 2 * rp, 1), (AC[j][1] + 2 * rp, 1)) for j in range(8)], -1, sScale)
        for tt_ in range(8):
            re, im = X[tt_]
            if tt_ >= 4: im = neg(im)
            for h in range(2):
                rr = 2 * rp + h
                o_ = RAW[1] + 8 * rr + tt_
                a(f"v_cvt_pk_bf16_f32 {v(o_)}, {sv((re[0]+h, re[1]))}, {sv((im[0]+h, im[1]))}")
                a(f"buffer_store_dword {v(o_)}, {v(vP[rr] if tt_ < 4 else vM[rr])}, {s(SWS,4)}, {s(sTt+tt_)} offen {ST}")
    a(f"s_mov_b32 {s(sHi)}, 0\ns_mov_b32 {s(sHi+1)}, -1")
    a(f"s_branch {name}_c_p1")
    hi = max(hi, va.hi)
    a.label(f"{name}_t3")
    a(f"s_lshr_b32 {s(sG)}, {s(sB)}, 3")
    a(f"s_and_b32 {s(sC)}, {s(sB)}, 7")
    a(f"s_lshl_b32 {s(sT0)}, {s(sG)}, 7")
    a(f"s_lshl_b32 {s(sT1)}, {s(sC)}, 2")
    a(f"s_add_u32 {s(sT0)}, {s(sT0)}, {s(sT1)}")
    a(f"s_add_u32 {s(sT0)}, {s(sT0)}, {s(sW)}")
    a(f"s_mul_i32 {s(sXo)}, {s(sT0)}, 900")
    a(f"s_lshl_b32 {s(sSl)}, {s(sW)}, 13")
    a(f"s_add_u32 {s(sSl)}, {s(sSl)}, 65536")
    a(f"v_lshlrev_b32 v2, 7, v0")
    a(f"s_and_b32 {s(sT1)}, {s(sSlot)}, 7")
    a(f"s_lshl_b32 {s(sT1)}, {s(sT1)}, 13")
    if os.environ.get("T3P", "1") == "1":
        a(f"buffer_load_dword v3, v2, {s(SC_,4)}, {s(sT1)} offen")
        a("s_waitcnt vmcnt(0)")
    for rnd in range(int(os.environ.get("T3R", "0"))):
        a("s_waitcnt lgkmcnt(0)")
        a(f"s_mov_b32 {s(SP)}, s68\ns_mov_b32 {s(SP+1)}, s69\ns_mov_b32 {s(SP+2)}, {448*896}\ns_mov_b32 {s(SP+3)}, 0x20000")
        a(f"s_lshl_b32 {s(sT0)}, {s(sB)}, 2\ns_add_u32 {s(sT0)}, {s(sT0)}, {s(sW)}\ns_lshl_b32 {s(sT0)}, {s(sT0)}, 9\ns_add_u32 {s(sT0)}, {s(sT0)}, {262144 + rnd*65536}")
        a(f"buffer_load_dwordx2 v[8:9], v1, {s(SP,4)}, {s(sT0)} offen")
        a("s_waitcnt vmcnt(0)")
    a(f"s_waitcnt lgkmcnt(0)")
    a(f"s_mov_b32 {s(SBv)}, s72\ns_mov_b32 {s(SBv+1)}, s73\ns_mov_b32 {s(SBv+2)}, {2048*450}\ns_mov_b32 {s(SBv+3)}, 0x20000")
    a(f"s_mov_b32 {s(SD)}, s74\ns_mov_b32 {s(SD+1)}, s75\ns_mov_b32 {s(SD+2)}, {2048*450}\ns_mov_b32 {s(SD+3)}, 0x20000")
    a(f"v_mov_b32 v254, {WS_TAG}")
    a(f"buffer_load_dword v255, v254, {s(SWS,4)}, 0 offen")
    for r in range(4):
        for arr in range(2):
            a(f"s_add_u32 m0, {s(sSl)}, {4096*arr + 1024*r}")
            a(f"s_add_u32 {s(sT0)}, {s(sXo)}, {64*450*r}")
            a(f"buffer_load_dwordx4 v1, {s(SD if arr else SBv,4)}, {s(sT0)} offen lds")
    a(f"v_and_b32 v2, 1, v0")
    a(f"v_lshrrev_b32 v3, 1, v0")
    a(f"v_mul_u32_u24 v4, 450, v2")
    a(f"v_lshl_add_u32 v4, v3, 1, v4")
    a(f"v_add_u32 v4, {s(sSl)}, v4")
    a(f"v_lshrrev_b32 v5, 3, v0")
    a(f"v_mul_u32_u24 v5, {M.WTS}, v5")
    a(f"v_and_b32 v2, 7, v0")
    a(f"v_lshl_add_u32 v5, v2, 4, v5")
    a(f"s_lshl_b32 {s(sT0)}, {s(sG)}, 12")
    a(f"s_lshl_b32 {s(sT1)}, {s(sC)}, 9")
    a(f"s_add_u32 {s(sT0)}, {s(sT0)}, {s(sT1)}")
    a(f"s_lshl_b32 {s(sT1)}, {s(sW)}, 7")
    a(f"s_add_u32 {s(sT0)}, {s(sT0)}, {s(sT1)}")
    a(f"s_add_u32 {s(sT0)}, {s(sT0)}, {M.WS_WT}")
    a("s_waitcnt vmcnt(0)")
    rt(1)
    D0 = 160
    def t3_reads(it):
        for r in range(4):
            a(f"ds_read_u16 {v(D0+4*it+r)}, v4 offset:{1024*r+64*it}")
            a(f"ds_read_u16 {v(D0+32+4*(it%2)+r)}, v4 offset:{4096+1024*r+64*it}")
    t3_reads(0)
    for it in range(8):
        if it < 7:
            t3_reads(it + 1)
            a("s_waitcnt lgkmcnt(8)")
        else:
            a("s_waitcnt lgkmcnt(0)")
        for r in range(4):
            a(f"v_lshl_or_b32 {v(D0+4*it+r)}, {v(D0+32+4*(it%2)+r)}, 16, {v(D0+4*it+r)}")
        a(f"buffer_store_dwordx4 {v(D0+4*it,4)}, v5, {s(SWS,4)}, {s(sT0)} offen {ST}")
        a(f"s_add_u32 {s(sT0)}, {s(sT0)}, {8*M.WTS}")
    a(f"s_mov_b32 {s(sWo)}, 1")
    a.label(f"{name}_h_p1")
    import fused_b
    hi = max(hi, fused_b.helpers(a, name, locals()))
    a.label(f"{name}_c_p1")
    hi = max(hi, fused_b.computes(a, name, locals()))
    a.label(f"{name}_end")
    a("s_endpgm")
    return a.text() + kernel_desc(NAME, 256, 102), hi
```

```python
from asmlib import *
import model as M
import os
from k2 import (CT_F64, CT_F32, CT_T2048, CT_F56, CT_TW448, CT_G56, srd_consts, cmul)
from dft8 import *
import fused as F

def helpers(a, name, E):
    SA, SBv, SWS, SC_, SD = E['SA'], E['SBv'], E['SWS'], E['SC_'], E['SD']
    sW, sXc, sSlot, sTag = E['sW'], E['sXc'], E['sSlot'], E['sTag']
    sXo, sWo, sN = E['sXo'], E['sWo'], E['sN']
    rt, dump, poll, ppoll = E['rt'], E['dump'], E['poll'], E['ppoll']
    PP = os.environ.get('PP', '0') == '1'
    ST, LD = F.ST, F.LD
    sT0, sT1, sT2 = 33, 34, 35
    sHead, sCol, sDK, sM, sK, sV, sZ0, sZ1, sTb2, sCg, sWoO, sK8 = 31, 32, 36, 37, 40, 41, 42, 43, 44, 45, 46, 48
    va = VAlloc(8)
    DA = [[va(4) for ks in range(4)] for mt in range(2)]
    F64 = [[va(4) for ks in range(4)] for c in range(2)]
    F32 = [[va(4) for k in range(3)] for mt in range(2)]
    TW = va(16); Wv = [va(4), va(4)]
    AC = [[va(4) for c in range(2)] for mt in range(2)]
    BF = [va(4), va(4)]
    T = va(4); WR = va(1); WI = va(1)
    vL16 = va(1); vG = va(1); vA = va(1); vB = va(1); vC = va(1); vD = va(1); vWo = va(1); vS2 = va(1); vE = va(1)
    assert va.hi <= 160
    srd_consts(a, SC_)
    a(f"s_lshr_b32 {s(sHead)}, {s(sSlot)}, 4")
    a(f"s_lshl_b32 {s(sT0)}, {s(sXc)}, 1")
    a(f"s_add_u32 {s(sHead)}, {s(sHead)}, {s(sT0)}")
    a(f"s_mul_i32 {s(sDK)}, {s(sHead)}, {M.HS}")
    a(f"s_lshl_b32 {s(sT0)}, {s(sW)}, 12")
    a(f"s_add_u32 {s(sDK)}, {s(sDK)}, {s(sT0)}")
    a(f"s_add_u32 {s(sDK)}, {s(sDK)}, {M.WS_KF}")
    a(f"s_lshl_b32 {s(sM)}, {s(sW)}, 13")
    a(f"s_lshl_b32 {s(sCol)}, {s(sXc)}, 5")
    a(f"s_add_u32 {s(sCol)}, {s(sCol)}, {s(sSlot)}")
    a(f"v_and_b32 {v(vL16)}, 15, v0")
    a(f"v_lshrrev_b32 {v(vG)}, 4, v0")
    a(f"v_lshlrev_b32 {v(vA)}, 12, {v(vG)}")
    a(f"v_lshrrev_b32 {v(T)}, 1, {v(vL16)}")
    a(f"v_lshl_add_u32 {v(vA)}, {v(T)}, 7, {v(vA)}")
    a(f"v_and_b32 {v(T)}, 1, v0")
    a(f"v_lshl_add_u32 {v(vA)}, {v(T)}, 4, {v(vA)}")
    a(f"v_mul_u32_u24 {v(vB)}, {4*272}, {v(vG)}")
    a(f"v_lshl_add_u32 {v(vB)}, {v(vL16)}, 2, {v(vB)}")
    a(f"s_lshl_b32 {s(sT0)}, {s(sW)}, 6")
    a(f"s_add_u32 {s(sT0)}, {s(sT0)}, {F.LDS_X}")
    a(f"v_add_u32 {v(vB)}, {s(sT0)}, {v(vB)}")
    a(f"v_mul_u32_u24 {v(vC)}, 272, {v(vL16)}")
    a(f"v_lshl_add_u32 {v(vC)}, {v(vG)}, 4, {v(vC)}")
    a(f"v_add_u32 {v(vC)}, {F.LDS_X}, {v(vC)}")
    a(f"v_mul_u32_u24 {v(vD)}, 144, {v(vL16)}")
    a(f"v_lshl_add_u32 {v(vD)}, {v(vG)}, 4, {v(vD)}")
    a(f"s_mul_i32 {s(sT0)}, {s(sW)}, 2304")
    a(f"s_add_u32 {s(sT0)}, {s(sT0)}, {F.LDS_Z}")
    a(f"v_add_u32 {v(vD)}, {s(sT0)}, {v(vD)}")
    a(f"v_lshrrev_b32 {v(T)}, 3, v0")
    a(f"v_mul_u32_u24 {v(vE)}, 144, {v(T)}")
    a(f"v_and_b32 {v(T)}, 7, v0")
    a(f"v_lshl_add_u32 {v(vE)}, {v(T)}, 4, {v(vE)}")
    a(f"v_add_u32 {v(vE)}, {s(sT0)}, {v(vE)}")
    a(f"s_mul_i32 {s(sZ0)}, {s(sCol)}, {M.ZCS}")
    a(f"s_lshl_b32 {s(sT1)}, {s(sW)}, 11")
    a(f"s_add_u32 {s(sZ0)}, {s(sZ0)}, {s(sT1)}")
    a(f"s_add_u32 {s(sZ0)}, {s(sZ0)}, {M.WS_ZB}")
    a(f"s_cmp_lt_u32 {s(sCol)}, 225")
    a(f"s_cselect_b32 {s(sZ0)}, {s(sZ0)}, 0x7f000000")
    a(f"s_mul_i32 {s(sT0)}, {s(sSlot)}, 37")
    a(f"s_lshr_b32 {s(sT0)}, {s(sT0)}, 8")
    a(f"s_mul_i32 {s(sT1)}, {s(sT0)}, 7")
    a(f"s_sub_u32 {s(sCg)}, {s(sSlot)}, {s(sT1)}")
    a(f"v_bfe_u32 {v(T)}, v0, 2, 1")
    a(f"v_lshl_add_u32 {v(T)}, {v(vG)}, 1, {v(T)}")
    a(f"v_mul_u32_u24 {v(vWo)}, 896, {v(T)}")
    a(f"v_lshrrev_b32 {v(T)}, 3, v0")
    a(f"v_xor_b32 {v(T)}, {v(T)}, {v(vG)}")
    a(f"v_and_b32 {v(T)}, 1, {v(T)}")
    a(f"v_lshl_add_u32 {v(vWo)}, {v(T)}, 6, {v(vWo)}")
    a(f"v_and_b32 {v(T)}, 3, v0")
    a(f"v_lshl_add_u32 {v(vWo)}, {v(T)}, 4, {v(vWo)}")
    a(f"s_mul_i32 {s(sWoO)}, {s(sW)}, {8*896}")
    a(f"s_lshl_b32 {s(sT0)}, {s(sCg)}, 7")
    a(f"s_add_u32 {s(sWoO)}, {s(sWoO)}, {s(sT0)}")
    a(f"v_cmp_lt_u32 vcc, 6, v0")
    a(f"s_and_b32 {s(sT0)}, {s(sSlot)}, 15")
    a(f"s_and_b32 {s(sT1)}, {s(sT0)}, 1")
    a(f"s_mul_i32 {s(sT1)}, {s(sT1)}, 14")
    a(f"v_add_u32 {v(vS2)}, {s(sT1)}, v0")
    a(f"s_lshr_b32 {s(sT0)}, {s(sT0)}, 1")
    a(f"v_lshl_add_u32 {v(vS2)}, {v(vS2)}, 3, {s(sT0)}")
    a(f"v_lshlrev_b32 {v(vS2)}, 7, {v(vS2)}")
    a(f"s_waitcnt lgkmcnt(0)")
    a(f"s_mov_b32 {s(SD)}, s78\ns_mov_b32 {s(SD+1)}, s79\ns_mov_b32 {s(SD+2)}, 256\ns_mov_b32 {s(SD+3)}, 0x20000")
    a(f"s_mov_b32 {s(SA)}, s68\ns_mov_b32 {s(SA+1)}, s69\ns_mov_b32 {s(SA+3)}, 0x20000")
    a(f"s_cmp_lt_u32 {s(sSlot)}, 28")
    a(f"s_cselect_b32 {s(SA+2)}, {448*896}, 0")
    a(f"s_mov_b32 {s(SBv)}, s76\ns_mov_b32 {s(SBv+1)}, s77\ns_mov_b32 {s(SBv+2)}, {2048*1792}\ns_mov_b32 {s(SBv+3)}, 0x20000")
    a(f"v_mov_b32 v5, 0")
    a(f"v_lshlrev_b32 v6, 2, v0")
    lead = [0]
    def if_lead(fn):
        lead[0] += 1; L = f"{name}_nl{lead[0]}"
        a(f"s_cmp_lg_u32 {s(sW)}, 0")
        a(f"s_cbranch_scc1 {L}")
        fn()
        a.label(L)
    def get_tag():
        a(f"v_readfirstlane_b32 {s(sTag)}, v255")
        a("s_nop 3")
        a(f"s_add_u32 {s(sTag)}, {s(sTag)}, 1")
    def tree_up(off):
        a(f"s_lshr_b32 {s(sT1)}, s2, 4")
        a(f"s_mul_i32 {s(sT0)}, {s(sT1)}, {17*128}")
        a(f"s_and_b32 {s(sT1)}, s2, 15")
        a(f"s_lshl_b32 {s(sT1)}, {s(sT1)}, 2")
        a(f"s_add_u32 {s(sT0)}, {s(sT0)}, {s(sT1)}")
        a(f"s_add_u32 {s(sT0)}, {s(sT0)}, {F.WS_MB3 + off}")
        a(f"v_mov_b32 v7, {s(sTag)}")
        a("s_mov_b64 exec, 1")
        a(f"buffer_store_dword v7, v5, {s(SWS,4)}, {s(sT0)} offen sc1")
        a("s_mov_b64 exec, -1")
    def tree_down(off, base, shift, lbl):
        a(f"s_lshr_b32 {s(sT1)}, s2, 4")
        a(f"s_and_b32 {s(sT2)}, s2, 15")
        a(f"s_cmp_lg_u32 {s(sT1)}, {s(sT2)}")
        a(f"s_cbranch_scc1 {lbl}")
        a(f"s_lshl_b32 {s(sT0)}, s2, 7")
        a(f"s_add_u32 {s(sT0)}, {s(sT0)}, {F.WS_MB3 + off}")
        poll(f"buffer_load_dword v7, v6, {s(SWS,4)}, {s(sT0)} offen sc1", f"v_cmp_ne_u32 vcc, {s(sTag)}, v7", "0xffff")
        a(f"s_lshl_b32 {s(sT1)}, {s(sT1)}, 2")
        a(f"s_lshl_b32 {s(sT2)}, {s(sW)}, {6 + shift}")
        a(f"v_lshlrev_b32 v3, {shift}, v0")
        a(f"v_mov_b32 v7, {s(sTag)}")
        a(f"s_add_u32 {s(sT0)}, {s(sT1)}, {base}")
        a(f"s_add_u32 {s(sT0)}, {s(sT0)}, {s(sT2)}")
        a(f"buffer_store_dword v7, v3, {s(SWS,4)}, {s(sT0)} offen sc1")
        a.label(lbl)
    def broadcast(base, shift):
        a(f"v_lshlrev_b32 v3, {shift}, v0")
        a(f"v_mov_b32 v7, {s(sTag)}")
        a(f"s_mov_b32 {s(sT0)}, {base}")
        for i in range(4):
            a(f"buffer_store_dword v7, v3, {s(SWS,4)}, {s(sT0)} offen sc1")
            a(f"s_add_u32 {s(sT0)}, {s(sT0)}, {64 << shift}")
    def atom(off_s, off):
        a("s_mov_b64 exec, 1")
        a("v_mov_b32 v4, 1")
        a(f"buffer_atomic_add v4, v5, {s(SD,4)}, {off_s} offen offset:{off} sc0 sc1")
        a("s_mov_b64 exec, -1")
    get_tag()
    a("s_waitcnt vmcnt(0)")
    rt(3)
    a("s_barrier")
    def sig1a():
        a(f"v_mov_b32 v7, {s(sTag)}")
        a(f"s_cmp_lg_u32 {s(sWo)}, 0")
        a(f"s_cbranch_scc1 {name}_sigB")
        a(f"buffer_store_dword v7, v2, {s(SWS,4)}, {s(sXo)} offen sc1")
        a(f"s_branch {name}_sigD")
        a.label(f"{name}_sigB")
        tree_up(0)
        a.label(f"{name}_sigD")
    if_lead(sig1a)
    a(f"s_cmp_eq_u32 {s(sWo)}, 0")
    a(f"s_cbranch_scc1 {name}_tdB")
    tree_down(0, F.WS_MB1 + (33 - (12 if os.environ.get('BLAST', '0') == '1' else 0)) * 4, 8, f"{name}_tdB")
    def sig1b():
        a(f"s_lshl_b32 {s(sT0)}, s2, 8")
        a(f"s_add_u32 {s(sT0)}, {s(sT0)}, {F.WS_MB1}")
        a(f"s_mov_b32 {s(sK)}, -1\ns_mov_b32 {s(sK+1)}, 1")
        if PP: ppoll("v6", s(sT0), s(sK, 2), [250, 251, 252, 253])
        else: poll(f"buffer_load_dword v7, v6, {s(SWS,4)}, {s(sT0)} offen sc1", f"v_cmp_ne_u32 vcc, {s(sTag)}, v7", s(sK, 2))
    if_lead(sig1b)
    rt(4)
    a("s_barrier")
    q_ = []
    def epoch(e_):
        for tl in range(2):
            lds = (e_ % 4) * 32768 + tl * 4096
            src = e_ * 16384 + tl * 2048
            a(f"s_add_u32 m0, {s(sM)}, {lds}")
            a(f"s_add_u32 {s(sT0)}, {s(sDK)}, {src}")
            a(f"buffer_load_dwordx4 v1, {s(SWS,4)}, {s(sT0)} offen {LD} lds")
            a(f"buffer_load_dwordx4 v1, {s(SWS,4)}, {s(sT0)} offen offset:1024 {LD} lds")
            a(f"s_add_u32 m0, {s(sM)}, {lds + 2048}")
            a(f"s_add_u32 {s(sT0)}, {s(sDK)}, {src + M.WS_VF - M.WS_KF}")
            a(f"buffer_load_dwordx4 v1, {s(SWS,4)}, {s(sT0)} offen {LD} lds")
            a(f"buffer_load_dwordx4 v1, {s(SWS,4)}, {s(sT0)} offen offset:1024 {LD} lds")
            q_.extend([f"E{e_}"] * 4)
    def wait_for(tag):
        last = max(i for i, t_ in enumerate(q_) if t_ == tag)
        n = len(q_) - 1 - last
        assert n <= 63
        a(f"s_waitcnt vmcnt({n})")
    def fl(txt, tag):
        a(txt); q_.append(tag)
    def stage64(waits):
        for ks in range(4):
            waits(ks)
            for mt in range(2):
                for c in range(2):
                    a(mfma16(AC[mt][c], DA[mt][ks], F64[c][ks], None if ks == 0 else AC[mt][c]))
                    if os.environ.get("MGAP"): a(f"s_nop {os.environ['MGAP']}")
        a("s_nop 7")
    def twiddle():
        for mt in range(2):
            for r in range(4):
                tw = TW + 4 * (2 * mt + r // 2) + 2 * (r % 2)
                cmul(a, AC[mt][0] + r, AC[mt][1] + r, AC[mt][0] + r, AC[mt][1] + r, tw, tw + 1, T + 2 * (r % 2))
    def pack_sep():
        for c in range(2):
            for mt in range(2):
                for h in range(2):
                    a(f"v_cvt_pk_bf16_f32 {v(BF[c]+2*mt+h)}, {v(AC[mt][c]+2*h)}, {v(AC[mt][c]+2*h+1)}")
        a("s_nop 1")
    def stage32():
        for mt in range(2):
            a(mfma16(AC[mt][0], F32[mt][0], BF[0], None))
            a(mfma16(AC[mt][1], F32[mt][2], BF[0], None))
        for mt in range(2):
            a(mfma16(AC[mt][0], F32[mt][1], BF[1], AC[mt][0]))
            a(mfma16(AC[mt][1], F32[mt][0], BF[1], AC[mt][1]))
        a("s_nop 7")
    epoch(0); epoch(1)
    a(f"s_setprio {os.environ.get('HPRIO', '2')}")
    def B(k):
        a("s_barrier")
        if not os.environ.get("LSTAMP"): rt(5 + k)
    wait_for("E0"); B(0)
    def pollB():
        a(f"s_lshl_b32 {s(sT0)}, s2, 8")
        a(f"s_add_u32 {s(sT0)}, {s(sT0)}, {F.WS_MB1 + 33*4}")
        poll(f"buffer_load_dword v7, v6, {s(SWS,4)}, {s(sT0)} offen sc1", f"v_cmp_ne_u32 vcc, {s(sTag)}, v7", "0xf")
    if_lead(pollB)
    epoch(2)
    a(f"s_lshl_b32 {s(sK)}, {s(sW)}, 13")
    a(f"s_add_u32 {s(sV)}, {s(sK)}, 4096")
    for ks in range(4):
        fl(f"buffer_load_dwordx4 {v(F64[0][ks],4)}, v1, {s(SC_,4)}, {s(sK)} offen offset:{1024*ks}", "C")
        fl(f"buffer_load_dwordx4 {v(F64[1][ks],4)}, v1, {s(SC_,4)}, {s(sV)} offen offset:{1024*ks}", "C")
    wait_for("E1"); B(1)
    epoch(3)
    a(f"s_mul_i32 {s(sT2)}, {s(sCol)}, {M.X1S}")
    a(f"s_add_u32 {s(sK)}, {s(sT2)}, {M.WS_X1}")
    a(f"s_add_u32 {s(sV)}, {s(sK)}, 4096")
    for ks in range(4):
        fl(f"buffer_load_dwordx4 {v(DA[0][ks],4)}, v1, {s(SWS,4)}, {s(sK)} offen offset:{1024*ks} {LD}", "DA")
        fl(f"buffer_load_dwordx4 {v(DA[1][ks],4)}, v1, {s(SWS,4)}, {s(sV)} offen offset:{1024*ks} {LD}", "DA")
    a(f"s_lshl_b32 {s(sK)}, {s(sW)}, 12")
    a(f"s_add_u32 {s(sK)}, {s(sK)}, {CT_T2048}")
    for q in range(4):
        fl(f"buffer_load_dwordx4 {v(TW+4*q,4)}, v1, {s(SC_,4)}, {s(sK)} offen offset:{1024*q}", "TW")
    wait_for("E2"); B(2)
    a(f"s_mov_b32 {s(sK)}, {CT_F32}")
    a(f"s_mov_b32 {s(sV)}, {CT_F32+3072}")
    for k in range(3):
        fl(f"buffer_load_dwordx4 {v(F32[0][k],4)}, v1, {s(SC_,4)}, {s(sK)} offen offset:{1024*k}", "F32")
        fl(f"buffer_load_dwordx4 {v(F32[1][k],4)}, v1, {s(SC_,4)}, {s(sV)} offen offset:{1024*k}", "F32")
    a(f"s_lshr_b32 {s(sT2)}, {s(sCol)}, 2")
    a(f"s_mul_i32 {s(sT2)}, {s(sT2)}, {M.WTS}")
    a(f"s_lshl_b32 {s(sK)}, {s(sW)}, 10")
    a(f"s_add_u32 {s(sK)}, {s(sK)}, {s(sT2)}")
    a(f"s_and_b32 {s(sT2)}, {s(sCol)}, 3")
    a(f"s_lshl_b32 {s(sT2)}, {s(sT2)}, 5")
    a(f"s_add_u32 {s(sK)}, {s(sK)}, {s(sT2)}")
    a(f"s_add_u32 {s(sK)}, {s(sK)}, {M.WS_WT}")
    a(f"s_add_u32 {s(sV)}, {s(sK)}, 16384")
    fl(f"buffer_load_dwordx4 {v(Wv[0],4)}, {v(vA)}, {s(SWS,4)}, {s(sK)} offen {LD}", "W")
    fl(f"buffer_load_dwordx4 {v(Wv[1],4)}, {v(vA)}, {s(SWS,4)}, {s(sV)} offen {LD}", "W")
    wait_for("TW")
    a(f"s_cmp_ge_u32 {s(sCol)}, 225"); a(f"s_cbranch_scc1 {name}_sk1")
    stage64(lambda ks: None)
    a.label(f"{name}_sk1")
    epoch(4)
    a(f"s_cmp_ge_u32 {s(sCol)}, 225"); a(f"s_cbranch_scc1 {name}_sk2")
    twiddle()
    pack_sep()
    a.label(f"{name}_sk2")
    B(3)
    wait_for("W")
    a(f"s_cmp_ge_u32 {s(sCol)}, 225"); a(f"s_cbranch_scc1 {name}_sk3")
    stage32()
    for mt in range(2):
        for r in range(4):
            a(f"v_lshlrev_b32 {v(WR)}, 16, {v(Wv[mt]+r)}")
            a(f"v_and_b32 {v(WI)}, 0xffff0000, {v(Wv[mt]+r)}")
            cmul(a, AC[mt][0] + r, AC[mt][1] + r, AC[mt][0] + r, AC[mt][1] + r, WR, WI, T + 2 * (r % 2), conj_out=True)
    pack_sep()
    stage32()
    a.label(f"{name}_sk3")
    epoch(5)
    a(f"s_cmp_ge_u32 {s(sCol)}, 225"); a(f"s_cbranch_scc1 {name}_sk4")
    twiddle()
    for mt in range(2):
        for r in range(4):
            a(f"v_cvt_pk_bf16_f32 {v(BF[mt]+r)}, {v(AC[mt][0]+r)}, {v(AC[mt][1]+r)}")
    for mt in range(2):
        for r in range(4):
            a(f"ds_write_b32 {v(vB)}, {v(BF[mt]+r)} offset:{(16*mt+r)*272}")
    a("s_waitcnt lgkmcnt(0)")
    a.label(f"{name}_sk4")
    wait_for("E4"); B(4)
    a(f"s_cmp_ge_u32 {s(sCol)}, 225"); a(f"s_cbranch_scc1 {name}_sk5")
    for ks in range(4):
        for mt in range(2):
            a(f"ds_read_b128 {v(DA[mt][ks],4)}, {v(vC)} offset:{16*mt*272+64*ks}")
    stage64(lambda ks: a(f"s_waitcnt lgkmcnt({2*(3-ks)})"))
    for mt in range(2):
        for r in range(4):
            a(f"v_cvt_pk_bf16_f32 {v(BF[mt]+r)}, {v(AC[mt][0]+r)}, {v(AC[mt][1]+r)}")
    a(f"ds_write_b128 {v(vD)}, {v(BF[0],4)}")
    a(f"ds_write_b128 {v(vD)}, {v(BF[1],4)} offset:64")
    a("s_waitcnt lgkmcnt(0)")
    a(f"ds_read_b128 {v(BF[0],4)}, {v(vE)}")
    a(f"ds_read_b128 {v(BF[1],4)}, {v(vE)} offset:{8*144}")
    a("s_waitcnt lgkmcnt(0)")
    a.label(f"{name}_sk5")
    fl(f"buffer_store_dwordx4 {v(BF[0],4)}, v1, {s(SWS,4)}, {s(sZ0)} offen {ST}", "ST")
    fl(f"buffer_store_dwordx4 {v(BF[1],4)}, v1, {s(SWS,4)}, {s(sZ0)} offen offset:1024 {ST}", "ST")
    epoch(6)
    a("s_setprio 0")
    wait_for("ST"); B(5)
    if_lead(lambda: tree_up(64))
    epoch(7)
    wait_for("E6"); B(6)
    tree_down(64, F.WS_MB2 + 64, 7, f"{name}_tdF")
    def wo_items(k0, k1):
        for k in range(k0, k1):
            a(f"s_lshr_b32 {s(sT1)}, {s(sM)}, 3")
            a(f"s_add_u32 m0, {s(sT1)}, {4096*k}")
            a(f"s_add_u32 {s(sT0)}, {s(sWoO)}, {32*896*k}")
            fl(f"buffer_load_dwordx4 {v(vWo)}, {s(SA,4)}, {s(sT0)} offen lds", "WO")
    wo_items(0, 8)
    wait_for("E7"); B(7)
    wo_items(8, 15)
    vb = VAlloc(8)
    D5 = vb(16); Zr = vb(8); Hh = vb(16); TWv = vb(16); GF = [vb(4) for ks in range(4)]; AF = [vb(4) for ks in range(4)]
    PL = vb(8); t = [vb(1) for i in range(8)]
    vP, vM, vEw, vEr, vY = [vb(1) for i in range(5)]
    assert vb.hi <= vL16
    a(f"v_lshrrev_b32 {v(t[0])}, 3, v0")
    a(f"v_and_b32 {v(t[1])}, 7, v0")
    a(f"v_sub_u32 {v(t[2])}, 7, {v(t[0])}")
    a(f"v_mul_u32_u24 {v(t[2])}, {M.ZCS}, {v(t[2])}")
    a(f"v_lshl_add_u32 {v(vM)}, {v(t[1])}, 2, {v(t[2])}")
    a(f"v_mul_u32_u24 {v(t[2])}, {M.ZCS}, {v(t[0])}")
    a(f"v_lshl_add_u32 {v(vP)}, {v(t[1])}, 2, {v(t[2])}")
    a(f"v_lshlrev_b32 {v(t[3])}, 6, {v(t[0])}")
    a(f"s_lshl_b32 {s(sT2)}, {s(sW)}, 9")
    a(f"s_add_u32 {s(sT2)}, {s(sT2)}, {CT_TW448}")
    for q in range(4):
        a(f"buffer_load_dwordx4 {v(TWv+4*q,4)}, {v(t[3])}, {s(SC_,4)}, {s(sT2)} offen offset:{16*q}")
    a(f"s_and_b32 {s(sK)}, {s(sW)}, 1")
    a(f"s_lshl_b32 {s(sT1)}, {s(sK)}, 12")
    a(f"s_add_u32 {s(sT1)}, {s(sT1)}, {CT_G56}")
    for ks in range(4):
        a(f"buffer_load_dwordx4 {v(GF[ks],4)}, v1, {s(SC_,4)}, {s(sT1)} offen offset:{1024*ks}")
    B(8)
    a(f"v_mul_u32_u24 {v(vEw)}, 1168, {v(t[1])}")
    a(f"v_lshl_add_u32 {v(vEw)}, {v(t[0])}, 2, {v(vEw)}")
    a(f"s_lshl_b32 {s(sT1)}, {s(sW)}, 5")
    a(f"s_add_u32 {s(sT1)}, {s(sT1)}, {F.LDS_X}")
    a(f"v_add_u32 {v(vEw)}, {s(sT1)}, {v(vEw)}")
    a(f"v_and_b32 {v(t[4])}, 31, v0")
    a(f"v_lshrrev_b32 {v(t[5])}, 5, v0")
    a(f"v_mul_u32_u24 {v(vEr)}, 144, {v(t[4])}")
    a(f"v_lshrrev_b32 {v(t[6])}, 3, {v(t[4])}")
    a(f"v_add_u32 {v(t[6])}, {v(t[6])}, {v(t[5])}")
    a(f"v_lshl_add_u32 {v(vEr)}, {v(t[6])}, 4, {v(vEr)}")
    a(f"s_lshr_b32 {s(sV)}, {s(sW)}, 1")
    a(f"s_mul_i32 {s(sT1)}, {s(sV)}, {4*1168}")
    a(f"s_add_u32 {s(sT1)}, {s(sT1)}, {F.LDS_X}")
    a(f"v_add_u32 {v(vEr)}, {s(sT1)}, {v(vEr)}")
    a(f"s_lshl_b32 {s(sT1)}, {s(sK)}, 5")
    a(f"v_add_u32 {v(t[6])}, {s(sT1)}, {v(t[4])}")
    a(f"v_lshlrev_b32 {v(vY)}, 4, {v(t[6])}")
    a(f"v_lshl_add_u32 {v(vY)}, {v(t[5])}, 3, {v(vY)}")
    a(f"v_mov_b32 {v(t[7])}, 0x7f000000")
    a(f"v_cmp_lt_u32 vcc, 55, {v(t[6])}")
    a(f"s_lshl_b32 {s(sZ0)}, {s(sCol)}, 5")
    a(f"s_add_u32 {s(sZ0)}, {s(sZ0)}, {M.WS_ZB}")
    a(f"v_cndmask_b32 {v(vY)}, {v(vY)}, {v(t[7])}, vcc")
    a(f"s_mul_i32 {s(sT2)}, {s(sW)}, {8*M.ZCS}")
    a(f"s_sub_u32 {s(sZ1)}, {s(sZ0)}, {s(sT2)}")
    a(f"s_add_u32 {s(sZ0)}, {s(sZ0)}, {s(sT2)}")
    a(f"s_mov_b32 {s(sK8)}, {f32hex(0.5**0.5)}")
    a(f"s_lshl_b32 {s(sDK)}, {s(sCol)}, 3")
    a(f"s_lshl_b32 {s(sT2)}, {s(sV)}, 2")
    a(f"s_add_u32 {s(sDK)}, {s(sDK)}, {s(sT2)}")
    a(f"s_mul_i32 {s(sDK)}, {s(sDK)}, 1792")
    a(f"s_add_u32 {s(sDK)}, {s(sDK)}, 896")
    a(f"s_add_u32 {s(sM)}, {s(sDK)}, 3584")
    def pollF():
        a(f"s_lshl_b32 {s(sT0)}, s2, 7")
        a(f"s_add_u32 {s(sT0)}, {s(sT0)}, {F.WS_MB2 + 64}")
        poll(f"buffer_load_dword v7, v6, {s(SWS,4)}, {s(sT0)} offen sc1", f"v_cmp_ne_u32 vcc, {s(sTag)}, v7", "0xffff")
    pollF()
    for tt_ in range(8):
        if tt_ < 4:
            a(f"s_add_u32 {s(sT0)}, {s(sZ0)}, {56*tt_*M.ZCS}")
            a(f"buffer_load_dword {v(Zr+tt_)}, {v(vP)}, {s(SWS,4)}, {s(sT0)} offen {LD}")
        else:
            a(f"s_add_u32 {s(sT0)}, {s(sZ1)}, {(56*(8-tt_)-7)*M.ZCS}")
            a(f"buffer_load_dword {v(Zr+tt_)}, {v(vM)}, {s(SWS,4)}, {s(sT0)} offen {LD}")
    rt(14)
    a("s_barrier")
    def sig2():
        a(f"v_mov_b32 v7, {s(sTag)}")
        a(f"s_lshl_b32 {s(sT0)}, {s(sHead)}, 2")
        a(f"s_add_u32 {s(sT0)}, {s(sT0)}, {F.WS_MB2}")
        a("s_mov_b64 exec, 0x3fff")
        a(f"buffer_store_dword v7, {v(vS2)}, {s(SWS,4)}, {s(sT0)} offen sc1")
        a("s_mov_b64 exec, -1")
        a(f"s_cmp_lg_u32 s2, 255")
        a(f"s_cbranch_scc1 {name}_noadv")
        a(f"s_mov_b32 {s(sT0)}, {F.WS_TAG}")
        a("s_mov_b64 exec, 1")
        a(f"buffer_store_dword v7, v5, {s(SWS,4)}, {s(sT0)} offen sc1")
        a("s_mov_b64 exec, -1")
        a.label(f"{name}_noadv")
        a("s_waitcnt vmcnt(2)")
    if_lead(sig2)
    a(f"s_cmp_eq_u32 {s(sW)}, 0")
    a(f"s_cbranch_scc1 {name}_zok")
    a("s_waitcnt vmcnt(0)")
    a.label(f"{name}_zok")
    a("s_waitcnt vmcnt(1)")
    for tt_ in range(8):
        a(f"v_lshlrev_b32 {v(Hh+2*tt_)}, 16, {v(Zr+tt_)}")
        a(f"v_and_b32 {v(Hh+2*tt_+1)}, 0xffff0000, {v(Zr+tt_)}")
    pool = Pool([PL + i for i in range(8)])
    X = dft8(a, pool, [((Hh + 2 * tt_, 1), (Hh + 2 * tt_ + 1, -1 if tt_ < 4 else 1)) for tt_ in range(8)], +1, sK8)
    for j in range(8):
        xr, xi = X[j]
        o_ = Zr + j
        if j == 0:
            a(f"v_cvt_pk_bf16_f32 {v(o_)}, {sv(xr)}, {sv(xi)}")
        else:
            tr = TWv + 2 * (j - 1); ti = tr + 1
            p, q = t[2 * (j % 2)], t[2 * (j % 2) + 1]
            a(f"v_mul_f32_e64 {v(p)}, {sv(xi)}, {v(ti)}")
            a(f"v_mul_f32_e64 {v(q)}, {sv(xi)}, {v(tr)}")
            a(f"v_fma_f32 {v(p)}, {sv(xr)}, {v(tr)}, {v(p)}")
            a(f"v_fma_f32 {v(q)}, {sv(neg(xr))}, {v(ti)}, {v(q)}")
            a(f"v_cvt_pk_bf16_f32 {v(o_)}, {v(p)}, {v(q)}")
        a(f"ds_write_b32 {v(vEw)}, {v(o_)} offset:{144*j}")
    a("s_waitcnt lgkmcnt(0)")
    def poll2():
        a(f"s_cmp_ge_u32 {s(sSlot)}, 28")
        a(f"s_cbranch_scc1 {name}_np2")
        a(f"s_lshl_b32 {s(sT0)}, s2, 7")
        a(f"s_add_u32 {s(sT0)}, {s(sT0)}, {F.WS_MB2}")
        if PP: ppoll("v6", s(sT0), "0xffff", [250, 251, 252, 253])
        else: poll(f"buffer_load_dword v7, v6, {s(SWS,4)}, {s(sT0)} offen sc1", f"v_cmp_ne_u32 vcc, {s(sTag)}, v7", "0xffff")
        a.label(f"{name}_np2")
    if_lead(poll2)
    a("s_barrier")
    for ks in range(4):
        a(f"ds_read_b128 {v(AF[ks],4)}, {v(vEr)} offset:{32*ks}")
    for ks in range(4):
        a(f"s_waitcnt lgkmcnt({3-ks})")
        a(mfma32(D5, AF[ks], GF[ks], None if ks == 0 else D5))
    a("s_nop 7\ns_nop 3")
    for k in range(8):
        a(f"v_cvt_pk_bf16_f32 {v(Hh+k)}, {v(D5+2*k)}, {v(D5+2*k+1)}")
    for q in range(4):
        a(f"buffer_store_dwordx2 {v(Hh+2*q,2)}, {v(vY)}, {s(SBv,4)}, {s(sDK if q < 2 else sM)} offen offset:{1792*(q%2)} {os.environ.get('OF5','')}")
    dump(4, 2)
    a("s_endpgm")
    return 200

def computes(a, name, E):
    SA, SBv, SWS = E['SA'], E['SBv'], E['SWS']
    sW, sXc, sSlot, sHi = E['sW'], E['sXc'], E['sSlot'], E['sHi']
    rt, dump = E['rt'], E['dump']
    ST, LD = F.ST, F.LD
    sT0, sT1, sT2 = 33, 34, 35
    sHead, sQt, sK0, sJ, sIt, sK, sV, sQo, sTb2, sCg = 31, 32, 36, 37, 38, 40, 41, 42, 44, 45
    va = VAlloc(2)
    Q = [va(4), va(4)]
    O = va(16)
    S_ = [va(16), va(16)]
    P_ = [va(8), va(8)]
    Kb = [va(8), va(8)]
    Vb = [va(8), va(8)]
    Mx = va(1); va(1); T = [va(1) for i in range(4)]
    vA = va(1); vB = va(1)
    def ld(dst, so, off):
        a(f"buffer_load_dwordx4 {v(dst,4)}, v1, {s(SWS,4)}, {s(so)} offen offset:{off} {LD}")
    a(f"s_mov_b32 {s(SBv)}, s76\ns_mov_b32 {s(SBv+1)}, s77")
    a(f"s_lshr_b32 {s(sHead)}, {s(sSlot)}, 4")
    a(f"s_lshl_b32 {s(sT0)}, {s(sXc)}, 1")
    a(f"s_add_u32 {s(sHead)}, {s(sHead)}, {s(sT0)}")
    a(f"s_mul_i32 {s(sT0)}, {s(sHead)}, {M.HS}")
    a(f"s_add_u32 {s(sK0)}, {s(sT0)}, {M.WS_KF}")
    a(f"s_and_b32 {s(sQt)}, {s(sSlot)}, 15")
    a(f"s_lshl_b32 {s(sQt)}, {s(sQt)}, 2")
    a(f"s_add_u32 {s(sQt)}, {s(sQt)}, {s(sW)}")
    a(f"s_lshl_b32 {s(sT1)}, {s(sQt)}, 11")
    a(f"s_add_u32 {s(sQo)}, {s(sT0)}, {s(sT1)}")
    a(f"s_add_u32 {s(sQo)}, {s(sQo)}, {M.WS_QF}")
    a(f"s_lshl_b32 {s(sJ)}, {s(sQt)}, 4")
    a(f"s_add_u32 {s(sJ)}, {s(sJ)}, {s(sHead)}")
    a(f"s_lshl_b32 {s(sJ)}, {s(sJ)}, 11")
    a(f"s_add_u32 {s(sJ)}, {s(sJ)}, {M.WS_OF}")
    a(f"s_mov_b32 {s(sIt)}, 0")
    a(f"s_mov_b32 {s(SBv+2)}, {2048*1792}\ns_mov_b32 {s(SBv+3)}, 0x20000")
    rt(2)
    a("s_waitcnt vmcnt(0) lgkmcnt(0)")
    rt(3)
    a("s_barrier")
    a(f"v_mov_b32 {v(Mx)}, 0xff800000")
    for r in range(16): a(f"v_mov_b32 {v(O+r)}, 0")
    for r in range(8): a(f"v_mov_b32 {v(P_[1]+r)}, 0")
    for r in range(8): a(f"v_mov_b32 {v(Vb[1]+r)}, 0")
    a(f"v_mov_b32 {v(vA)}, v1")
    a(f"v_add_u32 {v(vB)}, 0x8000, v1")
    a("s_barrier")
    rt(4)
    for t in range(2): ld(Kb[0] + 4 * t, sK0, 1024 * t)
    for t in range(2): ld(Q[t], sQo, 1024 * t)
    a("s_waitcnt vmcnt(0)")
    rt(5)
    def maxstep():
        a(mfma32(S_[1], Kb[0], Q[0], None))
        a(mfma32(S_[1], Kb[0] + 4, Q[1], S_[1]))
        a("s_nop 7\ns_nop 3")
        for r in range(0, 16, 2):
            a(f"v_max3_f32 {v(Mx)}, {v(S_[1]+r)}, {v(S_[1]+r+1)}, {v(Mx)}")
    def finalize():
        a(f"v_mov_b32 {v(T[0])}, {v(Mx)}\nv_mov_b32 {v(T[1])}, {v(Mx)}\ns_nop 1")
        a(f"v_permlane32_swap_b32 {v(T[0])}, {v(T[1])}\ns_nop 0")
        a(f"v_max_f32 {v(Mx)}, {v(T[0])}, {v(T[1])}")
        a(f"v_cvt_pk_bf16_f32 {v(T[0])}, {v(Mx)}, {v(Mx)}")
        a(f"v_and_b32 {v(T[0])}, 0xffff0000, {v(T[0])}")
        a(f"v_sub_f32 {v(T[1])}, {v(Mx)}, {v(T[0])}")
        a(f"s_mov_b64 exec, {s(sHi,2)}")
        a(f"v_cvt_pk_bf16_f32 {v(Q[1]+2)}, -{v(T[0])}, -{v(T[1])}")
        a(f"s_mov_b64 exec, -1")
    maxstep()
    finalize()
    a(mfma32(S_[0], Kb[0], Q[0], None))
    a("s_barrier")
    a(mfma32(S_[0], Kb[0] + 4, Q[1], S_[0]))
    for t in range(2):
        a(f"ds_read_b128 {v(Kb[1]+4*t,4)}, {v(vA)} offset:{4096+1024*t}")
    a("s_nop 7")
    a("s_waitcnt lgkmcnt(0)")
    rt(6)
    if os.environ.get("APRIO"): a(f"s_setprio {os.environ['APRIO']}")
    a.raw(".p2align 6")
    a.label(f"{name}_loop")
    for u in range(8):
        p = u % 2; q = 1 - p
        sb = S_[p]; pb = P_[p]; sn = S_[q]; pp = P_[q]
        e = lambda r: a(f"v_exp_f32 {v(sb+r)}, {v(sb+r)}")
        c = lambda k: a(f"v_cvt_pk_bf16_f32 {v(pb+k)}, {v(sb+2*k)}, {v(sb+2*k+1)}")
        def rdK(t):
            if u < 6: a(f"ds_read_b128 {v(Kb[p]+4*t,4)}, {v(vA)} offset:{4096*(u+2)+1024*t}")
            else:     a(f"ds_read_b128 {v(Kb[p]+4*t,4)}, {v(vB)} offset:{4096*(u-6)+1024*t}")
        def rdV(t):
            a(f"ds_read_b128 {v(Vb[p]+4*t,4)}, {v(vA)} offset:{4096*u+2048+1024*t}")
        a(mfma32(sn, Kb[q], Q[0], None))
        if u == 6: a("s_barrier")
        rdV(0)
        e(0); e(1); e(2); e(3)
        a(mfma32(sn, Kb[q] + 4, Q[1], sn))
        rdV(1)
        e(4); e(5); c(0); e(6); e(7); c(1)
        a(mfma32(O, Vb[q], pp, O))
        rdK(0); rdK(1)
        e(8); e(9); c(2); e(10); e(11); c(3)
        a(mfma32(O, Vb[q] + 4, pp + 4, O))
        e(12)
        if u == 7: a(f"s_add_u32 {s(sIt)}, {s(sIt)}, 1")
        e(13); c(4); e(14)
        if u == 7: a(f"s_cmp_lt_u32 {s(sIt)}, 8")
        e(15)
        a("s_waitcnt lgkmcnt(0)")
        c(5); c(6); c(7)
        if u == 7:
            a(f"v_mov_b32 {v(vA)}, {v(vB)}")
            a(f"v_add_u32 {v(vB)}, 0x8000, {v(vB)}")
            a(f"v_and_b32 {v(vB)}, 0x1ffff, {v(vB)}")
    a(f"s_cbranch_scc1 {name}_loop")
    a(mfma32(O, Vb[1], P_[1], O))
    a(mfma32(O, Vb[1] + 4, P_[1] + 4, O))
    rt(7)
    a(f"s_mov_b32 {s(sT1)}, 0x5d800000")
    a("s_nop 7\ns_nop 3")
    a(f"v_cmp_nge_f32 vcc, {s(sT1)}, {v(O+12)}")
    a(f"v_mov_b32 {v(T[0])}, {v(O+12)}")
    a(f"v_mov_b32 {v(T[1])}, {v(O+12)}")
    a(f"s_cmp_lg_u32 vcc_hi, 0")
    a(f"s_cbranch_scc1 {name}_redo")
    a.label(f"{name}_epi")
    a(f"v_permlane32_swap_b32 {v(T[0])}, {v(T[1])}")
    a("s_nop 1")
    a(f"v_rcp_f32 {v(T[2])}, {v(T[1])}")
    a("s_nop 0")
    assert T[2] % 2 == 0
    for r in range(0, 16, 2):
        a(f"v_pk_mul_f32 {v(O+r,2)}, {v(O+r,2)}, {v(T[2],2)} op_sel_hi:[1,0]")
    for k in range(8):
        a(f"v_cvt_pk_bf16_f32 {v(S_[0]+k)}, {v(O+2*k)}, {v(O+2*k+1)}")
    a(f"s_mov_b64 exec, {s(sHi,2)}")
    a(f"v_mov_b32 {v(S_[0]+6)}, 0")
    a(f"v_mov_b32 {v(S_[0]+7)}, 0")
    a(f"s_mov_b64 exec, -1")
    a(f"buffer_store_dwordx4 {v(S_[0],4)}, v1, {s(SWS,4)}, {s(sJ)} offen {ST}")
    a(f"buffer_store_dwordx4 {v(S_[0]+4,4)}, v1, {s(SWS,4)}, {s(sJ)} offen offset:1024 {ST}")
    vb = VAlloc(2)
    ACC = [vb(16), vb(16)]
    t = [vb(1) for i in range(8)]
    assert vb.hi <= S_[0] or True
    vb = VAlloc(max(va.hi, 48))
    vb = VAlloc(64 - 8)
    OFr = [vb(4) for k in range(16)]
    WFR = [[vb(4) for k in range(16)] for ct in range(2)]
    aW = [vb(1), vb(1)]; vTw = vb(1); vTr = vb(1); vSt = vb(1); vRw = vb(1); vRr = vb(1)
    a(f"s_mul_i32 {s(sT0)}, {s(sSlot)}, 37")
    a(f"s_lshr_b32 {s(sT0)}, {s(sT0)}, 8")
    a(f"s_mul_i32 {s(sT1)}, {s(sT0)}, 7")
    a(f"s_sub_u32 {s(sCg)}, {s(sSlot)}, {s(sT1)}")
    a(f"s_lshl_b32 {s(sTb2)}, {s(sXc)}, 2")
    a(f"s_add_u32 {s(sTb2)}, {s(sTb2)}, {s(sT0)}")
    a(f"s_and_b32 {s(sK)}, {s(sW)}, 1")
    a(f"s_lshr_b32 {s(sV)}, {s(sW)}, 1")
    a("s_waitcnt vmcnt(0)")
    rt(8)
    a("s_barrier")
    a(f"s_cmp_ge_u32 {s(sSlot)}, 28")
    a(f"s_cbranch_scc1 {name}_c_end")
    a(f"v_lshrrev_b32 {v(t[5])}, 5, v0")
    a(f"v_bfe_u32 {v(t[6])}, v0, 3, 1")
    a(f"v_lshlrev_b32 {v(aW[0])}, 9, {v(t[5])}")
    a(f"v_lshl_add_u32 {v(aW[0])}, {v(t[6])}, 8, {v(aW[0])}")
    a(f"v_xor_b32 {v(t[6])}, {s(sK)}, {v(t[6])}")
    a(f"v_lshl_add_u32 {v(aW[0])}, {v(t[6])}, 7, {v(aW[0])}")
    a(f"v_bfe_u32 {v(t[6])}, v0, 2, 1")
    a(f"v_lshl_add_u32 {v(aW[0])}, {v(t[6])}, 6, {v(aW[0])}")
    a(f"v_bfe_u32 {v(t[6])}, v0, 4, 1")
    a(f"v_lshl_add_u32 {v(aW[0])}, {v(t[6])}, 5, {v(aW[0])}")
    a(f"v_and_b32 {v(t[6])}, 3, v0")
    a(f"v_lshl_add_u32 {v(aW[0])}, {v(t[6])}, 3, {v(aW[0])}")
    a(f"s_mul_i32 {s(sT0)}, {s(sK)}, {8*28*128}")
    a(f"v_add_u32 {v(aW[0])}, {s(sT0)}, {v(aW[0])}")
    a(f"v_xor_b32 {v(aW[1])}, 0x80, {v(aW[0])}")
    n = 0
    for k in range(16):
        h2, t_ = k // 2, k % 2
        for ct in range(2):
            for jj in range(2):
                a(f"ds_read_b64_tr_b16 {v(WFR[ct][k]+2*jj,2)}, {v(aW[ct])} offset:{(28*h2+16*t_+8*jj)*128}")
                n += 1
                if n % 12 == 0: a("s_waitcnt lgkmcnt(4)")
    a(f"v_and_b32 {v(t[4])}, 31, v0")
    a(f"s_mul_i32 {s(sT1)}, {s(sW)}, 2560")
    a(f"s_add_u32 {s(sT1)}, {s(sT1)}, {F.L_TR}")
    a(f"v_mul_u32_u24 {v(vTw)}, 80, {v(t[4])}")
    a(f"v_lshl_add_u32 {v(vTw)}, {v(t[5])}, 3, {v(vTw)}")
    a(f"v_add_u32 {v(vTw)}, {s(sT1)}, {v(vTw)}")
    a(f"v_lshrrev_b32 {v(t[7])}, 2, v0")
    a(f"v_mul_u32_u24 {v(vTr)}, 80, {v(t[7])}")
    a(f"v_lshl_add_u32 {v(vTr)}, {v(t[6])}, 4, {v(vTr)}")
    a(f"v_add_u32 {v(vTr)}, {s(sT1)}, {v(vTr)}")
    a(f"v_mul_u32_u24 {v(vSt)}, 1792, {v(t[7])}")
    a(f"v_lshl_add_u32 {v(vSt)}, {v(t[6])}, 4, {v(vSt)}")
    a(f"s_lshl_b32 {s(sT1)}, {s(sW)}, 12")
    a(f"s_add_u32 {s(sT1)}, {s(sT1)}, {F.L_RED}")
    a(f"v_add_u32 {v(vRw)}, {s(sT1)}, v1")
    a(f"v_xor_b32 {v(vRr)}, 0x1000, {v(vRw)}")
    a(f"s_lshl_b32 {s(sT0)}, {s(sTb2)}, 1")
    a(f"s_add_u32 {s(sT0)}, {s(sT0)}, {s(sV)}")
    a(f"s_lshl_b32 {s(sJ)}, {s(sT0)}, 15")
    a(f"s_lshl_b32 {s(sT1)}, {s(sK)}, 14")
    a(f"s_add_u32 {s(sJ)}, {s(sJ)}, {s(sT1)}")
    a(f"s_add_u32 {s(sJ)}, {s(sJ)}, {M.WS_OF}")
    a(f"s_mul_i32 {s(sQo)}, {s(sT0)}, {32*1792}")
    a(f"s_lshl_b32 {s(sT1)}, {s(sCg)}, 7")
    a(f"s_add_u32 {s(sQo)}, {s(sQo)}, {s(sT1)}")
    a(f"s_lshl_b32 {s(sT1)}, {s(sK)}, 6")
    a(f"s_add_u32 {s(sQo)}, {s(sQo)}, {s(sT1)}")
    a(f"s_add_u32 {s(sK0)}, {s(sQo)}, {16*1792}")
    a("s_waitcnt lgkmcnt(0)")
    a("s_barrier")
    rt(9)
    for k in range(16):
        a(f"buffer_load_dwordx4 {v(OFr[k],4)}, v1, {s(SWS,4)}, {s(sJ)} offen offset:{1024*(k%4)} {LD}")
        if k % 4 == 3: a(f"s_add_u32 {s(sJ)}, {s(sJ)}, 4096")
    for k in range(16):
        a(f"s_waitcnt vmcnt({15-k})")
        for ct in (1, 0):
            a(mfma32(ACC[ct], WFR[ct][k], OFr[k], None if k == 0 else ACC[ct]))
    rt(10)
    a("s_nop 7\ns_nop 3")
    for q in range(4):
        a(f"ds_write_b128 {v(vRw)}, {v(ACC[1]+4*q,4)} offset:{1024*q}")
    a("s_waitcnt lgkmcnt(0)")
    a("s_barrier")
    for q in range(4):
        a(f"ds_read_b128 {v(ACC[1]+4*q,4)}, {v(vRr)} offset:{1024*q}")
    for q in range(4):
        a(f"s_waitcnt lgkmcnt({3-q})")
        for h in range(2):
            r = 4 * q + 2 * h
            a(f"v_pk_add_f32 {v(ACC[0]+r,2)}, {v(ACC[0]+r,2)}, {v(ACC[1]+r,2)}")
        for h in range(2):
            a(f"v_cvt_pk_bf16_f32 {v(OFr[0]+2*q+h)}, {v(ACC[0]+4*q+2*h)}, {v(ACC[0]+4*q+2*h+1)}")
    for q in range(4):
        a(f"ds_write_b64 {v(vTw)}, {v(OFr[0]+2*q,2)} offset:{16*q}")
    a("s_waitcnt lgkmcnt(0)")
    a(f"ds_read_b128 {v(OFr[4],4)}, {v(vTr)}")
    a(f"ds_read_b128 {v(OFr[5],4)}, {v(vTr)} offset:{16*80}")
    a("s_waitcnt lgkmcnt(1)")
    a(f"buffer_store_dwordx4 {v(OFr[4],4)}, {v(vSt)}, {s(SBv,4)}, {s(sQo)} offen {os.environ.get('OF4','')}")
    a("s_waitcnt lgkmcnt(0)")
    a(f"buffer_store_dwordx4 {v(OFr[5],4)}, {v(vSt)}, {s(SBv,4)}, {s(sK0)} offen {os.environ.get('OF4','')}")
    a.label(f"{name}_c_end")
    dump(0, 2)
    a("s_endpgm")
    a.label(f"{name}_redo")
    a(f"s_mov_b64 exec, {s(sHi,2)}")
    a(f"v_mov_b32 {v(Q[1]+2)}, 0")
    a(f"s_mov_b64 exec, -1")
    a(f"s_mov_b32 {s(sK)}, {s(sK0)}")
    a(f"s_mov_b32 {s(sIt)}, 0")
    a.label(f"{name}_redo1")
    for t_ in range(2): ld(Kb[0] + 4 * t_, sK, 1024 * t_)
    a("s_waitcnt vmcnt(0)")
    maxstep()
    a(f"s_add_u32 {s(sK)}, {s(sK)}, 2048")
    a(f"s_add_u32 {s(sIt)}, {s(sIt)}, 1")
    a(f"s_cmp_lt_u32 {s(sIt)}, 64")
    a(f"s_cbranch_scc1 {name}_redo1")
    finalize()
    for r in range(16): a(f"v_mov_b32 {v(O+r)}, 0")
    a(f"s_mov_b32 {s(sK)}, {s(sK0)}")
    a(f"s_mov_b32 {s(sIt)}, 0")
    a.label(f"{name}_redo2")
    a(f"s_add_u32 {s(sV)}, {s(sK)}, {M.WS_VF - M.WS_KF}")
    for t_ in range(2): ld(Kb[0] + 4 * t_, sK, 1024 * t_)
    for t_ in range(2): ld(Vb[0] + 4 * t_, sV, 1024 * t_)
    a("s_waitcnt vmcnt(0)")
    a(mfma32(S_[0], Kb[0], Q[0], None))
    a(mfma32(S_[0], Kb[0] + 4, Q[1], S_[0]))
    a("s_nop 7\ns_nop 3")
    for r in range(16): a(f"v_exp_f32 {v(S_[0]+r)}, {v(S_[0]+r)}")
    a("s_nop 0")
    for k in range(8): a(f"v_cvt_pk_bf16_f32 {v(P_[0]+k)}, {v(S_[0]+2*k)}, {v(S_[0]+2*k+1)}")
    a("s_nop 1")
    a(mfma32(O, Vb[0], P_[0], O))
    a(mfma32(O, Vb[0] + 4, P_[0] + 4, O))
    a(f"s_add_u32 {s(sK)}, {s(sK)}, 2048")
    a(f"s_add_u32 {s(sIt)}, {s(sIt)}, 1")
    a(f"s_cmp_lt_u32 {s(sIt)}, 64")
    a("s_nop 7")
    a(f"s_cbranch_scc1 {name}_redo2")
    a("s_nop 7")
    a(f"v_mov_b32 {v(T[0])}, {v(O+12)}")
    a(f"v_mov_b32 {v(T[1])}, {v(O+12)}")
    a("s_nop 1")
    a(f"s_branch {name}_epi")
    return max(va.hi, vb.hi)
```

```python
import numpy as np

S, D, H, DH = 2048, 448, 16, 28
SC = DH ** -0.5 * np.log2(np.e)

def bf16_bits(x):
    x = np.ascontiguousarray(x, dtype=np.float32)
    u = x.view(np.uint32)
    r = ((u + 0x7FFF + ((u >> 16) & 1)) >> 16).astype(np.uint16)
    return r
def bf16_val(b):
    return (b.astype(np.uint32) << 16).view(np.float32)
def rb(x):
    return bf16_val(bf16_bits(x))

import os as _os
HS = 131072 + int(_os.environ.get("HPAD", "0"))
RS = 16 * HS + int(_os.environ.get("RPAD", "0"))
WS_QF = 16 << 20
WS_KF = WS_QF + RS
WS_VF = WS_QF + 2 * RS
WS_X1 = 6 << 20
X1S = 8320
WS_WT = 17 << 19
WTS = 32768 + 128
WS_OF = 11 << 20
WS_ZB = 13 << 20
ZSTRIDE = 7296
ZCS = 8320
WS_DBG = 15 << 20
WS_END = 16 << 20

def feat(t, half, j):
    return 16 * t + 8 * (j // 4) + 4 * half + j % 4

_t, _half, _j = np.meshgrid(np.arange(2), np.arange(2), np.arange(8), indexing='ij')
FEAT = 16 * _t + 8 * (_j // 4) + 4 * _half + _j % 4

def qkv_stage(x, wqkv):
    qkv = x.astype(np.float64) @ wqkv.astype(np.float64)
    q = qkv[:, :448].reshape(S, H, DH); k = qkv[:, 448:896].reshape(S, H, DH); v = qkv[:, 896:].reshape(S, H, DH)
    qp = np.zeros((S, H, 32)); kp = np.zeros((S, H, 32)); vp = np.zeros((S, H, 32))
    qp[:, :, :28] = q * SC; kp[:, :, :28] = k; kp[:, :, 28:30] = 1.0; vp[:, :, :28] = v; vp[:, :, 28] = 1.0
    def tokfrag(a):
        a = a.reshape(64, 32, H, 32)
        out = a[:, :, :, FEAT]
        out = out.transpose(2, 0, 3, 4, 1, 5)
        return rb(out.reshape(H, 64, 2, 64, 8))
    QF = tokfrag(qp); KF = tokfrag(kp)
    a = vp.reshape(64, 32, H, 32)
    out = a[:, FEAT]
    out = out.transpose(4, 0, 1, 2, 5, 3)
    VF = rb(out.reshape(H, 64, 2, 64, 8))
    return QF, KF, VF

def unfrag_tok(F):
    a = F.reshape(H, 64, 2, 2, 32, 8)
    out = np.zeros((64, 32, H, 32), F.dtype)
    for t in range(2):
        for hf in range(2):
            for j in range(8):
                out[:, :, :, FEAT[t, hf, j]] = a[:, :, t, hf, :, j].transpose(1, 2, 0)
    return out.reshape(S, H, 32)
def unfrag_v(F):
    a = F.reshape(H, 64, 2, 2, 32, 8)
    out = np.zeros((64, 32, H, 32), F.dtype)
    for t in range(2):
        for hf in range(2):
            for j in range(8):
                out[:, FEAT[t, hf, j], :, :] = a[:, :, t, hf, :, j].transpose(1, 0, 2)
    return out.reshape(S, H, 32)

def attn_stage(QF, KF, VF):
    q = unfrag_tok(QF).astype(np.float64); k = unfrag_tok(KF).astype(np.float64); v = unfrag_v(VF).astype(np.float64)
    o = np.zeros((S, H, 32))
    for h in range(H):
        s = q[:, h, :28] @ k[:, h, :28].T
        p = rb(np.exp2(s - s.max(axis=1, keepdims=True))).astype(np.float64)
        oo = p @ v[:, h, :]
        o[:, h, :28] = oo[:, :28] / oo[:, 28:29]
    a = o.reshape(64, 32, H, 32)
    out = a[:, :, :, FEAT]
    out = out.transpose(0, 2, 3, 4, 1, 5)
    return rb(out.reshape(64, H, 2, 64, 8))

def outproj_stage(OF, wo):
    a = OF.reshape(64, H, 2, 2, 32, 8)
    o = np.zeros((64, 32, H, 32))
    for t in range(2):
        for hf in range(2):
            for j in range(8):
                o[:, :, :, FEAT[t, hf, j]] = a[:, :, t, hf, :, j].transpose(0, 2, 1)
    o = o.reshape(S, H, 32)[:, :, :28].reshape(S, 448)
    return rb(o @ wo.astype(np.float64))

def const_F56():
    out = np.zeros((2, 2, 2, 64, 8))
    for kb in range(2):
        for u in range(2):
            for l in range(64):
                kap = 16 * kb + l % 16; g = l // 16
                for j in range(8):
                    m = 32 * u + 8 * g + j
                    if m < 56 and kap <= 28:
                        th = 2 * np.pi * ((kap * m) % 56) / 56
                        out[kb, 0, u, l, j] = np.cos(th); out[kb, 1, u, l, j] = -np.sin(th)
    return rb(out)
def const_TW448():
    out = np.zeros((32, 16), np.float32)
    for kap in range(32):
        for j in range(1, 8):
            th = 2 * np.pi * (kap * j) / 448
            out[kap, 2 * (j - 1)] = np.cos(th); out[kap, 2 * (j - 1) + 1] = -np.sin(th)
    return out
def const_TW448B():
    t = const_TW448()
    out = np.zeros((8, 64), np.float32)
    for kq in range(8):
        for j in range(7):
            for c in range(2):
                for rr in range(4):
                    out[kq, (j * 2 + c) * 4 + rr] = t[4 * kq + rr, 2 * j + c]
    return out
def const_F64():
    out = np.zeros((4, 2, 4, 64, 8))
    for w in range(4):
        for ks in range(4):
            for l in range(64):
                k1 = 16 * w + l % 16; g = l // 16
                for j in range(8):
                    n1 = 16 * ks + 4 * g + j // 2; c = j % 2
                    th = 2 * np.pi * ((n1 * k1) % 64) / 64
                    out[w, 0, ks, l, j] = np.cos(th) if c == 0 else np.sin(th)
                    out[w, 1, ks, l, j] = -np.sin(th) if c == 0 else np.cos(th)
    return rb(out)
def const_F32():
    out = np.zeros((2, 3, 64, 8))
    for mt in range(2):
        for l in range(64):
            k2 = 16 * mt + l % 16; g = l // 16
            for j in range(8):
                n2 = 16 * (j // 4) + 4 * g + j % 4
                th = 2 * np.pi * ((n2 * k2) % 32) / 32
                out[mt, 0, l, j] = np.cos(th); out[mt, 1, l, j] = np.sin(th); out[mt, 2, l, j] = -np.sin(th)
    return rb(out)
def const_T2048():
    out = np.zeros((4, 4, 64, 4), np.float32)
    for w in range(4):
        for l in range(64):
            k1 = 16 * w + l % 16; g = l // 16
            for mt in range(2):
                for r in range(4):
                    n2 = 16 * mt + 4 * g + r
                    th = 2 * np.pi * (n2 * k1) / 2048
                    out[w, 2 * mt + r // 2, l, 2 * (r % 2)] = np.cos(th); out[w, 2 * mt + r // 2, l, 2 * (r % 2) + 1] = -np.sin(th)
    return out
def const_G56():
    out = np.zeros((2, 4, 64, 8))
    cc = 1.0 / (S * D)
    for nu in range(2):
        for ks in range(4):
            for l in range(64):
                m = 32 * nu + l % 32; hf = l // 32
                for j in range(8):
                    kap = 8 * ks + 4 * hf + j // 2; c = j % 2
                    if m < 56 and kap <= 28:
                        wk = 1.0 if kap in (0, 28) else 2.0
                        th = 2 * np.pi * ((kap * m) % 56) / 56
                        out[nu, ks, l, j] = cc * wk * (np.cos(th) if c == 0 else -np.sin(th))
    return rb(out)

def rowdft_stage(x):
    F = const_F56().astype(np.float64)
    Fc = np.zeros((32, 64)); Fs = np.zeros((32, 64))
    for kb in range(2):
        for u in range(2):
            for l in range(64):
                for j in range(8):
                    Fc[16 * kb + l % 16, 32 * u + 8 * (l // 16) + j] = F[kb, 0, u, l, j]
                    Fs[16 * kb + l % 16, 32 * u + 8 * (l // 16) + j] = F[kb, 1, u, l, j]
    xx = x.astype(np.float64).reshape(S, 56, 8)
    Dj = np.einsum('km,smj->skj', Fc[:29, :56] + 1j * Fs[:29, :56], xx)
    tw = const_TW448().astype(np.float64)
    T = np.ones((29, 8), complex)
    for j in range(1, 8):
        T[:, j] = tw[:29, 2 * (j - 1)] + 1j * tw[:29, 2 * (j - 1) + 1]
    P = Dj * T[None]
    w8 = np.exp(-2j * np.pi * np.outer(np.arange(8), np.arange(8)) / 8)
    Xt = np.einsum('tj,skj->skt', w8, P)
    X = np.zeros((S, 225), complex)
    kap = np.arange(29)
    for t in range(4):
        X[:, kap + 56 * t] = Xt[:, :, t]
    for t in range(4, 8):
        X[:, 56 * (8 - t) - kap] = np.conj(Xt[:, :, t])
    return pack_X1(X)
def pack_X1(X):
    out = np.zeros((225, 2, 4, 64, 8))
    for mt in range(2):
        for ks in range(4):
            for l in range(64):
                for j in range(8):
                    n2 = 16 * mt + l % 16; n1 = 16 * ks + 4 * (l // 16) + j // 2
                    s = 32 * n1 + n2
                    out[:, mt, ks, l, j] = X[s].real if j % 2 == 0 else X[s].imag
    return rb(out)
def unpack_X1(X1):
    X = np.zeros((S, 225), complex)
    for mt in range(2):
        for ks in range(4):
            for l in range(64):
                for j in range(0, 8, 2):
                    n2 = 16 * mt + l % 16; n1 = 16 * ks + 4 * (l // 16) + j // 2
                    X[32 * n1 + n2] = X1[:, mt, ks, l, j] + 1j * X1[:, mt, ks, l, j + 1]
    return X

def wt_stage(w_r, w_i):
    k2 = (16 * np.arange(2)[:, None, None] + 4 * np.arange(4)[None, :, None] + np.arange(4)[None, None, :])
    k = np.arange(64)[None, None, :, None] + 64 * k2[:, :, None, :]
    out = np.stack([w_r[k], w_i[k]], axis=-1)
    return np.ascontiguousarray(out.transpose(4, 0, 1, 2, 3, 5)).astype(np.float32)

def crb(z):
    return rb(z.real).astype(np.float64) + 1j * rb(z.imag).astype(np.float64)

def colfft_stage(X1, WT):
    X = unpack_X1(X1)
    u = X.reshape(64, 32, 225)
    F64 = crb(np.exp(-2j * np.pi * (np.outer(np.arange(64), np.arange(64)) % 64) / 64))
    F32 = crb(np.exp(-2j * np.pi * (np.outer(np.arange(32), np.arange(32)) % 32) / 32))
    T = np.exp(-2j * np.pi * np.outer(np.arange(64), np.arange(32)) / 2048)
    A = np.einsum('kn,nmc->kmc', F64, u)
    B = crb(A * T[:, :, None])
    U = np.einsum('pm,kmc->kpc', F32, B)
    W = np.zeros((64, 32, 225), complex)
    Wc = WT[..., 0].astype(np.float64) + 1j * WT[..., 1].astype(np.float64)
    W = Wc.transpose(3, 1, 2, 4, 0).reshape(64, 32, 225)
    V = crb(np.conj(U * W))
    D3 = np.einsum('mp,kpc->kmc', F32, V)
    E = crb(D3 * T[:, :, None])
    Zb = np.einsum('nk,kmc->nmc', F64, E)
    return crb(Zb.reshape(S, 225))
def pack_ZB(Zb):
    out = np.zeros((256, ZSTRIDE // 2), np.float32)
    z = np.stack([Zb.real, Zb.imag], axis=-1).reshape(256, 8, 225, 2).transpose(0, 2, 1, 3)
    out[:, :225 * 16] = z.reshape(256, 225 * 16)
    return out
def unpack_ZB(ZB):
    z = ZB[:, :225 * 16].reshape(256, 225, 8, 2).transpose(0, 2, 1, 3).reshape(S, 225, 2).astype(np.float64)
    return z[..., 0] + 1j * z[..., 1]

def rowidft_stage(Zb):
    Z = np.conj(Zb)
    kap = np.arange(29)
    Hh = np.zeros((S, 29, 8), complex)
    for t in range(4):
        Hh[:, :, t] = Z[:, kap + 56 * t]
    for t in range(4, 8):
        Hh[:, :, t] = np.conj(Z[:, 56 * (8 - t) - kap])
    w8 = np.exp(2j * np.pi * np.outer(np.arange(8), np.arange(8)) / 8)
    Q = np.einsum('jt,skt->skj', w8, Hh)
    tw = const_TW448().astype(np.float64)
    T = np.ones((29, 8), complex)
    for j in range(1, 8):
        T[:, j] = tw[:29, 2 * (j - 1)] - 1j * tw[:29, 2 * (j - 1) + 1]
    Q = crb(Q * T[None])
    G = const_G56().astype(np.float64)
    Gr = np.zeros((32, 64)); Gi = np.zeros((32, 64))
    for nu in range(2):
        for ks in range(4):
            for l in range(64):
                for j in range(8):
                    kp = 8 * ks + 4 * (l // 32) + j // 2
                    (Gr if j % 2 == 0 else Gi)[kp, 32 * nu + l % 32] = G[nu, ks, l, j]
    y = np.einsum('skj,km->smj', Q.real, Gr[:29, :56]) + np.einsum('skj,km->smj', Q.imag, Gi[:29, :56])
    return rb(y.reshape(S, 448))

def reference(A_x, wqkv, wo, B_x, w_r, w_i):
    x = A_x.astype(np.float64)
    qkv = rb(x @ wqkv.astype(np.float64)).astype(np.float64)
    q = qkv[:, :448].reshape(S, H, DH); k = qkv[:, 448:896].reshape(S, H, DH); v = qkv[:, 896:].reshape(S, H, DH)
    o = np.zeros((S, H, DH))
    for h in range(H):
        s = rb(rb(q[:, h] @ k[:, h].T) * np.float32(DH ** -0.5)).astype(np.float64)
        p = np.exp(s - s.max(axis=1, keepdims=True)); p = rb(p / p.sum(axis=1, keepdims=True)).astype(np.float64)
        o[:, h] = rb(p @ v[:, h])
    a = rb(o.reshape(S, D) @ wo.astype(np.float64))
    X = np.fft.rfft2(B_x.astype(np.float64))
    y = np.fft.irfft2(X * (w_r.astype(np.float64) + 1j * w_i.astype(np.float64)), s=(S, D))
    return a, rb(y)

def make_inputs(seed=0):
    rng = np.random.default_rng(seed)
    r = lambda *s: rb(rng.standard_normal(s))
    return dict(A_x=rb(r(S, D) * 0.2), wqkv=rb(r(D, 3 * D) * 0.2), wo=rb(r(D, D) * 0.05), B_x=rb(r(S, D) * 0.05),
                w_r=rb(rb(r(S, 225) * 6.4) * 0.02), w_i=rb(rb(r(S, 225) * 6.4) * 0.02))

if __name__ == "__main__":
    I = make_inputs()
    ra, rbb = reference(**I)
    QF, KF, VF = qkv_stage(I['A_x'], I['wqkv'])
    OF = attn_stage(QF, KF, VF)
    a = outproj_stage(OF, I['wo'])
    print("A: max|ref|", np.abs(ra).max(), "maxerr", np.abs(a - ra).max(), "rel l2", np.linalg.norm(a - ra) / np.linalg.norm(ra))
    X1 = rowdft_stage(I['B_x'])
    Xref = np.fft.rfft(I['B_x'].astype(np.float64), axis=1)
    print("X1 rel", np.linalg.norm(unpack_X1(X1) - Xref) / np.linalg.norm(Xref))
    WT = wt_stage(I['w_r'], I['w_i'])
    Zb = colfft_stage(X1, WT)
    y = rowidft_stage(unpack_ZB(pack_ZB(Zb)))
    print("B: max|ref|", np.abs(rbb).max(), "maxerr", np.abs(y - rbb).max(), "rel l2", np.linalg.norm(y - rbb) / np.linalg.norm(rbb))


def x1_from_ws(w16):
    out = np.zeros((225, 4096), np.float32)
    for c in range(225):
        o = (WS_X1 + c * X1S) // 2
        out[c] = bf16_val(w16[o:o + 4096])
    return out.reshape(225, 2, 4, 64, 8)
def wt_from_ws(w16):
    out = np.zeros((228, 8, 64, 4, 2), np.float32)
    for cg in range(57):
        o = (WS_WT + cg * WTS) // 2
        blk = bf16_val(w16[o:o + 16384]).reshape(8, 32, 4, 2, 4, 2)
        out[4 * cg:4 * cg + 4] = blk.transpose(2, 0, 1, 3, 4, 5).reshape(4, 8, 64, 4, 2)
    return out[:225].reshape(225, 2, 4, 64, 4, 2)

def zc_from_ws(w16):
    out = np.zeros((225, 2048, 2), np.float32)
    for c in range(225):
        o = (WS_ZB + c * ZCS) // 2
        out[c] = bf16_val(w16[o:o + 4096]).reshape(2048, 2)
    return out

def frag_from_ws(w16, base):
    out = np.zeros((16, 65536), np.float32)
    for h in range(16):
        o = (base + h * HS) // 2
        out[h] = bf16_val(w16[o:o + 65536])
    return out.reshape(16, 64, 2, 64, 8)
```

```python
from asmlib import *
import model as M
import os
from k2 import (CT_F64, CT_F32, CT_T2048, CT_F56, CT_TW448, CT_G56, CT_TW448B, CT_SIZE, srd_consts, cmul)
from dft8 import *
import dft8pk as PK8

INSTR = os.environ.get("INSTR", "0") == "1"
NAME = "concat_heads__mha_block__spectral_gfnet__prompt_kernel"
WS_MB1 = 31 << 19
WS_MB2 = WS_MB1 + 65536
WS_MB3 = WS_MB1 + 98304
WS_TAG = WS_MB1 + 131072
LDS_X = 131072
LDS_Z = LDS_X + 9472
F_LDS = LDS_Z + 4 * 2304
L_RED = 65536
L_TR = 98304
NS = 4
SPIN = 100000
ST = os.environ.get("STF", "sc1")
LD = os.environ.get("LDF", "sc1")
SB = 80

def gen():
    name = "fk"
    a = Asm()
    a.raw(f".globl {NAME}\n.p2align 8\n.type {NAME},@function\n{NAME}:")
    SA, SBv, SWS, SC_, SD = 8, 12, 16, 20, 24
    sW, sXc, sSlot, sTag = 28, 29, 30, 49
    sTb, sG, sT0, sT1, sT2, sC, sSl, sXo, sWo, sOfs = 31, 32, 33, 34, 35, 36, 37, 38, 39, 48
    sHi = 50; sMsk = 52; sScale = 54; sPadv = 55; sTt = 40
    SP = 60; sN, sCh, sA_, sB2 = 56, 57, 58, 59
    uid = [0]
    def rt(idx):
        if INSTR:
            a("s_memrealtime s[96:97]\ns_waitcnt lgkmcnt(0)")
            a(f"s_mov_b32 s{SB+idx}, s96")
    def dump(wadd, vt):
        if INSTR:
            a("s_waitcnt vmcnt(0)")
            rt(15)
            a(f"s_lshl_b32 s96, s2, 9\ns_add_u32 s97, {s(sW)}, {wadd}\ns_lshl_b32 s97, s97, 6\ns_add_u32 s96, s96, s97\ns_add_u32 s96, s96, {M.WS_DBG}")
            a(f"v_mov_b32 {v(vt)}, 0")
            for i in range(16):
                a(f"v_mov_b32 {v(vt+1)}, s{SB+i}")
                a(f"buffer_store_dword {v(vt+1)}, {v(vt)}, {s(SWS,4)}, s96 offen offset:{4*i}\ns_nop 1")
            if os.environ.get("DBGOUT") and wadd == 0:
                uid[0] += 1
                a(f"s_lshl_b32 s96, s2, 2\ns_add_u32 s96, s96, {s(sW)}\ns_cmp_lg_u32 s96, 400\ns_cbranch_scc1 {name}_nodbg{uid[0]}")
                a(f"s_mov_b32 {s(SD)}, s78\ns_mov_b32 {s(SD+1)}, s79\ns_mov_b32 {s(SD+2)}, 256\ns_mov_b32 {s(SD+3)}, 0x20000")
                for i in range(16):
                    a(f"s_sub_u32 s96, s{SB+i}, s{SB}")
                    a(f"v_mov_b32 {v(vt+1)}, s96")
                    a(f"buffer_store_dword {v(vt+1)}, {v(vt)}, {s(SD,4)}, 0 offen offset:{4*i}\ns_nop 1")
                a.label(f"{name}_nodbg{uid[0]}")
    def poll(load_txt, cmp_txt, execmask):
        uid[0] += 1; L = f"{name}_poll{uid[0]}"
        a(f"s_mov_b64 exec, {execmask}")
        a(f"s_mov_b32 {s(sN)}, 0")
        a.label(L)
        a(load_txt)
        a("s_waitcnt vmcnt(0)")
        a(cmp_txt)
        a(f"s_add_u32 {s(sN)}, {s(sN)}, 1")
        a(f"s_cmp_gt_u32 {s(sN)}, {SPIN}")
        a(f"s_cbranch_scc1 {L}_x")
        if os.environ.get("BACKOFF"):
            a(f"s_cbranch_vccz {L}_x")
            a(f"s_sleep {os.environ['BACKOFF']}")
            a(f"s_branch {L}")
        else:
            a(f"s_cbranch_vccnz {L}")
        a.label(f"{L}_x")
        a("s_mov_b64 exec, -1")
    def ppoll(addr_v, soff, execmask, regs):
        NP = len(regs)
        uid[0] += 1; L = f"{name}_pp{uid[0]}"
        a("s_waitcnt vmcnt(0)")
        a(f"s_mov_b64 exec, {execmask}")
        a(f"s_mov_b32 {s(sN)}, 0")
        for i_, r_ in enumerate(regs):
            a(f"buffer_load_dword v{r_}, {addr_v}, {s(SWS,4)}, {soff} offen sc1")
            if i_ < NP - 1: a(f"s_sleep {os.environ.get('PSLEEP', '5')}")
        a.label(L)
        for r_ in regs:
            a(f"s_waitcnt vmcnt({NP-1})")
            a(f"v_cmp_ne_u32 vcc, {s(sTag)}, v{r_}")
            a("s_nop 1")
            a(f"s_cbranch_vccz {L}_x")
            a(f"buffer_load_dword v{r_}, {addr_v}, {s(SWS,4)}, {soff} offen sc1")
        a(f"s_add_u32 {s(sN)}, {s(sN)}, 1")
        a(f"s_cmp_lt_u32 {s(sN)}, {SPIN}")
        a(f"s_cbranch_scc1 {L}")
        a.label(f"{L}_x")
        a("s_mov_b64 exec, -1")
    if INSTR:
        for i in range(16): a(f"s_mov_b32 s{SB+i}, 0")
        rt(0)
    a(f"s_load_dwordx16 s[64:79], s[0:1], 0")
    a(f"s_cmp_ge_u32 s2, 256")
    a(f"s_cbranch_scc1 {name}_end")
    a(f"v_lshrrev_b32 v1, 6, v0")
    a(f"s_load_dwordx2 {s(SWS,2)}, s[0:1], 64")
    a(f"v_and_b32 v0, 63, v0")
    a(f"s_and_b32 {s(sXc)}, s2, 7")
    a(f"v_readfirstlane_b32 s3, v1")
    a(f"s_lshr_b32 {s(sSlot)}, s2, 3")
    a(f"v_lshlrev_b32 v1, 4, v0")
    if os.environ.get("WSOFF"):
        a("s_waitcnt lgkmcnt(0)")
        a(f"s_add_u32 {s(SWS)}, {s(SWS)}, {int(os.environ['WSOFF']) << 20}")
        a(f"s_addc_u32 {s(SWS+1)}, {s(SWS+1)}, 0")
    a(f"s_and_b32 {s(sW)}, s3, 3")
    a(f"s_mov_b32 {s(SWS+2)}, {M.WS_END}")
    a(f"s_mov_b32 {s(SWS+3)}, 0x20000")
    BL = os.environ.get("BLAST", "0") == "1"
    a(f"s_cmp_ge_u32 {s(sSlot)}, 24" if BL else f"s_cmp_lt_u32 {s(sSlot)}, 8")
    a(f"s_cbranch_scc1 {name}_bwg")
    a(f"s_sub_u32 {s(sN)}, {s(sSlot)}, {0 if BL else 8}")
    a(f"s_mul_i32 {s(sT0)}, {s(sN)}, 43")
    a(f"s_lshr_b32 {s(sT0)}, {s(sT0)}, 8")
    a(f"s_mul_i32 {s(sT1)}, {s(sT0)}, 6")
    a(f"s_sub_u32 {s(sT1)}, {s(sN)}, {s(sT1)}")
    a(f"s_lshr_b32 {s(sTb)}, {s(sXc)}, 1")
    a(f"s_lshl_b32 {s(sTb)}, {s(sTb)}, 2")
    a(f"s_add_u32 {s(sTb)}, {s(sTb)}, {s(sT0)}")
    a(f"s_and_b32 {s(sG)}, {s(sXc)}, 1")
    a(f"s_mul_i32 {s(sG)}, {s(sG)}, 6")
    a(f"s_add_u32 {s(sG)}, {s(sG)}, {s(sT1)}")
    a(f"s_and_b32 {s(sOfs)}, {s(sG)}, 1")
    a(f"s_lshl_b32 {s(sOfs)}, {s(sOfs)}, 5")
    a(f"s_mov_b32 {s(SA+2)}, {2048*896}\ns_mov_b32 {s(SA+3)}, 0x20000")
    a(f"s_mov_b32 {s(SBv+2)}, {448*2688}\ns_mov_b32 {s(SBv+3)}, 0x20000")
    CW2 = os.environ.get("CW2", "0") == "1"
    if not CW2:
        a(f"s_cmp_lt_u32 s3, 4")
        a(f"s_cbranch_scc1 {name}_t1c")
    vX0, vX1, vWw, vt = 2, 3, 4, 5
    a(f"v_lshrrev_b32 {v(vt)}, 3, v0")
    a(f"v_mul_u32_u24 {v(vX0)}, 896, {v(vt)}")
    a(f"v_and_b32 {v(vt)}, 7, v0")
    a(f"v_lshrrev_b32 {v(vt+1)}, 4, v0")
    a(f"v_xor_b32 {v(vt)}, {v(vt)}, {v(vt+1)}")
    a(f"v_xor_b32 {v(vt+2)}, 4, {v(vt)}")
    a(f"v_lshl_add_u32 {v(vX1)}, {v(vt+2)}, 4, {v(vX0)}")
    a(f"v_lshl_add_u32 {v(vX0)}, {v(vt)}, 4, {v(vX0)}")
    a(f"v_mul_u32_u24 {v(vWw)}, 2688, {v(vt+1)}")
    a(f"v_lshrrev_b32 {v(vt)}, 2, v0")
    a(f"v_sub_u32 {v(vt)}, {v(vt)}, {v(vt+1)}")
    a(f"v_and_b32 {v(vt)}, 3, {v(vt)}")
    a(f"v_lshl_add_u32 {v(vWw)}, {v(vt)}, 6, {v(vWw)}")
    a(f"v_and_b32 {v(vt)}, 3, v0")
    a(f"v_lshl_add_u32 {v(vWw)}, {v(vt)}, 4, {v(vWw)}")
    a(f"s_lshl_b32 {s(sT0)}, {s(sTb)}, 2")
    a(f"s_add_u32 {s(sT0)}, {s(sT0)}, {s(sW)}")
    a(f"s_mul_i32 {s(sXo)}, {s(sT0)}, {32*896}")
    a(f"s_mul_i32 {s(sWo)}, {s(sW)}, {16*2688}")
    a(f"s_mul_i32 {s(sT0)}, {s(sG)}, 224")
    a(f"s_add_u32 {s(sWo)}, {s(sWo)}, {s(sT0)}")
    a(f"s_sub_u32 {s(sWo)}, {s(sWo)}, {s(sOfs)}")
    a(f"s_lshl_b32 {s(sSl)}, {s(sW)}, 12")
    a(f"s_waitcnt lgkmcnt(0)")
    a(f"s_mov_b32 {s(SA)}, s64\ns_mov_b32 {s(SA+1)}, s65\ns_mov_b32 {s(SBv)}, s66\ns_mov_b32 {s(SBv+1)}, s67")
    def issue(c):
        base = (c % NS) * 32768
        for i in range(4):
            a(f"s_add_u32 m0, {s(sSl)}, {base + 1024*i}")
            a(f"s_add_u32 {s(sT0)}, {s(sXo)}, {8*i*896 + 128*c}")
            a(f"buffer_load_dwordx4 {v(vX1 if i % 2 else vX0)}, {s(SA,4)}, {s(sT0)} offen lds")
            a(f"s_add_u32 m0, {s(sSl)}, {base + 16384 + 1024*i}")
            a(f"s_add_u32 {s(sT0)}, {s(sWo)}, {(64*c + 4*i)*2688}")
            a(f"buffer_load_dwordx4 {v(vWw)}, {s(SBv,4)}, {s(sT0)} offen lds")
    if CW2:
        a(f"s_cmp_lt_u32 s3, 4")
        a(f"s_cbranch_scc1 {name}_t1c")
    a(f"v_mov_b32 v254, {WS_TAG}")
    a(f"buffer_load_dword v255, v254, {s(SWS,4)}, 0 offen")
    mine = [0, 1, 3, 4, 5, 6] if CW2 else list(range(7))
    qi = []
    for c in mine[:2]: issue(c); qi.append(c)
    for c in range(7):
        if c in qi: a(f"s_waitcnt vmcnt({8*(len(qi)-1-qi.index(c))})")
        if c in (0, 6): rt(1 if c == 0 else 2)
        if os.environ.get("LSTAMP"): rt(5 + c)
        a("s_barrier")
        if len(qi) < len(mine) and mine[len(qi)] <= c + 3:
            issue(mine[len(qi)]); qi.append(mine[len(qi)])
    a(f"s_and_b32 {s(sT0)}, {s(sG)}, 3")
    a(f"s_lshl_b32 {s(sT0)}, {s(sT0)}, 2")
    a(f"v_lshrrev_b32 v2, 4, v0")
    a(f"v_add_u32 v2, {s(sT0)}, v2")
    a(f"v_and_b32 v3, 15, v0")
    a(f"s_lshr_b32 {s(sT1)}, {s(sG)}, 2")
    a(f"s_cmp_eq_u32 {s(sT1)}, 0")
    a(f"s_cbranch_scc0 {name}_sig_kv")
    a(f"v_mov_b32 v3, {s(sTb)}")
    a.label(f"{name}_sig_kv")
    a(f"v_and_b32 v4, 1, v2")
    a(f"v_lshl_add_u32 v4, v4, 4, v3")
    a(f"v_lshrrev_b32 v2, 1, v2")
    a(f"v_lshl_add_u32 v2, v4, 3, v2")
    a(f"v_lshlrev_b32 v2, 8, v2")
    a(f"s_lshl_b32 {s(sT0)}, {s(sT1)}, 4")
    a(f"s_add_u32 {s(sT0)}, {s(sT0)}, {s(sTb)}")
    a(f"s_sub_u32 {s(sT0)}, {s(sT0)}, 16")
    a(f"s_cmp_eq_u32 {s(sT1)}, 0")
    a(f"s_cselect_b32 {s(sT0)}, 32, {s(sT0)}")
    a(f"s_lshl_b32 {s(sT0)}, {s(sT0)}, 2")
    a(f"s_add_u32 {s(sXo)}, {s(sT0)}, {WS_MB1}")
    a(f"s_mov_b32 {s(sWo)}, 0")
    a(f"s_branch {name}_h_p1")
    a.label(f"{name}_t1c")
    va = VAlloc(8)
    ACC = [[va(16) for hp in range(2)] for tt in range(2)]
    XF = [[va(4) for tt in range(2)] for b in range(2)]
    WF = [[va(4) for hp in range(2)] for b in range(2)]
    bX = [va(1) for i in range(4)]; bW = [va(1) for hp in range(2)]
    aX = [va(1) for i in range(4)]; aW = [va(1) for hp in range(2)]
    t = [va(1) for i in range(6)]
    vPad = va(1)
    def pf_lin():
        a(f"s_lshl_b32 {s(sN)}, {s(sN)}, 2")
        a(f"s_add_u32 {s(sN)}, {s(sN)}, {s(sW)}")
        a(f"s_cmp_lt_u32 {s(sN)}, 56")
        a(f"s_cbranch_scc1 {name}_pf_x")
        a(f"s_sub_u32 {s(sA_)}, {s(sN)}, 56")
        a(f"s_lshl_b32 {s(sA_)}, {s(sA_)}, 6")
        a(f"s_and_b32 {s(sB2)}, {s(sXc)}, 1")
        a(f"s_mul_i32 {s(sB2)}, {s(sB2)}, 1280")
        a(f"s_add_u32 {s(sB2)}, {s(sB2)}, {128*2688}")
        a(f"s_waitcnt lgkmcnt(0)")
        a(f"s_mov_b32 {s(SBv)}, s66\ns_mov_b32 {s(SBv+1)}, s67")
        for it in range(2):
            a(f"v_add_u32 v3, {s(sA_)}, v0")
            a(f"v_mul_u32_u24 v4, 43691, v3")
            a(f"v_lshrrev_b32 v4, 19, v4")
            a(f"v_mul_u32_u24 v5, 12, v4")
            a(f"v_sub_u32 v5, v3, v5")
            a(f"v_mul_u32_u24 v4, 2688, v4")
            a(f"v_lshl_add_u32 v4, v5, 7, v4")
            a(f"buffer_load_dword v6, v4, {s(SBv,4)}, {s(sB2)} offen")
            a(f"s_add_u32 {s(sA_)}, {s(sA_)}, 2560")
        a(f"s_branch {name}_pf_end")
        a.label(f"{name}_pf_x")
        a(f"v_lshlrev_b32 v4, 7, v0")
        a(f"s_lshr_b32 {s(sB2)}, {s(sXc)}, 1")
        a(f"s_mul_i32 {s(sB2)}, {s(sB2)}, {512*896}")
        a(f"s_lshl_b32 {s(sA_)}, {s(sN)}, 13")
        a(f"s_add_u32 {s(sB2)}, {s(sB2)}, {s(sA_)}")
        a(f"s_waitcnt lgkmcnt(0)")
        a(f"s_mov_b32 {s(SA)}, s64\ns_mov_b32 {s(SA+1)}, s65")
        a(f"buffer_load_dword v6, v4, {s(SA,4)}, {s(sB2)} offen")
        a(f"s_add_u32 {s(sN)}, {s(sN)}, 50")
    def pf_block():
        if os.environ.get("PFMODE", "lin") == "lin":
            pf_lin()
        else:
            a(f"s_lshl_b32 {s(sN)}, {s(sN)}, 2")
            a(f"s_add_u32 {s(sN)}, {s(sN)}, {s(sW)}")
            a(f"s_add_u32 {s(sN)}, {s(sN)}, {os.environ.get('PFO', '4')}")
            a(f"s_cmp_ge_u32 {s(sN)}, {os.environ.get('PFN', '100')}")
            a(f"s_cbranch_scc1 {name}_pf_end")
            a(f"s_mul_i32 {s(sCh)}, {s(sN)}, 205")
            a(f"s_lshr_b32 {s(sCh)}, {s(sCh)}, 12")
            a(f"s_mul_i32 {s(sA_)}, {s(sCh)}, 20")
            a(f"s_sub_u32 {s(sA_)}, {s(sN)}, {s(sA_)}")
            a(f"s_add_u32 {s(sCh)}, {s(sCh)}, 2")
            a(f"s_cmp_lt_u32 {s(sA_)}, 8")
            a(f"s_cbranch_scc1 {name}_pf_x")
            a(f"s_sub_u32 {s(sA_)}, {s(sA_)}, 8")
            a(f"s_lshl_b32 {s(sA_)}, {s(sA_)}, 6")
            a(f"v_add_u32 v3, {s(sA_)}, v0")
            a(f"v_mul_u32_u24 v4, 43691, v3")
            a(f"v_lshrrev_b32 v4, 19, v4")
            a(f"v_mul_u32_u24 v5, 12, v4")
            a(f"v_sub_u32 v5, v3, v5")
            a(f"v_mul_u32_u24 v4, 2688, v4")
            a(f"v_lshl_add_u32 v4, v5, 7, v4")
            a(f"s_and_b32 {s(sA_)}, {s(sXc)}, 1")
            a(f"s_mul_i32 {s(sA_)}, {s(sA_)}, 1280")
            a(f"s_mul_i32 {s(sB2)}, {s(sCh)}, {64*2688}")
            a(f"s_add_u32 {s(sA_)}, {s(sA_)}, {s(sB2)}")
            a(f"s_waitcnt lgkmcnt(0)")
            a(f"s_mov_b32 {s(SBv)}, s66\ns_mov_b32 {s(SBv+1)}, s67")
            a(f"buffer_load_dword v6, v4, {s(SBv,4)}, {s(sA_)} offen")
            a(f"s_branch {name}_pf_end")
            a.label(f"{name}_pf_x")
            a(f"v_mul_u32_u24 v4, 896, v0")
            a(f"s_lshr_b32 {s(sB2)}, {s(sXc)}, 1")
            a(f"s_lshl_b32 {s(sB2)}, {s(sB2)}, 3")
            a(f"s_add_u32 {s(sB2)}, {s(sB2)}, {s(sA_)}")
            a(f"s_mul_i32 {s(sB2)}, {s(sB2)}, {64*896}")
            a(f"s_lshl_b32 {s(sA_)}, {s(sCh)}, 7")
            a(f"s_add_u32 {s(sB2)}, {s(sB2)}, {s(sA_)}")
            a(f"s_waitcnt lgkmcnt(0)")
            a(f"s_mov_b32 {s(SA)}, s64\ns_mov_b32 {s(SA+1)}, s65")
            a(f"buffer_load_dword v6, v4, {s(SA,4)}, {s(sB2)} offen")
        a.label(f"{name}_pf_end")
        rt(11)
        if os.environ.get("CPF2", "1") == "1":
            a(f"s_sub_u32 {s(sN)}, {s(sN)}, 87")
            a(f"s_cmp_ge_u32 {s(sN)}, 13")
            a(f"s_cbranch_scc1 {name}_nocp2")
            a(f"v_lshlrev_b32 v2, 7, v0")
            a(f"s_cmp_lt_u32 {s(sN)}, 3")
            a(f"s_cbranch_scc0 {name}_cp2_c")
            a(f"s_lshl_b32 {s(sT0)}, {s(sN)}, 13")
            a(f"s_getpc_b64 {s(SC_,2)}")
            a.label(f"{name}_cp2_pc")
            a(f"s_sub_u32 {s(SC_)}, {s(SC_)}, {name}_cp2_pc-{NAME}")
            a(f"s_subb_u32 {s(SC_+1)}, {s(SC_+1)}, 0")
            a(f"s_mov_b32 {s(SC_+2)}, {name}_end-{NAME}")
            a(f"s_mov_b32 {s(SC_+3)}, 0x20000")
            a(f"buffer_load_dword v7, v2, {s(SC_,4)}, {s(sT0)} offen")
            a(f"s_branch {name}_nocp2")
            a.label(f"{name}_cp2_c")
            srd_consts(a, SC_)
            a(f"s_sub_u32 {s(sT0)}, {s(sN)}, 3")
            a(f"s_lshl_b32 {s(sT0)}, {s(sT0)}, 13")
            a(f"buffer_load_dword v7, v2, {s(SC_,4)}, {s(sT0)} offen")
            a.label(f"{name}_nocp2")

    PFIRST = os.environ.get("PFIRST", "1") == "1"
    if CW2:
        for r_ in range(3): a(f"v_mov_b32 {v(t[r_])}, v{2+r_}")
        if PFIRST: pf_block()
        for r_ in range(3): a(f"v_mov_b32 v{2+r_}, {v(t[r_])}")
        issue(2)
        if not PFIRST: pf_block()
    else:
        pf_block()
    a(f"v_and_b32 {v(t[0])}, 31, v0")
    a(f"v_lshrrev_b32 {v(t[1])}, 5, v0")
    a(f"v_bfe_u32 {v(t[2])}, v0, 1, 3")
    a(f"v_xor_b32 {v(t[2])}, {v(t[2])}, {v(t[1])}")
    a(f"s_lshr_b32 {s(sT0)}, {s(sW)}, 1")
    a(f"s_lshl_b32 {s(sT0)}, {s(sT0)}, 13")
    a(f"v_lshl_add_u32 {v(t[3])}, {v(t[0])}, 7, {s(sT0)}")
    for i in range(4):
        a(f"v_xor_b32 {v(t[4])}, {2*i}, {v(t[2])}")
        a(f"v_lshl_add_u32 {v(bX[i])}, {v(t[4])}, 4, {v(t[3])}")
    a(f"v_mov_b32 {v(vPad)}, 0")
    a(f"v_mov_b32 {v(t[4])}, 0x3f803f80")
    a(f"v_cmp_eq_u32 vcc, 28, {v(t[0])}")
    a(f"v_bfe_u32 {v(t[0])}, v0, 2, 2")
    a(f"v_lshl_add_u32 {v(t[2])}, {v(t[1])}, 3, {v(t[0])}")
    a(f"v_cndmask_b32 {v(vPad)}, {v(vPad)}, {v(t[4])}, vcc")
    a(f"v_lshlrev_b32 {v(t[2])}, 8, {v(t[2])}")
    a(f"v_bfe_u32 {v(t[3])}, v0, 4, 1")
    a(f"v_lshlrev_b32 {v(t[3])}, 5, {v(t[3])}")
    a(f"v_lshl_add_u32 {v(t[3])}, {v(t[0])}, 6, {v(t[3])}")
    a(f"v_and_b32 {v(t[4])}, 3, v0")
    a(f"v_lshl_add_u32 {v(t[3])}, {v(t[4])}, 3, {v(t[3])}")
    a(f"s_and_b32 {s(sT0)}, {s(sW)}, 1")
    a(f"s_mul_i32 {s(sT0)}, {s(sT0)}, 112")
    a(f"s_add_u32 {s(sT0)}, {s(sT0)}, {s(sOfs)}")
    for hp in range(2):
        a(f"s_add_u32 {s(sT1)}, {s(sT0)}, {56*hp}")
        a(f"v_add_u32 {v(t[4])}, {s(sT1)}, {v(t[3])}")
        a(f"v_and_b32 {v(t[4])}, 255, {v(t[4])}")
        a(f"v_add_u32 {v(bW[hp])}, {v(t[4])}, {v(t[2])}")
    for tt in range(2):
        for hp in range(2):
            for r in range(16):
                a(f"v_mov_b32 {v(ACC[tt][hp]+r)}, 0")
    a(f"s_lshr_b32 {s(sT0)}, {s(sG)}, 2")
    a(f"s_mul_i32 {s(sXo)}, {s(sT0)}, {M.RS}")
    a(f"s_add_u32 {s(sXo)}, {s(sXo)}, {M.WS_QF}")
    a(f"s_and_b32 {s(sT0)}, {s(sG)}, 3")
    a(f"s_mul_i32 {s(sT0)}, {s(sT0)}, {4*M.HS}")
    a(f"s_add_u32 {s(sXo)}, {s(sXo)}, {s(sT0)}")
    a(f"s_and_b32 {s(sT0)}, {s(sW)}, 1")
    a(f"s_mul_i32 {s(sT0)}, {s(sT0)}, {2*M.HS}")
    a(f"s_add_u32 {s(sXo)}, {s(sXo)}, {s(sT0)}")
    a(f"s_lshl_b32 {s(sT0)}, {s(sTb)}, 13")
    a(f"s_add_u32 {s(sXo)}, {s(sXo)}, {s(sT0)}")
    a(f"s_lshr_b32 {s(sT0)}, {s(sW)}, 1")
    a(f"s_lshl_b32 {s(sT0)}, {s(sT0)}, 12")
    a(f"s_add_u32 {s(sXo)}, {s(sXo)}, {s(sT0)}")
    a(f"s_add_u32 {s(sWo)}, {s(sXo)}, {M.HS}")
    a(f"s_mov_b32 {s(sHi)}, 0\ns_mov_b32 {s(sHi+1)}, -1")
    a(f"s_mov_b32 {s(sMsk)}, 0xf0000000\ns_mov_b32 {s(sMsk+1)}, 0xf0000000")
    a(f"s_cmp_lt_u32 {s(sG)}, 4")
    a(f"s_cselect_b32 {s(SP)}, {f32hex(M.SC)}, 1.0")
    a(f"s_cselect_b32 {s(SP+1)}, {f32hex(M.SC)}, 1.0")
    a(f"s_cselect_b32 {s(sPadv)}, 0, 0x3f803f80")
    a(f"s_mov_b32 {s(sC)}, 0")
    a(f"s_cmp_ge_u32 {s(sG)}, 8")
    a(f"s_cbranch_scc1 {name}_t1v")
    def setaddr(nxt):
        a(f"s_add_u32 {s(sT0)}, {s(sC)}, {nxt}")
        a(f"s_and_b32 {s(sT0)}, {s(sT0)}, {NS-1}")
        a(f"s_lshl_b32 {s(sT0)}, {s(sT0)}, 15")
        for i in range(4):
            a(f"v_add_u32 {v(aX[i])}, {s(sT0)}, {v(bX[i])}")
        for hp in range(2):
            a(f"v_add_u32 {v(aW[hp])}, {s(sT0)}, {v(bW[hp])}")
    def rd_list(i, b):
        L = []
        for tt in range(2):
            L.append(f"ds_read_b128 {v(XF[b][tt],4)}, {v(aX[i])} offset:{4096*tt}")
        for hp in range(2):
            for jj in range(2):
                L.append(f"ds_read_b64_tr_b16 {v(WF[b][hp]+2*jj,2)}, {v(aW[hp])} offset:{16384+(16*i+4*jj)*256}")
        return [L[0], L[2], L[3], L[4], L[5], L[1]]
    def kloop(lbl, vmode):
        setaddr(0)
        rt(12)
        a("s_barrier")
        rt(13)
        for r_ in rd_list(0, 0): a(r_)
        a.label(lbl)
        for i in range(4):
            b = i % 2
            mm = []
            for tt in range(2):
                for hp in range(2):
                    mm.append(mfma32(ACC[tt][hp], XF[b][tt], WF[b][hp], ACC[tt][hp]) if vmode else mfma32(ACC[tt][hp], WF[b][hp], XF[b][tt], ACC[tt][hp]))
            a("s_waitcnt lgkmcnt(0)")
            if i < 3:
                R = rd_list(i + 1, 1 - b)
                a(mm[0]); a(R[0]); a(R[1]); a(mm[1]); a(R[2]); a(R[3]); a(mm[2]); a(R[4]); a(R[5]); a(mm[3])
            else:
                R = rd_list(0, 0)
                a(mm[0])
                a(f"s_cmp_eq_u32 {s(sC)}, 6")
                a(f"s_cbranch_scc1 {lbl}_last")
                setaddr(1)
                a(mm[1])
                if CW2:
                    a(f"s_cmp_lg_u32 {s(sC)}, 1")
                    a(f"s_cbranch_scc1 {lbl}_nw")
                    a("s_waitcnt vmcnt(0)" if PFIRST else "s_waitcnt vmcnt(2)")
                    a.label(f"{lbl}_nw")
                a("s_barrier")
                a(R[0]); a(R[1]); a(R[2]); a(mm[2]); a(R[3]); a(R[4]); a(R[5]); a(mm[3])
                a(f"s_add_u32 {s(sC)}, {s(sC)}, 1")
                a(f"s_branch {lbl}")
                a.label(f"{lbl}_last")
                a(mm[1]); a(mm[2]); a(mm[3])
        rt(1)
        a("s_nop 7\ns_nop 1")
    order = [(0, 0), (0, 1), (1, 0), (1, 1)]
    kloop(f"{name}_qk_loop", False)
    for tt, hp in order:
        A_ = ACC[tt][hp]
        for r in range(0, 16, 2):
            a(f"v_pk_mul_f32 {v(A_+r,2)}, {v(A_+r,2)}, {s(SP,2)}")
        for k in range(8):
            a(f"v_cvt_pk_bf16_f32 {v(A_+k)}, {v(A_+2*k)}, {v(A_+2*k+1)}")
        a(f"s_mov_b64 exec, {s(sHi,2)}")
        a(f"v_mov_b32 {v(A_+6)}, {s(sPadv)}")
        a(f"v_mov_b32 {v(A_+7)}, 0")
        a(f"s_mov_b64 exec, -1")
        for t_ in range(2):
            a(f"buffer_store_dwordx4 {v(A_+4*t_,4)}, v1, {s(SWS,4)}, {s(sWo if hp else sXo)} offen offset:{2048*tt+1024*t_} {ST}")
    a(f"s_branch {name}_c_p1")
    a.label(f"{name}_t1v")
    kloop(f"{name}_v_loop", True)
    for tt, hp in order:
        A_ = ACC[tt][hp]
        for k in range(8):
            a(f"v_cvt_pk_bf16_f32 {v(A_+k)}, {v(A_+2*k)}, {v(A_+2*k+1)}")
        a(f"s_mov_b64 exec, {s(sMsk,2)}")
        for k in range(8):
            a(f"v_mov_b32 {v(A_+k)}, {v(vPad)}")
        a(f"s_mov_b64 exec, -1")
        for t_ in range(2):
            a(f"buffer_store_dwordx4 {v(A_+4*t_,4)}, v1, {s(SWS,4)}, {s(sWo if hp else sXo)} offen offset:{2048*tt+1024*t_} {ST}")
    a(f"s_branch {name}_c_p1")
    hi = va.hi
    a.label(f"{name}_bwg")
    sB = sTb
    a(f"s_lshl_b32 {s(sB)}, {s(sXc)}, 3")
    a(f"s_add_u32 {s(sB)}, {s(sB)}, {s(sSlot)}")
    if BL: a(f"s_sub_u32 {s(sB)}, {s(sB)}, 24")
    srd_consts(a, SC_)
    if os.environ.get("CPF", "0") == "1":
        a(f"s_cmp_ge_u32 {s(sSlot)}, 3")
        a(f"s_cbranch_scc1 {name}_nocpf")
        a(f"v_lshlrev_b32 v2, 7, v0")
        a(f"s_lshl_b32 {s(sT0)}, s3, 13")
        a(f"s_cmp_eq_u32 {s(sSlot)}, 0")
        a(f"s_cbranch_scc0 {name}_cpf_c")
        a(f"s_getpc_b64 {s(SP,2)}")
        a.label(f"{name}_cpf_pc")
        a(f"s_sub_u32 {s(SP)}, {s(SP)}, {name}_cpf_pc-{NAME}")
        a(f"s_subb_u32 {s(SP+1)}, {s(SP+1)}, 0")
        a(f"s_mov_b32 {s(SP+2)}, {name}_end-{NAME}")
        a(f"s_mov_b32 {s(SP+3)}, 0x20000")
        a(f"buffer_load_dword v3, v2, {s(SP,4)}, {s(sT0)} offen")
        a(f"s_branch {name}_nocpf")
        a.label(f"{name}_cpf_c")
        a(f"s_lshl_b32 {s(sT1)}, {s(sSlot)}, 16")
        a(f"s_add_u32 {s(sT0)}, {s(sT0)}, {s(sT1)}")
        a(f"s_sub_u32 {s(sT0)}, {s(sT0)}, 65536")
        a(f"buffer_load_dword v3, v2, {s(SC_,4)}, {s(sT0)} offen")
        a.label(f"{name}_nocpf")
    a(f"s_cmp_ge_u32 s3, 4")
    a(f"s_cbranch_scc1 {name}_t3")
    a(f"s_mov_b32 {s(SA+2)}, {2048*896}\ns_mov_b32 {s(SA+3)}, 0x20000")
    va = VAlloc(2)
    RAW = [va(32), va(32)]
    XFc = [va(4) for j in range(8)]
    AC = [[va(4) for cs in range(2)] for j in range(8)]
    FC = [[va(4) for u in range(2)] for cs in range(2)]
    TWv = va(56)
    t = [va(1) for i in range(8)]
    vP = [va(1) for r in range(4)]; vM = [va(1) for r in range(4)]
    aR = [va(1), va(1)]
    sGq, sO = sG, sC
    a(f"s_lshr_b32 {s(sGq)}, {s(sB)}, 2")
    a(f"s_and_b32 {s(sO)}, {s(sB)}, 3")
    a(f"s_and_b32 {s(sT1)}, {s(sW)}, 1")
    a(f"s_lshl_b32 {s(sT0)}, {s(sT1)}, 12")
    a(f"s_add_u32 {s(sT0)}, {s(sT0)}, {CT_F56}")
    for cs in range(2):
        for u in range(2):
            a(f"buffer_load_dwordx4 {v(FC[cs][u],4)}, v1, {s(SC_,4)}, {s(sT0)} offen offset:{2048*cs+1024*u}")
    a(f"v_lshrrev_b32 {v(t[5])}, 4, v0")
    a(f"v_lshlrev_b32 {v(t[6])}, 8, {v(t[5])}")
    a(f"s_lshl_b32 {s(sT0)}, {s(sT1)}, 10")
    a(f"s_add_u32 {s(sT0)}, {s(sT0)}, {CT_TW448B}")
    for q in range(14):
        a(f"buffer_load_dwordx4 {v(TWv+4*q,4)}, {v(t[6])}, {s(SC_,4)}, {s(sT0)} offen offset:{16*q}")
    a(f"s_lshr_b32 {s(sT2)}, {s(sW)}, 1")
    a(f"s_lshl_b32 {s(sT0)}, {s(sGq)}, 5")
    a(f"s_lshl_b32 {s(sT1)}, {s(sO)}, 1")
    a(f"s_add_u32 {s(sT0)}, {s(sT0)}, {s(sT1)}")
    a(f"s_add_u32 {s(sT0)}, {s(sT0)}, {s(sT2)}")
    a(f"s_mul_i32 {s(sXo)}, {s(sT0)}, {4*896}")
    a(f"s_mul_i32 {s(sSl)}, {s(sW)}, 14336")
    a(f"v_lshrrev_b32 {v(t[0])}, 3, v0")
    a(f"v_and_b32 {v(t[1])}, 7, v0")
    for i in range(14):
        d_ = RAW[1] + i
        a(f"v_add_u32 {v(t[2])}, {8*i}, {v(t[0])}")
        a(f"v_mul_u32_u24 {v(t[3])}, 147, {v(t[2])}")
        a(f"v_lshrrev_b32 {v(t[3])}, 10, {v(t[3])}")
        a(f"v_lshrrev_b32 {v(t[4])}, 2, {v(t[3])}")
        a(f"v_and_b32 {v(t[3])}, 1, {v(t[3])}")
        a(f"v_lshl_add_u32 {v(t[3])}, {v(t[3])}, 2, {v(t[4])}")
        a(f"v_xor_b32 {v(t[3])}, {v(t[3])}, {v(t[1])}")
        a(f"v_mul_u32_u24 {v(t[4])}, {32*896-3584}, {v(t[4])}")
        a(f"v_lshl_add_u32 {v(t[4])}, {v(t[2])}, 7, {v(t[4])}")
        a(f"v_lshl_add_u32 {v(d_)}, {v(t[3])}, 4, {v(t[4])}")
    a("s_waitcnt lgkmcnt(0)" + (" vmcnt(0)" if os.environ.get("T2P", "0") == "1" else ""))
    a(f"s_mov_b32 {s(SA)}, s70\ns_mov_b32 {s(SA+1)}, s71")
    for rnd in range(int(os.environ.get("T2R", "0"))):
        a(f"s_mov_b32 {s(SP)}, s68\ns_mov_b32 {s(SP+1)}, s69\ns_mov_b32 {s(SP+2)}, {448*896}\ns_mov_b32 {s(SP+3)}, 0x20000")
        a(f"s_lshl_b32 {s(sT0)}, {s(sB)}, 2\ns_add_u32 {s(sT0)}, {s(sT0)}, {s(sW)}\ns_lshl_b32 {s(sT0)}, {s(sT0)}, 10\ns_add_u32 {s(sT0)}, {s(sT0)}, {rnd*262144}")
        a(f"buffer_load_dwordx4 {v(RAW[0],4)}, v1, {s(SP,4)}, {s(sT0)} offen")
        a("s_waitcnt vmcnt(0)")
    for i in range(14):
        a(f"s_add_u32 m0, {s(sSl)}, {1024*i}")
        a("s_nop 0")
        a(f"buffer_load_dwordx4 {v(RAW[1]+i)}, {s(SA,4)}, {s(sXo)} offen lds")
    a(f"s_and_b32 {s(sT1)}, {s(sW)}, 1")
    a(f"v_and_b32 {v(t[0])}, 3, v0")
    a(f"v_bfe_u32 {v(t[1])}, v0, 2, 2")
    a(f"v_lshl_add_u32 {v(t[2])}, {v(t[0])}, 2, {v(t[1])}")
    a(f"v_mul_u32_u24 {v(t[2])}, 896, {v(t[2])}")
    a(f"v_add_u32 {v(t[2])}, {s(sSl)}, {v(t[2])}")
    a(f"v_and_b32 {v(t[1])}, 1, {v(t[1])}")
    a(f"v_lshl_add_u32 {v(t[3])}, {v(t[1])}, 2, {v(t[0])}")
    a(f"v_lshlrev_b32 {v(t[3])}, 4, {v(t[3])}")
    a(f"v_lshl_add_u32 {v(aR[0])}, {v(t[5])}, 7, {v(t[2])}")
    a(f"v_min_u32 {v(t[4])}, 2, {v(t[5])}")
    a(f"v_lshl_add_u32 {v(aR[1])}, {v(t[4])}, 7, {v(t[2])}")
    a(f"v_add_u32 {v(aR[1])}, 512, {v(aR[1])}")
    a(f"v_and_b32 {v(t[0])}, 15, v0")
    a(f"v_lshlrev_b32 {v(t[0])}, 2, {v(t[0])}")
    a(f"s_lshl_b32 {s(sT0)}, {s(sT1)}, 4")
    a(f"v_lshl_add_u32 {v(t[1])}, {v(t[5])}, 2, {s(sT0)}")
    a(f"v_mov_b32 {v(t[7])}, 0x7f000000")
    a(f"s_mov_b32 {s(sA_)}, {M.X1S}")
    for rr in range(4):
        a(f"v_add_u32 {v(t[2])}, {rr}, {v(t[1])}")
        a(f"v_mad_u32_u24 {v(vP[rr])}, {v(t[2])}, {s(sA_)}, {v(t[0])}")
        a(f"v_sub_u32 {v(t[4])}, 28, {v(t[2])}")
        a(f"v_mad_u32_u24 {v(vM[rr])}, {v(t[4])}, {s(sA_)}, {v(t[0])}")
        a(f"v_cmp_lt_u32 vcc, 28, {v(t[2])}")
        a("s_nop 1")
        a(f"v_cndmask_b32 {v(vP[rr])}, {v(vP[rr])}, {v(t[7])}, vcc")
        a(f"v_cndmask_b32 {v(vM[rr])}, {v(vM[rr])}, {v(t[7])}, vcc")
    a(f"s_lshr_b32 {s(sT0)}, {s(sO)}, 1")
    a(f"s_lshl_b32 {s(sT0)}, {s(sT0)}, 12")
    a(f"s_lshl_b32 {s(sT1)}, {s(sGq)}, 8")
    a(f"s_add_u32 {s(sT0)}, {s(sT0)}, {s(sT1)}")
    a(f"s_and_b32 {s(sT1)}, {s(sO)}, 1")
    a(f"s_lshl_b32 {s(sT1)}, {s(sT1)}, 7")
    a(f"s_add_u32 {s(sT0)}, {s(sT0)}, {s(sT1)}")
    a(f"s_lshl_b32 {s(sT1)}, {s(sT2)}, 6")
    a(f"s_add_u32 {s(sT0)}, {s(sT0)}, {s(sT1)}")
    for tt_ in range(8):
        col = 56 * tt_ if tt_ < 4 else 56 * (8 - tt_) - 28
        a(f"s_add_u32 {s(sTt+tt_)}, {s(sT0)}, {M.WS_X1 + col*M.X1S}")
    a(f"s_mov_b32 {s(sScale)}, {f32hex(0.5**0.5)}\ns_mov_b32 {s(sScale+1)}, {f32hex(0.5**0.5)}")
    a(f"s_mov_b32 {s(sMsk)}, 0x05040100\ns_mov_b32 {s(sMsk+1)}, 0x07060302")
    a("s_waitcnt vmcnt(0)")
    rt(1)
    for u in range(2):
        for e in range(8):
            a(f"v_xor_b32 {v(t[e%2])}, {16*e}, {v(t[3])}")
            a(f"v_add_u32 {v(t[e%2])}, {v(t[e%2])}, {v(aR[u])}")
            a(f"ds_read_b128 {v(RAW[u]+4*e,4)}, {v(t[e%2])}")
    for u in range(2):
        a(f"s_waitcnt lgkmcnt({8 if u == 0 else 0})")
        for j in range(8):
            for q in range(4):
                lo = RAW[u] + 8 * q + j // 2; hi_ = RAW[u] + 8 * q + 4 + j // 2
                a(f"v_perm_b32 {v(XFc[j]+q)}, {v(hi_)}, {v(lo)}, {s(sMsk + j % 2)}")
            if j >= 1:
                for cs in range(2):
                    a(mfma16(AC[j-1][cs], FC[cs][u], XFc[j-1], None if u == 0 else AC[j-1][cs]))
        a("s_nop 1")
        for cs in range(2):
            a(mfma16(AC[7][cs], FC[cs][u], XFc[7], None if u == 0 else AC[7][cs]))
    a("s_nop 7")
    for rp in range(2):
        pool = Pool([RAW[0] + 8 + 2 * i for i in range(8)])
        for j in range(1, 8):
            tw = TWv + 8 * (j - 1) + 2 * rp
            PK8.pcmul(a, AC[j][0] + 2 * rp, AC[j][1] + 2 * rp, tw, tw + 4, RAW[0] + 4 * (j % 2))
        X = PK8.dft8(a, pool, [((AC[j][0] + 2 * rp, 1), (AC[j][1] + 2 * rp, 1)) for j in range(8)], -1, sScale)
        for tt_ in range(8):
            re, im = X[tt_]
            if tt_ >= 4: im = neg(im)
            for h in range(2):
                rr = 2 * rp + h
                o_ = RAW[1] + 8 * rr + tt_
                a(f"v_cvt_pk_bf16_f32 {v(o_)}, {sv((re[0]+h, re[1]))}, {sv((im[0]+h, im[1]))}")
                a(f"buffer_store_dword {v(o_)}, {v(vP[rr] if tt_ < 4 else vM[rr])}, {s(SWS,4)}, {s(sTt+tt_)} offen {ST}")
    a(f"s_mov_b32 {s(sHi)}, 0\ns_mov_b32 {s(sHi+1)}, -1")
    a(f"s_branch {name}_c_p1")
    hi = max(hi, va.hi)
    a.label(f"{name}_t3")
    if os.environ.get("TLB", "0") == "1":
        a(f"s_cmp_lg_u32 {s(sW)}, 0")
        a(f"s_cbranch_scc1 {name}_notlb")
        a(f"s_cmp_ge_u32 {s(sSlot)}, 6")
        a(f"s_cbranch_scc1 {name}_notlb")
        a(f"v_lshlrev_b32 v252, 16, v0")
        a(f"s_waitcnt lgkmcnt(0)")
        a(f"s_cmp_ge_u32 {s(sSlot)}, 4")
        a(f"s_cbranch_scc1 {name}_tlb2")
        a(f"s_lshl_b32 {s(sT0)}, {s(sSlot)}, 22")
        a(f"buffer_load_dword v253, v252, {s(SWS,4)}, {s(sT0)} offen")
        a(f"s_branch {name}_notlb")
        a.label(f"{name}_tlb2")
        a(f"s_cmp_eq_u32 {s(sSlot)}, 4")
        a(f"s_cselect_b32 {s(SP)}, s76, s68")
        a(f"s_cselect_b32 {s(SP+1)}, s77, s69")
        a(f"s_mov_b32 {s(SP+2)}, {448*896}")
        a(f"s_cselect_b32 {s(SP+2)}, {2048*1792}, {s(SP+2)}")
        a(f"s_mov_b32 {s(SP+3)}, 0x20000")
        a(f"buffer_load_dword v253, v252, {s(SP,4)}, 0 offen")
        a.label(f"{name}_notlb")
    a(f"s_lshr_b32 {s(sG)}, {s(sB)}, 3")
    a(f"s_and_b32 {s(sC)}, {s(sB)}, 7")
    a(f"s_lshl_b32 {s(sT0)}, {s(sG)}, 7")
    a(f"s_lshl_b32 {s(sT1)}, {s(sC)}, 2")
    a(f"s_add_u32 {s(sT0)}, {s(sT0)}, {s(sT1)}")
    a(f"s_add_u32 {s(sT0)}, {s(sT0)}, {s(sW)}")
    a(f"s_mul_i32 {s(sXo)}, {s(sT0)}, 900")
    a(f"s_lshl_b32 {s(sSl)}, {s(sW)}, 13")
    a(f"s_add_u32 {s(sSl)}, {s(sSl)}, 65536")
    a(f"v_lshlrev_b32 v2, 7, v0")
    a(f"s_and_b32 {s(sT1)}, {s(sSlot)}, 7")
    a(f"s_lshl_b32 {s(sT1)}, {s(sT1)}, 13")
    if os.environ.get("T3P", "1") == "1":
        a(f"buffer_load_dword v3, v2, {s(SC_,4)}, {s(sT1)} offen")
        a("s_waitcnt vmcnt(0)")
    for rnd in range(int(os.environ.get("T3R", "0"))):
        a("s_waitcnt lgkmcnt(0)")
        a(f"s_mov_b32 {s(SP)}, s68\ns_mov_b32 {s(SP+1)}, s69\ns_mov_b32 {s(SP+2)}, {448*896}\ns_mov_b32 {s(SP+3)}, 0x20000")
        a(f"s_lshl_b32 {s(sT0)}, {s(sB)}, 2\ns_add_u32 {s(sT0)}, {s(sT0)}, {s(sW)}\ns_lshl_b32 {s(sT0)}, {s(sT0)}, 9\ns_add_u32 {s(sT0)}, {s(sT0)}, {262144 + rnd*65536}")
        a(f"buffer_load_dwordx2 v[8:9], v1, {s(SP,4)}, {s(sT0)} offen")
        a("s_waitcnt vmcnt(0)")
    a(f"s_waitcnt lgkmcnt(0)")
    a(f"s_mov_b32 {s(SBv)}, s72\ns_mov_b32 {s(SBv+1)}, s73\ns_mov_b32 {s(SBv+2)}, {2048*450}\ns_mov_b32 {s(SBv+3)}, 0x20000")
    a(f"s_mov_b32 {s(SD)}, s74\ns_mov_b32 {s(SD+1)}, s75\ns_mov_b32 {s(SD+2)}, {2048*450}\ns_mov_b32 {s(SD+3)}, 0x20000")
    a(f"v_mov_b32 v254, {WS_TAG}")
    a(f"buffer_load_dword v255, v254, {s(SWS,4)}, 0 offen")
    for r in range(4):
        for arr in range(2):
            a(f"s_add_u32 m0, {s(sSl)}, {4096*arr + 1024*r}")
            a(f"s_add_u32 {s(sT0)}, {s(sXo)}, {64*450*r}")
            a(f"buffer_load_dwordx4 v1, {s(SD if arr else SBv,4)}, {s(sT0)} offen lds")
    a(f"v_and_b32 v2, 1, v0")
    a(f"v_lshrrev_b32 v3, 1, v0")
    a(f"v_mul_u32_u24 v4, 450, v2")
    a(f"v_lshl_add_u32 v4, v3, 1, v4")
    a(f"v_add_u32 v4, {s(sSl)}, v4")
    a(f"v_lshrrev_b32 v5, 3, v0")
    a(f"v_mul_u32_u24 v5, {M.WTS}, v5")
    a(f"v_and_b32 v2, 7, v0")
    a(f"v_lshl_add_u32 v5, v2, 4, v5")
    a(f"s_lshl_b32 {s(sT0)}, {s(sG)}, 12")
    a(f"s_lshl_b32 {s(sT1)}, {s(sC)}, 9")
    a(f"s_add_u32 {s(sT0)}, {s(sT0)}, {s(sT1)}")
    a(f"s_lshl_b32 {s(sT1)}, {s(sW)}, 7")
    a(f"s_add_u32 {s(sT0)}, {s(sT0)}, {s(sT1)}")
    a(f"s_add_u32 {s(sT0)}, {s(sT0)}, {M.WS_WT}")
    a("s_waitcnt vmcnt(0)")
    rt(1)
    D0 = 160
    def t3_reads(it):
        for r in range(4):
            a(f"ds_read_u16 {v(D0+4*it+r)}, v4 offset:{1024*r+64*it}")
            a(f"ds_read_u16 {v(D0+32+4*(it%2)+r)}, v4 offset:{4096+1024*r+64*it}")
    t3_reads(0)
    for it in range(8):
        if it < 7:
            t3_reads(it + 1)
            a("s_waitcnt lgkmcnt(8)")
        else:
            a("s_waitcnt lgkmcnt(0)")
        for r in range(4):
            a(f"v_lshl_or_b32 {v(D0+4*it+r)}, {v(D0+32+4*(it%2)+r)}, 16, {v(D0+4*it+r)}")
        a(f"buffer_store_dwordx4 {v(D0+4*it,4)}, v5, {s(SWS,4)}, {s(sT0)} offen {ST}")
        a(f"s_add_u32 {s(sT0)}, {s(sT0)}, {8*M.WTS}")
    a(f"s_mov_b32 {s(sWo)}, 1")
    a.label(f"{name}_h_p1")
    import fused_b
    hi = max(hi, fused_b.helpers(a, name, locals()))
    a.label(f"{name}_c_p1")
    hi = max(hi, fused_b.computes(a, name, locals()))
    a.label(f"{name}_end")
    a("s_endpgm")
    return a.text() + kernel_desc(NAME, 256, 102), hi
```

```python
from asmlib import *
import model as M
import os
from k2 import (CT_F64, CT_F32, CT_T2048, CT_F56, CT_TW448, CT_G56, srd_consts, cmul)
from dft8 import *
import fused as F

def helpers(a, name, E):
    SA, SBv, SWS, SC_, SD = E['SA'], E['SBv'], E['SWS'], E['SC_'], E['SD']
    sW, sXc, sSlot, sTag = E['sW'], E['sXc'], E['sSlot'], E['sTag']
    sXo, sWo, sN = E['sXo'], E['sWo'], E['sN']
    rt, dump, poll, ppoll = E['rt'], E['dump'], E['poll'], E['ppoll']
    PP = os.environ.get('PP', '0') == '1'
    ST, LD = F.ST, F.LD
    sT0, sT1, sT2 = 33, 34, 35
    sHead, sCol, sDK, sM, sK, sV, sZ0, sZ1, sTb2, sCg, sWoO, sK8 = 31, 32, 36, 37, 40, 41, 42, 43, 44, 45, 46, 48
    va = VAlloc(8)
    DA = [[va(4) for ks in range(4)] for mt in range(2)]
    F64 = [[va(4) for ks in range(4)] for c in range(2)]
    F32 = [[va(4) for k in range(3)] for mt in range(2)]
    TW = va(16); Wv = [va(4), va(4)]
    AC = [[va(4) for c in range(2)] for mt in range(2)]
    BF = [va(4), va(4)]
    T = va(4); WR = va(1); WI = va(1)
    vL16 = va(1); vG = va(1); vA = va(1); vB = va(1); vC = va(1); vD = va(1); vWo = va(1); vS2 = va(1); vE = va(1)
    assert va.hi <= 160
    srd_consts(a, SC_)
    a(f"s_lshr_b32 {s(sHead)}, {s(sSlot)}, 4")
    a(f"s_lshl_b32 {s(sT0)}, {s(sXc)}, 1")
    a(f"s_add_u32 {s(sHead)}, {s(sHead)}, {s(sT0)}")
    a(f"s_mul_i32 {s(sDK)}, {s(sHead)}, {M.HS}")
    a(f"s_lshl_b32 {s(sT0)}, {s(sW)}, 12")
    a(f"s_add_u32 {s(sDK)}, {s(sDK)}, {s(sT0)}")
    a(f"s_add_u32 {s(sDK)}, {s(sDK)}, {M.WS_KF}")
    a(f"s_lshl_b32 {s(sM)}, {s(sW)}, 13")
    a(f"s_lshl_b32 {s(sCol)}, {s(sXc)}, 5")
    a(f"s_add_u32 {s(sCol)}, {s(sCol)}, {s(sSlot)}")
    a(f"v_and_b32 {v(vL16)}, 15, v0")
    a(f"v_lshrrev_b32 {v(vG)}, 4, v0")
    a(f"v_lshlrev_b32 {v(vA)}, 12, {v(vG)}")
    a(f"v_lshrrev_b32 {v(T)}, 1, {v(vL16)}")
    a(f"v_lshl_add_u32 {v(vA)}, {v(T)}, 7, {v(vA)}")
    a(f"v_and_b32 {v(T)}, 1, v0")
    a(f"v_lshl_add_u32 {v(vA)}, {v(T)}, 4, {v(vA)}")
    a(f"v_mul_u32_u24 {v(vB)}, {4*272}, {v(vG)}")
    a(f"v_lshl_add_u32 {v(vB)}, {v(vL16)}, 2, {v(vB)}")
    a(f"s_lshl_b32 {s(sT0)}, {s(sW)}, 6")
    a(f"s_add_u32 {s(sT0)}, {s(sT0)}, {F.LDS_X}")
    a(f"v_add_u32 {v(vB)}, {s(sT0)}, {v(vB)}")
    a(f"v_mul_u32_u24 {v(vC)}, 272, {v(vL16)}")
    a(f"v_lshl_add_u32 {v(vC)}, {v(vG)}, 4, {v(vC)}")
    a(f"v_add_u32 {v(vC)}, {F.LDS_X}, {v(vC)}")
    a(f"v_mul_u32_u24 {v(vD)}, 144, {v(vL16)}")
    a(f"v_lshl_add_u32 {v(vD)}, {v(vG)}, 4, {v(vD)}")
    a(f"s_mul_i32 {s(sT0)}, {s(sW)}, 2304")
    a(f"s_add_u32 {s(sT0)}, {s(sT0)}, {F.LDS_Z}")
    a(f"v_add_u32 {v(vD)}, {s(sT0)}, {v(vD)}")
    a(f"v_lshrrev_b32 {v(T)}, 3, v0")
    a(f"v_mul_u32_u24 {v(vE)}, 144, {v(T)}")
    a(f"v_and_b32 {v(T)}, 7, v0")
    a(f"v_lshl_add_u32 {v(vE)}, {v(T)}, 4, {v(vE)}")
    a(f"v_add_u32 {v(vE)}, {s(sT0)}, {v(vE)}")
    a(f"s_mul_i32 {s(sZ0)}, {s(sCol)}, {M.ZCS}")
    a(f"s_lshl_b32 {s(sT1)}, {s(sW)}, 11")
    a(f"s_add_u32 {s(sZ0)}, {s(sZ0)}, {s(sT1)}")
    a(f"s_add_u32 {s(sZ0)}, {s(sZ0)}, {M.WS_ZB}")
    a(f"s_cmp_lt_u32 {s(sCol)}, 225")
    a(f"s_cselect_b32 {s(sZ0)}, {s(sZ0)}, 0x7f000000")
    a(f"s_mul_i32 {s(sT0)}, {s(sSlot)}, 37")
    a(f"s_lshr_b32 {s(sT0)}, {s(sT0)}, 8")
    a(f"s_mul_i32 {s(sT1)}, {s(sT0)}, 7")
    a(f"s_sub_u32 {s(sCg)}, {s(sSlot)}, {s(sT1)}")
    a(f"v_bfe_u32 {v(T)}, v0, 2, 1")
    a(f"v_lshl_add_u32 {v(T)}, {v(vG)}, 1, {v(T)}")
    a(f"v_mul_u32_u24 {v(vWo)}, 896, {v(T)}")
    a(f"v_lshrrev_b32 {v(T)}, 3, v0")
    a(f"v_xor_b32 {v(T)}, {v(T)}, {v(vG)}")
    a(f"v_and_b32 {v(T)}, 1, {v(T)}")
    a(f"v_lshl_add_u32 {v(vWo)}, {v(T)}, 6, {v(vWo)}")
    a(f"v_and_b32 {v(T)}, 3, v0")
    a(f"v_lshl_add_u32 {v(vWo)}, {v(T)}, 4, {v(vWo)}")
    a(f"s_mul_i32 {s(sWoO)}, {s(sW)}, {8*896}")
    a(f"s_lshl_b32 {s(sT0)}, {s(sCg)}, 7")
    a(f"s_add_u32 {s(sWoO)}, {s(sWoO)}, {s(sT0)}")
    a(f"v_cmp_lt_u32 vcc, 6, v0")
    a(f"s_and_b32 {s(sT0)}, {s(sSlot)}, 15")
    a(f"s_and_b32 {s(sT1)}, {s(sT0)}, 1")
    a(f"s_mul_i32 {s(sT1)}, {s(sT1)}, 14")
    a(f"v_add_u32 {v(vS2)}, {s(sT1)}, v0")
    a(f"s_lshr_b32 {s(sT0)}, {s(sT0)}, 1")
    a(f"v_lshl_add_u32 {v(vS2)}, {v(vS2)}, 3, {s(sT0)}")
    a(f"v_lshlrev_b32 {v(vS2)}, 7, {v(vS2)}")
    a(f"s_waitcnt lgkmcnt(0)")
    a(f"s_mov_b32 {s(SD)}, s78\ns_mov_b32 {s(SD+1)}, s79\ns_mov_b32 {s(SD+2)}, 256\ns_mov_b32 {s(SD+3)}, 0x20000")
    a(f"s_mov_b32 {s(SA)}, s68\ns_mov_b32 {s(SA+1)}, s69\ns_mov_b32 {s(SA+3)}, 0x20000")
    a(f"s_cmp_lt_u32 {s(sSlot)}, 28")
    a(f"s_cselect_b32 {s(SA+2)}, {448*896}, 0")
    a(f"s_mov_b32 {s(SBv)}, s76\ns_mov_b32 {s(SBv+1)}, s77\ns_mov_b32 {s(SBv+2)}, {2048*1792}\ns_mov_b32 {s(SBv+3)}, 0x20000")
    a(f"v_mov_b32 v5, 0")
    a(f"v_lshlrev_b32 v6, 2, v0")
    lead = [0]
    def if_lead(fn):
        lead[0] += 1; L = f"{name}_nl{lead[0]}"
        a(f"s_cmp_lg_u32 {s(sW)}, 0")
        a(f"s_cbranch_scc1 {L}")
        fn()
        a.label(L)
    def get_tag():
        a(f"v_readfirstlane_b32 {s(sTag)}, v255")
        a("s_nop 3")
        a(f"s_add_u32 {s(sTag)}, {s(sTag)}, 1")
    def tree_up(off):
        a(f"s_lshr_b32 {s(sT1)}, s2, 4")
        a(f"s_mul_i32 {s(sT0)}, {s(sT1)}, {17*128}")
        a(f"s_and_b32 {s(sT1)}, s2, 15")
        a(f"s_lshl_b32 {s(sT1)}, {s(sT1)}, 2")
        a(f"s_add_u32 {s(sT0)}, {s(sT0)}, {s(sT1)}")
        a(f"s_add_u32 {s(sT0)}, {s(sT0)}, {F.WS_MB3 + off}")
        a(f"v_mov_b32 v7, {s(sTag)}")
        a("s_mov_b64 exec, 1")
        a(f"buffer_store_dword v7, v5, {s(SWS,4)}, {s(sT0)} offen sc1")
        a("s_mov_b64 exec, -1")
    def tree_down(off, base, shift, lbl):
        a(f"s_lshr_b32 {s(sT1)}, s2, 4")
        a(f"s_and_b32 {s(sT2)}, s2, 15")
        a(f"s_cmp_lg_u32 {s(sT1)}, {s(sT2)}")
        a(f"s_cbranch_scc1 {lbl}")
        a(f"s_lshl_b32 {s(sT0)}, s2, 7")
        a(f"s_add_u32 {s(sT0)}, {s(sT0)}, {F.WS_MB3 + off}")
        poll(f"buffer_load_dword v7, v6, {s(SWS,4)}, {s(sT0)} offen sc1", f"v_cmp_ne_u32 vcc, {s(sTag)}, v7", "0xffff")
        a(f"s_lshl_b32 {s(sT1)}, {s(sT1)}, 2")
        a(f"s_lshl_b32 {s(sT2)}, {s(sW)}, {6 + shift}")
        a(f"v_lshlrev_b32 v3, {shift}, v0")
        a(f"v_mov_b32 v7, {s(sTag)}")
        a(f"s_add_u32 {s(sT0)}, {s(sT1)}, {base}")
        a(f"s_add_u32 {s(sT0)}, {s(sT0)}, {s(sT2)}")
        a(f"buffer_store_dword v7, v3, {s(SWS,4)}, {s(sT0)} offen sc1")
        a.label(lbl)
    def broadcast(base, shift):
        a(f"v_lshlrev_b32 v3, {shift}, v0")
        a(f"v_mov_b32 v7, {s(sTag)}")
        a(f"s_mov_b32 {s(sT0)}, {base}")
        for i in range(4):
            a(f"buffer_store_dword v7, v3, {s(SWS,4)}, {s(sT0)} offen sc1")
            a(f"s_add_u32 {s(sT0)}, {s(sT0)}, {64 << shift}")
    def atom(off_s, off):
        a("s_mov_b64 exec, 1")
        a("v_mov_b32 v4, 1")
        a(f"buffer_atomic_add v4, v5, {s(SD,4)}, {off_s} offen offset:{off} sc0 sc1")
        a("s_mov_b64 exec, -1")
    get_tag()
    a("s_waitcnt vmcnt(0)")
    rt(3)
    a("s_barrier")
    def sig1a():
        a(f"v_mov_b32 v7, {s(sTag)}")
        a(f"s_cmp_lg_u32 {s(sWo)}, 0")
        a(f"s_cbranch_scc1 {name}_sigB")
        a(f"buffer_store_dword v7, v2, {s(SWS,4)}, {s(sXo)} offen sc1")
        a(f"s_branch {name}_sigD")
        a.label(f"{name}_sigB")
        tree_up(0)
        a.label(f"{name}_sigD")
    if_lead(sig1a)
    a(f"s_cmp_eq_u32 {s(sWo)}, 0")
    a(f"s_cbranch_scc1 {name}_tdB")
    tree_down(0, F.WS_MB1 + (33 - (12 if os.environ.get('BLAST', '0') == '1' else 0)) * 4, 8, f"{name}_tdB")
    def sig1b():
        a(f"s_lshl_b32 {s(sT0)}, s2, 8")
        a(f"s_add_u32 {s(sT0)}, {s(sT0)}, {F.WS_MB1}")
        a(f"s_mov_b32 {s(sK)}, -1\ns_mov_b32 {s(sK+1)}, 1")
        if PP: ppoll("v6", s(sT0), s(sK, 2), [250, 251, 252, 253])
        else: poll(f"buffer_load_dword v7, v6, {s(SWS,4)}, {s(sT0)} offen sc1", f"v_cmp_ne_u32 vcc, {s(sTag)}, v7", s(sK, 2))
    if_lead(sig1b)
    rt(4)
    a("s_barrier")
    q_ = []
    def epoch(e_):
        for tl in range(2):
            lds = (e_ % 4) * 32768 + tl * 4096
            src = e_ * 16384 + tl * 2048
            a(f"s_add_u32 m0, {s(sM)}, {lds}")
            a(f"s_add_u32 {s(sT0)}, {s(sDK)}, {src}")
            a(f"buffer_load_dwordx4 v1, {s(SWS,4)}, {s(sT0)} offen {LD} lds")
            a(f"buffer_load_dwordx4 v1, {s(SWS,4)}, {s(sT0)} offen offset:1024 {LD} lds")
            a(f"s_add_u32 m0, {s(sM)}, {lds + 2048}")
            a(f"s_add_u32 {s(sT0)}, {s(sDK)}, {src + M.WS_VF - M.WS_KF}")
            a(f"buffer_load_dwordx4 v1, {s(SWS,4)}, {s(sT0)} offen {LD} lds")
            a(f"buffer_load_dwordx4 v1, {s(SWS,4)}, {s(sT0)} offen offset:1024 {LD} lds")
            q_.extend([f"E{e_}"] * 4)
    def wait_for(tag):
        last = max(i for i, t_ in enumerate(q_) if t_ == tag)
        n = len(q_) - 1 - last
        assert n <= 63
        a(f"s_waitcnt vmcnt({n})")
    def fl(txt, tag):
        a(txt); q_.append(tag)
    def stage64(waits):
        for ks in range(4):
            waits(ks)
            for mt in range(2):
                for c in range(2):
                    a(mfma16(AC[mt][c], DA[mt][ks], F64[c][ks], None if ks == 0 else AC[mt][c]))
                    if os.environ.get("MGAP"): a(f"s_nop {os.environ['MGAP']}")
        a("s_nop 7")
    def twiddle():
        for mt in range(2):
            for r in range(4):
                tw = TW + 4 * (2 * mt + r // 2) + 2 * (r % 2)
                cmul(a, AC[mt][0] + r, AC[mt][1] + r, AC[mt][0] + r, AC[mt][1] + r, tw, tw + 1, T + 2 * (r % 2))
    def pack_sep():
        for c in range(2):
            for mt in range(2):
                for h in range(2):
                    a(f"v_cvt_pk_bf16_f32 {v(BF[c]+2*mt+h)}, {v(AC[mt][c]+2*h)}, {v(AC[mt][c]+2*h+1)}")
        a("s_nop 1")
    def stage32():
        for mt in range(2):
            a(mfma16(AC[mt][0], F32[mt][0], BF[0], None))
            a(mfma16(AC[mt][1], F32[mt][2], BF[0], None))
        for mt in range(2):
            a(mfma16(AC[mt][0], F32[mt][1], BF[1], AC[mt][0]))
            a(mfma16(AC[mt][1], F32[mt][0], BF[1], AC[mt][1]))
        a("s_nop 7")
    E1L = os.environ.get("E1L", "0") == "1"
    epoch(0)
    if not E1L: epoch(1)
    a(f"s_setprio {os.environ.get('HPRIO', '2')}")
    def B(k):
        a("s_barrier")
        if not os.environ.get("LSTAMP"): rt(5 + k)
    wait_for("E0"); B(0)
    if E1L: epoch(1)
    def pollB():
        a(f"s_lshl_b32 {s(sT0)}, s2, 8")
        a(f"s_add_u32 {s(sT0)}, {s(sT0)}, {F.WS_MB1 + 33*4}")
        poll(f"buffer_load_dword v7, v6, {s(SWS,4)}, {s(sT0)} offen sc1", f"v_cmp_ne_u32 vcc, {s(sTag)}, v7", "0xf")
    if_lead(pollB)
    epoch(2)
    a(f"s_lshl_b32 {s(sK)}, {s(sW)}, 13")
    a(f"s_add_u32 {s(sV)}, {s(sK)}, 4096")
    for ks in range(4):
        fl(f"buffer_load_dwordx4 {v(F64[0][ks],4)}, v1, {s(SC_,4)}, {s(sK)} offen offset:{1024*ks}", "C")
        fl(f"buffer_load_dwordx4 {v(F64[1][ks],4)}, v1, {s(SC_,4)}, {s(sV)} offen offset:{1024*ks}", "C")
    wait_for("E1"); B(1)
    epoch(3)
    a(f"s_mul_i32 {s(sT2)}, {s(sCol)}, {M.X1S}")
    a(f"s_add_u32 {s(sK)}, {s(sT2)}, {M.WS_X1}")
    a(f"s_add_u32 {s(sV)}, {s(sK)}, 4096")
    for ks in range(4):
        fl(f"buffer_load_dwordx4 {v(DA[0][ks],4)}, v1, {s(SWS,4)}, {s(sK)} offen offset:{1024*ks} {LD}", "DA")
        fl(f"buffer_load_dwordx4 {v(DA[1][ks],4)}, v1, {s(SWS,4)}, {s(sV)} offen offset:{1024*ks} {LD}", "DA")
    a(f"s_lshl_b32 {s(sK)}, {s(sW)}, 12")
    a(f"s_add_u32 {s(sK)}, {s(sK)}, {CT_T2048}")
    for q in range(4):
        fl(f"buffer_load_dwordx4 {v(TW+4*q,4)}, v1, {s(SC_,4)}, {s(sK)} offen offset:{1024*q}", "TW")
    wait_for("E2"); B(2)
    a(f"s_mov_b32 {s(sK)}, {CT_F32}")
    a(f"s_mov_b32 {s(sV)}, {CT_F32+3072}")
    for k in range(3):
        fl(f"buffer_load_dwordx4 {v(F32[0][k],4)}, v1, {s(SC_,4)}, {s(sK)} offen offset:{1024*k}", "F32")
        fl(f"buffer_load_dwordx4 {v(F32[1][k],4)}, v1, {s(SC_,4)}, {s(sV)} offen offset:{1024*k}", "F32")
    a(f"s_lshr_b32 {s(sT2)}, {s(sCol)}, 2")
    a(f"s_mul_i32 {s(sT2)}, {s(sT2)}, {M.WTS}")
    a(f"s_lshl_b32 {s(sK)}, {s(sW)}, 10")
    a(f"s_add_u32 {s(sK)}, {s(sK)}, {s(sT2)}")
    a(f"s_and_b32 {s(sT2)}, {s(sCol)}, 3")
    a(f"s_lshl_b32 {s(sT2)}, {s(sT2)}, 5")
    a(f"s_add_u32 {s(sK)}, {s(sK)}, {s(sT2)}")
    a(f"s_add_u32 {s(sK)}, {s(sK)}, {M.WS_WT}")
    a(f"s_add_u32 {s(sV)}, {s(sK)}, 16384")
    fl(f"buffer_load_dwordx4 {v(Wv[0],4)}, {v(vA)}, {s(SWS,4)}, {s(sK)} offen {LD}", "W")
    fl(f"buffer_load_dwordx4 {v(Wv[1],4)}, {v(vA)}, {s(SWS,4)}, {s(sV)} offen {LD}", "W")
    wait_for("TW")
    a(f"s_cmp_ge_u32 {s(sCol)}, 225"); a(f"s_cbranch_scc1 {name}_sk1")
    stage64(lambda ks: None)
    a.label(f"{name}_sk1")
    epoch(4)
    a(f"s_cmp_ge_u32 {s(sCol)}, 225"); a(f"s_cbranch_scc1 {name}_sk2")
    twiddle()
    pack_sep()
    a.label(f"{name}_sk2")
    B(3)
    wait_for("W")
    a(f"s_cmp_ge_u32 {s(sCol)}, 225"); a(f"s_cbranch_scc1 {name}_sk3")
    stage32()
    for mt in range(2):
        for r in range(4):
            a(f"v_lshlrev_b32 {v(WR)}, 16, {v(Wv[mt]+r)}")
            a(f"v_and_b32 {v(WI)}, 0xffff0000, {v(Wv[mt]+r)}")
            cmul(a, AC[mt][0] + r, AC[mt][1] + r, AC[mt][0] + r, AC[mt][1] + r, WR, WI, T + 2 * (r % 2), conj_out=True)
    pack_sep()
    stage32()
    a.label(f"{name}_sk3")
    epoch(5)
    a(f"s_cmp_ge_u32 {s(sCol)}, 225"); a(f"s_cbranch_scc1 {name}_sk4")
    twiddle()
    for mt in range(2):
        for r in range(4):
            a(f"v_cvt_pk_bf16_f32 {v(BF[mt]+r)}, {v(AC[mt][0]+r)}, {v(AC[mt][1]+r)}")
    for mt in range(2):
        for r in range(4):
            a(f"ds_write_b32 {v(vB)}, {v(BF[mt]+r)} offset:{(16*mt+r)*272}")
    a("s_waitcnt lgkmcnt(0)")
    a.label(f"{name}_sk4")
    wait_for("E4"); B(4)
    a(f"s_cmp_ge_u32 {s(sCol)}, 225"); a(f"s_cbranch_scc1 {name}_sk5")
    for ks in range(4):
        for mt in range(2):
            a(f"ds_read_b128 {v(DA[mt][ks],4)}, {v(vC)} offset:{16*mt*272+64*ks}")
    stage64(lambda ks: a(f"s_waitcnt lgkmcnt({2*(3-ks)})"))
    for mt in range(2):
        for r in range(4):
            a(f"v_cvt_pk_bf16_f32 {v(BF[mt]+r)}, {v(AC[mt][0]+r)}, {v(AC[mt][1]+r)}")
    a(f"ds_write_b128 {v(vD)}, {v(BF[0],4)}")
    a(f"ds_write_b128 {v(vD)}, {v(BF[1],4)} offset:64")
    a("s_waitcnt lgkmcnt(0)")
    a(f"ds_read_b128 {v(BF[0],4)}, {v(vE)}")
    a(f"ds_read_b128 {v(BF[1],4)}, {v(vE)} offset:{8*144}")
    a("s_waitcnt lgkmcnt(0)")
    a.label(f"{name}_sk5")
    fl(f"buffer_store_dwordx4 {v(BF[0],4)}, v1, {s(SWS,4)}, {s(sZ0)} offen {ST}", "ST")
    fl(f"buffer_store_dwordx4 {v(BF[1],4)}, v1, {s(SWS,4)}, {s(sZ0)} offen offset:1024 {ST}", "ST")
    epoch(6)
    a("s_setprio 0")
    wait_for("ST"); B(5)
    if_lead(lambda: tree_up(64))
    epoch(7)
    wait_for("E6"); B(6)
    tree_down(64, F.WS_MB2 + 64, 7, f"{name}_tdF")
    def wo_items(k0, k1):
        for k in range(k0, k1):
            a(f"s_lshr_b32 {s(sT1)}, {s(sM)}, 3")
            a(f"s_add_u32 m0, {s(sT1)}, {4096*k}")
            a(f"s_add_u32 {s(sT0)}, {s(sWoO)}, {32*896*k}")
            fl(f"buffer_load_dwordx4 {v(vWo)}, {s(SA,4)}, {s(sT0)} offen lds", "WO")
    wo_items(0, 8)
    wait_for("E7"); B(7)
    wo_items(8, 15)
    vb = VAlloc(8)
    D5 = vb(16); Zr = vb(8); Hh = vb(16); TWv = vb(16); GF = [vb(4) for ks in range(4)]; AF = [vb(4) for ks in range(4)]
    PL = vb(8); t = [vb(1) for i in range(8)]
    vP, vM, vEw, vEr, vY = [vb(1) for i in range(5)]
    assert vb.hi <= vL16
    a(f"v_lshrrev_b32 {v(t[0])}, 3, v0")
    a(f"v_and_b32 {v(t[1])}, 7, v0")
    a(f"v_sub_u32 {v(t[2])}, 7, {v(t[0])}")
    a(f"v_mul_u32_u24 {v(t[2])}, {M.ZCS}, {v(t[2])}")
    a(f"v_lshl_add_u32 {v(vM)}, {v(t[1])}, 2, {v(t[2])}")
    a(f"v_mul_u32_u24 {v(t[2])}, {M.ZCS}, {v(t[0])}")
    a(f"v_lshl_add_u32 {v(vP)}, {v(t[1])}, 2, {v(t[2])}")
    a(f"v_lshlrev_b32 {v(t[3])}, 6, {v(t[0])}")
    a(f"s_lshl_b32 {s(sT2)}, {s(sW)}, 9")
    a(f"s_add_u32 {s(sT2)}, {s(sT2)}, {CT_TW448}")
    for q in range(4):
        a(f"buffer_load_dwordx4 {v(TWv+4*q,4)}, {v(t[3])}, {s(SC_,4)}, {s(sT2)} offen offset:{16*q}")
    a(f"s_and_b32 {s(sK)}, {s(sW)}, 1")
    a(f"s_lshl_b32 {s(sT1)}, {s(sK)}, 12")
    a(f"s_add_u32 {s(sT1)}, {s(sT1)}, {CT_G56}")
    for ks in range(4):
        a(f"buffer_load_dwordx4 {v(GF[ks],4)}, v1, {s(SC_,4)}, {s(sT1)} offen offset:{1024*ks}")
    B(8)
    a(f"v_mul_u32_u24 {v(vEw)}, 1168, {v(t[1])}")
    a(f"v_lshl_add_u32 {v(vEw)}, {v(t[0])}, 2, {v(vEw)}")
    a(f"s_lshl_b32 {s(sT1)}, {s(sW)}, 5")
    a(f"s_add_u32 {s(sT1)}, {s(sT1)}, {F.LDS_X}")
    a(f"v_add_u32 {v(vEw)}, {s(sT1)}, {v(vEw)}")
    a(f"v_and_b32 {v(t[4])}, 31, v0")
    a(f"v_lshrrev_b32 {v(t[5])}, 5, v0")
    a(f"v_mul_u32_u24 {v(vEr)}, 144, {v(t[4])}")
    a(f"v_lshrrev_b32 {v(t[6])}, 3, {v(t[4])}")
    a(f"v_add_u32 {v(t[6])}, {v(t[6])}, {v(t[5])}")
    a(f"v_lshl_add_u32 {v(vEr)}, {v(t[6])}, 4, {v(vEr)}")
    a(f"s_lshr_b32 {s(sV)}, {s(sW)}, 1")
    a(f"s_mul_i32 {s(sT1)}, {s(sV)}, {4*1168}")
    a(f"s_add_u32 {s(sT1)}, {s(sT1)}, {F.LDS_X}")
    a(f"v_add_u32 {v(vEr)}, {s(sT1)}, {v(vEr)}")
    a(f"s_lshl_b32 {s(sT1)}, {s(sK)}, 5")
    a(f"v_add_u32 {v(t[6])}, {s(sT1)}, {v(t[4])}")
    a(f"v_lshlrev_b32 {v(vY)}, 4, {v(t[6])}")
    a(f"v_lshl_add_u32 {v(vY)}, {v(t[5])}, 3, {v(vY)}")
    a(f"v_mov_b32 {v(t[7])}, 0x7f000000")
    a(f"v_cmp_lt_u32 vcc, 55, {v(t[6])}")
    a(f"s_lshl_b32 {s(sZ0)}, {s(sCol)}, 5")
    a(f"s_add_u32 {s(sZ0)}, {s(sZ0)}, {M.WS_ZB}")
    a(f"v_cndmask_b32 {v(vY)}, {v(vY)}, {v(t[7])}, vcc")
    a(f"s_mul_i32 {s(sT2)}, {s(sW)}, {8*M.ZCS}")
    a(f"s_sub_u32 {s(sZ1)}, {s(sZ0)}, {s(sT2)}")
    a(f"s_add_u32 {s(sZ0)}, {s(sZ0)}, {s(sT2)}")
    a(f"s_mov_b32 {s(sK8)}, {f32hex(0.5**0.5)}")
    a(f"s_lshl_b32 {s(sDK)}, {s(sCol)}, 3")
    a(f"s_lshl_b32 {s(sT2)}, {s(sV)}, 2")
    a(f"s_add_u32 {s(sDK)}, {s(sDK)}, {s(sT2)}")
    a(f"s_mul_i32 {s(sDK)}, {s(sDK)}, 1792")
    a(f"s_add_u32 {s(sDK)}, {s(sDK)}, 896")
    a(f"s_add_u32 {s(sM)}, {s(sDK)}, 3584")
    def pollF():
        a(f"s_lshl_b32 {s(sT0)}, s2, 7")
        a(f"s_add_u32 {s(sT0)}, {s(sT0)}, {F.WS_MB2 + 64}")
        poll(f"buffer_load_dword v7, v6, {s(SWS,4)}, {s(sT0)} offen sc1", f"v_cmp_ne_u32 vcc, {s(sTag)}, v7", "0xffff")
    pollF()
    for tt_ in range(8):
        if tt_ < 4:
            a(f"s_add_u32 {s(sT0)}, {s(sZ0)}, {56*tt_*M.ZCS}")
            a(f"buffer_load_dword {v(Zr+tt_)}, {v(vP)}, {s(SWS,4)}, {s(sT0)} offen {LD}")
        else:
            a(f"s_add_u32 {s(sT0)}, {s(sZ1)}, {(56*(8-tt_)-7)*M.ZCS}")
            a(f"buffer_load_dword {v(Zr+tt_)}, {v(vM)}, {s(SWS,4)}, {s(sT0)} offen {LD}")
    rt(14)
    a("s_barrier")
    def sig2():
        a(f"v_mov_b32 v7, {s(sTag)}")
        a(f"s_lshl_b32 {s(sT0)}, {s(sHead)}, 2")
        a(f"s_add_u32 {s(sT0)}, {s(sT0)}, {F.WS_MB2}")
        a("s_mov_b64 exec, 0x3fff")
        a(f"buffer_store_dword v7, {v(vS2)}, {s(SWS,4)}, {s(sT0)} offen sc1")
        a("s_mov_b64 exec, -1")
        a(f"s_cmp_lg_u32 s2, 255")
        a(f"s_cbranch_scc1 {name}_noadv")
        a(f"s_mov_b32 {s(sT0)}, {F.WS_TAG}")
        a("s_mov_b64 exec, 1")
        a(f"buffer_store_dword v7, v5, {s(SWS,4)}, {s(sT0)} offen sc1")
        a("s_mov_b64 exec, -1")
        a.label(f"{name}_noadv")
        a("s_waitcnt vmcnt(2)")
    if_lead(sig2)
    a(f"s_cmp_eq_u32 {s(sW)}, 0")
    a(f"s_cbranch_scc1 {name}_zok")
    a("s_waitcnt vmcnt(0)")
    a.label(f"{name}_zok")
    a("s_waitcnt vmcnt(1)")
    for tt_ in range(8):
        a(f"v_lshlrev_b32 {v(Hh+2*tt_)}, 16, {v(Zr+tt_)}")
        a(f"v_and_b32 {v(Hh+2*tt_+1)}, 0xffff0000, {v(Zr+tt_)}")
    pool = Pool([PL + i for i in range(8)])
    X = dft8(a, pool, [((Hh + 2 * tt_, 1), (Hh + 2 * tt_ + 1, -1 if tt_ < 4 else 1)) for tt_ in range(8)], +1, sK8)
    for j in range(8):
        xr, xi = X[j]
        o_ = Zr + j
        if j == 0:
            a(f"v_cvt_pk_bf16_f32 {v(o_)}, {sv(xr)}, {sv(xi)}")
        else:
            tr = TWv + 2 * (j - 1); ti = tr + 1
            p, q = t[2 * (j % 2)], t[2 * (j % 2) + 1]
            a(f"v_mul_f32_e64 {v(p)}, {sv(xi)}, {v(ti)}")
            a(f"v_mul_f32_e64 {v(q)}, {sv(xi)}, {v(tr)}")
            a(f"v_fma_f32 {v(p)}, {sv(xr)}, {v(tr)}, {v(p)}")
            a(f"v_fma_f32 {v(q)}, {sv(neg(xr))}, {v(ti)}, {v(q)}")
            a(f"v_cvt_pk_bf16_f32 {v(o_)}, {v(p)}, {v(q)}")
        a(f"ds_write_b32 {v(vEw)}, {v(o_)} offset:{144*j}")
    a("s_waitcnt lgkmcnt(0)")
    def poll2():
        a(f"s_cmp_ge_u32 {s(sSlot)}, 28")
        a(f"s_cbranch_scc1 {name}_np2")
        a(f"s_lshl_b32 {s(sT0)}, s2, 7")
        a(f"s_add_u32 {s(sT0)}, {s(sT0)}, {F.WS_MB2}")
        if PP: ppoll("v6", s(sT0), "0xffff", [250, 251, 252, 253])
        else: poll(f"buffer_load_dword v7, v6, {s(SWS,4)}, {s(sT0)} offen sc1", f"v_cmp_ne_u32 vcc, {s(sTag)}, v7", "0xffff")
        a.label(f"{name}_np2")
    if_lead(poll2)
    a("s_barrier")
    for ks in range(4):
        a(f"ds_read_b128 {v(AF[ks],4)}, {v(vEr)} offset:{32*ks}")
    for ks in range(4):
        a(f"s_waitcnt lgkmcnt({3-ks})")
        a(mfma32(D5, AF[ks], GF[ks], None if ks == 0 else D5))
    a("s_nop 7\ns_nop 3")
    for k in range(8):
        a(f"v_cvt_pk_bf16_f32 {v(Hh+k)}, {v(D5+2*k)}, {v(D5+2*k+1)}")
    for q in range(4):
        a(f"buffer_store_dwordx2 {v(Hh+2*q,2)}, {v(vY)}, {s(SBv,4)}, {s(sDK if q < 2 else sM)} offen offset:{1792*(q%2)} {os.environ.get('OF5','')}")
    dump(4, 2)
    a("s_endpgm")
    return 200

def computes(a, name, E):
    SA, SBv, SWS = E['SA'], E['SBv'], E['SWS']
    sW, sXc, sSlot, sHi = E['sW'], E['sXc'], E['sSlot'], E['sHi']
    rt, dump = E['rt'], E['dump']
    ST, LD = F.ST, F.LD
    sT0, sT1, sT2 = 33, 34, 35
    sHead, sQt, sK0, sJ, sIt, sK, sV, sQo, sTb2, sCg = 31, 32, 36, 37, 38, 40, 41, 42, 44, 45
    va = VAlloc(2)
    Q = [va(4), va(4)]
    O = va(16)
    S_ = [va(16), va(16)]
    P_ = [va(8), va(8)]
    Kb = [va(8), va(8)]
    Vb = [va(8), va(8)]
    Mx = va(1); va(1); T = [va(1) for i in range(4)]
    vA = va(1); vB = va(1)
    def ld(dst, so, off):
        a(f"buffer_load_dwordx4 {v(dst,4)}, v1, {s(SWS,4)}, {s(so)} offen offset:{off} {LD}")
    a(f"s_mov_b32 {s(SBv)}, s76\ns_mov_b32 {s(SBv+1)}, s77")
    a(f"s_lshr_b32 {s(sHead)}, {s(sSlot)}, 4")
    a(f"s_lshl_b32 {s(sT0)}, {s(sXc)}, 1")
    a(f"s_add_u32 {s(sHead)}, {s(sHead)}, {s(sT0)}")
    a(f"s_mul_i32 {s(sT0)}, {s(sHead)}, {M.HS}")
    a(f"s_add_u32 {s(sK0)}, {s(sT0)}, {M.WS_KF}")
    a(f"s_and_b32 {s(sQt)}, {s(sSlot)}, 15")
    a(f"s_lshl_b32 {s(sQt)}, {s(sQt)}, 2")
    a(f"s_add_u32 {s(sQt)}, {s(sQt)}, {s(sW)}")
    a(f"s_lshl_b32 {s(sT1)}, {s(sQt)}, 11")
    a(f"s_add_u32 {s(sQo)}, {s(sT0)}, {s(sT1)}")
    a(f"s_add_u32 {s(sQo)}, {s(sQo)}, {M.WS_QF}")
    a(f"s_lshl_b32 {s(sJ)}, {s(sQt)}, 4")
    a(f"s_add_u32 {s(sJ)}, {s(sJ)}, {s(sHead)}")
    a(f"s_lshl_b32 {s(sJ)}, {s(sJ)}, 11")
    a(f"s_add_u32 {s(sJ)}, {s(sJ)}, {M.WS_OF}")
    a(f"s_mov_b32 {s(sIt)}, 0")
    a(f"s_mov_b32 {s(SBv+2)}, {2048*1792}\ns_mov_b32 {s(SBv+3)}, 0x20000")
    rt(2)
    a("s_waitcnt vmcnt(0) lgkmcnt(0)")
    rt(3)
    a("s_barrier")
    a(f"v_mov_b32 {v(Mx)}, 0xff800000")
    for r in range(16): a(f"v_mov_b32 {v(O+r)}, 0")
    for r in range(8): a(f"v_mov_b32 {v(P_[1]+r)}, 0")
    for r in range(8): a(f"v_mov_b32 {v(Vb[1]+r)}, 0")
    a(f"v_mov_b32 {v(vA)}, v1")
    a(f"v_add_u32 {v(vB)}, 0x8000, v1")
    a("s_barrier")
    rt(4)
    for t in range(2): ld(Kb[0] + 4 * t, sK0, 1024 * t)
    for t in range(2): ld(Q[t], sQo, 1024 * t)
    a("s_waitcnt vmcnt(0)")
    rt(5)
    def maxstep():
        a(mfma32(S_[1], Kb[0], Q[0], None))
        a(mfma32(S_[1], Kb[0] + 4, Q[1], S_[1]))
        a("s_nop 7\ns_nop 3")
        for r in range(0, 16, 2):
            a(f"v_max3_f32 {v(Mx)}, {v(S_[1]+r)}, {v(S_[1]+r+1)}, {v(Mx)}")
    def finalize():
        a(f"v_mov_b32 {v(T[0])}, {v(Mx)}\nv_mov_b32 {v(T[1])}, {v(Mx)}\ns_nop 1")
        a(f"v_permlane32_swap_b32 {v(T[0])}, {v(T[1])}\ns_nop 0")
        a(f"v_max_f32 {v(Mx)}, {v(T[0])}, {v(T[1])}")
        a(f"v_cvt_pk_bf16_f32 {v(T[0])}, {v(Mx)}, {v(Mx)}")
        a(f"v_and_b32 {v(T[0])}, 0xffff0000, {v(T[0])}")
        a(f"v_sub_f32 {v(T[1])}, {v(Mx)}, {v(T[0])}")
        a(f"s_mov_b64 exec, {s(sHi,2)}")
        a(f"v_cvt_pk_bf16_f32 {v(Q[1]+2)}, -{v(T[0])}, -{v(T[1])}")
        a(f"s_mov_b64 exec, -1")
    maxstep()
    finalize()
    a(mfma32(S_[0], Kb[0], Q[0], None))
    a("s_barrier")
    a(mfma32(S_[0], Kb[0] + 4, Q[1], S_[0]))
    for t in range(2):
        a(f"ds_read_b128 {v(Kb[1]+4*t,4)}, {v(vA)} offset:{4096+1024*t}")
    a("s_nop 7")
    a("s_waitcnt lgkmcnt(0)")
    rt(6)
    if os.environ.get("APRIO"): a(f"s_setprio {os.environ['APRIO']}")
    a.raw(".p2align 6")
    a.label(f"{name}_loop")
    for u in range(8):
        p = u % 2; q = 1 - p
        sb = S_[p]; pb = P_[p]; sn = S_[q]; pp = P_[q]
        e = lambda r: a(f"v_exp_f32 {v(sb+r)}, {v(sb+r)}")
        c = lambda k: a(f"v_cvt_pk_bf16_f32 {v(pb+k)}, {v(sb+2*k)}, {v(sb+2*k+1)}")
        def rdK(t):
            if u < 6: a(f"ds_read_b128 {v(Kb[p]+4*t,4)}, {v(vA)} offset:{4096*(u+2)+1024*t}")
            else:     a(f"ds_read_b128 {v(Kb[p]+4*t,4)}, {v(vB)} offset:{4096*(u-6)+1024*t}")
        def rdV(t):
            a(f"ds_read_b128 {v(Vb[p]+4*t,4)}, {v(vA)} offset:{4096*u+2048+1024*t}")
        a(mfma32(sn, Kb[q], Q[0], None))
        if u == 6: a("s_barrier")
        rdV(0)
        e(0); e(1); e(2); e(3)
        a(mfma32(sn, Kb[q] + 4, Q[1], sn))
        rdV(1)
        e(4); e(5); c(0); e(6); e(7); c(1)
        a(mfma32(O, Vb[q], pp, O))
        rdK(0); rdK(1)
        e(8); e(9); c(2); e(10); e(11); c(3)
        a(mfma32(O, Vb[q] + 4, pp + 4, O))
        e(12)
        if u == 7: a(f"s_add_u32 {s(sIt)}, {s(sIt)}, 1")
        e(13); c(4); e(14)
        if u == 7: a(f"s_cmp_lt_u32 {s(sIt)}, 8")
        e(15)
        a("s_waitcnt lgkmcnt(0)")
        c(5); c(6); c(7)
        if u == 7:
            a(f"v_mov_b32 {v(vA)}, {v(vB)}")
            a(f"v_add_u32 {v(vB)}, 0x8000, {v(vB)}")
            a(f"v_and_b32 {v(vB)}, 0x1ffff, {v(vB)}")
    a(f"s_cbranch_scc1 {name}_loop")
    a(mfma32(O, Vb[1], P_[1], O))
    a(mfma32(O, Vb[1] + 4, P_[1] + 4, O))
    rt(7)
    a(f"s_mov_b32 {s(sT1)}, 0x5d800000")
    a("s_nop 7\ns_nop 3")
    a(f"v_cmp_nge_f32 vcc, {s(sT1)}, {v(O+12)}")
    a(f"v_mov_b32 {v(T[0])}, {v(O+12)}")
    a(f"v_mov_b32 {v(T[1])}, {v(O+12)}")
    a(f"s_cmp_lg_u32 vcc_hi, 0")
    a(f"s_cbranch_scc1 {name}_redo")
    a.label(f"{name}_epi")
    a(f"v_permlane32_swap_b32 {v(T[0])}, {v(T[1])}")
    a("s_nop 1")
    a(f"v_rcp_f32 {v(T[2])}, {v(T[1])}")
    a("s_nop 0")
    assert T[2] % 2 == 0
    for r in range(0, 16, 2):
        a(f"v_pk_mul_f32 {v(O+r,2)}, {v(O+r,2)}, {v(T[2],2)} op_sel_hi:[1,0]")
    for k in range(8):
        a(f"v_cvt_pk_bf16_f32 {v(S_[0]+k)}, {v(O+2*k)}, {v(O+2*k+1)}")
    a(f"s_mov_b64 exec, {s(sHi,2)}")
    a(f"v_mov_b32 {v(S_[0]+6)}, 0")
    a(f"v_mov_b32 {v(S_[0]+7)}, 0")
    a(f"s_mov_b64 exec, -1")
    a(f"buffer_store_dwordx4 {v(S_[0],4)}, v1, {s(SWS,4)}, {s(sJ)} offen {ST}")
    a(f"buffer_store_dwordx4 {v(S_[0]+4,4)}, v1, {s(SWS,4)}, {s(sJ)} offen offset:1024 {ST}")
    vb = VAlloc(2)
    ACC = [vb(16), vb(16)]
    t = [vb(1) for i in range(8)]
    assert vb.hi <= S_[0] or True
    vb = VAlloc(max(va.hi, 48))
    vb = VAlloc(64 - 8)
    OFr = [vb(4) for k in range(16)]
    WFR = [[vb(4) for k in range(16)] for ct in range(2)]
    aW = [vb(1), vb(1)]; vTw = vb(1); vTr = vb(1); vSt = vb(1); vRw = vb(1); vRr = vb(1)
    a(f"s_mul_i32 {s(sT0)}, {s(sSlot)}, 37")
    a(f"s_lshr_b32 {s(sT0)}, {s(sT0)}, 8")
    a(f"s_mul_i32 {s(sT1)}, {s(sT0)}, 7")
    a(f"s_sub_u32 {s(sCg)}, {s(sSlot)}, {s(sT1)}")
    a(f"s_lshl_b32 {s(sTb2)}, {s(sXc)}, 2")
    a(f"s_add_u32 {s(sTb2)}, {s(sTb2)}, {s(sT0)}")
    a(f"s_and_b32 {s(sK)}, {s(sW)}, 1")
    a(f"s_lshr_b32 {s(sV)}, {s(sW)}, 1")
    a("s_waitcnt vmcnt(0)")
    rt(8)
    a("s_barrier")
    a(f"s_cmp_ge_u32 {s(sSlot)}, 28")
    a(f"s_cbranch_scc1 {name}_c_end")
    a(f"v_lshrrev_b32 {v(t[5])}, 5, v0")
    a(f"v_bfe_u32 {v(t[6])}, v0, 3, 1")
    a(f"v_lshlrev_b32 {v(aW[0])}, 9, {v(t[5])}")
    a(f"v_lshl_add_u32 {v(aW[0])}, {v(t[6])}, 8, {v(aW[0])}")
    a(f"v_xor_b32 {v(t[6])}, {s(sK)}, {v(t[6])}")
    a(f"v_lshl_add_u32 {v(aW[0])}, {v(t[6])}, 7, {v(aW[0])}")
    a(f"v_bfe_u32 {v(t[6])}, v0, 2, 1")
    a(f"v_lshl_add_u32 {v(aW[0])}, {v(t[6])}, 6, {v(aW[0])}")
    a(f"v_bfe_u32 {v(t[6])}, v0, 4, 1")
    a(f"v_lshl_add_u32 {v(aW[0])}, {v(t[6])}, 5, {v(aW[0])}")
    a(f"v_and_b32 {v(t[6])}, 3, v0")
    a(f"v_lshl_add_u32 {v(aW[0])}, {v(t[6])}, 3, {v(aW[0])}")
    a(f"s_mul_i32 {s(sT0)}, {s(sK)}, {8*28*128}")
    a(f"v_add_u32 {v(aW[0])}, {s(sT0)}, {v(aW[0])}")
    a(f"v_xor_b32 {v(aW[1])}, 0x80, {v(aW[0])}")
    n = 0
    for k in range(16):
        h2, t_ = k // 2, k % 2
        for ct in range(2):
            for jj in range(2):
                a(f"ds_read_b64_tr_b16 {v(WFR[ct][k]+2*jj,2)}, {v(aW[ct])} offset:{(28*h2+16*t_+8*jj)*128}")
                n += 1
                if n % 12 == 0: a("s_waitcnt lgkmcnt(4)")
    a(f"v_and_b32 {v(t[4])}, 31, v0")
    a(f"s_mul_i32 {s(sT1)}, {s(sW)}, 2560")
    a(f"s_add_u32 {s(sT1)}, {s(sT1)}, {F.L_TR}")
    a(f"v_mul_u32_u24 {v(vTw)}, 80, {v(t[4])}")
    a(f"v_lshl_add_u32 {v(vTw)}, {v(t[5])}, 3, {v(vTw)}")
    a(f"v_add_u32 {v(vTw)}, {s(sT1)}, {v(vTw)}")
    a(f"v_lshrrev_b32 {v(t[7])}, 2, v0")
    a(f"v_mul_u32_u24 {v(vTr)}, 80, {v(t[7])}")
    a(f"v_lshl_add_u32 {v(vTr)}, {v(t[6])}, 4, {v(vTr)}")
    a(f"v_add_u32 {v(vTr)}, {s(sT1)}, {v(vTr)}")
    a(f"v_mul_u32_u24 {v(vSt)}, 1792, {v(t[7])}")
    a(f"v_lshl_add_u32 {v(vSt)}, {v(t[6])}, 4, {v(vSt)}")
    a(f"s_lshl_b32 {s(sT1)}, {s(sW)}, 12")
    a(f"s_add_u32 {s(sT1)}, {s(sT1)}, {F.L_RED}")
    a(f"v_add_u32 {v(vRw)}, {s(sT1)}, v1")
    a(f"v_xor_b32 {v(vRr)}, 0x1000, {v(vRw)}")
    a(f"s_lshl_b32 {s(sT0)}, {s(sTb2)}, 1")
    a(f"s_add_u32 {s(sT0)}, {s(sT0)}, {s(sV)}")
    a(f"s_lshl_b32 {s(sJ)}, {s(sT0)}, 15")
    a(f"s_lshl_b32 {s(sT1)}, {s(sK)}, 14")
    a(f"s_add_u32 {s(sJ)}, {s(sJ)}, {s(sT1)}")
    a(f"s_add_u32 {s(sJ)}, {s(sJ)}, {M.WS_OF}")
    a(f"s_mul_i32 {s(sQo)}, {s(sT0)}, {32*1792}")
    a(f"s_lshl_b32 {s(sT1)}, {s(sCg)}, 7")
    a(f"s_add_u32 {s(sQo)}, {s(sQo)}, {s(sT1)}")
    a(f"s_lshl_b32 {s(sT1)}, {s(sK)}, 6")
    a(f"s_add_u32 {s(sQo)}, {s(sQo)}, {s(sT1)}")
    a(f"s_add_u32 {s(sK0)}, {s(sQo)}, {16*1792}")
    a("s_waitcnt lgkmcnt(0)")
    a("s_barrier")
    rt(9)
    for k in range(16):
        a(f"buffer_load_dwordx4 {v(OFr[k],4)}, v1, {s(SWS,4)}, {s(sJ)} offen offset:{1024*(k%4)} {LD}")
        if k % 4 == 3: a(f"s_add_u32 {s(sJ)}, {s(sJ)}, 4096")
    for k in range(16):
        a(f"s_waitcnt vmcnt({15-k})")
        for ct in (1, 0):
            a(mfma32(ACC[ct], WFR[ct][k], OFr[k], None if k == 0 else ACC[ct]))
    rt(10)
    a("s_nop 7\ns_nop 3")
    for q in range(4):
        a(f"ds_write_b128 {v(vRw)}, {v(ACC[1]+4*q,4)} offset:{1024*q}")
    a("s_waitcnt lgkmcnt(0)")
    a("s_barrier")
    for q in range(4):
        a(f"ds_read_b128 {v(ACC[1]+4*q,4)}, {v(vRr)} offset:{1024*q}")
    for q in range(4):
        a(f"s_waitcnt lgkmcnt({3-q})")
        for h in range(2):
            r = 4 * q + 2 * h
            a(f"v_pk_add_f32 {v(ACC[0]+r,2)}, {v(ACC[0]+r,2)}, {v(ACC[1]+r,2)}")
        for h in range(2):
            a(f"v_cvt_pk_bf16_f32 {v(OFr[0]+2*q+h)}, {v(ACC[0]+4*q+2*h)}, {v(ACC[0]+4*q+2*h+1)}")
    for q in range(4):
        a(f"ds_write_b64 {v(vTw)}, {v(OFr[0]+2*q,2)} offset:{16*q}")
    a("s_waitcnt lgkmcnt(0)")
    a(f"ds_read_b128 {v(OFr[4],4)}, {v(vTr)}")
    a(f"ds_read_b128 {v(OFr[5],4)}, {v(vTr)} offset:{16*80}")
    a("s_waitcnt lgkmcnt(1)")
    a(f"buffer_store_dwordx4 {v(OFr[4],4)}, {v(vSt)}, {s(SBv,4)}, {s(sQo)} offen {os.environ.get('OF4','')}")
    a("s_waitcnt lgkmcnt(0)")
    a(f"buffer_store_dwordx4 {v(OFr[5],4)}, {v(vSt)}, {s(SBv,4)}, {s(sK0)} offen {os.environ.get('OF4','')}")
    a.label(f"{name}_c_end")
    dump(0, 2)
    a("s_endpgm")
    a.label(f"{name}_redo")
    a(f"s_mov_b64 exec, {s(sHi,2)}")
    a(f"v_mov_b32 {v(Q[1]+2)}, 0")
    a(f"s_mov_b64 exec, -1")
    a(f"s_mov_b32 {s(sK)}, {s(sK0)}")
    a(f"s_mov_b32 {s(sIt)}, 0")
    a.label(f"{name}_redo1")
    for t_ in range(2): ld(Kb[0] + 4 * t_, sK, 1024 * t_)
    a("s_waitcnt vmcnt(0)")
    maxstep()
    a(f"s_add_u32 {s(sK)}, {s(sK)}, 2048")
    a(f"s_add_u32 {s(sIt)}, {s(sIt)}, 1")
    a(f"s_cmp_lt_u32 {s(sIt)}, 64")
    a(f"s_cbranch_scc1 {name}_redo1")
    finalize()
    for r in range(16): a(f"v_mov_b32 {v(O+r)}, 0")
    a(f"s_mov_b32 {s(sK)}, {s(sK0)}")
    a(f"s_mov_b32 {s(sIt)}, 0")
    a.label(f"{name}_redo2")
    a(f"s_add_u32 {s(sV)}, {s(sK)}, {M.WS_VF - M.WS_KF}")
    for t_ in range(2): ld(Kb[0] + 4 * t_, sK, 1024 * t_)
    for t_ in range(2): ld(Vb[0] + 4 * t_, sV, 1024 * t_)
    a("s_waitcnt vmcnt(0)")
    a(mfma32(S_[0], Kb[0], Q[0], None))
    a(mfma32(S_[0], Kb[0] + 4, Q[1], S_[0]))
    a("s_nop 7\ns_nop 3")
    for r in range(16): a(f"v_exp_f32 {v(S_[0]+r)}, {v(S_[0]+r)}")
    a("s_nop 0")
    for k in range(8): a(f"v_cvt_pk_bf16_f32 {v(P_[0]+k)}, {v(S_[0]+2*k)}, {v(S_[0]+2*k+1)}")
    a("s_nop 1")
    a(mfma32(O, Vb[0], P_[0], O))
    a(mfma32(O, Vb[0] + 4, P_[0] + 4, O))
    a(f"s_add_u32 {s(sK)}, {s(sK)}, 2048")
    a(f"s_add_u32 {s(sIt)}, {s(sIt)}, 1")
    a(f"s_cmp_lt_u32 {s(sIt)}, 64")
    a("s_nop 7")
    a(f"s_cbranch_scc1 {name}_redo2")
    a("s_nop 7")
    a(f"v_mov_b32 {v(T[0])}, {v(O+12)}")
    a(f"v_mov_b32 {v(T[1])}, {v(O+12)}")
    a("s_nop 1")
    a(f"s_branch {name}_epi")
    return max(va.hi, vb.hi)
```

```python
import sys
from asmlib import *
import k2, fused
HDR = open('concat_heads__mha_block__spectral_gfnet__prompt.s.ref').read().split("; Override launch")[0]
DOC = '''; ---------------------------------------------------------------------------------------------
; ---------------------------------------------------------------------------------------------
'''
t, nv = fused.gen()
print("vgprs", nv, file=sys.stderr)
out = HDR + f"; @launch grid=(256,1,1) block=(512,1,1) lds={fused.F_LDS}\n" + DOC + '.amdgcn_target "amdgcn-amd-amdhsa--gfx950"\n.text\n' + t
out += '.section .rodata,"a"\n.p2align 8\n.type ctab,@object\nctab:\n' + data_lines(k2.const_table()) + f".size ctab, {k2.CT_SIZE}\n.text\n"
open(sys.argv[1], 'w').write(out)
```
